```python
import torch

def _softmax(x, axis=-1):
    return torch.softmax(x, dim=axis)
def _gelu(x):
    return torch.nn.functional.gelu(x, approximate="tanh")
def _silu(x):
    return torch.nn.functional.silu(x)
def _sigmoid(x):
    return torch.sigmoid(x)
def _layernorm(x, axis=-1, eps=1e-5):
    m = x.mean(dim=axis, keepdim=True)
    v = x.var(dim=axis, keepdim=True, unbiased=False)
    return (x - m) / torch.sqrt(v + eps)
def _scatter_add(tgt, idx, src, axis=0):
    return tgt.clone().index_add_(axis, idx, src)
def _segment_sum(src, seg, n):
    out = torch.zeros((n,) + src.shape[1:], dtype=src.dtype)
    return out.index_add_(0, seg, src)
def _pad(x, pw):
    flat = tuple(v for pair in reversed(pw) for v in pair)
    return torch.nn.functional.pad(x, flat)

kernel_name = 'gather_scatter__edge_featured_mpnn_gatedgcn__graph'

def setup_inputs():

    _w = (lambda a: (lambda t: t.to(torch.bfloat16) if t.is_floating_point() else t)(torch.as_tensor(a)))
    N, deg, D, De = 10000, 16, 256, max(0, 1)
    E = N * deg
    return {
        "x": _w((lambda *s: torch.randn(*s, dtype=torch.bfloat16) * 0.4)(N, D)),
        "e_attr": _w((lambda *s: torch.randn(*s, dtype=torch.bfloat16) * 0.8)(E, De)),
        "src": _w((lambda lo, hi, *s: torch.randint(lo, hi, s))(0, N, E).to(torch.int64)),
        "dst": _w((lambda lo, hi, *s: torch.randint(lo, hi, s))(0, N, E).to(torch.int64)),
        "w_a": _w((lambda *s: torch.randn(*s, dtype=torch.bfloat16) * 0.4)(D, D)),
        "w_b": _w((lambda *s: torch.randn(*s, dtype=torch.bfloat16) * 0.4)(D, D)),
        "w_c": _w((lambda *s: torch.randn(*s, dtype=torch.bfloat16) * 0.8)(De, D)),
        "w_u": _w((lambda *s: torch.randn(*s, dtype=torch.bfloat16) * 0.05)(D, D)),
        "w_v": _w((lambda *s: torch.randn(*s, dtype=torch.bfloat16) * 0.05)(D, D)),
    }

def reference(x, e_attr, src, dst, w_a, w_b, w_c, w_u, w_v):
    N, D = x.shape
    hv = x @ w_v
    g = x[dst] @ w_a + x[src] @ w_b + e_attr @ w_c
    eta = _sigmoid(g)
    denom = _segment_sum(eta, dst, N) + 1e-6
    eta_n = eta / denom[dst]
    agg = _segment_sum(eta_n * hv[src], dst, N)
    z = x @ w_u + agg
    relu_z = torch.where(z > 0, z, 0 * z)
    return x + relu_z
```

```python
import sys
NAME='gather_scatter__edge_featured_mpnn_gatedgcn__graph_kernel'
PROF = '--prof' in sys.argv
N=10000; E=160000; RN=157; CH=625; CHCAP=704
SLICE=10240*256
WS_TBL=0; WS_RECS=0xA00000; WS_SEGT=0xB80000; SEGT_FLAG2=0x20000; WS_EPOCH=0xBB0000; WS_PROF=0xC00000
XT=0; WR=81920; AU=81920; ELL=122880; ELLB=288; MISC=159744
HIST1=MISC; DEG=MISC+256; HIST2=MISC+1024; LG=MISC+1280; GBASE=MISC+1408; NODEOF=MISC+1536; SLOTB=MISC+2304
CNT=MISC+3072
C_W=CNT; C_G=CNT+4; C_T=CNT+8; C_E1=CNT+12; C_SORT=CNT+16; C_P=CNT+20; C_FB=CNT+24
LDS_TOTAL=163840
NLOG2E=0xbfb8aa3b
sX,sEA,sSRC,sDST,sWA,sWB,sWC,sWU=16,18,20,22,24,26,28,30
sWV,sOUT,sDBG,sWS=32,34,36,38
sW,sS,sR,sNONCE,sNB,sNV=40,41,42,43,44,45
sT0,sT1=46,47
rX,rDST,rSRC,rEA,rW1,rW2,rTW,rTR,rREC,rSEG,rOUT=48,52,56,60,64,68,72,76,80,84,88
sA,sB,sC_,sD,sSP=92,93,94,95,96
sEX=98
L=[]
def o(t): L.append('  '+t)
def lab(t): L.append(t+':')
def vr(a,n): return f'v[{a}:{a+n-1}]' if n>1 else f'v{a}'
def sr(a,n): return f's[{a}:{a+n-1}]'
uid=[0]
def U(p):
    uid[0]+=1; return f'L_{p}_{uid[0]}'
def srd(r,base,size):
    o(f's_mov_b32 s{r}, s{base}'); o(f's_mov_b32 s{r+1}, s{base+1}')
    if isinstance(size,int): o(f's_mov_b32 s{r+2}, {size}')
    else: o(f's_mov_b32 s{r+2}, {size}')
    o(f's_mov_b32 s{r+3}, 0x20000')
def srd_off(r,base,off,size):
    o(f's_add_u32 s{r}, s{base}, {off}'); o(f's_addc_u32 s{r+1}, s{base+1}, 0')
    o(f's_mov_b32 s{r+2}, {size}'); o(f's_mov_b32 s{r+3}, 0x20000')
nstamp=[0]
def stamp(idx):
    if not PROF: return
    o(f's_memrealtime s[100:101]')
    o('s_waitcnt lgkmcnt(0)')
    o(f'v_writelane_b32 v255, s100, {idx}')
def lds_spin(addr, need, vtmp, vaddr):
    l=U('spin'); d=U('spind')
    o(f'v_mov_b32 v{vaddr}, {addr}')
    o(f's_mov_b32 s{sSP}, 0')
    lab(l)
    o(f'ds_read_b32 v{vtmp}, v{vaddr}')
    o('s_waitcnt lgkmcnt(0)')
    o(f'v_readfirstlane_b32 s{sA}, v{vtmp}')
    o('s_nop 0')
    o(f's_cmp_ge_u32 s{sA}, {need}')
    o(f's_cbranch_scc1 {d}')
    o('s_sleep 1')
    o(f's_add_u32 s{sSP}, s{sSP}, 1')
    o(f's_cmp_lt_u32 s{sSP}, 0x40000')
    o(f's_cbranch_scc1 {l}')
    lab(d)
def lds_inc(addr, vtmp, vaddr, ret=False):
    o(f'v_mov_b32 v{vaddr}, {addr}')
    o(f'v_mov_b32 v{vtmp}, 1')
    o(f's_mov_b64 {sr(sEX,2)}, exec')
    o('s_mov_b64 exec, 1')
    if ret:
        o(f'ds_add_rtn_u32 v{vtmp}, v{vaddr}, v{vtmp}')
        o('s_waitcnt lgkmcnt(0)')
        o(f'v_readfirstlane_b32 s{sA}, v{vtmp}')
    else:
        o(f'ds_add_u32 v{vaddr}, v{vtmp}')
    o(f's_mov_b64 exec, {sr(sEX,2)}')
def scan64(v):
    for sh in (1,2,4,8):
        o('s_nop 1'); o(f'v_add_u32_dpp v{v}, v{v}, v{v} row_shr:{sh} row_mask:0xf bank_mask:0xf')
    o('s_nop 1'); o(f'v_add_u32_dpp v{v}, v{v}, v{v} row_bcast:15 row_mask:0xa bank_mask:0xf')
    o('s_nop 1'); o(f'v_add_u32_dpp v{v}, v{v}, v{v} row_bcast:31 row_mask:0xc bank_mask:0xf')
    o('s_nop 1')

lab(NAME)
o('s_cmp_ge_u32 s2, 256')
o('s_cbranch_scc1 L_end')
o('s_load_dwordx16 s[16:31], s[0:1], 0')
o('s_load_dwordx8 s[32:39], s[0:1], 64')
o('v_and_b32 v1, 63, v0')
o('v_lshrrev_b32 v2, 6, v0')
o('s_nop 0')
o(f'v_readfirstlane_b32 s{sW}, v2')
o(f's_and_b32 s{sS}, s2, 7'); o(f's_lshr_b32 s{sS}, s{sS}, 1')
o(f's_lshr_b32 s{sR}, s2, 3'); o(f's_lshl_b32 s{sR}, s{sR}, 1'); o(f's_and_b32 s{sA}, s2, 1'); o(f's_or_b32 s{sR}, s{sR}, s{sA}')
o(f's_mul_i32 s{sNB}, s{sR}, {RN}')
o(f's_sub_u32 s{sNV}, {N}, s{sNB}'); o(f's_min_u32 s{sNV}, s{sNV}, {RN}')
if PROF: o('v_mov_b32 v255, 0')
for _v in (208,209,210,211,212,213,214): o(f'v_mov_b32 v{_v}, 0')
o('s_waitcnt lgkmcnt(0)')
stamp(0)
o(f's_add_u32 s{sT0}, s{sWS}, {WS_EPOCH}'); o(f's_addc_u32 s{sT1}, s{sWS+1}, 0')
o(f's_load_dword s{sNONCE}, {sr(sT0,2)}, 0')
srd(rX,sX,N*512); srd(rDST,sDST,E*4); srd(rSRC,sSRC,E*4); srd(rEA,sEA,E*2)
srd(rW1,sWB,131072); srd(rW2,sWV,131072); srd(rOUT,sOUT,N*512)
o(f's_mul_i32 s{sA}, s{sS}, {SLICE}')
o(f's_add_u32 s{rTW}, s{sWS}, s{sA}'); o(f's_addc_u32 s{rTW+1}, s{sWS+1}, 0')
o(f's_add_u32 s{sA}, s{sNB}, s{sNV}'); o(f's_lshl_b32 s{rTW+2}, s{sA}, 8'); o(f's_mov_b32 s{rTW+3}, 0x20000')
o(f's_mov_b32 s{rTR}, s{rTW}'); o(f's_mov_b32 s{rTR+1}, s{rTW+1}'); o(f's_mov_b32 s{rTR+2}, {(N+1)*256}'); o(f's_mov_b32 s{rTR+3}, 0x20000')
srd_off(rREC,sWS,WS_RECS,256*CHCAP*8); srd_off(rSEG,sWS,WS_SEGT,0x21000)
o(f's_mul_i32 s{sA}, s2, {CH}')
o(f'v_add_u32 v14, s{sA}, v0')
o('v_lshlrev_b32 v15, 2, v14'); o('v_lshlrev_b32 v16, 1, v14')
o(f'buffer_load_dword v2, v15, {sr(rDST,4)}, 0 offen')
o(f'buffer_load_dword v3, v15, {sr(rSRC,4)}, 0 offen')
o(f'buffer_load_ushort v4, v16, {sr(rEA,4)}, 0 offen')
o(f'v_cmp_gt_u32 vcc, {CH-512}, v0')
o('v_mov_b32 v17, 0x40000000')
o('v_add_u32 v15, 2048, v15'); o('v_add_u32 v16, 1024, v16')
o('v_cndmask_b32 v15, v17, v15, vcc'); o('v_cndmask_b32 v16, v17, v16, vcc')
o(f'buffer_load_dword v5, v15, {sr(rDST,4)}, 0 offen')
o(f'buffer_load_dword v6, v15, {sr(rSRC,4)}, 0 offen')
o(f'buffer_load_ushort v7, v16, {sr(rEA,4)}, 0 offen')
o('v_and_b32 v17, 7, v1'); o('v_lshlrev_b32 v17, 3, v17')
o(f's_lshl_b32 s{sA}, s{sS}, 7')
o(f'v_add_u32 v17, s{sA}, v17')
srd(92,sWC,512)
o('buffer_load_dwordx2 v[250:251], v17, s[92:95], 0 offen')
o('buffer_load_dwordx2 v[252:253], v17, s[92:95], 0 offen offset:64')
o('v_lshrrev_b32 v17, 5, v1')
o(f's_lshl_b32 s{sA}, s{sW}, 1')
o(f'v_add_u32 v17, s{sA}, v17')
o('v_and_b32 v18, 31, v1'); o('v_and_b32 v19, 15, v17'); o('v_xor_b32 v18, v18, v19')
o('v_lshlrev_b32 v18, 4, v18'); o('v_lshl_add_u32 v18, v17, 9, v18')
o(f's_lshl_b32 s{sB}, s{sNB}, 9')
o(f's_lshl_b32 s{sC_}, s{sW}, 10')
for j in range(10):
    o(f's_add_u32 m0, s{sC_}, {XT+j*8192}')
    if j: o(f's_add_u32 s{sB}, s{sB}, 8192')
    else: o('s_nop 0')
    o(f'buffer_load_dwordx4 v18, {sr(rX,4)}, s{sB} offen lds')
o('v_lshrrev_b32 v17, 3, v1')
o(f's_lshl_b32 s{sA}, s{sW}, 3'); o(f'v_add_u32 v17, s{sA}, v17')
o('v_bfe_u32 v18, v1, 4, 1')
o(f's_and_b32 s{sA}, s{sW}, 1'); o(f's_lshl_b32 s{sA}, s{sA}, 1')
o(f'v_or_b32 v18, s{sA}, v18')
o('v_bfe_u32 v19, v1, 1, 2'); o('v_xor_b32 v19, v19, v18'); o('v_lshlrev_b32 v19, 1, v19')
o('v_and_b32 v18, 1, v1'); o('v_or_b32 v19, v19, v18')
o('v_lshlrev_b32 v19, 4, v19'); o('v_lshl_add_u32 v19, v17, 9, v19')
o(f's_lshl_b32 s{sA}, s{sS}, 7'); o(f'v_add_u32 v249, s{sA}, v19')
def wdma():
    o(f's_lshl_b32 s{sC_}, s{sW}, 10')
    for m,r in ((0,rW1),(1,rW2)):
        for j in range(4):
            o(f's_add_u32 m0, s{sC_}, {WR+m*32768+j*8192}')
            o(f's_mov_b32 s{sB}, {j*32768}')
            o(f'buffer_load_dwordx4 v249, {sr(r,4)}, s{sB} offen lds')
wdma()
o('v_lshlrev_b32 v17, 3, v0'); o(f'v_add_u32 v17, {MISC}, v17')
o('v_mov_b32 v18, 0'); o('v_mov_b32 v19, 0')
o('ds_write_b64 v17, v[18:19]')
o('s_waitcnt lgkmcnt(0)')
o(f's_mul_i32 s{sNONCE}, s{sNONCE}, 0x9E3779B1'); o(f's_add_u32 s{sNONCE}, s{sNONCE}, 0x7F4A7C15')
o('s_barrier')
stamp(1)
o('s_waitcnt vmcnt(20)')
o(f's_mov_b32 s{sA}, 106862')
o(f'v_mul_lo_u32 v8, v2, s{sA}'); o(f'v_mul_lo_u32 v9, v5, s{sA}')
o('v_lshrrev_b32 v8, 24, v8'); o('v_lshrrev_b32 v9, 24, v9')
o(f'v_mul_u32_u24 v10, {RN}, v8'); o(f'v_mul_u32_u24 v11, {RN}, v9')
o('v_sub_u32 v10, v2, v10'); o('v_sub_u32 v11, v5, v11')
o('v_lshlrev_b32 v14, 2, v8'); o(f'v_add_u32 v14, {HIST1}, v14')
o('v_lshlrev_b32 v15, 2, v9'); o(f'v_add_u32 v15, {HIST1}, v15')
o('v_mov_b32 v16, 1')
o('ds_add_rtn_u32 v12, v14, v16')
o(f'v_cmp_gt_u32 vcc, {CH-512}, v0')
o(f's_and_saveexec_b64 {sr(sEX,2)}, vcc')
l=U('skip'); o(f's_cbranch_execz {l}')
o('ds_add_rtn_u32 v13, v15, v16')
lab(l)
o(f's_mov_b64 exec, {sr(sEX,2)}')
o('v_lshl_or_b32 v24, v10, 16, v3'); o('v_lshlrev_b32 v25, 16, v4')
o('v_lshl_or_b32 v26, v11, 16, v6'); o('v_lshlrev_b32 v27, 16, v7')
o('s_waitcnt lgkmcnt(0)')
o('s_barrier')
o(f'v_lshlrev_b32 v17, 2, v1'); o(f'v_add_u32 v17, {HIST1}, v17')
o('ds_read_b32 v20, v17')
o('s_waitcnt lgkmcnt(0)')
o('v_add_u32 v21, 1, v20'); o('v_and_b32 v21, -2, v21'); o('v_mov_b32 v22, v21')
scan64(21)
o('v_sub_u32 v22, v21, v22')
o('v_lshlrev_b32 v14, 2, v8'); o('v_lshlrev_b32 v15, 2, v9')
o('ds_bpermute_b32 v14, v14, v22'); o('ds_bpermute_b32 v15, v15, v22')
o(f's_mul_i32 s{sA}, s2, {CHCAP*8}')
o('s_waitcnt lgkmcnt(0)')
o('v_add_u32 v14, v14, v12'); o('v_add_u32 v15, v15, v13')
o('v_lshlrev_b32 v14, 3, v14'); o('v_lshlrev_b32 v15, 3, v15')
o(f'buffer_store_dwordx2 v[24:25], v14, {sr(rREC,4)}, s{sA} offen sc1')
o(f'v_cmp_gt_u32 vcc, {CH-512}, v0')
o(f's_and_saveexec_b64 {sr(sEX,2)}, vcc')
l=U('skip'); o(f's_cbranch_execz {l}')
o(f'buffer_store_dwordx2 v[26:27], v15, {sr(rREC,4)}, s{sA} offen sc1')
lab(l)
o(f's_mov_b64 exec, {sr(sEX,2)}')
stamp(2)
o('s_waitcnt vmcnt(0)')
o('s_barrier')
stamp(3)
o(f's_cmp_ge_u32 s{sW}, 4')
o('s_cbranch_scc1 L_eteam_a')
W1,W2,AF0,AF1,ACC,XA,TRA,TOF,AUA=64,96,128,160,192,208,212,213,214
o('v_lshrrev_b32 v17, 4, v1')
o('v_bfe_u32 v18, v1, 2, 2')
o('v_lshl_add_u32 v19, v17, 3, v18')
o('v_lshlrev_b32 v19, 7, v19')
o('v_bfe_u32 v20, v1, 3, 1')
o('v_and_b32 v21, 1, v17'); o('v_lshl_or_b32 v20, v21, 1, v20')
o(f'v_xor_b32 v20, s{sW}, v20')
o('v_lshl_add_u32 v19, v20, 5, v19')
o('v_and_b32 v20, 3, v1'); o('v_lshl_add_u32 v19, v20, 3, v19')
o(f'v_add_u32 v{TRA}, {WR}, v19')
def wfrags():
    for m,Wr in ((0,W1),(1,W2)):
        for ks in range(8):
            o(f'ds_read_b64_tr_b16 {vr(Wr+4*ks,2)}, v{TRA} offset:{m*32768+ks*4096}')
            o(f'ds_read_b64_tr_b16 {vr(Wr+4*ks+2,2)}, v{TRA} offset:{m*32768+ks*4096+512}')
wfrags()
o('v_and_b32 v18, 15, v1')
for k in range(4):
    o(f'v_and_b32 v19, 12, v18'); o(f'v_xor_b32 v19, {4*k}, v19')
    o('v_and_b32 v20, 3, v18'); o('v_xor_b32 v20, v20, v17')
    o('v_add_u32 v19, v19, v20'); o('v_lshlrev_b32 v19, 4, v19')
    o(f'v_lshl_add_u32 v{XA+k}, v18, 9, v19')
o('v_lshlrev_b32 v19, 10, v17')
o(f's_lshl_b32 s{sA}, s{sW}, 6')
o('v_lshl_add_u32 v19, v18, 2, v19'); o(f'v_add_u32 v{TOF}, s{sA}, v19')
o(f'v_add_u32 v{AUA}, {AU}, v{TOF}')
o('s_waitcnt lgkmcnt(0)')
o('s_branch L_b3')
lab('L_eteam_a')
o(f's_cmp_lg_u32 s{sW}, 4')
o('s_cbranch_scc1 L_b3')
o('v_lshl_or_b32 v24, v20, 16, v22'); o(f'v_mov_b32 v25, s{sNONCE}')
o('v_lshlrev_b32 v17, 11, v1')
o(f's_lshl_b32 s{sA}, s2, 3')
o(f'buffer_store_dwordx2 v[24:25], v17, {sr(rSEG,4)}, s{sA} offen sc1')
lab('L_b3')
o('s_barrier')
srd(rW1,sWA,131072); srd(rW2,sWU,131072)
wdma()
stamp(4)
o(f's_cmp_ge_u32 s{sW}, 4')
o('s_cbranch_scc1 L_eteam_b')
def xreads(tile, buf):
    i = tile % 5
    for ks in range(8):
        o(f'ds_read_b128 {vr(buf+4*ks,4)}, v{XA+(ks&3)} offset:{i*8192+(256 if ks>=4 else 0)}')
def gemm(which):
    nst = 0
    xreads(0,AF0)
    pend=None
    for tile in range(11):
        epi=[]
        if pend is not None:
            a=ACC+8*(pend&1)
            for i in range(4): epi.append(f'v_mul_f32 v{a+i}, {NLOG2E:#x}, v{a+i}')
            for i in range(4): epi.append(f'v_cvt_pk_bf16_f32 v{a+i}, v{a+i}, v{a+4+i}')
            if which==1:
                epi.append(f's_add_u32 s{sB}, s{sNB}, {16*pend}'); epi.append(f's_lshl_b32 s{sB}, s{sB}, 8')
                for i in range(4): epi.append(f'buffer_store_dword v{a+i}, v{TOF}, {sr(rTW,4)}, s{sB} offen offset:{i*256} sc1')
            else:
                for i in range(4): epi.append(f'ds_write_b32 v{AUA}, v{a+i} offset:{pend*4096+i*256}')
        if tile<10:
            buf=AF0 if tile%2==0 else AF1
            nbuf=AF1 if tile%2==0 else AF0
            nrd=0
            if tile+1<10:
                if tile+1==5:
                    for k in range(4): o(f'v_add_u32 v{XA+k}, 40960, v{XA+k}')
                xreads(tile+1,nbuf); nrd=8
            o(f's_waitcnt lgkmcnt({nrd})')
            a=ACC+8*(tile&1)
            for ks in range(8):
                c1 = '0' if ks==0 else vr(a,4)
                c2 = '0' if ks==0 else vr(a+4,4)
                o(f'v_mfma_f32_16x16x32_bf16 {vr(a,4)}, {vr(buf+4*ks,4)}, {vr(W1+4*ks,4)}, {c1}')
                o(f'v_mfma_f32_16x16x32_bf16 {vr(a+4,4)}, {vr(buf+4*ks,4)}, {vr(W2+4*ks,4)}, {c2}')
                if ks>=4:
                    take = 4 if ks<7 else len(epi)
                    for t in epi[:take]: o(t)
                    epi=epi[take:]
            pend=tile
            if which==1 and tile==3:
                o('s_waitcnt vmcnt(12)')
                lds_inc(C_W,215,216)
            if which==2 and tile==5:
                o('s_waitcnt vmcnt(0)')
                lds_inc(C_T,215,216,ret=True)
                l=U('nf2')
                o('s_nop 0'); o(f's_cmp_lg_u32 s{sA}, 3'); o(f's_cbranch_scc1 {l}')
                o(f's_mov_b64 {sr(sEX,2)}, exec'); o('s_mov_b64 exec, 1')
                for i in range(4): o(f'v_mov_b32 v{216+i}, s{sNONCE}')
                o(f's_lshl_b32 s{sA}, s{sS}, 6'); o(f's_add_u32 s{sA}, s{sA}, s{sR}'); o(f's_lshl_b32 s{sA}, s{sA}, 4')
                o(f's_add_u32 s{sA}, s{sA}, {SEGT_FLAG2}')
                o('v_mov_b32 v215, 0')
                o(f'buffer_store_dwordx4 v[216:219], v215, {sr(rSEG,4)}, s{sA} offen sc1')
                o(f's_mov_b64 exec, {sr(sEX,2)}')
                lab(l)
        else:
            o('s_nop 7'); o('s_nop 1')
            for t in epi: o(t)
    for k in range(4): o(f'v_subrev_u32 v{XA+k}, 40960, v{XA+k}')
l=U('nodummy')
o(f's_cmp_lg_u32 s{sR}, 63'); o(f's_cbranch_scc1 {l}')
o(f's_cmp_lg_u32 s{sW}, 0'); o(f's_cbranch_scc1 {l}')
o('v_mov_b32 v215, 0x7f7f'); o('v_lshlrev_b32 v216, 2, v1'); o(f'v_add_u32 v216, {N*256}, v216')
o(f'buffer_store_dword v215, v216, {sr(rTR,4)}, 0 offen sc1')
lab(l)
gemm(1)
stamp(5)
lds_spin(C_W,8,215,216)
wfrags()
o('s_waitcnt lgkmcnt(0)')
lds_inc(C_G,215,216)
lds_spin(C_G,4,215,216)
stamp(6)
gemm(2)
o('s_waitcnt lgkmcnt(0)')
stamp(7)
o('s_branch L_main_setup')
lab('L_eteam_b')
SG,RC0,RC1,RK=64,80,112,144
T=176
o(f's_sub_u32 s{sC_}, s{sW}, 4')
o('v_lshrrev_b32 v17, 3, v1')
o(f's_lshl_b32 s{sA}, s{sC_}, 3'); o(f'v_add_u32 v17, s{sA}, v17')
o(f'v_lshlrev_b32 v{T}, 3, v17')
o('v_and_b32 v18, 7, v1')
o(f'v_mul_u32_u24 v{T+1}, {CHCAP*8}, v17'); o(f'v_lshl_add_u32 v{T+1}, v18, 4, v{T+1}')
o(f'v_lshlrev_b32 v{T+2}, 1, v18')
o(f's_lshl_b32 s{sD}, s{sR}, 11')
o(f's_mov_b32 s{sSP}, 0')
lp=U('poll1'); dn=U('poll1d')
lab(lp)
for p in range(8):
    o(f'buffer_load_dwordx2 {vr(SG+2*p,2)}, v{T}, {sr(rSEG,4)}, s{sD} offen offset:{p*256} sc1')
o('s_waitcnt vmcnt(0)')
o(f'v_mov_b32 v19, s{sNONCE}')
o(f'v_xor_b32 v20, v{SG+1}, v19')
for p in range(1,8):
    o(f'v_xor_b32 v21, v{SG+2*p+1}, v19'); o('v_or_b32 v20, v20, v21')
o('v_cmp_ne_u32 vcc, 0, v20')
o(f's_cbranch_vccz {dn}')
o('s_sleep 2')
o(f's_add_u32 s{sSP}, s{sSP}, 1'); o(f's_cmp_lt_u32 s{sSP}, 0x10000'); o(f's_cbranch_scc1 {lp}')
lab(dn)
lds_inc(C_W,20,21)
stamp(5)
for p in range(8):
    o(f'v_and_b32 v19, 0xffff, v{SG+2*p}')
    o(f'v_lshl_add_u32 v19, v19, 3, v{T+1}')
    o(f's_mov_b32 s{sA}, {p*32*CHCAP*8}')
    o(f'buffer_load_dwordx4 {vr(RC0+4*p,4)}, v19, {sr(rREC,4)}, s{sA} offen sc1')
    o(f'buffer_load_dwordx4 {vr(RC1+4*p,4)}, v19, {sr(rREC,4)}, s{sA} offen offset:128 sc1')
o('v_mov_b32 v20, 0')
for p in range(8):
    o(f'v_lshrrev_b32 v{SG+2*p+1}, 16, v{SG+2*p}')
    o(f'v_max_u32 v20, v20, v{SG+2*p+1}')
o('v_cmp_lt_u32 vcc, 32, v20')
l=U('nofb'); o(f's_cbranch_vccz {l}')
o(f'v_mov_b32 v20, {C_FB}'); o('v_mov_b32 v21, 1'); o('ds_write_b32 v20, v21')
lab(l)
o('s_waitcnt vmcnt(0)')
stamp(6)
def for_each_record(fn):
    for p in range(8):
        for st in range(2):
            for i in range(2):
                rec=(RC0 if st==0 else RC1)+4*p+2*i
                rk=RK+4*p+2*st+i
                o(f'v_add_u32 v19, {16*st+i}, v{T+2}')
                o(f'v_cmp_lt_u32 vcc, v19, v{SG+2*p+1}')
                o(f's_and_saveexec_b64 {sr(sEX,2)}, vcc')
                l=U('rk'); o(f's_cbranch_execz {l}')
                fn(rec,rk)
                lab(l)
                o(f's_mov_b64 exec, {sr(sEX,2)}')
o('v_mov_b32 v22, 1')
def f_hist(rec,rk):
    o(f'v_lshrrev_b32 v20, 16, v{rec}'); o(f'v_lshlrev_b32 v20, 2, v20')
    o(f'ds_add_rtn_u32 v{rk}, v20, v22 offset:{DEG-0 if DEG<65536 else 0}') if False else (o(f'v_add_u32 v20, {DEG}, v20'), o(f'ds_add_rtn_u32 v{rk}, v20, v22'))
for_each_record(f_hist)
o('s_waitcnt lgkmcnt(0)')
lds_inc(C_E1,20,21)
stamp(7)
o(f's_cmp_lg_u32 s{sW}, 4')
o('s_cbranch_scc1 L_e_prefill')
lds_spin(C_E1,4,20,21)
D0,K0,P0=24,28,32
for a in range(3):
    o(f'v_lshlrev_b32 v20, 2, v1'); o(f'v_add_u32 v20, {DEG+a*256}, v20')
    o(f'ds_read_b32 v{D0+a}, v20')
o('s_waitcnt lgkmcnt(0)')
for a in range(3):
    o(f'v_min_u32 v{K0+a}, 63, v{D0+a}')
    o(f'v_lshlrev_b32 v20, 2, v{K0+a}'); o(f'v_add_u32 v20, {HIST2}, v20')
    if a==2:
        o('v_cmp_gt_u32 vcc, 32, v1'); o(f's_and_saveexec_b64 {sr(sEX,2)}, vcc')
    o(f'ds_add_rtn_u32 v{P0+a}, v20, v22')
    if a==2: o(f's_mov_b64 exec, {sr(sEX,2)}')
o('s_waitcnt lgkmcnt(0)')
o('v_sub_u32 v20, 63, v1'); o('v_lshlrev_b32 v20, 2, v20'); o(f'v_add_u32 v20, {HIST2}, v20')
o('ds_read_b32 v36, v20')
o('s_waitcnt lgkmcnt(0)')
o('v_mov_b32 v37, v36')
scan64(36)
o('v_sub_u32 v36, v36, v37')
for a in range(3):
    o(f'v_sub_u32 v20, 63, v{K0+a}'); o('v_lshlrev_b32 v20, 2, v20')
    o(f'ds_bpermute_b32 v{K0+a}, v20, v36')
o('s_waitcnt lgkmcnt(0)')
for a in range(3):
    o(f'v_add_u32 v{P0+a}, v{P0+a}, v{K0+a}')
    if a==2:
        o('v_cmp_gt_u32 vcc, 32, v1'); o(f's_and_saveexec_b64 {sr(sEX,2)}, vcc')
    o(f'v_add_u32 v21, {64*a}, v1')
    o(f'v_cmp_gt_u32 vcc, s{sNV}, v21')
    o('v_mov_b32 v23, 0xffff'); o('s_nop 0')
    o('v_cndmask_b32 v21, v23, v21, vcc')
    o(f'v_lshlrev_b32 v20, 2, v{P0+a}'); o(f'v_add_u32 v20, {NODEOF}, v20')
    o('ds_write_b32 v20, v21')
    o(f'v_lshrrev_b32 v20, 3, v{P0+a}'); o('v_lshlrev_b32 v20, 2, v20'); o(f'v_add_u32 v20, {LG}, v20')
    o(f'ds_max_u32 v20, v{D0+a}')
    if a==2: o(f's_mov_b64 exec, {sr(sEX,2)}')
perm=[]
for w in range(8):
    perm += [w,15-w] + ([19-w] if w<4 else [])
o('v_mov_b32 v38, 31')
for i,g in enumerate(perm):
    o(f'v_writelane_b32 v38, {g}, {i}')
o('s_waitcnt lgkmcnt(0)')
o('v_lshlrev_b32 v38, 2, v38')
o(f'v_add_u32 v20, {LG}, v38'); o('ds_read_b32 v39, v20')
o('s_waitcnt lgkmcnt(0)')
o('v_add_u32 v39, 1, v39'); o('v_lshrrev_b32 v39, 1, v39')
o('ds_write_b32 v20, v39')
o('v_mov_b32 v40, v39')
scan64(39)
o('v_sub_u32 v40, v39, v40')
o('v_lshlrev_b32 v40, 7, v40'); o(f'v_add_u32 v40, {ELL}, v40')
o(f'v_add_u32 v20, {GBASE}, v38'); o('ds_write_b32 v20, v40')
o(f'v_readlane_b32 s{sA}, v39, 19')
o('s_nop 1')
o(f's_cmp_le_u32 s{sA}, {ELLB-4}')
l=U('fits'); o(f's_cbranch_scc1 {l}')
o(f'v_mov_b32 v20, {C_FB}'); o('v_mov_b32 v21, 1'); o('ds_write_b32 v20, v21')
lab(l)
o('s_waitcnt lgkmcnt(0)')
for a in range(3):
    o(f'v_lshrrev_b32 v20, 3, v{P0+a}'); o('v_lshlrev_b32 v20, 2, v20'); o(f'v_add_u32 v20, {GBASE}, v20')
    o(f'ds_read_b32 v{K0+a}, v20')
o('s_waitcnt lgkmcnt(0)')
for a in range(3):
    o(f'v_and_b32 v21, 7, v{P0+a}'); o(f'v_lshl_add_u32 v21, v21, 4, v{K0+a}')
    o(f'v_lshlrev_b32 v20, 2, v1'); o(f'v_add_u32 v20, {SLOTB+a*256}, v20')
    o('ds_write_b32 v20, v21')
o('s_waitcnt lgkmcnt(0)')
lds_inc(C_SORT,20,21)
o('s_branch L_e_wait')
lab('L_e_prefill')
lds_spin(C_G,4,20,21)
o(f's_sub_u32 s{sA}, s{sW}, 5'); o(f's_lshl_b32 s{sA}, s{sA}, 10')
o(f'v_lshlrev_b32 v20, 4, v1'); o(f'v_add_u32 v20, s{sA}, v20'); o(f'v_add_u32 v20, {ELL}, v20')
o(f'v_mov_b32 v24, {N*256}'); o(f'v_mov_b32 v25, {N*256}'); o('v_mov_b32 v26, 0'); o('v_mov_b32 v27, 0')
for i in range(12):
    o(f'ds_write_b128 v20, v[24:27] offset:{i*3072}')
o('s_waitcnt lgkmcnt(0)')
lds_inc(C_P,20,21)
lab('L_e_wait')
lds_spin(C_SORT,1,20,21)
lds_spin(C_P,3,20,21)
stamp(8)
o(f'v_mov_b32 v21, {C_FB}'); o('ds_read_b32 v20, v21'); o('s_waitcnt lgkmcnt(0)')
o(f'v_readfirstlane_b32 s{sA}, v20'); o('s_nop 0'); o(f's_cmp_lg_u32 s{sA}, 0'); o('s_cbranch_scc1 L_e_done')
SA=200
def f_slot(rec,rk):
    o(f'v_lshrrev_b32 v20, 16, v{rec}'); o('v_lshlrev_b32 v20, 2, v20'); o(f'v_add_u32 v20, {SLOTB}, v20')
    o(f'ds_read_b32 v{SA+rk-RK}, v20')
for_each_record(f_slot)
o('s_waitcnt lgkmcnt(0)')
def f_put(rec,rk):
    o(f'v_lshrrev_b32 v23, 1, v{rk}'); o(f'v_and_b32 v24, 1, v{rk}')
    o('v_lshlrev_b32 v23, 7, v23'); o('v_lshl_add_u32 v23, v24, 2, v23')
    o(f'v_and_b32 v24, 0xffff, v{rec}'); o('v_lshlrev_b32 v24, 8, v24')
    o(f'v_add_u32 v21, v{SA+rk-RK}, v23')
    o(f'ds_write2_b32 v21, v24, v{rec+1} offset0:0 offset1:2')
for_each_record(f_put)
lab('L_e_done')
o('s_waitcnt lgkmcnt(0)')
stamp(9)
o(f's_cmp_lg_u32 s{sW}, 4')
o('s_cbranch_scc1 L_main_setup')
o('v_lshlrev_b32 v20, 4, v1')
o(f's_lshl_b32 s{sD}, s{sS}, 10'); o(f's_add_u32 s{sD}, s{sD}, {SEGT_FLAG2}')
o(f's_mov_b32 s{sSP}, 0')
lp=U('poll2'); dn=U('poll2d')
lab(lp)
o(f'buffer_load_dword v21, v20, {sr(rSEG,4)}, s{sD} offen sc1')
o('s_waitcnt vmcnt(0)')
o(f'v_cmp_ne_u32 vcc, s{sNONCE}, v21')
o(f's_cbranch_vccz {dn}')
o('s_sleep 2')
o(f's_add_u32 s{sSP}, s{sSP}, 1'); o(f's_cmp_lt_u32 s{sSP}, 0x10000'); o(f's_cbranch_scc1 {lp}')
lab(dn)
l=U('noep')
o('s_cmp_lg_u32 s2, 0'); o(f's_cbranch_scc1 {l}')
o(f's_mov_b64 {sr(sEX,2)}, exec'); o('s_mov_b64 exec, 1')
o(f'v_mov_b32 v20, 0'); o(f'v_mov_b32 v21, s{sNONCE}')
o(f'global_store_dword v20, v21, {sr(sT0,2)} sc1')
o(f's_mov_b64 exec, {sr(sEX,2)}')
lab(l)
LOFF,RP=2,3
S1A,S1B,S2A,S2B,ONE=4,8,12,16,20
WC=24; NUM=32; DEN=40; C=48; DX,DY=72,104; R0,R1=136,152
OFA,OFB,EA_,EB_,AD=168,170,172,174,176
NL=178; AUR=180; XR=188; TM=192
lab('L_main_setup')
stamp(10)
o(f'v_and_b32 v{LOFF}, 7, v1'); o(f'v_lshlrev_b32 v{LOFF}, 4, v{LOFF}')
o('v_bfe_u32 v196, v1, 3, 2')
o('v_bfe_u32 v197, v1, 2, 1')
o('v_lshrrev_b32 v198, 5, v1')
o('v_and_b32 v199, 3, v1')
o('v_cmp_eq_u32 vcc, v197, v198')
o('v_mov_b32 v195, 7'); o('s_nop 0')
o('v_cndmask_b32 v199, v195, v199, vcc')
LO,HI=0x00003f80,0x3f800000
mats={S1A:{0:HI,2:LO}, S1B:{1:HI,3:LO}, S2A:{0:LO,2:HI}, S2B:{1:LO,3:HI}}
for M,mp in mats.items():
    o('v_mov_b32 v194, 0')
    for a,val in mp.items():
        o(f'v_cmp_eq_u32 vcc, {a}, v196'); o(f'v_mov_b32 v195, {val:#x}'); o('s_nop 0'); o('v_cndmask_b32 v194, v194, v195, vcc')
    for i in range(4):
        o(f'v_cmp_eq_u32 vcc, {i}, v199'); o('s_nop 1'); o(f'v_cndmask_b32 v{M+i}, 0, v194, vcc')
o('v_cmp_gt_u32 vcc, 32, v1'); o(f'v_mov_b32 v195, {LO:#x}'); o('s_nop 0')
o(f'v_cndmask_b32 v{ONE}, 0, v195, vcc')
for i in range(1,4): o(f'v_mov_b32 v{ONE+i}, 0')
for i in range(4):
    o(f'v_lshlrev_b32 v{WC+2*i}, 16, v{250+i}'); o(f'v_and_b32 v{WC+2*i+1}, 0xffff0000, v{250+i}')
for i in range(8): o(f'v_mul_f32 v{WC+i}, {NLOG2E:#x}, v{WC+i}')
for i in range(8):
    o(f'v_mov_b32 v{C+i}, 0'); o(f'v_mov_b32 v{C+16+i}, 0')
o('s_waitcnt vmcnt(0) lgkmcnt(0)')
o('s_barrier')
stamp(11)
o(f'v_mov_b32 v195, {C_FB}'); o('ds_read_b32 v194, v195')
o(f's_lshl_b32 s{sA}, s{sW}, 2'); o(f's_add_u32 s{sA}, s{sA}, {GBASE}'); o(f'v_mov_b32 v195, s{sA}'); o(f'ds_read_b32 v{RP}, v195')
o('s_waitcnt lgkmcnt(0)')
o(f'v_readfirstlane_b32 s{sA}, v194'); o('s_nop 0'); o(f's_cmp_lg_u32 s{sA}, 0'); o('s_cbranch_scc1 L_fallback')
o('v_lshrrev_b32 v195, 3, v1'); o(f'v_lshl_add_u32 v{RP}, v195, 4, v{RP}')
def vrr(a,n): return vr(a,n)
def mfma(d,a,b,c): o(f'v_mfma_f32_32x32x16_bf16 {vr(d,16)}, {vr(a,4)}, {vr(b,4)}, {c}')
def unpack_list(D,R):
    f=lambda d,a,b,c: f'v_mfma_f32_32x32x16_bf16 {vr(d,16)}, {vr(a,4)}, {vr(b,4)}, {c}'
    return [f(D,S1A,R,vr(C,16)), f(D,S1B,R+4,vr(D,16)), f(D+16,S2A,R+8,vr(C+8,16)), f(D+16,S2B,R+12,vr(D+16,16))]
def gfma(D,Er):
    for sl in range(2):
        for j in range(4):
            g=D+8+8*sl+2*j
            sel='op_sel:[0,0,0] op_sel_hi:[0,1,1]' if sl==0 else 'op_sel:[1,0,0] op_sel_hi:[1,1,1]'
            o(f'v_pk_fma_f32 {vr(g,2)}, {vr(Er,2)}, {vr(WC+2*j,2)}, {vr(g,2)} {sel}')
def loads(R,OF):
    o(f'v_add_u32 v{AD}, v{OF}, v{LOFF}'); o(f'v_add_u32 v{AD+1}, v{OF+1}, v{LOFF}')
    o(f'buffer_load_dwordx4 {vr(R,4)}, v{AD}, {sr(rTR,4)}, 0 offen sc1')
    o(f'buffer_load_dwordx4 {vr(R+4,4)}, v{AD}, {sr(rTR,4)}, 0 offen offset:128 sc1')
    o(f'buffer_load_dwordx4 {vr(R+8,4)}, v{AD+1}, {sr(rTR,4)}, 0 offen sc1')
    o(f'buffer_load_dwordx4 {vr(R+12,4)}, v{AD+1}, {sr(rTR,4)}, 0 offen offset:128 sc1')
def dsreads(P):
    OFn=OFB if P==0 else OFA; En=EB_ if P==0 else EA_
    o(f'ds_read_b64 {vr(OFn,2)}, v{RP} offset:{(P+3)*128}')
    o(f'ds_read_b64 {vr(En,2)}, v{RP} offset:{(P+1)*128+8}')
    if P==1: o(f'v_add_u32 v{RP}, 256, v{RP}')
def accum(D):
    for sl in range(2):
        for j in range(4):
            g=D+8+8*sl+2*j
            o(f'v_pk_add_f32 {vr(DEN+2*j,2)}, {vr(DEN+2*j,2)}, {vr(g,2)}')
            v=(D+2*j) if sl==0 else (D+24+2*j)
            o(f'v_pk_fma_f32 {vr(NUM+2*j,2)}, {vr(g,2)}, {vr(v,2)}, {vr(NUM+2*j,2)}')
Ds=[DX,DY]; Rs=[R0,R1]; OFs=[OFA,OFB]; Es=[EA_,EB_]
sNBT,sRD,sPAR,sG=92,93,94,95
o(f'ds_read_b64 {vr(OFA,2)}, v{RP}'); o(f'ds_read_b64 {vr(OFB,2)}, v{RP} offset:128')
o('s_waitcnt lgkmcnt(0)')
loads(R0,OFA); loads(R1,OFB)
o(f'ds_read_b64 {vr(OFA,2)}, v{RP} offset:256'); o(f'ds_read_b64 {vr(EA_,2)}, v{RP} offset:8')
sRD=96; sPAR=97; sG=46; sNBT=47
o(f's_mov_b32 s{sRD}, 0'); o(f's_mov_b32 s{sPAR}, 0')
lab('L_group')
o(f's_cmp_eq_u32 s{sRD}, 0'); o(f's_cselect_b32 s{sG}, s{sW}, 0')
o(f's_sub_u32 s92, 15, s{sW}'); o(f's_cmp_eq_u32 s{sRD}, 1'); o(f's_cselect_b32 s{sG}, s92, s{sG}')
o(f's_sub_u32 s92, 19, s{sW}'); o(f's_cmp_eq_u32 s{sRD}, 2'); o(f's_cselect_b32 s{sG}, s92, s{sG}')
o(f's_cmp_ge_u32 s{sRD}, 3'); o('s_cbranch_scc1 L_done')
o(f's_cmp_eq_u32 s{sRD}, 2'); o('s_cselect_b32 s92, 1, 0'); o(f's_cmp_ge_u32 s{sW}, 4'); o('s_cselect_b32 s93, 1, 0')
o('s_and_b32 s92, s92, s93'); o('s_cbranch_scc1 L_done')
o(f's_add_u32 s{sRD}, s{sRD}, 1')
o(f's_lshl_b32 s92, s{sG}, 2'); o(f's_add_u32 s93, s92, {LG}'); o(f'v_mov_b32 v{TM}, s93'); o(f'ds_read_b32 v{TM+1}, v{TM}')
o(f's_lshl_b32 s92, s{sG}, 5'); o(f's_add_u32 s92, s92, {NODEOF}')
o(f'v_lshrrev_b32 v{TM}, 3, v1'); o(f'v_lshlrev_b32 v{TM}, 2, v{TM}'); o(f'v_add_u32 v{TM}, s92, v{TM}')
o(f'ds_read_b32 v{NL}, v{TM}')
o('s_waitcnt lgkmcnt(0)')
o(f'v_readfirstlane_b32 s{sNBT}, v{TM+1}')
o(f'v_cmp_gt_u32 vcc, 256, v{NL}'); o('s_nop 1'); o(f'v_cndmask_b32 v{TM}, 0, v{NL}, vcc')
o(f'v_lshlrev_b32 v{TM+1}, 8, v{TM}'); o(f'v_add_u32 v{TM+1}, v{TM+1}, v{LOFF}'); o(f'v_add_u32 v{TM+1}, {AU}, v{TM+1}')
o(f'ds_read_b128 {vr(AUR,4)}, v{TM+1}'); o(f'ds_read_b128 {vr(AUR+4,4)}, v{TM+1} offset:128')
o(f'v_bfe_u32 v{TM+2}, v1, 1, 2'); o(f's_lshl_b32 s92, s{sS}, 3'); o(f'v_add_u32 v{TM+2}, s92, v{TM+2}')
o(f'v_and_b32 v{TM+3}, 15, v{TM}')
o(f'v_xor_b32 v{TM+4}, v{TM+2}, v{TM+3}'); o(f'v_add_u32 v{TM+2}, 4, v{TM+2}'); o(f'v_xor_b32 v{TM+5}, v{TM+2}, v{TM+3}')
o(f'v_and_b32 v{TM+3}, 1, v1'); o(f'v_lshlrev_b32 v{TM+3}, 3, v{TM+3}'); o(f'v_lshl_add_u32 v{TM+3}, v{TM}, 9, v{TM+3}')
o(f'v_lshl_add_u32 v{TM+4}, v{TM+4}, 4, v{TM+3}'); o(f'v_lshl_add_u32 v{TM+5}, v{TM+5}, 4, v{TM+3}')
o(f'ds_read_b64 {vr(XR,2)}, v{TM+4}'); o(f'ds_read_b64 {vr(XR+2,2)}, v{TM+5}')
for i in range(8):
    o(f'v_mov_b32 v{NUM+i}, 0'); o(f'v_mov_b32 v{DEN+i}, 0')
o('s_waitcnt lgkmcnt(0)')
for i in range(8): o(f'v_lshlrev_b32 v{C+8+i}, 16, v{AUR+i}')
o(f's_cmp_eq_u32 s{sNBT}, 0'); o('s_cbranch_scc1 L_epi')
o(f's_cmp_eq_u32 s{sPAR}, 1'); o('s_cbranch_scc1 L_gs1')
def exps(D): return [f'v_exp_f32 v{D+8+i}, v{D+8+i}' for i in range(16)]
def rcps(D): return [f'v_rcp_f32 v{D+8+i}, v{D+8+i}' for i in range(16)]
for P in range(2):
    lab(f'L_gs{P}')
    o('s_waitcnt vmcnt(4)')
    for t in unpack_list(Ds[P],Rs[P]): o(t)
    o('s_waitcnt lgkmcnt(0)')
    loads(Rs[P],OFs[P])
    dsreads(P)
    o('s_nop 7')
    gfma(Ds[P],Es[P])
    if P==0: o('s_branch L_body0')
    else: o('s_branch L_body1')
for P in range(2):
    Q=P^1
    lab(f'L_body{P}')
    o(f's_sub_u32 s{sNBT}, s{sNBT}, 1'); o(f's_cmp_eq_u32 s{sNBT}, 0'); o(f's_cbranch_scc1 L_last{P}')
    ex=exps(Ds[P]); un=unpack_list(Ds[Q],Rs[Q])
    o('s_waitcnt vmcnt(4)')
    for k in range(4):
        o(un[k])
        for t in ex[4*k:4*k+4]: o(t)
    o('s_nop 1')
    mfma(Ds[P]+8,ONE,ONE,vr(Ds[P]+8,16))
    o('s_waitcnt lgkmcnt(0)')
    loads(Rs[Q],OFs[Q])
    o('s_nop 2')
    dsreads(Q)
    for t in rcps(Ds[P]): o(t)
    gfma(Ds[Q],Es[Q])
    accum(Ds[P])
    if P==1: o('s_branch L_body0')
for P in range(2):
    lab(f'L_last{P}')
    for t in exps(Ds[P]): o(t)
    o('s_nop 1')
    mfma(Ds[P]+8,ONE,ONE,vr(Ds[P]+8,16))
    o('s_nop 7'); o('s_nop 3')
    for t in rcps(Ds[P]): o(t)
    accum(Ds[P])
    o(f's_mov_b32 s{sPAR}, {P^1}')
    if P==0: o('s_branch L_epi')
lab('L_epi')
o('s_mov_b32 s92, 0x358637bd')
for i in range(8): o(f'v_add_f32 v{DEN+i}, s92, v{DEN+i}')
for i in range(8): o(f'v_rcp_f32 v{DEN+i}, v{DEN+i}')
for i in range(8): o(f'v_and_b32 v{AUR+i}, 0xffff0000, v{AUR+i}')
for i in range(8): o(f'v_fmac_f32 v{AUR+i}, v{NUM+i}, v{DEN+i}')
for i in range(8): o(f'v_max_f32 v{AUR+i}, 0, v{AUR+i}')
for i in range(4):
    o(f'v_lshlrev_b32 v{TM}, 16, v{XR+i}'); o(f'v_and_b32 v{TM+1}, 0xffff0000, v{XR+i}')
    o(f'v_add_f32 v{AUR+2*i}, v{AUR+2*i}, v{TM}'); o(f'v_add_f32 v{AUR+2*i+1}, v{AUR+2*i+1}, v{TM+1}')
for i in range(4): o(f'v_cvt_pk_bf16_f32 v{AUR+i}, v{AUR+2*i}, v{AUR+2*i+1}')
o(f'v_add_u32 v{TM}, s{sNB}, v{NL}'); o(f'v_lshlrev_b32 v{TM}, 9, v{TM}')
o(f'v_lshrrev_b32 v{TM+1}, 1, v{LOFF}'); o(f'v_add_u32 v{TM}, v{TM}, v{TM+1}')
o(f'v_cmp_gt_u32 vcc, 256, v{NL}'); o(f'v_mov_b32 v{TM+1}, 0x40000000'); o('s_nop 0')
o(f'v_cndmask_b32 v{TM}, v{TM+1}, v{TM}, vcc')
o(f's_lshl_b32 s92, s{sS}, 7')
o(f'buffer_store_dwordx2 {vr(AUR,2)}, v{TM}, {sr(rOUT,4)}, s92 offen')
o(f'buffer_store_dwordx2 {vr(AUR+2,2)}, v{TM}, {sr(rOUT,4)}, s92 offen offset:64')
o('s_branch L_group')
lab('L_done')
stamp(12)
if PROF:
    o('s_waitcnt vmcnt(0)')
    srd_off(92,sWS,WS_PROF,0x100000)
    o(f's_lshl_b32 s96, s2, 3'); o(f's_add_u32 s96, s96, s{sW}'); o('s_lshl_b32 s96, s96, 8')
    o('v_lshlrev_b32 v2, 2, v1')
    o('buffer_store_dword v255, v2, s[92:95], s96 offen')
o('s_endpgm')
lab('L_fallback')
FN,FD,FA,FU,FW=10,11,12,13,14
o('v_lshlrev_b32 v5, 2, v1')
o(f's_lshl_b32 s92, s{sS}, 7')
o('v_lshlrev_b32 v6, 1, v1'); o(f'v_add_u32 v6, s92, v6')
srd(64,sWC,512)
o(f'buffer_load_ushort v{FW}, v6, s[64:67], 0 offen')
o('s_waitcnt vmcnt(0)')
o(f'v_lshlrev_b32 v{FW}, 16, v{FW}'); o(f'v_mul_f32 v{FW}, {NLOG2E:#x}, v{FW}')
o(f's_mov_b32 s46, s{sW}')
lab('L_fb_node')
o(f's_cmp_ge_u32 s46, s{sNV}'); o('s_cbranch_scc1 L_fb_end')
o(f's_lshl_b32 s92, s46, 8'); o(f's_add_u32 s92, s92, {AU}'); o(f'v_add_u32 v7, s92, v5'); o('ds_read_b32 v8, v7')
o('s_waitcnt lgkmcnt(0)')
o(f'v_lshlrev_b32 v{FA}, 16, v8'); o(f'v_and_b32 v{FU}, 0xffff0000, v8')
o(f'v_mov_b32 v{FN}, 0'); o(f'v_mov_b32 v{FD}, 0')
o(f's_add_u32 s47, s46, s{sNB}')
o('s_mov_b32 s93, 0')
lab('L_fb_e')
o('v_add_u32 v7, s93, v1'); o('v_lshlrev_b32 v8, 2, v7'); o('v_lshlrev_b32 v7, 1, v7')
o(f'buffer_load_dword v15, v8, {sr(rDST,4)}, 0 offen')
o(f'buffer_load_dword v16, v8, {sr(rSRC,4)}, 0 offen')
o(f'buffer_load_ushort v17, v7, {sr(rEA,4)}, 0 offen')
o('s_waitcnt vmcnt(0)')
o('v_cmp_eq_u32 vcc, s47, v15')
o('s_mov_b64 s[94:95], vcc')
lab('L_fb_m')
o('s_cmp_eq_u64 s[94:95], 0'); o('s_cbranch_scc1 L_fb_next')
o('s_ff1_i32_b64 s96, s[94:95]')
o('s_bitset0_b64 s[94:95], s96')
o('v_readlane_b32 s97, v16, s96'); o('v_readlane_b32 s92, v17, s96')
o('s_nop 1')
o('s_lshl_b32 s97, s97, 8'); o('s_lshl_b32 s92, s92, 16')
o('s_nop 4')
o(f'buffer_load_dword v18, v5, {sr(rTR,4)}, s97 offen sc1')
o('s_waitcnt vmcnt(0)')
o('v_lshlrev_b32 v19, 16, v18'); o('v_and_b32 v18, 0xffff0000, v18')
o(f'v_add_f32 v19, v19, v{FA}'); o(f'v_fmac_f32 v19, s92, v{FW}')
o('v_exp_f32 v19, v19'); o('s_nop 0'); o('v_add_f32 v19, 1.0, v19'); o('v_rcp_f32 v19, v19'); o('s_nop 0')
o(f'v_add_f32 v{FD}, v{FD}, v19'); o(f'v_fmac_f32 v{FN}, v19, v18')
o('s_branch L_fb_m')
lab('L_fb_next')
o('s_add_u32 s93, s93, 64'); o(f's_cmp_lt_u32 s93, {E}'); o('s_cbranch_scc1 L_fb_e')
o('s_mov_b32 s92, 0x358637bd')
o(f'v_add_f32 v{FD}, s92, v{FD}'); o(f'v_rcp_f32 v{FD}, v{FD}'); o('s_nop 0')
o(f'v_fmac_f32 v{FU}, v{FN}, v{FD}'); o(f'v_max_f32 v{FU}, 0, v{FU}')
o('s_lshl_b32 s92, s47, 9')
o(f'buffer_load_ushort v18, v6, {sr(rX,4)}, s92 offen')
o('s_waitcnt vmcnt(0)')
o(f'v_lshlrev_b32 v18, 16, v18'); o(f'v_add_f32 v{FU}, v{FU}, v18')
o(f'v_cvt_pk_bf16_f32 v18, v{FU}, v{FU}')
o(f'buffer_store_short v18, v6, {sr(rOUT,4)}, s92 offen')
o('s_add_u32 s46, s46, 8'); o('s_branch L_fb_node')
lab('L_fb_end')
lab('L_end')
o('s_endpgm')

hdr=open('gather_scatter__edge_featured_mpnn_gatedgcn__graph.s.ref').read().split('; Override')[0]
out=hdr+f'''; Generated by dev/gen.py (hand-written generator). One fused persistent launch, 1 workgroup per CU.
; @launch grid=(256,1,1) block=(512,1,1) lds={LDS_TOTAL}
.amdgcn_target "amdgcn-amd-amdhsa--gfx950"
.text
.globl {NAME}
.p2align 8
.type {NAME},@function
'''+'\n'.join(L)+f'''
.section .rodata,"a"
.p2align 6
.amdhsa_kernel {NAME}
  .amdhsa_next_free_vgpr 256
  .amdhsa_next_free_sgpr 102
  .amdhsa_accum_offset 256
  .amdhsa_group_segment_fixed_size 0
  .amdhsa_kernarg_size 96
  .amdhsa_user_sgpr_count 2
  .amdhsa_user_sgpr_kernarg_segment_ptr 1
  .amdhsa_system_sgpr_workgroup_id_x 1
.end_amdhsa_kernel
'''
fn=[a for a in sys.argv[1:] if not a.startswith('--')]
open(fn[0] if fn else 'k.s','w').write(out)
```

```python
import sys
NAME='gather_scatter__edge_featured_mpnn_gatedgcn__graph_kernel'
PROF = '--prof' in sys.argv
OPT = {a.split('=')[0][2:]:(a.split('=')[1] if '=' in a else '1') for a in sys.argv[1:] if a.startswith('--')}
N=10000; E=160000; RN=157; CH=625; CHCAP=704
SLICE=10240*256
WS_RECS=0xA00000; WS_SEGT=0xB80000; SEGT_FLAG2=0x20000; WS_EPOCH=0xBB0000; WS_PROF=0xC00000
HIST1=0; DEG=256; HIST2=1024; LG=1280; GBASE=1408; NODEOF=1536; CUR=2304; CNT=3072
C_W=CNT; C_G=CNT+4; C_T=CNT+8; C_E1=CNT+12; C_SORT=CNT+16; C_P=CNT+20; C_FB=CNT+24; C_X=CNT+28; C_G1=CNT+32; C_H=CNT+36; C_R=CNT+40; C_X2=CNT+44; C_S=CNT+48
XT=4096; WR=XT+81920; AU=WR; ELL=WR+40960; ELLB=288
LDS_TOTAL=163840
RST=WR+65536
assert ELL+ELLB*128==LDS_TOTAL
NLOG2E=0xbfb8aa3b
sEP=4
sI,sROT,sTL,sWROT=6,7,8,9
sM=10
sX,sEA,sSRC,sDST,sWA,sWB,sWC,sWU=16,18,20,22,24,26,28,30
sWV,sOUT,sDBG,sWS=32,34,36,38
sW,sS,sR,sNONCE,sNB,sNV=40,41,42,43,44,45
rX,rDST,rSRC,rEA,rW1,rW2,rTW,rTR,rREC,rSEG,rOUT=48,52,56,60,64,68,72,76,80,84,88
sA,sB,sC_,sD,sSP=92,93,94,95,96
L=[]
def o(t): L.append('  '+t)
def lab(t): L.append(t+':')
def vr(a,n): return f'v[{a}:{a+n-1}]' if n>1 else f'v{a}'
def sr(a,n): return f's[{a}:{a+n-1}]'
uid=[0]
def U(p):
    uid[0]+=1; return f'L_{p}_{uid[0]}'
def srd(r,base,size):
    o(f's_mov_b32 s{r}, s{base}'); o(f's_mov_b32 s{r+1}, s{base+1}')
    o(f's_mov_b32 s{r+2}, {size}'); o(f's_mov_b32 s{r+3}, 0x20000')
def srd_off(r,base,off,size):
    o(f's_add_u32 s{r}, s{base}, {off}'); o(f's_addc_u32 s{r+1}, s{base+1}, 0')
    o(f's_mov_b32 s{r+2}, {size}'); o(f's_mov_b32 s{r+3}, 0x20000')
def stamp(idx):
    if not PROF: return
    o(f's_memrealtime s[100:101]'); o('s_waitcnt lgkmcnt(0)'); o(f'v_writelane_b32 v255, s100, {idx}')
    o(f's_memtime s[100:101]'); o('s_waitcnt lgkmcnt(0)'); o(f'v_writelane_b32 v255, s100, {idx+32}')
VZ=248
def lds_spin(addr, need, vtmp):
    l=U('spin'); d=U('spind')
    o(f's_mov_b32 s{sSP}, 0')
    lab(l)
    o(f'ds_read_b32 v{vtmp}, v{VZ} offset:{addr}')
    o('s_waitcnt lgkmcnt(0)')
    o(f'v_readfirstlane_b32 s{sA}, v{vtmp}')
    o(f's_add_u32 s{sSP}, s{sSP}, 1')
    o(f's_cmp_ge_u32 s{sA}, {need}')
    o(f's_cbranch_scc1 {d}')
    o('s_sleep 1')
    o(f's_cmp_lt_u32 s{sSP}, 0x40000')
    o(f's_cbranch_scc1 {l}')
    lab(d)
def lds_inc(addr, vtmp, ret=False):
    o(f'v_mov_b32 v{vtmp}, 1')
    o('s_mov_b64 exec, 1')
    if ret:
        o(f'ds_add_rtn_u32 v{vtmp}, v{VZ}, v{vtmp} offset:{addr}')
        o('s_waitcnt lgkmcnt(0)')
        o(f'v_readfirstlane_b32 s{sA}, v{vtmp}')
    else:
        o(f'ds_add_u32 v{VZ}, v{vtmp} offset:{addr}')
    o('s_mov_b64 exec, -1')
def scan64(v):
    for sh in (1,2,4,8):
        o('s_nop 1'); o(f'v_add_u32_dpp v{v}, v{v}, v{v} row_shr:{sh} row_mask:0xf bank_mask:0xf')
    o('s_nop 1'); o(f'v_add_u32_dpp v{v}, v{v}, v{v} row_bcast:15 row_mask:0xa bank_mask:0xf')
    o('s_nop 1'); o(f'v_add_u32_dpp v{v}, v{v}, v{v} row_bcast:31 row_mask:0xc bank_mask:0xf')
    o('s_nop 1')
lab(NAME)
o('s_cmp_ge_u32 s2, 256')
o('s_cbranch_scc1 L_end')
o('s_load_dwordx16 s[16:31], s[0:1], 0')
o('s_load_dwordx8 s[32:39], s[0:1], 64')
o('v_and_b32 v1, 63, v0')
o('v_lshrrev_b32 v2, 6, v0')
o(f'v_mov_b32 v{VZ}, 0')
o(f'v_readfirstlane_b32 s{sW}, v2')
o('s_getpc_b64 s[12:13]')
lab('L_pc')
if 'nopf' not in OPT:
    o(f's_cmp_lg_u32 s{sW}, 7'); o('s_cbranch_scc1 L_nopf')
    o('s_lshr_b32 s3, s2, 3'); o('s_lshl_b32 s3, s3, 10')
    o('v_lshl_add_u32 v2, v1, 4, s3')
    o('v_cmp_gt_u32 vcc, L_codeend-L_pc-16, v2')
    o('s_and_saveexec_b64 s[98:99], vcc')
    o('s_cbranch_execz L_nopf2')
    o('global_load_dwordx4 v[240:243], v2, s[12:13]')
    lab('L_nopf2')
    o('s_mov_b64 exec, -1')
    lab('L_nopf')
o('v_lshlrev_b32 v17, 3, v0'); o('v_mov_b32 v20, 0'); o('v_mov_b32 v21, 0')
o('ds_write_b64 v17, v[20:21]')
o(f's_and_b32 s{sS}, s2, 7'); o(f's_lshr_b32 s{sS}, s{sS}, 1')
o(f's_lshr_b32 s{sR}, s2, 3'); o(f's_lshl_b32 s{sR}, s{sR}, 1'); o(f's_and_b32 s{sA}, s2, 1'); o(f's_or_b32 s{sR}, s{sR}, s{sA}')
o(f's_mul_i32 s{sNB}, s{sR}, {RN}')
o(f's_sub_u32 s{sNV}, {N}, s{sNB}'); o(f's_min_u32 s{sNV}, s{sNV}, {RN}')
if PROF: o('v_mov_b32 v255, 0')
for _v in (208,209,210,211,212,213,214,216,217,218,219): o(f'v_mov_b32 v{_v}, 0')
o(f's_mul_i32 s{sROT}, s{sS}, 5'); o(f's_add_u32 s{sROT}, s{sROT}, 1'); o(f's_lshr_b32 s{sROT}, s{sROT}, 1')
o(f's_lshr_b32 s{sWROT}, s2, 3')
o(f's_mov_b32 s{sM}, 0xffffff00')
def build_common():
    srd(rOUT,sOUT,N*512)
    o(f's_mul_i32 s{sA}, s{sS}, {SLICE}')
    o(f's_add_u32 s{rTW}, s{sWS}, s{sA}'); o(f's_addc_u32 s{rTW+1}, s{sWS+1}, 0')
    o(f's_add_u32 s{sA}, s{sNB}, s{sNV}'); o(f's_lshl_b32 s{rTW+2}, s{sA}, 8'); o(f's_mov_b32 s{rTW+3}, 0x20000')
    o(f's_mov_b32 s{rTR}, s{rTW}'); o(f's_mov_b32 s{rTR+1}, s{rTW+1}'); o(f's_mov_b32 s{rTR+2}, {(N+1)*256}'); o(f's_mov_b32 s{rTR+3}, 0x20000')
    srd_off(rSEG,sWS,WS_SEGT,0x21000)
    o(f's_add_u32 s{sEP}, s{sWS}, {WS_EPOCH}'); o(f's_addc_u32 s{sEP+1}, s{sWS+1}, 0')
    o(f's_load_dword s{sNONCE}, {sr(sEP,2)}, 0')
def wc_load():
    o('v_and_b32 v17, 7, v1'); o('v_lshlrev_b32 v17, 3, v17')
    o(f's_lshl_b32 s{sA}, s{sS}, 7'); o(f'v_add_u32 v17, s{sA}, v17')
    srd(rREC,sWC,512)
    o(f'buffer_load_dwordx2 v[250:251], v17, {sr(rREC,4)}, 0 offen')
    o(f'buffer_load_dwordx2 v[252:253], v17, {sr(rREC,4)}, 0 offen offset:64')
def wvoff(dst, wexpr_s):
    o('v_lshrrev_b32 v17, 3, v1')
    o(f's_lshl_b32 s{sA}, s{wexpr_s}, 3'); o(f'v_add_u32 v17, s{sA}, v17')
    o('v_bfe_u32 v20, v1, 4, 1')
    o(f's_and_b32 s{sA}, s{wexpr_s}, 1'); o(f's_lshl_b32 s{sA}, s{sA}, 1'); o(f'v_or_b32 v20, s{sA}, v20')
    o('v_bfe_u32 v19, v1, 1, 2'); o('v_xor_b32 v19, v19, v20'); o('v_lshlrev_b32 v19, 1, v19')
    o('v_and_b32 v20, 1, v1'); o('v_or_b32 v19, v19, v20')
    o('v_lshlrev_b32 v19, 4, v19'); o('v_lshl_add_u32 v19, v17, 9, v19')
    o(f's_lshl_b32 s{sA}, s{sS}, 7'); o(f'v_add_u32 v{dst}, s{sA}, v19')
o(f's_cmp_ge_u32 s{sW}, 4')
o('s_cbranch_scc1 L_e0')
o('v_lshrrev_b32 v17, 5, v1')
o(f's_lshl_b32 s{sA}, s{sW}, 1'); o(f'v_add_u32 v17, s{sA}, v17')
o('v_and_b32 v18, 31, v1'); o('v_and_b32 v19, 15, v17'); o('v_xor_b32 v22, v18, v19')
o('v_lshlrev_b32 v22, 4, v22'); o('v_lshl_add_u32 v22, v17, 9, v22')
o('v_add_u32 v17, 8, v17'); o('v_and_b32 v19, 15, v17'); o('v_xor_b32 v23, v18, v19')
o('v_lshlrev_b32 v23, 4, v23'); o('v_lshl_add_u32 v23, v17, 9, v23')
wvoff(249,sW)
o('s_waitcnt lgkmcnt(0)')
o('s_barrier')
stamp(0)
wc_load()
srd(rX,sX,N*512); srd(rW1,sWB,131072); srd(rW2,sWV,131072)
o(f's_lshl_b32 s{sC_}, s{sW}, 10')
o(f's_mov_b32 s{sTL}, s{sROT}')
o(f's_mov_b32 s{sI}, 0')
lab('L_dmaw')
o(f's_add_u32 s{sA}, s{sI}, s{sWROT}'); o(f's_and_b32 s{sA}, s{sA}, 7')
o(f's_lshl_b32 s{sB}, s{sA}, 14'); o(f's_lshl_b32 s{sA}, s{sA}, 12'); o(f's_add_u32 s{sA}, s{sA}, s{sC_}')
o(f's_add_u32 m0, s{sA}, {WR}'); o('s_nop 0')
o(f'buffer_load_dwordx4 v249, {sr(rW1,4)}, s{sB} offen lds')
o(f's_add_u32 m0, s{sA}, {WR+32768}'); o('s_nop 0')
o(f'buffer_load_dwordx4 v249, {sr(rW2,4)}, s{sB} offen lds')
o('s_waitcnt vmcnt(%s)' % OPT.get('pace','8'))
o(f's_add_u32 s{sI}, s{sI}, 1'); o(f's_cmp_lt_u32 s{sI}, 8'); o('s_cbranch_scc1 L_dmaw')
o(f's_mov_b32 s{sI}, 0')
lab('L_dmax')
o(f's_lshl_b32 s{sA}, s{sTL}, 13'); o(f's_add_u32 s{sD}, s{sA}, s{sC_}'); o(f's_add_u32 m0, s{sD}, {XT}')
o(f's_lshl_b32 s{sB}, s{sNB}, 9'); o(f's_add_u32 s{sB}, s{sB}, s{sA}')
o(f'buffer_load_dwordx4 v22, {sr(rX,4)}, s{sB} offen lds')
o(f's_add_u32 m0, s{sD}, {XT+4096}'); o('s_nop 0')
o(f'buffer_load_dwordx4 v23, {sr(rX,4)}, s{sB} offen lds')
o('s_waitcnt vmcnt(%s)' % OPT.get('pace','8'))
o(f's_add_u32 s{sTL}, s{sTL}, 1'); o(f's_cmp_eq_u32 s{sTL}, 10'); o(f's_cselect_b32 s{sTL}, 0, s{sTL}')
o(f's_add_u32 s{sI}, s{sI}, 1'); o(f's_cmp_lt_u32 s{sI}, 10'); o('s_cbranch_scc1 L_dmax')
stamp(19)
build_common()
srd(rDST,sDST,E*4); srd(rSRC,sSRC,E*4); srd(rEA,sEA,E*2); srd_off(rREC,sWS,WS_RECS,256*CHCAP*8)
W1,W2,AF0,AF1,ACC,XA,XC,TRA,TOF,AUA=64,96,128,160,192,208,216,212,213,214
o('v_lshrrev_b32 v17, 4, v1')
o('v_bfe_u32 v18, v1, 2, 2')
o('v_lshl_add_u32 v19, v17, 3, v18')
o('v_lshlrev_b32 v19, 7, v19')
o('v_bfe_u32 v20, v1, 3, 1')
o('v_and_b32 v21, 1, v17'); o('v_lshl_or_b32 v20, v21, 1, v20')
o(f'v_xor_b32 v20, s{sW}, v20')
o('v_lshl_add_u32 v19, v20, 5, v19')
o('v_and_b32 v20, 3, v1'); o('v_lshl_add_u32 v19, v20, 3, v19')
o(f'v_add_u32 v{TRA}, {WR}, v19')
def wfrags():
    for m,Wr in ((0,W1),(1,W2)):
        for ks in range(8):
            o(f'ds_read_b64_tr_b16 {vr(Wr+4*ks,2)}, v{TRA} offset:{m*32768+ks*4096}')
            o(f'ds_read_b64_tr_b16 {vr(Wr+4*ks+2,2)}, v{TRA} offset:{m*32768+ks*4096+512}')
o('v_and_b32 v18, 15, v1')
for k in range(4):
    o(f'v_and_b32 v19, 12, v18'); o(f'v_xor_b32 v19, {4*k}, v19')
    o('v_and_b32 v20, 3, v18'); o('v_xor_b32 v20, v20, v17')
    o('v_add_u32 v19, v19, v20'); o('v_lshlrev_b32 v19, 4, v19')
    o(f'v_lshl_add_u32 v{XA+k}, v18, 9, v19')
    o(f'v_add_u32 v{XA+k}, {XT}, v{XA+k}')
o('v_lshlrev_b32 v19, 10, v17')
o(f's_lshl_b32 s{sA}, s{sW}, 6')
o('v_lshl_add_u32 v19, v18, 2, v19'); o(f'v_add_u32 v{TOF}, s{sA}, v19')
o('s_waitcnt vmcnt(8) lgkmcnt(0)')
o(f's_mul_i32 s{sNONCE}, s{sNONCE}, 0x9E3779B1'); o(f's_add_u32 s{sNONCE}, s{sNONCE}, 0x7F4A7C15')
lds_inc(C_X,220)
stamp(2)
lds_spin(C_X,4,220)
stamp(3)
wfrags()
o('s_waitcnt lgkmcnt(0)')
lds_inc(C_G1,220)
stamp(4)
o('s_branch L_g_gemm')
lab('L_e0')
if 'noprio' not in OPT: o('s_setprio 2')
o('v_subrev_u32 v14, 256, v0')
o(f's_mul_i32 s{sA}, s2, {CH}')
o(f'v_add_u32 v15, s{sA}, v14')
o('v_lshlrev_b32 v16, 1, v15'); o('v_lshlrev_b32 v15, 2, v15')
o(f'v_cmp_gt_u32 vcc, {CH-512}, v14')
o('v_add_u32 v18, 2048, v15'); o('v_add_u32 v19, 1024, v16')
o('v_mov_b32 v17, 0x40000000')
o('v_cndmask_b32 v18, v17, v18, vcc'); o('v_cndmask_b32 v19, v17, v19, vcc')
o('s_waitcnt lgkmcnt(0)')
ED,ES,EE=2,5,8
srd(rDST,sDST,E*4)
o(f'buffer_load_dword v{ED}, v15, {sr(rDST,4)}, 0 offen')
o(f'buffer_load_dword v{ED+1}, v15, {sr(rDST,4)}, 0 offen offset:1024')
o(f'buffer_load_dword v{ED+2}, v18, {sr(rDST,4)}, 0 offen')
srd(rSRC,sSRC,E*4)
o(f'buffer_load_dword v{ES}, v15, {sr(rSRC,4)}, 0 offen')
o(f'buffer_load_dword v{ES+1}, v15, {sr(rSRC,4)}, 0 offen offset:1024')
o(f'buffer_load_dword v{ES+2}, v18, {sr(rSRC,4)}, 0 offen')
srd(rEA,sEA,E*2)
o(f'buffer_load_ushort v{EE}, v16, {sr(rEA,4)}, 0 offen')
o(f'buffer_load_ushort v{EE+1}, v16, {sr(rEA,4)}, 0 offen offset:512')
o(f'buffer_load_ushort v{EE+2}, v19, {sr(rEA,4)}, 0 offen')
o('s_barrier')
stamp(0)
wc_load()
srd(rW1,sWA,131072); srd(rW2,sWU,131072)
o('s_lshr_b32 s3, s2, 3'); o('s_lshl_b32 s3, s3, 12')
o('v_lshrrev_b32 v17, 3, v1'); o('v_lshlrev_b32 v17, 9, v17'); o('v_and_b32 v19, 7, v1'); o('v_lshl_add_u32 v17, v19, 4, v17')
o(f's_lshl_b32 s{sA}, s{sS}, 7'); o(f'v_add_u32 v17, s{sA}, v17')
l=U('wu')
if 'nowu' not in OPT:
    o(f's_cmp_lg_u32 s{sW}, 4'); o(f's_cbranch_scc1 {l}_a')
    o(f'buffer_load_dwordx4 v[240:243], v17, {sr(rW1,4)}, s3 offen')
    lab(l+'_a')
    o(f's_cmp_lg_u32 s{sW}, 5'); o(f's_cbranch_scc1 {l}_b')
    o(f'buffer_load_dwordx4 v[240:243], v17, {sr(rW2,4)}, s3 offen')
    lab(l+'_b')
build_common()
srd(rX,sX,N*512); srd_off(rREC,sWS,WS_RECS,256*CHCAP*8)
if 'notlb' not in OPT:
    o(f's_cmp_lg_u32 s{sW}, 6'); o(f's_cbranch_scc1 {l}_c')
    o('v_lshlrev_b32 v17, 20, v1'); o('v_cmpx_gt_u32 vcc, 3, v1')
    o(f'buffer_load_dword v244, v17, {sr(rTR,4)}, 0 offen')
    o('s_mov_b64 exec, -1')
    lab(l+'_c')
    o(f's_cmp_lg_u32 s{sW}, 7'); o(f's_cbranch_scc1 {l}_d')
    o(f's_lshl_b32 s{sA}, s{sNB}, 9')
    o(f'buffer_load_dword v244, v{VZ}, {sr(rOUT,4)}, s{sA} offen')
    o(f'buffer_load_dword v245, v{VZ}, {sr(rREC,4)}, 0 offen')
    lab(l+'_d')
wvoff(249,sW)
o('v_subrev_u32 v247, 16384, v249')
o('s_waitcnt vmcnt(%d)' % (2 if ('nowu' in OPT or 'notlb' in OPT) else 3))
stamp(22)
o(f's_mov_b32 s{sA}, 106862')
RR,RK_,RW=36,24,28
for k in range(3):
    o(f'v_mul_lo_u32 v{RR+k}, v{ED+k}, s{sA}')
for k in range(3):
    o(f'v_lshrrev_b32 v{RR+k}, 24, v{RR+k}')
    o(f'v_mul_u32_u24 v17, {RN}, v{RR+k}'); o(f'v_sub_u32 v17, v{ED+k}, v17')
    o(f'v_lshl_or_b32 v{RW+2*k}, v{ES+k}, 8, v17'); o(f'v_lshlrev_b32 v{RW+2*k+1}, 16, v{EE+k}')
    o(f'v_lshlrev_b32 v{RR+k}, 2, v{RR+k}')
o('v_mov_b32 v16, 1')
o(f'ds_add_rtn_u32 v{RK_}, v{RR}, v16 offset:{HIST1}')
o(f'ds_add_rtn_u32 v{RK_+1}, v{RR+1}, v16 offset:{HIST1}')
o(f'v_cmpx_gt_u32 vcc, {CH-512}, v14')
o(f'ds_add_rtn_u32 v{RK_+2}, v{RR+2}, v16 offset:{HIST1}')
o('s_mov_b64 exec, -1')
o('s_waitcnt lgkmcnt(0)')
o(f's_mul_i32 s{sNONCE}, s{sNONCE}, 0x9E3779B1'); o(f's_add_u32 s{sNONCE}, s{sNONCE}, 0x7F4A7C15')
lds_inc(C_H,17)
lds_spin(C_H,4,17)
o('v_lshlrev_b32 v17, 2, v1')
o(f'ds_read_b32 v20, v17 offset:{HIST1}')
o('s_waitcnt lgkmcnt(0)')
o('v_add_u32 v21, 1, v20'); o('v_and_b32 v21, -2, v21'); o('v_mov_b32 v22, v21')
scan64(21)
o('v_sub_u32 v22, v21, v22')
for k in range(3): o(f'ds_bpermute_b32 v{RR+k}, v{RR+k}, v22')
o('s_waitcnt lgkmcnt(0)')
for k in range(3): o(f'v_add_lshl_u32 v{RR+k}, v{RR+k}, v{RK_+k}, 3')
for k in range(3): o(f'v_add_u32 v{RR+k}, {RST}, v{RR+k}')
o(f'ds_write_b64 v{RR}, {vr(RW,2)}')
o(f'ds_write_b64 v{RR+1}, {vr(RW+2,2)}')
o(f'v_cmpx_gt_u32 vcc, {CH-512}, v14')
o(f'ds_write_b64 v{RR+2}, {vr(RW+4,2)}')
o('s_mov_b64 exec, -1')
o('s_waitcnt lgkmcnt(0)')
lds_inc(C_S,17)
lds_spin(C_S,4,17)
o('v_lshlrev_b32 v17, 4, v14'); o(f'v_add_u32 v18, {RST}, v17')
o('ds_read_b128 v[28:31], v18'); o('ds_read_b128 v[32:35], v18 offset:4096')
o(f's_mul_i32 s{sA}, s2, {CHCAP*8}'); o(f's_add_u32 s{sB}, s{sA}, 4096')
o('s_waitcnt lgkmcnt(0)')
o(f'buffer_store_dwordx4 v[28:31], v17, {sr(rREC,4)}, s{sA} offen sc1')
o(f'v_cmpx_gt_u32 vcc, {(CHCAP*8-4096)//16}, v14')
o(f'buffer_store_dwordx4 v[32:35], v17, {sr(rREC,4)}, s{sB} offen sc1')
o('s_mov_b64 exec, -1')
stamp(2)
o('s_waitcnt vmcnt(0)')
lds_inc(C_R,17,ret=True)
l=U('nopub')
o(f's_cmp_lg_u32 s{sA}, 3'); o(f's_cbranch_scc1 {l}')
o('v_lshl_or_b32 v24, v20, 16, v22'); o(f'v_mov_b32 v25, s{sNONCE}')
o('v_lshlrev_b32 v17, 11, v1')
o(f's_lshl_b32 s{sA}, s2, 3')
o(f'buffer_store_dwordx2 v[24:25], v17, {sr(rSEG,4)}, s{sA} offen sc1')
lab(l)
stamp(3)
lds_spin(C_G1,4,17)
stamp(4)
o('s_branch L_eteam_b')
lab('L_g_gemm')
sTE=11
sTC=12
def next_tile(s):
    o(f's_add_u32 s{s}, s{s}, 1'); o(f's_cmp_eq_u32 s{s}, 10'); o(f's_cselect_b32 s{s}, 0, s{s}')
def xc_update():
    o(f's_lshl_b32 s{sA}, s{sTL}, 13')
    return [f'v_add_u32 v{XC+k}, s{sA}, v{XA+k}' for k in range(4)]
def xread(buf,ks): return f'ds_read_b128 {vr(buf+4*ks,4)}, v{XC+(ks&3)} offset:{256 if ks>=4 else 0}'
def epi_list(which,a):
    e=[]
    for i in range(4): e.append(f'v_mul_f32 v{a+i}, {NLOG2E:#x}, v{a+i}')
    for i in range(4): e.append(f'v_cvt_pk_bf16_f32 v{a+i}, v{a+i}, v{a+4+i}')
    if which==1:
        for i in range(4): e.append(f'buffer_store_dword v{a+i}, v{TOF}, {sr(rTW,4)}, s{sB} offen offset:{i*256} sc1')
    else:
        for i in range(4): e.append(f'ds_write_b32 v{AUA}, v{a+i} offset:{i*256}')
    return e
def epi_addr(which):
    if which==1:
        o(f's_lshl_b32 s{sB}, s{sTE}, 4'); o(f's_add_u32 s{sB}, s{sB}, s{sNB}'); o(f's_lshl_b32 s{sB}, s{sB}, 8')
    else:
        o(f's_lshl_b32 s{sB}, s{sTE}, 12'); o(f's_add_u32 s{sB}, s{sB}, {AU}'); o(f'v_add_u32 v{AUA}, s{sB}, v{TOF}')
def gemm(which):
    lp=U('gemm')
    o(f's_mov_b32 s{sTL}, s{sROT}')
    for t in xc_update(): o(t)
    for ks in range(8): o(xread(AF0,ks))
    next_tile(sTL)
    o('s_nop 0')
    for t in xc_update(): o(t)
    if which==1: o(f's_mov_b32 s{sTE}, 0x40000')
    else:
        o(f's_add_u32 s{sTE}, s{sROT}, 9'); o(f's_cmp_ge_u32 s{sTE}, 10'); o(f's_cselect_b32 s{sA}, 10, 0'); o(f's_sub_u32 s{sTE}, s{sTE}, s{sA}')
    o(f's_mov_b32 s{sTC}, s{sROT}')
    o(f's_mov_b32 s{sI}, 0')
    if which==2: o('s_waitcnt lgkmcnt(0)')
    lab(lp)
    for h in range(2):
        buf=AF0 if h==0 else AF1; nbuf=AF1 if h==0 else AF0
        a=ACC+8*h; ap=ACC+8*(h^1)
        e=epi_list(which,ap)
        if which==1: ea=[f's_lshl_b32 s{sB}, s{sTE}, 4', f's_add_u32 s{sB}, s{sB}, s{sNB}', f's_lshl_b32 s{sB}, s{sB}, 8']
        else: ea=[f's_lshl_b32 s{sB}, s{sTE}, 12', f's_add_u32 s{sB}, s{sB}, {AU}', f'v_add_u32 v{AUA}, s{sB}, v{TOF}']
        nt=[f's_mov_b32 s{sTE}, s{sTC}', f's_mov_b32 s{sTC}, s{sTL}', f's_add_u32 s{sTL}, s{sTL}, 1', f's_cmp_eq_u32 s{sTL}, 10', f's_cselect_b32 s{sTL}, 0, s{sTL}', f's_lshl_b32 s{sA}, s{sTL}, 13']
        xu=[f'v_add_u32 v{XC+k}, s{sA}, v{XA+k}' for k in range(4)]
        fill=[[xread(nbuf,0),ea[0]],[xread(nbuf,1),ea[1]],[xread(nbuf,2),ea[2]],[xread(nbuf,3)],[xread(nbuf,4)],[xread(nbuf,5)],[xread(nbuf,6)],[xread(nbuf,7)],
              [e[0],e[1],nt[0],nt[1]],[e[2],e[3],nt[2],nt[3]],[e[4],e[5],nt[4],nt[5]],[e[6],e[7]],[e[8],xu[0]],[e[9],xu[1]],[e[10],xu[2]],[e[11],xu[3]]]
        o('s_waitcnt lgkmcnt(0)' if which==1 else 's_waitcnt lgkmcnt(4)')
        m=0
        for ks in range(8):
            c1='0' if ks==0 else vr(a,4); c2='0' if ks==0 else vr(a+4,4)
            o(f'v_mfma_f32_16x16x32_bf16 {vr(a,4)}, {vr(buf+4*ks,4)}, {vr(W1+4*ks,4)}, {c1}')
            for t in fill[m]: o(t)
            m+=1
            o(f'v_mfma_f32_16x16x32_bf16 {vr(a+4,4)}, {vr(buf+4*ks,4)}, {vr(W2+4*ks,4)}, {c2}')
            for t in fill[m]: o(t)
            m+=1
    o(f's_add_u32 s{sI}, s{sI}, 1')
    if PROF:
        o(f's_memrealtime s[100:101]'); o('s_waitcnt lgkmcnt(0)')
        o(f's_add_u32 m0, s{sI}, {12 if which==1 else 22}'); o('s_nop 3'); o('v_writelane_b32 v255, s100, m0')
    if which==1:
        l=U('x2a')
        o(f's_cmp_lg_u32 s{sI}, 1'); o(f's_cbranch_scc1 {l}')
        o('s_waitcnt vmcnt(8)')
        lds_inc(C_X2,220)
        lab(l)
        l=U('x2b')
        o(f's_cmp_lg_u32 s{sI}, 2'); o(f's_cbranch_scc1 {l}')
        lds_spin(C_X2,4,220)
        lab(l)
    if which==2:
        l=U('nf2')
        o(f's_cmp_lg_u32 s{sI}, 3'); o(f's_cbranch_scc1 {l}')
        o('s_waitcnt vmcnt(0)')
        lds_inc(C_T,220,ret=True)
        o(f's_cmp_lg_u32 s{sA}, 3'); o(f's_cbranch_scc1 {l}')
        o('s_mov_b64 exec, 1')
        for i in range(4): o(f'v_mov_b32 v{220+i}, s{sNONCE}')
        o(f's_lshl_b32 s{sA}, s{sS}, 6'); o(f's_add_u32 s{sA}, s{sA}, s{sR}'); o(f's_lshl_b32 s{sA}, s{sA}, 4')
        o(f's_add_u32 s{sA}, s{sA}, {SEGT_FLAG2}')
        o(f'buffer_store_dwordx4 v[220:223], v{VZ}, {sr(rSEG,4)}, s{sA} offen sc1')
        o('s_mov_b64 exec, -1')
        lab(l)
    o(f's_cmp_lt_u32 s{sI}, 5'); o(f's_cbranch_scc1 {lp}')
    epi_addr(which)
    o('s_nop 7')
    for t in epi_list(which,ACC+8): o(t)
l=U('nodummy')
o(f's_cmp_lg_u32 s{sR}, 63'); o(f's_cbranch_scc1 {l}')
o(f's_cmp_lg_u32 s{sW}, 0'); o(f's_cbranch_scc1 {l}')
o('v_mov_b32 v220, 0x7f7f'); o('v_lshlrev_b32 v221, 2, v1'); o(f'v_add_u32 v221, {N*256}, v221')
o(f'buffer_store_dword v220, v221, {sr(rTR,4)}, 0 offen sc1')
lab(l)
gemm(1)
stamp(5)
lds_spin(C_W,4,220)
wfrags()
o('s_waitcnt lgkmcnt(0)')
lds_inc(C_G,220)
lds_spin(C_G,4,220)
stamp(6)
gemm(2)
o('s_waitcnt lgkmcnt(0)')
stamp(7)
o('s_branch L_main_setup')
lab('L_eteam_b')
for half in range(2):
    o(f's_lshl_b32 s{sC_}, s{sW}, 10')
    if half==0: o(f's_sub_u32 s{sC_}, s{sC_}, 4096')
    vv = 247 if half==0 else 249
    for jj in range(4):
        o(f's_add_u32 m0, s{sC_}, {WR+jj*8192}'); o(f's_mov_b32 s{sB}, {jj*32768}')
        o(f'buffer_load_dwordx4 v{vv}, {sr(rW1,4)}, s{sB} offen lds')
        o(f's_add_u32 m0, s{sC_}, {WR+32768+jj*8192}'); o('s_nop 0')
        o(f'buffer_load_dwordx4 v{vv}, {sr(rW2,4)}, s{sB} offen lds')
        o('s_waitcnt vmcnt(%s)' % OPT.get('pace2','4'))
SG,RC0,RC1,SA,RKB=64,80,112,144,200
T=176
o(f's_sub_u32 s{sC_}, s{sW}, 4')
o('v_lshrrev_b32 v17, 3, v1')
o(f's_lshl_b32 s{sA}, s{sC_}, 3'); o(f'v_add_u32 v17, s{sA}, v17')
o(f'v_lshlrev_b32 v{T}, 3, v17')
o('v_and_b32 v18, 7, v1')
o(f'v_mul_u32_u24 v{T+1}, {CHCAP*8}, v17'); o(f'v_lshl_add_u32 v{T+1}, v18, 4, v{T+1}')
IX=T+2
o(f'v_lshlrev_b32 v{IX}, 1, v18'); o(f'v_add_u32 v{IX+1}, 1, v{IX}'); o(f'v_add_u32 v{IX+2}, 16, v{IX}'); o(f'v_add_u32 v{IX+3}, 17, v{IX}')
o(f's_lshl_b32 s{sD}, s{sR}, 11')
o(f's_mov_b32 s{sSP}, 0')
lp=U('poll1'); dn=U('poll1d')
lab(lp)
for p in range(8):
    o(f'buffer_load_dwordx2 {vr(SG+2*p,2)}, v{T}, {sr(rSEG,4)}, s{sD} offen offset:{p*256} sc1')
o(f'v_mov_b32 v19, s{sNONCE}')
o('s_waitcnt vmcnt(0)')
o(f'v_xor_b32 v20, v{SG+1}, v19')
for p in range(1,8):
    o(f'v_xor_b32 v21, v{SG+2*p+1}, v19'); o('v_or_b32 v20, v20, v21')
o('v_cmp_ne_u32 vcc, 0, v20')
o(f's_cbranch_vccz {dn}')
o('s_sleep 6')
o(f's_add_u32 s{sSP}, s{sSP}, 1'); o(f's_cmp_lt_u32 s{sSP}, 0x10000'); o(f's_cbranch_scc1 {lp}')
lab(dn)
stamp(5)
for p in range(8):
    o(f'v_and_b32 v19, 0xffff, v{SG+2*p}')
    o(f'v_lshl_add_u32 v19, v19, 3, v{T+1}')
    o(f's_mov_b32 s{sA}, {p*32*CHCAP*8}')
    o(f'v_cmp_lt_u32 vcc, 0x10ffff, v{SG+2*p}')
    o(f'buffer_load_dwordx4 {vr(RC0+4*p,4)}, v19, {sr(rREC,4)}, s{sA} offen sc1')
    l=U('ld1'); o(f's_cbranch_vccz {l}')
    o(f'buffer_load_dwordx4 {vr(RC1+4*p,4)}, v19, {sr(rREC,4)}, s{sA} offen offset:128 sc1')
    lab(l)
lds_inc(C_W,20)
o('v_mov_b32 v20, 0')
for p in range(8):
    o(f'v_lshrrev_b32 v{SG+2*p+1}, 16, v{SG+2*p}')
    o(f'v_max_u32 v20, v20, v{SG+2*p+1}')
o('v_cmp_lt_u32 vcc, 32, v20')
l=U('nofb'); o(f's_cbranch_vccz {l}')
o('v_mov_b32 v21, 1'); o(f'ds_write_b32 v{VZ}, v21 offset:{C_FB}')
lab(l)
o('s_waitcnt vmcnt(0)')
stamp(6)
def each_rec(fn):
    for p in range(8):
        for st in range(2):
            if st==1:
                l=U('st1'); o(f'v_cmp_lt_u32 vcc, 16, v{SG+2*p+1}'); o(f's_cbranch_vccz {l}')
            for i in range(2):
                rec=(RC0 if st==0 else RC1)+4*p+2*i
                o(f'v_cmpx_lt_u32 vcc, v{IX+2*st+i}, v{SG+2*p+1}')
                fn(rec, SA+4*p+2*st+i)
            o('s_mov_b64 exec, -1')
            if st==1: lab(l)
SD='dst_sel:DWORD dst_unused:UNUSED_PAD src0_sel:DWORD src1_sel:BYTE_0'
o('v_mov_b32 v22, 1'); o('v_mov_b32 v23, 64')
def f_hist(rec,sa):
    o(f'v_lshlrev_b32_sdwa v20, 2, v{rec} {SD}'); o(f'ds_add_rtn_u32 v{sa-SA+RKB}, v20, v22 offset:{DEG}')
each_rec(f_hist)
o('s_waitcnt lgkmcnt(0)')
lds_inc(C_E1,20)
stamp(7)
o(f's_cmp_lg_u32 s{sW}, 4')
o('s_cbranch_scc1 L_e_prefill')
lds_spin(C_E1,4,20)
D0,K0,P0=24,28,32
o('v_lshlrev_b32 v19, 2, v1')
for a in range(3): o(f'ds_read_b32 v{D0+a}, v19 offset:{DEG+a*256}')
perm=[]
for w in range(8): perm += [w,15-w] + ([19-w] if w<4 else [])
o('v_mov_b32 v38, 31')
for i,g in enumerate(perm): o(f'v_writelane_b32 v38, {g}, {i}')
o('v_lshlrev_b32 v38, 2, v38')
o('v_sub_u32 v37, 252, v19')
o('s_waitcnt lgkmcnt(0)')
for a in range(3):
    o(f'v_min_u32 v{K0+a}, 63, v{D0+a}'); o(f'v_lshlrev_b32 v{K0+a}, 2, v{K0+a}')
    if a==2: o('v_cmpx_gt_u32 vcc, 32, v1')
    o(f'ds_add_rtn_u32 v{P0+a}, v{K0+a}, v22 offset:{HIST2}')
o('s_mov_b64 exec, -1')
o('s_waitcnt lgkmcnt(0)')
o(f'ds_read_b32 v36, v37 offset:{HIST2}')
for a in range(3): o(f'v_sub_u32 v{K0+a}, 252, v{K0+a}')
o('s_waitcnt lgkmcnt(0)')
o('v_mov_b32 v35, v36') if False else None
o('v_mov_b32 v39, v36')
scan64(36)
o('v_sub_u32 v36, v36, v39')
for a in range(3): o(f'ds_bpermute_b32 v{K0+a}, v{K0+a}, v36')
o('s_waitcnt lgkmcnt(0)')
for a in range(3):
    o(f'v_add_u32 v{P0+a}, v{P0+a}, v{K0+a}')
    o(f'v_add_u32 v21, {64*a}, v1')
    o(f'v_cmp_gt_u32 vcc, s{sNV}, v21')
    o(f'v_lshlrev_b32 v20, 2, v{P0+a}')
    o(f'v_lshrrev_b32 v{K0+a}, 3, v{P0+a}'); o(f'v_lshlrev_b32 v{K0+a}, 2, v{K0+a}')
    o('v_mov_b32 v40, 0xffff')
    o('v_cndmask_b32 v21, v40, v21, vcc')
    if a==2: o('v_cmpx_gt_u32 vcc, 32, v1')
    o(f'ds_write_b32 v20, v21 offset:{NODEOF}')
    o(f'ds_max_u32 v{K0+a}, v{D0+a} offset:{LG}')
o('s_mov_b64 exec, -1')
o('s_waitcnt lgkmcnt(0)')
o(f'ds_read_b32 v39, v38 offset:{LG}')
o('s_waitcnt lgkmcnt(0)')
o('v_add_u32 v39, 1, v39'); o('v_lshrrev_b32 v39, 1, v39')
o(f'ds_write_b32 v38, v39 offset:{LG}')
o('v_mov_b32 v40, v39')
scan64(39)
o('v_sub_u32 v40, v39, v40')
o('v_lshlrev_b32 v40, 7, v40'); o(f'v_add_u32 v40, {ELL}, v40')
o(f'ds_write_b32 v38, v40 offset:{GBASE}')
o(f'v_readlane_b32 s{sA}, v39, 19')
o('s_waitcnt lgkmcnt(0)')
for a in range(3): o(f'ds_read_b32 v{K0+a}, v{K0+a} offset:{GBASE}')
o(f's_cmp_le_u32 s{sA}, {ELLB-4}')
l=U('fits'); o(f's_cbranch_scc1 {l}')
o('v_mov_b32 v21, 1'); o(f'ds_write_b32 v{VZ}, v21 offset:{C_FB}')
lab(l)
o('s_waitcnt lgkmcnt(0)')
for a in range(3):
    o(f'v_and_b32 v21, 7, v{P0+a}'); o(f'v_lshl_add_u32 v21, v21, 3, v{K0+a}')
    o(f'ds_write_b32 v19, v21 offset:{CUR+a*256}')
o('s_waitcnt lgkmcnt(0)')
lds_inc(C_SORT,20)
o('s_branch L_e_wait')
lab('L_e_prefill')
lds_spin(C_G,4,20)
o(f's_sub_u32 s{sA}, s{sW}, 5'); o(f's_lshl_b32 s{sA}, s{sA}, 10'); o(f's_add_u32 s{sA}, s{sA}, {ELL}')
o(f'v_lshlrev_b32 v20, 4, v1'); o(f'v_add_u32 v20, s{sA}, v20')
o(f'v_mov_b32 v24, {N*256}'); o('v_mov_b32 v25, 0'); o(f'v_mov_b32 v26, {N*256}'); o('v_mov_b32 v27, 0')
for i in range(12): o(f'ds_write_b128 v20, v[24:27] offset:{i*3072}')
o('s_waitcnt lgkmcnt(0)')
lds_inc(C_P,20)
lab('L_e_wait')
lds_spin(C_SORT,1,20)
lds_spin(C_P,3,20)
stamp(8)
o(f'ds_read_b32 v20, v{VZ} offset:{C_FB}'); o('s_waitcnt lgkmcnt(0)')
o(f'v_readfirstlane_b32 s{sA}, v20'); o(f's_cmp_lg_u32 s{sA}, 0'); o('s_cbranch_scc1 L_e_done')
def f_slot(rec,sa):
    o(f'v_lshlrev_b32_sdwa v20, 2, v{rec} {SD}'); o(f'ds_read_b32 v{sa}, v20 offset:{CUR}')
each_rec(f_slot)
o('s_waitcnt lgkmcnt(0)')
def f_put(rec,sa):
    o(f'v_lshl_add_u32 v{sa}, v{sa-SA+RKB}, 6, v{sa}'); o(f'ds_write_b64 v{sa}, {vr(rec,2)}')
each_rec(f_put)
lab('L_e_done')
o('s_waitcnt lgkmcnt(0)')
stamp(9)
o(f's_cmp_lg_u32 s{sW}, 4')
o('s_cbranch_scc1 L_main_setup')
o('v_lshlrev_b32 v20, 4, v1')
o(f's_lshl_b32 s{sD}, s{sS}, 10'); o(f's_add_u32 s{sD}, s{sD}, {SEGT_FLAG2}')
o(f's_mov_b32 s{sSP}, 0')
lp=U('poll2'); dn=U('poll2d')
lab(lp)
o(f'buffer_load_dword v21, v20, {sr(rSEG,4)}, s{sD} offen sc1')
o('s_waitcnt vmcnt(0)')
o(f'v_cmp_ne_u32 vcc, s{sNONCE}, v21')
o(f's_cbranch_vccz {dn}')
o('s_sleep 2')
o(f's_add_u32 s{sSP}, s{sSP}, 1'); o(f's_cmp_lt_u32 s{sSP}, 0x10000'); o(f's_cbranch_scc1 {lp}')
lab(dn)
l=U('noep')
o('s_cmp_lg_u32 s2, 0'); o(f's_cbranch_scc1 {l}')
o('s_mov_b64 exec, 1')
o(f'v_mov_b32 v21, s{sNONCE}')
o(f'global_store_dword v{VZ}, v21, {sr(sEP,2)} sc1')
o('s_mov_b64 exec, -1')
lab(l)
LOFF,RP=2,3
S1A,S1B,S2A,S2B,ONE=4,8,12,16,20
WC=24; NUM=32; DEN=40; C=48; DX,DY=72,104; R0,R1=136,152
OFA,OFB,EA_,EB_,AD=168,170,172,174,176
NL=178; AUR=180; XR=188; TM=192
lab('L_main_setup')
o('s_setprio 0')
stamp(10)
o(f'v_and_b32 v{LOFF}, 7, v1'); o(f'v_lshlrev_b32 v{LOFF}, 4, v{LOFF}')
o('v_bfe_u32 v196, v1, 3, 2'); o('v_bfe_u32 v197, v1, 2, 1'); o('v_lshrrev_b32 v198, 5, v1'); o('v_and_b32 v199, 3, v1')
o('v_cmp_eq_u32 vcc, v197, v198'); o('v_mov_b32 v195, 7'); o('v_and_b32 v193, 1, v196')
o('v_cndmask_b32 v199, v195, v199, vcc')
LO,HI=0x00003f80,0x3f800000
o('v_cmp_gt_u32 vcc, 2, v196'); o(f'v_mov_b32 v194, {LO:#x}'); o(f'v_mov_b32 v195, {HI:#x}')
o('v_cndmask_b32 v192, v194, v195, vcc')
o('v_cndmask_b32 v191, v195, v194, vcc')
o('v_lshl_add_u32 v199, v193, 3, v199')
for i in range(4):
    o(f'v_cmp_eq_u32 vcc, {i}, v199'); o(f'v_cmp_eq_u32 s[98:99], {8+i}, v199'); o('s_nop 0')
    o(f'v_cndmask_b32 v{S1A+i}, 0, v192, vcc'); o(f'v_cndmask_b32 v{S2A+i}, 0, v191, vcc')
    o(f'v_cndmask_b32 v{S1B+i}, 0, v192, s[98:99]'); o(f'v_cndmask_b32 v{S2B+i}, 0, v191, s[98:99]')
o('v_cmp_gt_u32 vcc, 32, v1')
for i in range(1,4): o(f'v_mov_b32 v{ONE+i}, 0')
o(f'v_cndmask_b32 v{ONE}, 0, v194, vcc')
for i in range(4):
    o(f'v_lshlrev_b32 v{WC+2*i}, 16, v{250+i}'); o(f'v_and_b32 v{WC+2*i+1}, 0xffff0000, v{250+i}')
for i in range(8): o(f'v_mul_f32 v{WC+i}, {NLOG2E:#x}, v{WC+i}')
for i in range(8):
    o(f'v_mov_b32 v{C+i}, 0'); o(f'v_mov_b32 v{C+16+i}, 0')
o('s_waitcnt vmcnt(0) lgkmcnt(0)')
o('s_barrier')
stamp(11)
o(f'ds_read_b32 v194, v{VZ} offset:{C_FB}')
o(f's_lshl_b32 s{sA}, s{sW}, 2'); o(f'v_mov_b32 v195, s{sA}'); o(f'ds_read_b32 v{RP}, v195 offset:{GBASE}')
o('s_waitcnt lgkmcnt(0)')
o(f'v_readfirstlane_b32 s{sA}, v194'); o(f's_cmp_lg_u32 s{sA}, 0'); o('s_cbranch_scc1 L_fallback')
o('v_lshrrev_b32 v195, 3, v1'); o(f'v_lshl_add_u32 v{RP}, v195, 3, v{RP}')
def mfma(d,a,b,c): o(f'v_mfma_f32_32x32x16_bf16 {vr(d,16)}, {vr(a,4)}, {vr(b,4)}, {c}')
def unpack_list(D,R):
    f=lambda d,a,b,c: f'v_mfma_f32_32x32x16_bf16 {vr(d,16)}, {vr(a,4)}, {vr(b,4)}, {c}'
    return [f(D,S1A,R,vr(C,16)), f(D,S1B,R+4,vr(D,16)), f(D+16,S2A,R+8,vr(C+8,16)), f(D+16,S2B,R+12,vr(D+16,16))]
def gfma(D,Er):
    for sl in range(2):
        for j in range(4):
            g=D+8+8*sl+2*j
            sel='op_sel:[0,0,0] op_sel_hi:[0,1,1]' if sl==0 else 'op_sel:[1,0,0] op_sel_hi:[1,1,1]'
            o(f'v_pk_fma_f32 {vr(g,2)}, {vr(Er,2)}, {vr(WC+2*j,2)}, {vr(g,2)} {sel}')
def loads(R,OF):
    o(f'v_and_or_b32 v{AD}, v{OF}, s{sM}, v{LOFF}'); o(f'v_and_or_b32 v{AD+1}, v{OF+1}, s{sM}, v{LOFF}')
    o(f'buffer_load_dwordx4 {vr(R,4)}, v{AD}, {sr(rTR,4)}, 0 offen sc1')
    o(f'buffer_load_dwordx4 {vr(R+4,4)}, v{AD}, {sr(rTR,4)}, 0 offen offset:128 sc1')
    o(f'buffer_load_dwordx4 {vr(R+8,4)}, v{AD+1}, {sr(rTR,4)}, 0 offen sc1')
    o(f'buffer_load_dwordx4 {vr(R+12,4)}, v{AD+1}, {sr(rTR,4)}, 0 offen offset:128 sc1')
def rd_off(dst,b): o(f'ds_read2_b32 {vr(dst,2)}, v{RP} offset0:{b*32} offset1:{b*32+16}')
def rd_e(dst,b): o(f'ds_read2_b32 {vr(dst,2)}, v{RP} offset0:{b*32+1} offset1:{b*32+17}')
def dsreads(P):
    OFn=OFB if P==0 else OFA; En=EB_ if P==0 else EA_
    rd_off(OFn,P+3); rd_e(En,P+1)
    if P==1: o(f'v_add_u32 v{RP}, 256, v{RP}')
def accum(D):
    for sl in range(2):
        for j in range(4):
            g=D+8+8*sl+2*j
            o(f'v_pk_add_f32 {vr(DEN+2*j,2)}, {vr(DEN+2*j,2)}, {vr(g,2)}')
            v=(D+2*j) if sl==0 else (D+24+2*j)
            o(f'v_pk_fma_f32 {vr(NUM+2*j,2)}, {vr(g,2)}, {vr(v,2)}, {vr(NUM+2*j,2)}')
Ds=[DX,DY]; Rs=[R0,R1]; OFs=[OFA,OFB]; Es=[EA_,EB_]
rd_off(OFA,0); rd_off(OFB,1)
o('s_waitcnt lgkmcnt(0)')
loads(R0,OFA); loads(R1,OFB)
rd_off(OFA,2); rd_e(EA_,0)
sRD,sPAR,sG,sNBT=96,97,46,47
o(f's_mov_b32 s{sRD}, 0'); o(f's_mov_b32 s{sPAR}, 0')
lab('L_group')
o(f's_cmp_eq_u32 s{sRD}, 0'); o(f's_cselect_b32 s{sG}, s{sW}, 0')
o(f's_sub_u32 s92, 15, s{sW}'); o(f's_cmp_eq_u32 s{sRD}, 1'); o(f's_cselect_b32 s{sG}, s92, s{sG}')
o(f's_sub_u32 s92, 19, s{sW}'); o(f's_cmp_eq_u32 s{sRD}, 2'); o(f's_cselect_b32 s{sG}, s92, s{sG}')
o(f's_cmp_ge_u32 s{sRD}, 3'); o('s_cbranch_scc1 L_done')
o(f's_cmp_eq_u32 s{sRD}, 2'); o('s_cselect_b32 s92, 1, 0'); o(f's_cmp_ge_u32 s{sW}, 4'); o('s_cselect_b32 s93, 1, 0')
o('s_and_b32 s92, s92, s93'); o('s_cbranch_scc1 L_done')
o(f's_add_u32 s{sRD}, s{sRD}, 1')
o(f's_lshl_b32 s92, s{sG}, 2'); o(f'v_mov_b32 v{TM}, s92'); o(f'ds_read_b32 v{TM+1}, v{TM} offset:{LG}')
o(f's_lshl_b32 s92, s{sG}, 5')
o(f'v_lshrrev_b32 v{TM}, 3, v1'); o(f'v_lshl_add_u32 v{TM}, v{TM}, 2, s92')
o(f'ds_read_b32 v{NL}, v{TM} offset:{NODEOF}')
o('s_waitcnt lgkmcnt(0)')
o(f'v_readfirstlane_b32 s{sNBT}, v{TM+1}')
o(f's_min_u32 s{sNBT}, s{sNBT}, {ELLB}')
if PROF:
    o(f's_memrealtime s[100:101]'); o('s_waitcnt lgkmcnt(0)')
    o(f's_add_u32 m0, s{sRD}, 27'); o('s_nop 3'); o('v_writelane_b32 v255, s100, m0')
    o(f's_add_u32 m0, s{sRD}, 59'); o('s_nop 3'); o(f'v_writelane_b32 v255, s{sNBT}, m0')
o(f'v_cmp_gt_u32 vcc, 256, v{NL}'); o('s_nop 1'); o(f'v_cndmask_b32 v{TM}, 0, v{NL}, vcc')
o(f'v_lshl_add_u32 v{TM+1}, v{TM}, 8, v{LOFF}'); o(f'v_add_u32 v{TM+1}, {AU}, v{TM+1}')
o(f'ds_read_b128 {vr(AUR,4)}, v{TM+1}'); o(f'ds_read_b128 {vr(AUR+4,4)}, v{TM+1} offset:128')
o(f'v_bfe_u32 v{TM+2}, v1, 1, 2'); o(f's_lshl_b32 s92, s{sS}, 3'); o(f'v_add_u32 v{TM+2}, s92, v{TM+2}')
o(f'v_and_b32 v{TM+3}, 15, v{TM}')
o(f'v_xor_b32 v{TM+4}, v{TM+2}, v{TM+3}'); o(f'v_add_u32 v{TM+2}, 4, v{TM+2}'); o(f'v_xor_b32 v{TM+5}, v{TM+2}, v{TM+3}')
o(f'v_and_b32 v{TM+3}, 1, v1'); o(f'v_lshlrev_b32 v{TM+3}, 3, v{TM+3}'); o(f'v_lshl_add_u32 v{TM+3}, v{TM}, 9, v{TM+3}')
o(f'v_lshl_add_u32 v{TM+4}, v{TM+4}, 4, v{TM+3}'); o(f'v_lshl_add_u32 v{TM+5}, v{TM+5}, 4, v{TM+3}')
o(f'ds_read_b64 {vr(XR,2)}, v{TM+4} offset:{XT}'); o(f'ds_read_b64 {vr(XR+2,2)}, v{TM+5} offset:{XT}')
for i in range(8):
    o(f'v_mov_b32 v{NUM+i}, 0'); o(f'v_mov_b32 v{DEN+i}, 0')
o('s_waitcnt lgkmcnt(0)')
for i in range(8): o(f'v_lshlrev_b32 v{C+8+i}, 16, v{AUR+i}')
o(f's_cmp_eq_u32 s{sNBT}, 0'); o('s_cbranch_scc1 L_epi')
o(f's_cmp_eq_u32 s{sPAR}, 1'); o('s_cbranch_scc1 L_gs1')
def exps(D): return [f'v_exp_f32 v{D+8+i}, v{D+8+i}' for i in range(16)]
def rcps(D): return [f'v_rcp_f32 v{D+8+i}, v{D+8+i}' for i in range(16)]
for P in range(2):
    lab(f'L_gs{P}')
    o('s_waitcnt vmcnt(4)')
    for t in unpack_list(Ds[P],Rs[P]): o(t)
    o('s_waitcnt lgkmcnt(0)')
    loads(Rs[P],OFs[P])
    dsreads(P)
    o('s_nop 7')
    gfma(Ds[P],Es[P])
    o(f's_branch L_body{P}')
for P in range(2):
    Q=P^1
    lab(f'L_body{P}')
    o(f's_sub_u32 s{sNBT}, s{sNBT}, 1'); o(f's_cmp_eq_u32 s{sNBT}, 0'); o(f's_cbranch_scc1 L_last{P}')
    ex=exps(Ds[P]); un=unpack_list(Ds[Q],Rs[Q])
    o('s_waitcnt vmcnt(4)')
    for k in range(4):
        o(un[k])
        for t in ex[4*k:4*k+4]: o(t)
    o('s_nop 1')
    mfma(Ds[P]+8,ONE,ONE,vr(Ds[P]+8,16))
    o('s_waitcnt lgkmcnt(0)')
    loads(Rs[Q],OFs[Q])
    o('s_nop 2')
    dsreads(Q)
    for t in rcps(Ds[P]): o(t)
    gfma(Ds[Q],Es[Q])
    accum(Ds[P])
    if P==1: o('s_branch L_body0')
for P in range(2):
    lab(f'L_last{P}')
    for t in exps(Ds[P]): o(t)
    o('s_nop 1')
    mfma(Ds[P]+8,ONE,ONE,vr(Ds[P]+8,16))
    o('s_nop 7'); o('s_nop 3')
    for t in rcps(Ds[P]): o(t)
    accum(Ds[P])
    o(f's_mov_b32 s{sPAR}, {P^1}')
    if P==0: o('s_branch L_epi')
lab('L_epi')
o('s_mov_b32 s92, 0x358637bd')
for i in range(8): o(f'v_add_f32 v{DEN+i}, s92, v{DEN+i}')
for i in range(8): o(f'v_rcp_f32 v{DEN+i}, v{DEN+i}')
for i in range(8): o(f'v_and_b32 v{AUR+i}, 0xffff0000, v{AUR+i}')
for i in range(8): o(f'v_fmac_f32 v{AUR+i}, v{NUM+i}, v{DEN+i}')
for i in range(8): o(f'v_max_f32 v{AUR+i}, 0, v{AUR+i}')
for i in range(4):
    o(f'v_lshlrev_b32 v{TM}, 16, v{XR+i}'); o(f'v_and_b32 v{TM+1}, 0xffff0000, v{XR+i}')
    o(f'v_add_f32 v{AUR+2*i}, v{AUR+2*i}, v{TM}'); o(f'v_add_f32 v{AUR+2*i+1}, v{AUR+2*i+1}, v{TM+1}')
for i in range(4): o(f'v_cvt_pk_bf16_f32 v{AUR+i}, v{AUR+2*i}, v{AUR+2*i+1}')
o(f'v_add_u32 v{TM}, s{sNB}, v{NL}'); o(f'v_lshlrev_b32 v{TM}, 9, v{TM}')
o(f'v_lshrrev_b32 v{TM+1}, 1, v{LOFF}'); o(f'v_add_u32 v{TM}, v{TM}, v{TM+1}')
o(f'v_cmp_gt_u32 vcc, 256, v{NL}'); o(f'v_mov_b32 v{TM+1}, 0x40000000'); o('s_nop 0')
o(f'v_cndmask_b32 v{TM}, v{TM+1}, v{TM}, vcc')
o(f's_lshl_b32 s92, s{sS}, 7')
o(f'buffer_store_dwordx2 {vr(AUR,2)}, v{TM}, {sr(rOUT,4)}, s92 offen')
o(f'buffer_store_dwordx2 {vr(AUR+2,2)}, v{TM}, {sr(rOUT,4)}, s92 offen offset:64')
o('s_branch L_group')
lab('L_done')
stamp(12)
if PROF:
    o('s_waitcnt vmcnt(0)')
    srd_off(92,sWS,WS_PROF,0x100000)
    o(f's_lshl_b32 s96, s2, 3'); o(f's_add_u32 s96, s96, s{sW}'); o('s_lshl_b32 s96, s96, 8')
    o('v_lshlrev_b32 v2, 2, v1')
    o('buffer_store_dword v255, v2, s[92:95], s96 offen')
o('s_endpgm')
lab('L_codeend')
lab('L_fallback')
FN,FD,FA,FU,FW=10,11,12,13,14
o('v_lshlrev_b32 v5, 2, v1')
o(f's_lshl_b32 s92, s{sS}, 7')
o('v_lshlrev_b32 v6, 1, v1'); o(f'v_add_u32 v6, s92, v6')
srd(64,sWC,512)
o(f'buffer_load_ushort v{FW}, v6, s[64:67], 0 offen')
o('s_waitcnt vmcnt(0)')
o(f'v_lshlrev_b32 v{FW}, 16, v{FW}'); o(f'v_mul_f32 v{FW}, {NLOG2E:#x}, v{FW}')
o(f's_mov_b32 s46, s{sW}')
lab('L_fb_node')
o(f's_cmp_ge_u32 s46, s{sNV}'); o('s_cbranch_scc1 L_fb_end')
o(f's_lshl_b32 s92, s46, 8'); o(f's_add_u32 s92, s92, {AU}'); o(f'v_add_u32 v7, s92, v5'); o('ds_read_b32 v8, v7')
o('s_waitcnt lgkmcnt(0)')
o(f'v_lshlrev_b32 v{FA}, 16, v8'); o(f'v_and_b32 v{FU}, 0xffff0000, v8')
o(f'v_mov_b32 v{FN}, 0'); o(f'v_mov_b32 v{FD}, 0')
o(f's_add_u32 s47, s46, s{sNB}')
o('s_mov_b32 s93, 0')
lab('L_fb_e')
o('v_add_u32 v7, s93, v1'); o('v_lshlrev_b32 v8, 2, v7'); o('v_lshlrev_b32 v7, 1, v7')
o(f'buffer_load_dword v15, v8, {sr(rDST,4)}, 0 offen')
o(f'buffer_load_dword v16, v8, {sr(rSRC,4)}, 0 offen')
o(f'buffer_load_ushort v17, v7, {sr(rEA,4)}, 0 offen')
o('s_waitcnt vmcnt(0)')
o('v_cmp_eq_u32 vcc, s47, v15')
o('s_mov_b64 s[94:95], vcc')
lab('L_fb_m')
o('s_cmp_eq_u64 s[94:95], 0'); o('s_cbranch_scc1 L_fb_next')
o('s_ff1_i32_b64 s96, s[94:95]')
o('s_bitset0_b64 s[94:95], s96')
o('v_readlane_b32 s97, v16, s96'); o('v_readlane_b32 s92, v17, s96')
o('s_nop 1')
o('s_lshl_b32 s97, s97, 8'); o('s_lshl_b32 s92, s92, 16')
o('s_nop 4')
o(f'buffer_load_dword v18, v5, {sr(rTR,4)}, s97 offen sc1')
o('s_waitcnt vmcnt(0)')
o('v_lshlrev_b32 v19, 16, v18'); o('v_and_b32 v18, 0xffff0000, v18')
o(f'v_add_f32 v19, v19, v{FA}'); o(f'v_fmac_f32 v19, s92, v{FW}')
o('v_exp_f32 v19, v19'); o('s_nop 0'); o('v_add_f32 v19, 1.0, v19'); o('v_rcp_f32 v19, v19'); o('s_nop 0')
o(f'v_add_f32 v{FD}, v{FD}, v19'); o(f'v_fmac_f32 v{FN}, v19, v18')
o('s_branch L_fb_m')
lab('L_fb_next')
o('s_add_u32 s93, s93, 64'); o(f's_cmp_lt_u32 s93, {E}'); o('s_cbranch_scc1 L_fb_e')
o('s_mov_b32 s92, 0x358637bd')
o(f'v_add_f32 v{FD}, s92, v{FD}'); o(f'v_rcp_f32 v{FD}, v{FD}'); o('s_nop 0')
o(f'v_fmac_f32 v{FU}, v{FN}, v{FD}'); o(f'v_max_f32 v{FU}, 0, v{FU}')
o('s_lshl_b32 s92, s47, 9')
o(f'buffer_load_ushort v18, v6, {sr(rX,4)}, s92 offen')
o('s_waitcnt vmcnt(0)')
o(f'v_lshlrev_b32 v18, 16, v18'); o(f'v_add_f32 v{FU}, v{FU}, v18')
o(f'v_cvt_pk_bf16_f32 v18, v{FU}, v{FU}')
o(f'buffer_store_short v18, v6, {sr(rOUT,4)}, s92 offen')
o('s_add_u32 s46, s46, 8'); o('s_branch L_fb_node')
lab('L_fb_end')
lab('L_end')
o('s_endpgm')
L=[x for x in L if x is not None]
hdr=open('gather_scatter__edge_featured_mpnn_gatedgcn__graph.s.ref').read().split('; Override')[0]
out=hdr+f'''; Generated by dev/gen2.py (hand-written generator). One fused persistent launch, 1 workgroup per CU.
; @launch grid=(256,1,1) block=(512,1,1) lds={LDS_TOTAL}
.amdgcn_target "amdgcn-amd-amdhsa--gfx950"
.text
.globl {NAME}
.p2align 8
.type {NAME},@function
'''+'\n'.join(L)+f'''
.section .rodata,"a"
.p2align 6
.amdhsa_kernel {NAME}
  .amdhsa_next_free_vgpr 256
  .amdhsa_next_free_sgpr 102
  .amdhsa_accum_offset 256
  .amdhsa_group_segment_fixed_size 0
  .amdhsa_kernarg_size 96
  .amdhsa_user_sgpr_count 2
  .amdhsa_user_sgpr_kernarg_segment_ptr 1
  .amdhsa_system_sgpr_workgroup_id_x 1
.end_amdhsa_kernel
'''
fn=[a for a in sys.argv[1:] if not a.startswith('--')]
open(fn[0] if fn else 'k.s','w').write(out)
```

```python
import sys
NAME='gather_scatter__edge_featured_mpnn_gatedgcn__graph_kernel'
PROF = '--prof' in sys.argv
OPT = {a.split('=')[0][2:]:(a.split('=')[1] if '=' in a else '1') for a in sys.argv[1:] if a.startswith('--')}
N=10000; E=160000; RN=157; CH=625; CHCAP=704
SLICE=10240*256
WS_RECS=0xA00000; WS_SEGT=0xB80000; SEGT_FLAG2=0x20000; WS_EPOCH=0xBB0000; WS_PROF=0xC00000
HIST1=0; DEG=256; HIST2=1024; LG=1280; GBASE=1408; NODEOF=1536; CUR=2304; CNT=3072
C_W=CNT; C_G=CNT+4; C_T=CNT+8; C_E1=CNT+12; C_SORT=CNT+16; C_P=CNT+20; C_FB=CNT+24; C_X=CNT+28; C_G1=CNT+32; C_H=CNT+36; C_R=CNT+40; C_X2=CNT+44; C_S=CNT+48
XT=4096; WR=XT+81920; AU=WR; ELL=WR+40960; ELLB=288
LDS_TOTAL=163840
RST=WR+65536
assert ELL+ELLB*128==LDS_TOTAL
NLOG2E=0xbfb8aa3b
sEP=4
sI,sROT,sTL,sWROT=6,7,8,9
sM=10
sX,sEA,sSRC,sDST,sWA,sWB,sWC,sWU=16,18,20,22,24,26,28,30
sWV,sOUT,sDBG,sWS=32,34,36,38
sW,sS,sR,sNONCE,sNB,sNV=40,41,42,43,44,45
rX,rDST,rSRC,rEA,rW1,rW2,rTW,rTR,rREC,rSEG,rOUT=48,52,56,60,64,68,72,76,80,84,88
sA,sB,sC_,sD,sSP=92,93,94,95,96
L=[]
def o(t): L.append('  '+t)
def lab(t): L.append(t+':')
def vr(a,n): return f'v[{a}:{a+n-1}]' if n>1 else f'v{a}'
def sr(a,n): return f's[{a}:{a+n-1}]'
uid=[0]
def U(p):
    uid[0]+=1; return f'L_{p}_{uid[0]}'
def srd(r,base,size):
    o(f's_mov_b32 s{r}, s{base}'); o(f's_mov_b32 s{r+1}, s{base+1}')
    o(f's_mov_b32 s{r+2}, {size}'); o(f's_mov_b32 s{r+3}, 0x20000')
def srd_off(r,base,off,size):
    o(f's_add_u32 s{r}, s{base}, {off}'); o(f's_addc_u32 s{r+1}, s{base+1}, 0')
    o(f's_mov_b32 s{r+2}, {size}'); o(f's_mov_b32 s{r+3}, 0x20000')
def stamp(idx):
    if not PROF: return
    o(f's_memrealtime s[100:101]'); o('s_waitcnt lgkmcnt(0)'); o(f'v_writelane_b32 v255, s100, {idx}')
    o(f's_memtime s[100:101]'); o('s_waitcnt lgkmcnt(0)'); o(f'v_writelane_b32 v255, s100, {idx+32}')
VZ=248
def lds_spin(addr, need, vtmp):
    l=U('spin'); d=U('spind')
    o(f's_mov_b32 s{sSP}, 0')
    lab(l)
    o(f'ds_read_b32 v{vtmp}, v{VZ} offset:{addr}')
    o('s_waitcnt lgkmcnt(0)')
    o(f'v_readfirstlane_b32 s{sA}, v{vtmp}')
    o(f's_add_u32 s{sSP}, s{sSP}, 1')
    o(f's_cmp_ge_u32 s{sA}, {need}')
    o(f's_cbranch_scc1 {d}')
    o('s_sleep 1')
    o(f's_cmp_lt_u32 s{sSP}, 0x40000')
    o(f's_cbranch_scc1 {l}')
    lab(d)
def lds_inc(addr, vtmp, ret=False):
    o(f'v_mov_b32 v{vtmp}, 1')
    o('s_mov_b64 exec, 1')
    if ret:
        o(f'ds_add_rtn_u32 v{vtmp}, v{VZ}, v{vtmp} offset:{addr}')
        o('s_waitcnt lgkmcnt(0)')
        o(f'v_readfirstlane_b32 s{sA}, v{vtmp}')
    else:
        o(f'ds_add_u32 v{VZ}, v{vtmp} offset:{addr}')
    o('s_mov_b64 exec, -1')
def scan64(v):
    for sh in (1,2,4,8):
        o('s_nop 1'); o(f'v_add_u32_dpp v{v}, v{v}, v{v} row_shr:{sh} row_mask:0xf bank_mask:0xf')
    o('s_nop 1'); o(f'v_add_u32_dpp v{v}, v{v}, v{v} row_bcast:15 row_mask:0xa bank_mask:0xf')
    o('s_nop 1'); o(f'v_add_u32_dpp v{v}, v{v}, v{v} row_bcast:31 row_mask:0xc bank_mask:0xf')
    o('s_nop 1')
lab(NAME)
o('s_cmp_ge_u32 s2, 256')
o('s_cbranch_scc1 L_end')
o('s_load_dwordx16 s[16:31], s[0:1], 0')
o('s_load_dwordx8 s[32:39], s[0:1], 64')
o('v_and_b32 v1, 63, v0')
o('v_lshrrev_b32 v2, 6, v0')
o(f'v_mov_b32 v{VZ}, 0')
o(f'v_readfirstlane_b32 s{sW}, v2')
o('s_getpc_b64 s[12:13]')
lab('L_pc')
if 'nopf' not in OPT:
    o(f's_cmp_lg_u32 s{sW}, 7'); o('s_cbranch_scc1 L_nopf')
    o('s_lshr_b32 s3, s2, 3'); o('s_lshl_b32 s3, s3, 10')
    o('v_lshl_add_u32 v2, v1, 4, s3')
    o('v_cmp_gt_u32 vcc, L_codeend-L_pc-16, v2')
    o('s_and_saveexec_b64 s[98:99], vcc')
    o('s_cbranch_execz L_nopf2')
    o('global_load_dwordx4 v[240:243], v2, s[12:13]')
    lab('L_nopf2')
    o('s_mov_b64 exec, -1')
    lab('L_nopf')
o('v_lshlrev_b32 v17, 3, v0'); o('v_mov_b32 v20, 0'); o('v_mov_b32 v21, 0')
o('ds_write_b64 v17, v[20:21]')
o(f's_and_b32 s{sS}, s2, 7'); o(f's_lshr_b32 s{sS}, s{sS}, 1')
o(f's_lshr_b32 s{sR}, s2, 3'); o(f's_lshl_b32 s{sR}, s{sR}, 1'); o(f's_and_b32 s{sA}, s2, 1'); o(f's_or_b32 s{sR}, s{sR}, s{sA}')
o(f's_mul_i32 s{sNB}, s{sR}, {RN}')
o(f's_sub_u32 s{sNV}, {N}, s{sNB}'); o(f's_min_u32 s{sNV}, s{sNV}, {RN}')
if PROF: o('v_mov_b32 v255, 0')
for _v in (208,209,210,211,212,213,214,216,217,218,219): o(f'v_mov_b32 v{_v}, 0')
o(f's_mul_i32 s{sROT}, s{sS}, 5'); o(f's_add_u32 s{sROT}, s{sROT}, 1'); o(f's_lshr_b32 s{sROT}, s{sROT}, 1')
o(f's_lshr_b32 s{sWROT}, s2, 3')
o(f's_mov_b32 s{sM}, 0xffffff00')
def build_common():
    srd(rOUT,sOUT,N*512)
    o(f's_mul_i32 s{sA}, s{sS}, {SLICE}')
    o(f's_add_u32 s{rTW}, s{sWS}, s{sA}'); o(f's_addc_u32 s{rTW+1}, s{sWS+1}, 0')
    o(f's_add_u32 s{sA}, s{sNB}, s{sNV}'); o(f's_lshl_b32 s{rTW+2}, s{sA}, 8'); o(f's_mov_b32 s{rTW+3}, 0x20000')
    o(f's_mov_b32 s{rTR}, s{rTW}'); o(f's_mov_b32 s{rTR+1}, s{rTW+1}'); o(f's_mov_b32 s{rTR+2}, {(N+1)*256}'); o(f's_mov_b32 s{rTR+3}, 0x20000')
    srd_off(rSEG,sWS,WS_SEGT,0x21000)
    o(f's_add_u32 s{sEP}, s{sWS}, {WS_EPOCH}'); o(f's_addc_u32 s{sEP+1}, s{sWS+1}, 0')
    o(f's_load_dword s{sNONCE}, {sr(sEP,2)}, 0')
def wc_load():
    o('v_and_b32 v17, 7, v1'); o('v_lshlrev_b32 v17, 3, v17')
    o(f's_lshl_b32 s{sA}, s{sS}, 7'); o(f'v_add_u32 v17, s{sA}, v17')
    srd(rREC,sWC,512)
    o(f'buffer_load_dwordx2 v[250:251], v17, {sr(rREC,4)}, 0 offen')
    o(f'buffer_load_dwordx2 v[252:253], v17, {sr(rREC,4)}, 0 offen offset:64')
def wvoff(dst, wexpr_s):
    o('v_lshrrev_b32 v17, 3, v1')
    o(f's_lshl_b32 s{sA}, s{wexpr_s}, 3'); o(f'v_add_u32 v17, s{sA}, v17')
    o('v_bfe_u32 v20, v1, 4, 1')
    o(f's_and_b32 s{sA}, s{wexpr_s}, 1'); o(f's_lshl_b32 s{sA}, s{sA}, 1'); o(f'v_or_b32 v20, s{sA}, v20')
    o('v_bfe_u32 v19, v1, 1, 2'); o('v_xor_b32 v19, v19, v20'); o('v_lshlrev_b32 v19, 1, v19')
    o('v_and_b32 v20, 1, v1'); o('v_or_b32 v19, v19, v20')
    o('v_lshlrev_b32 v19, 4, v19'); o('v_lshl_add_u32 v19, v17, 9, v19')
    o(f's_lshl_b32 s{sA}, s{sS}, 7'); o(f'v_add_u32 v{dst}, s{sA}, v19')
o(f's_cmp_ge_u32 s{sW}, 4')
o('s_cbranch_scc1 L_e0')
o('v_lshrrev_b32 v17, 5, v1')
o(f's_lshl_b32 s{sA}, s{sW}, 1'); o(f'v_add_u32 v17, s{sA}, v17')
o('v_and_b32 v18, 31, v1'); o('v_and_b32 v19, 15, v17'); o('v_xor_b32 v22, v18, v19')
o('v_lshlrev_b32 v22, 4, v22'); o('v_lshl_add_u32 v22, v17, 9, v22')
o('v_add_u32 v17, 8, v17'); o('v_and_b32 v19, 15, v17'); o('v_xor_b32 v23, v18, v19')
o('v_lshlrev_b32 v23, 4, v23'); o('v_lshl_add_u32 v23, v17, 9, v23')
wvoff(249,sW)
o('s_waitcnt lgkmcnt(0)')
o('s_barrier')
stamp(0)
if 'stlb' in OPT:
    def touch(base, off_s=None, off_i=0):
        if off_s is None and off_i==0:
            o(f's_load_dword s13, {sr(base,2)}, 0'); return
        if off_s is not None:
            o(f's_add_u32 s14, s{base}, s{off_s}'); o(f's_addc_u32 s15, s{base+1}, 0')
            if off_i: o(f's_add_u32 s14, s14, {off_i}'); o('s_addc_u32 s15, s15, 0')
        else:
            o(f's_add_u32 s14, s{base}, {off_i}'); o(f's_addc_u32 s15, s{base+1}, 0')
        o('s_load_dword s13, s[14:15], 0')
    o(f's_lshl_b32 s3, s{sNB}, 9')
    touch(sX,3); touch(sWB); touch(sWV); touch(sWA); touch(sWU); touch(sOUT,3)
    touch(sWS,None,WS_RECS)
    o(f's_mul_i32 s3, s{sS}, {SLICE}')
    touch(sWS,3); touch(sWS,3,0x100000); touch(sWS,3,0x200000); touch(sWS,3,SLICE-256)
wc_load()
srd(rX,sX,N*512); srd(rW1,sWB,131072); srd(rW2,sWV,131072)
o(f's_lshl_b32 s{sC_}, s{sW}, 10')
o(f's_mov_b32 s{sTL}, s{sROT}')
o(f's_mov_b32 s{sI}, 0')
lab('L_dmaw')
o(f's_add_u32 s{sA}, s{sI}, s{sWROT}'); o(f's_and_b32 s{sA}, s{sA}, 7')
o(f's_lshl_b32 s{sB}, s{sA}, 14'); o(f's_lshl_b32 s{sA}, s{sA}, 12'); o(f's_add_u32 s{sA}, s{sA}, s{sC_}')
o(f's_add_u32 m0, s{sA}, {WR}'); o('s_nop 0')
o(f'buffer_load_dwordx4 v249, {sr(rW1,4)}, s{sB} offen lds')
o(f's_add_u32 m0, s{sA}, {WR+32768}'); o('s_nop 0')
o(f'buffer_load_dwordx4 v249, {sr(rW2,4)}, s{sB} offen lds')
o('s_waitcnt vmcnt(%s)' % OPT.get('pace','8'))
o(f's_add_u32 s{sI}, s{sI}, 1'); o(f's_cmp_lt_u32 s{sI}, 8'); o('s_cbranch_scc1 L_dmaw')
o(f's_mov_b32 s{sI}, 0')
lab('L_dmax')
o(f's_lshl_b32 s{sA}, s{sTL}, 13'); o(f's_add_u32 s{sD}, s{sA}, s{sC_}'); o(f's_add_u32 m0, s{sD}, {XT}')
o(f's_lshl_b32 s{sB}, s{sNB}, 9'); o(f's_add_u32 s{sB}, s{sB}, s{sA}')
o(f'buffer_load_dwordx4 v22, {sr(rX,4)}, s{sB} offen lds')
o(f's_add_u32 m0, s{sD}, {XT+4096}'); o('s_nop 0')
o(f'buffer_load_dwordx4 v23, {sr(rX,4)}, s{sB} offen lds')
o('s_waitcnt vmcnt(%s)' % OPT.get('pace','8'))
o(f's_add_u32 s{sTL}, s{sTL}, 1'); o(f's_cmp_eq_u32 s{sTL}, 10'); o(f's_cselect_b32 s{sTL}, 0, s{sTL}')
o(f's_add_u32 s{sI}, s{sI}, 1'); o(f's_cmp_lt_u32 s{sI}, 10'); o('s_cbranch_scc1 L_dmax')
stamp(19)
build_common()
srd(rDST,sDST,E*4); srd(rSRC,sSRC,E*4); srd(rEA,sEA,E*2); srd_off(rREC,sWS,WS_RECS,256*CHCAP*8)
W1,W2,AF0,AF1,ACC,XA,XC,TRA,TOF,AUA=64,96,128,160,192,208,216,212,213,214
o('v_lshrrev_b32 v17, 4, v1')
o('v_bfe_u32 v18, v1, 2, 2')
o('v_lshl_add_u32 v19, v17, 3, v18')
o('v_lshlrev_b32 v19, 7, v19')
o('v_bfe_u32 v20, v1, 3, 1')
o('v_and_b32 v21, 1, v17'); o('v_lshl_or_b32 v20, v21, 1, v20')
o(f'v_xor_b32 v20, s{sW}, v20')
o('v_lshl_add_u32 v19, v20, 5, v19')
o('v_and_b32 v20, 3, v1'); o('v_lshl_add_u32 v19, v20, 3, v19')
o(f'v_add_u32 v{TRA}, {WR}, v19')
def wfrags():
    for m,Wr in ((0,W1),(1,W2)):
        for ks in range(8):
            o(f'ds_read_b64_tr_b16 {vr(Wr+4*ks,2)}, v{TRA} offset:{m*32768+ks*4096}')
            o(f'ds_read_b64_tr_b16 {vr(Wr+4*ks+2,2)}, v{TRA} offset:{m*32768+ks*4096+512}')
o('v_and_b32 v18, 15, v1')
for k in range(4):
    o(f'v_and_b32 v19, 12, v18'); o(f'v_xor_b32 v19, {4*k}, v19')
    o('v_and_b32 v20, 3, v18'); o('v_xor_b32 v20, v20, v17')
    o('v_add_u32 v19, v19, v20'); o('v_lshlrev_b32 v19, 4, v19')
    o(f'v_lshl_add_u32 v{XA+k}, v18, 9, v19')
    o(f'v_add_u32 v{XA+k}, {XT}, v{XA+k}')
o('v_lshlrev_b32 v19, 10, v17')
o(f's_lshl_b32 s{sA}, s{sW}, 6')
o('v_lshl_add_u32 v19, v18, 2, v19'); o(f'v_add_u32 v{TOF}, s{sA}, v19')
o('s_waitcnt vmcnt(8) lgkmcnt(0)')
o(f's_mul_i32 s{sNONCE}, s{sNONCE}, 0x9E3779B1'); o(f's_add_u32 s{sNONCE}, s{sNONCE}, 0x7F4A7C15')
lds_inc(C_X,220)
stamp(2)
lds_spin(C_X,4,220)
stamp(3)
wfrags()
o('s_waitcnt lgkmcnt(0)')
lds_inc(C_G1,220)
stamp(4)
o('s_branch L_g_gemm')
lab('L_e0')
if 'noprio' not in OPT: o('s_setprio 2')
o('v_subrev_u32 v14, 256, v0')
o(f's_mul_i32 s{sA}, s2, {CH}')
o(f'v_add_u32 v15, s{sA}, v14')
o('v_lshlrev_b32 v16, 1, v15'); o('v_lshlrev_b32 v15, 2, v15')
o(f'v_cmp_gt_u32 vcc, {CH-512}, v14')
o('v_add_u32 v18, 2048, v15'); o('v_add_u32 v19, 1024, v16')
o('v_mov_b32 v17, 0x40000000')
o('v_cndmask_b32 v18, v17, v18, vcc'); o('v_cndmask_b32 v19, v17, v19, vcc')
o('s_waitcnt lgkmcnt(0)')
ED,ES,EE=2,5,8
srd(rDST,sDST,E*4)
o(f'buffer_load_dword v{ED}, v15, {sr(rDST,4)}, 0 offen')
o(f'buffer_load_dword v{ED+1}, v15, {sr(rDST,4)}, 0 offen offset:1024')
o(f'buffer_load_dword v{ED+2}, v18, {sr(rDST,4)}, 0 offen')
srd(rSRC,sSRC,E*4)
o(f'buffer_load_dword v{ES}, v15, {sr(rSRC,4)}, 0 offen')
o(f'buffer_load_dword v{ES+1}, v15, {sr(rSRC,4)}, 0 offen offset:1024')
o(f'buffer_load_dword v{ES+2}, v18, {sr(rSRC,4)}, 0 offen')
srd(rEA,sEA,E*2)
o(f'buffer_load_ushort v{EE}, v16, {sr(rEA,4)}, 0 offen')
o(f'buffer_load_ushort v{EE+1}, v16, {sr(rEA,4)}, 0 offen offset:512')
o(f'buffer_load_ushort v{EE+2}, v19, {sr(rEA,4)}, 0 offen')
o('s_barrier')
stamp(0)
wc_load()
srd(rW1,sWA,131072); srd(rW2,sWU,131072)
o('s_lshr_b32 s3, s2, 3'); o('s_lshl_b32 s3, s3, 12')
o('v_lshrrev_b32 v17, 3, v1'); o('v_lshlrev_b32 v17, 9, v17'); o('v_and_b32 v19, 7, v1'); o('v_lshl_add_u32 v17, v19, 4, v17')
o(f's_lshl_b32 s{sA}, s{sS}, 7'); o(f'v_add_u32 v17, s{sA}, v17')
l=U('wu')
if 'nowu' not in OPT:
    o(f's_cmp_lg_u32 s{sW}, 4'); o(f's_cbranch_scc1 {l}_a')
    o(f'buffer_load_dwordx4 v[240:243], v17, {sr(rW1,4)}, s3 offen')
    lab(l+'_a')
    o(f's_cmp_lg_u32 s{sW}, 5'); o(f's_cbranch_scc1 {l}_b')
    o(f'buffer_load_dwordx4 v[240:243], v17, {sr(rW2,4)}, s3 offen')
    lab(l+'_b')
build_common()
srd(rX,sX,N*512); srd_off(rREC,sWS,WS_RECS,256*CHCAP*8)
if 'notlb' not in OPT:
    o(f's_cmp_lg_u32 s{sW}, 6'); o(f's_cbranch_scc1 {l}_c')
    o('v_lshlrev_b32 v17, 20, v1'); o('v_cmpx_gt_u32 vcc, 3, v1')
    o(f'buffer_load_dword v244, v17, {sr(rTR,4)}, 0 offen')
    o('s_mov_b64 exec, -1')
    lab(l+'_c')
    o(f's_cmp_lg_u32 s{sW}, 7'); o(f's_cbranch_scc1 {l}_d')
    o(f's_lshl_b32 s{sA}, s{sNB}, 9')
    o(f'buffer_load_dword v244, v{VZ}, {sr(rOUT,4)}, s{sA} offen')
    o(f'buffer_load_dword v245, v{VZ}, {sr(rREC,4)}, 0 offen')
    lab(l+'_d')
wvoff(249,sW)
o('v_subrev_u32 v247, 16384, v249')
o('s_waitcnt vmcnt(%d)' % (2 if ('nowu' in OPT or 'notlb' in OPT) else 3))
stamp(22)
o(f's_mov_b32 s{sA}, 106862')
RR,RK_,RW=36,24,28
for k in range(3):
    o(f'v_mul_lo_u32 v{RR+k}, v{ED+k}, s{sA}')
for k in range(3):
    o(f'v_lshrrev_b32 v{RR+k}, 24, v{RR+k}')
    o(f'v_mul_u32_u24 v17, {RN}, v{RR+k}'); o(f'v_sub_u32 v17, v{ED+k}, v17')
    o(f'v_lshl_or_b32 v{RW+2*k}, v{ES+k}, 8, v17'); o(f'v_lshlrev_b32 v{RW+2*k+1}, 16, v{EE+k}')
    o(f'v_lshlrev_b32 v{RR+k}, 2, v{RR+k}')
o('v_mov_b32 v16, 1')
o(f'ds_add_rtn_u32 v{RK_}, v{RR}, v16 offset:{HIST1}')
o(f'ds_add_rtn_u32 v{RK_+1}, v{RR+1}, v16 offset:{HIST1}')
o(f'v_cmpx_gt_u32 vcc, {CH-512}, v14')
o(f'ds_add_rtn_u32 v{RK_+2}, v{RR+2}, v16 offset:{HIST1}')
o('s_mov_b64 exec, -1')
o('s_waitcnt lgkmcnt(0)')
o(f's_mul_i32 s{sNONCE}, s{sNONCE}, 0x9E3779B1'); o(f's_add_u32 s{sNONCE}, s{sNONCE}, 0x7F4A7C15')
lds_inc(C_H,17)
lds_spin(C_H,4,17)
o('v_lshlrev_b32 v17, 2, v1')
o(f'ds_read_b32 v20, v17 offset:{HIST1}')
o('s_waitcnt lgkmcnt(0)')
o('v_add_u32 v21, 1, v20'); o('v_and_b32 v21, -2, v21'); o('v_mov_b32 v22, v21')
scan64(21)
o('v_sub_u32 v22, v21, v22')
for k in range(3): o(f'ds_bpermute_b32 v{RR+k}, v{RR+k}, v22')
o('s_waitcnt lgkmcnt(0)')
for k in range(3): o(f'v_add_lshl_u32 v{RR+k}, v{RR+k}, v{RK_+k}, 3')
for k in range(3): o(f'v_add_u32 v{RR+k}, {RST}, v{RR+k}')
o(f'ds_write_b64 v{RR}, {vr(RW,2)}')
o(f'ds_write_b64 v{RR+1}, {vr(RW+2,2)}')
o(f'v_cmpx_gt_u32 vcc, {CH-512}, v14')
o(f'ds_write_b64 v{RR+2}, {vr(RW+4,2)}')
o('s_mov_b64 exec, -1')
o('s_waitcnt lgkmcnt(0)')
lds_inc(C_S,17)
lds_spin(C_S,4,17)
o('v_lshlrev_b32 v17, 4, v14'); o(f'v_add_u32 v18, {RST}, v17')
o('ds_read_b128 v[28:31], v18'); o('ds_read_b128 v[32:35], v18 offset:4096')
o(f's_mul_i32 s{sA}, s2, {CHCAP*8}'); o(f's_add_u32 s{sB}, s{sA}, 4096')
o('s_waitcnt lgkmcnt(0)')
o(f'buffer_store_dwordx4 v[28:31], v17, {sr(rREC,4)}, s{sA} offen sc1')
o(f'v_cmpx_gt_u32 vcc, {(CHCAP*8-4096)//16}, v14')
o(f'buffer_store_dwordx4 v[32:35], v17, {sr(rREC,4)}, s{sB} offen sc1')
o('s_mov_b64 exec, -1')
stamp(2)
o('s_waitcnt vmcnt(0)')
lds_inc(C_R,17,ret=True)
l=U('nopub')
o(f's_cmp_lg_u32 s{sA}, 3'); o(f's_cbranch_scc1 {l}')
o('v_lshl_or_b32 v24, v20, 16, v22'); o(f'v_mov_b32 v25, s{sNONCE}')
o('v_lshlrev_b32 v17, 11, v1')
o(f's_lshl_b32 s{sA}, s2, 3')
o(f'buffer_store_dwordx2 v[24:25], v17, {sr(rSEG,4)}, s{sA} offen sc1')
lab(l)
stamp(3)
lds_spin(C_G1,4,17)
stamp(4)
o('s_branch L_eteam_b')
lab('L_g_gemm')
sTE=11
sTC=12
def next_tile(s):
    o(f's_add_u32 s{s}, s{s}, 1'); o(f's_cmp_eq_u32 s{s}, 10'); o(f's_cselect_b32 s{s}, 0, s{s}')
def xc_update():
    o(f's_lshl_b32 s{sA}, s{sTL}, 13')
    return [f'v_add_u32 v{XC+k}, s{sA}, v{XA+k}' for k in range(4)]
def xread(buf,ks): return f'ds_read_b128 {vr(buf+4*ks,4)}, v{XC+(ks&3)} offset:{256 if ks>=4 else 0}'
def epi_list(which,a):
    e=[]
    for i in range(4): e.append(f'v_mul_f32 v{a+i}, {NLOG2E:#x}, v{a+i}')
    for i in range(4): e.append(f'v_cvt_pk_bf16_f32 v{a+i}, v{a+i}, v{a+4+i}')
    if which==1:
        for i in range(4): e.append(f'buffer_store_dword v{a+i}, v{TOF}, {sr(rTW,4)}, s{sB} offen offset:{i*256} sc1')
    else:
        for i in range(4): e.append(f'ds_write_b32 v{AUA}, v{a+i} offset:{i*256}')
    return e
def epi_addr(which):
    if which==1:
        o(f's_lshl_b32 s{sB}, s{sTE}, 4'); o(f's_add_u32 s{sB}, s{sB}, s{sNB}'); o(f's_lshl_b32 s{sB}, s{sB}, 8')
    else:
        o(f's_lshl_b32 s{sB}, s{sTE}, 12'); o(f's_add_u32 s{sB}, s{sB}, {AU}'); o(f'v_add_u32 v{AUA}, s{sB}, v{TOF}')
def gemm(which):
    lp=U('gemm')
    o(f's_mov_b32 s{sTL}, s{sROT}')
    for t in xc_update(): o(t)
    for ks in range(8): o(xread(AF0,ks))
    next_tile(sTL)
    o('s_nop 0')
    for t in xc_update(): o(t)
    if which==1: o(f's_mov_b32 s{sTE}, 0x40000')
    else:
        o(f's_add_u32 s{sTE}, s{sROT}, 9'); o(f's_cmp_ge_u32 s{sTE}, 10'); o(f's_cselect_b32 s{sA}, 10, 0'); o(f's_sub_u32 s{sTE}, s{sTE}, s{sA}')
    o(f's_mov_b32 s{sTC}, s{sROT}')
    o(f's_mov_b32 s{sI}, 0')
    if which==2: o('s_waitcnt lgkmcnt(0)')
    lab(lp)
    for h in range(2):
        buf=AF0 if h==0 else AF1; nbuf=AF1 if h==0 else AF0
        a=ACC+8*h; ap=ACC+8*(h^1)
        e=epi_list(which,ap)
        if which==1: ea=[f's_lshl_b32 s{sB}, s{sTE}, 4', f's_add_u32 s{sB}, s{sB}, s{sNB}', f's_lshl_b32 s{sB}, s{sB}, 8']
        else: ea=[f's_lshl_b32 s{sB}, s{sTE}, 12', f's_add_u32 s{sB}, s{sB}, {AU}', f'v_add_u32 v{AUA}, s{sB}, v{TOF}']
        nt=[f's_mov_b32 s{sTE}, s{sTC}', f's_mov_b32 s{sTC}, s{sTL}', f's_add_u32 s{sTL}, s{sTL}, 1', f's_cmp_eq_u32 s{sTL}, 10', f's_cselect_b32 s{sTL}, 0, s{sTL}', f's_lshl_b32 s{sA}, s{sTL}, 13']
        xu=[f'v_add_u32 v{XC+k}, s{sA}, v{XA+k}' for k in range(4)]
        fill=[[xread(nbuf,0),ea[0]],[xread(nbuf,1),ea[1]],[xread(nbuf,2),ea[2]],[xread(nbuf,3)],[xread(nbuf,4)],[xread(nbuf,5)],[xread(nbuf,6)],[xread(nbuf,7)],
              [e[0],e[1],nt[0],nt[1]],[e[2],e[3],nt[2],nt[3]],[e[4],e[5],nt[4],nt[5]],[e[6],e[7]],[e[8],xu[0]],[e[9],xu[1]],[e[10],xu[2]],[e[11],xu[3]]]
        o('s_waitcnt lgkmcnt(0)' if which==1 else 's_waitcnt lgkmcnt(4)')
        m=0
        for ks in range(8):
            c1='0' if ks==0 else vr(a,4); c2='0' if ks==0 else vr(a+4,4)
            o(f'v_mfma_f32_16x16x32_bf16 {vr(a,4)}, {vr(buf+4*ks,4)}, {vr(W1+4*ks,4)}, {c1}')
            for t in fill[m]: o(t)
            m+=1
            o(f'v_mfma_f32_16x16x32_bf16 {vr(a+4,4)}, {vr(buf+4*ks,4)}, {vr(W2+4*ks,4)}, {c2}')
            for t in fill[m]: o(t)
            m+=1
    o(f's_add_u32 s{sI}, s{sI}, 1')
    if PROF:
        o(f's_memrealtime s[100:101]'); o('s_waitcnt lgkmcnt(0)')
        o(f's_add_u32 m0, s{sI}, {12 if which==1 else 22}'); o('s_nop 3'); o('v_writelane_b32 v255, s100, m0')
    if which==1:
        l=U('x2a')
        o(f's_cmp_lg_u32 s{sI}, 1'); o(f's_cbranch_scc1 {l}')
        o('s_waitcnt vmcnt(8)')
        lds_inc(C_X2,220)
        lab(l)
        l=U('x2b')
        o(f's_cmp_lg_u32 s{sI}, 2'); o(f's_cbranch_scc1 {l}')
        lds_spin(C_X2,4,220)
        lab(l)
    if which==2:
        l=U('nf2')
        o(f's_cmp_lg_u32 s{sI}, 3'); o(f's_cbranch_scc1 {l}')
        o('s_waitcnt vmcnt(0)')
        lds_inc(C_T,220,ret=True)
        o(f's_cmp_lg_u32 s{sA}, 3'); o(f's_cbranch_scc1 {l}')
        o('s_mov_b64 exec, 1')
        for i in range(4): o(f'v_mov_b32 v{220+i}, s{sNONCE}')
        o(f's_lshl_b32 s{sA}, s{sS}, 6'); o(f's_add_u32 s{sA}, s{sA}, s{sR}'); o(f's_lshl_b32 s{sA}, s{sA}, 4')
        o(f's_add_u32 s{sA}, s{sA}, {SEGT_FLAG2}')
        o(f'buffer_store_dwordx4 v[220:223], v{VZ}, {sr(rSEG,4)}, s{sA} offen sc1')
        o('s_mov_b64 exec, -1')
        lab(l)
    o(f's_cmp_lt_u32 s{sI}, 5'); o(f's_cbranch_scc1 {lp}')
    epi_addr(which)
    o('s_nop 7')
    for t in epi_list(which,ACC+8): o(t)
l=U('nodummy')
o(f's_cmp_lg_u32 s{sR}, 63'); o(f's_cbranch_scc1 {l}')
o(f's_cmp_lg_u32 s{sW}, 0'); o(f's_cbranch_scc1 {l}')
o('v_mov_b32 v220, 0x7f7f'); o('v_lshlrev_b32 v221, 2, v1'); o(f'v_add_u32 v221, {N*256}, v221')
o(f'buffer_store_dword v220, v221, {sr(rTR,4)}, 0 offen sc1')
lab(l)
gemm(1)
stamp(5)
lds_spin(C_W,4,220)
wfrags()
o('s_waitcnt lgkmcnt(0)')
lds_inc(C_G,220)
lds_spin(C_G,4,220)
stamp(6)
gemm(2)
o('s_waitcnt lgkmcnt(0)')
stamp(7)
o('s_branch L_main_setup')
lab('L_eteam_b')
for half in range(2):
    o(f's_lshl_b32 s{sC_}, s{sW}, 10')
    if half==0: o(f's_sub_u32 s{sC_}, s{sC_}, 4096')
    vv = 247 if half==0 else 249
    for jj in range(4):
        o(f's_add_u32 m0, s{sC_}, {WR+jj*8192}'); o(f's_mov_b32 s{sB}, {jj*32768}')
        o(f'buffer_load_dwordx4 v{vv}, {sr(rW1,4)}, s{sB} offen lds')
        o(f's_add_u32 m0, s{sC_}, {WR+32768+jj*8192}'); o('s_nop 0')
        o(f'buffer_load_dwordx4 v{vv}, {sr(rW2,4)}, s{sB} offen lds')
        o('s_waitcnt vmcnt(%s)' % OPT.get('pace2','4'))
SG,RC0,RC1,SA,RKB=64,80,112,144,200
T=176
o(f's_sub_u32 s{sC_}, s{sW}, 4')
o('v_lshrrev_b32 v17, 3, v1')
o(f's_lshl_b32 s{sA}, s{sC_}, 3'); o(f'v_add_u32 v17, s{sA}, v17')
o(f'v_lshlrev_b32 v{T}, 3, v17')
o('v_and_b32 v18, 7, v1')
o(f'v_mul_u32_u24 v{T+1}, {CHCAP*8}, v17'); o(f'v_lshl_add_u32 v{T+1}, v18, 4, v{T+1}')
IX=T+2
o(f'v_lshlrev_b32 v{IX}, 1, v18'); o(f'v_add_u32 v{IX+1}, 1, v{IX}'); o(f'v_add_u32 v{IX+2}, 16, v{IX}'); o(f'v_add_u32 v{IX+3}, 17, v{IX}')
o(f's_lshl_b32 s{sD}, s{sR}, 11')
o(f's_mov_b32 s{sSP}, 0')
lp=U('poll1'); dn=U('poll1d')
lab(lp)
for p in range(8):
    o(f'buffer_load_dwordx2 {vr(SG+2*p,2)}, v{T}, {sr(rSEG,4)}, s{sD} offen offset:{p*256} sc1')
o(f'v_mov_b32 v19, s{sNONCE}')
o('s_waitcnt vmcnt(0)')
o(f'v_xor_b32 v20, v{SG+1}, v19')
for p in range(1,8):
    o(f'v_xor_b32 v21, v{SG+2*p+1}, v19'); o('v_or_b32 v20, v20, v21')
o('v_cmp_ne_u32 vcc, 0, v20')
o(f's_cbranch_vccz {dn}')
o('s_sleep 6')
o(f's_add_u32 s{sSP}, s{sSP}, 1'); o(f's_cmp_lt_u32 s{sSP}, 0x10000'); o(f's_cbranch_scc1 {lp}')
lab(dn)
stamp(5)
for p in range(8):
    o(f'v_and_b32 v19, 0xffff, v{SG+2*p}')
    o(f'v_lshl_add_u32 v19, v19, 3, v{T+1}')
    o(f's_mov_b32 s{sA}, {p*32*CHCAP*8}')
    o(f'v_cmp_lt_u32 vcc, 0x10ffff, v{SG+2*p}')
    o(f'buffer_load_dwordx4 {vr(RC0+4*p,4)}, v19, {sr(rREC,4)}, s{sA} offen sc1')
    l=U('ld1'); o(f's_cbranch_vccz {l}')
    o(f'buffer_load_dwordx4 {vr(RC1+4*p,4)}, v19, {sr(rREC,4)}, s{sA} offen offset:128 sc1')
    lab(l)
lds_inc(C_W,20)
o('v_mov_b32 v20, 0')
for p in range(8):
    o(f'v_lshrrev_b32 v{SG+2*p+1}, 16, v{SG+2*p}')
    o(f'v_max_u32 v20, v20, v{SG+2*p+1}')
o('v_cmp_lt_u32 vcc, 32, v20')
l=U('nofb'); o(f's_cbranch_vccz {l}')
o('v_mov_b32 v21, 1'); o(f'ds_write_b32 v{VZ}, v21 offset:{C_FB}')
lab(l)
o('s_waitcnt vmcnt(0)')
stamp(6)
def each_rec(fn):
    for p in range(8):
        for st in range(2):
            if st==1:
                l=U('st1'); o(f'v_cmp_lt_u32 vcc, 16, v{SG+2*p+1}'); o(f's_cbranch_vccz {l}')
            for i in range(2):
                rec=(RC0 if st==0 else RC1)+4*p+2*i
                o(f'v_cmpx_lt_u32 vcc, v{IX+2*st+i}, v{SG+2*p+1}')
                fn(rec, SA+4*p+2*st+i)
            o('s_mov_b64 exec, -1')
            if st==1: lab(l)
SD='dst_sel:DWORD dst_unused:UNUSED_PAD src0_sel:DWORD src1_sel:BYTE_0'
o('v_mov_b32 v22, 1'); o('v_mov_b32 v23, 64')
def f_hist(rec,sa):
    o(f'v_lshlrev_b32_sdwa v20, 2, v{rec} {SD}'); o(f'ds_add_rtn_u32 v{sa-SA+RKB}, v20, v22 offset:{DEG}')
each_rec(f_hist)
o('s_waitcnt lgkmcnt(0)')
lds_inc(C_E1,20)
stamp(7)
o(f's_cmp_lg_u32 s{sW}, 4')
o('s_cbranch_scc1 L_e_prefill')
lds_spin(C_E1,4,20)
D0,K0,P0=24,28,32
o('v_lshlrev_b32 v19, 2, v1')
for a in range(3): o(f'ds_read_b32 v{D0+a}, v19 offset:{DEG+a*256}')
perm=[]
for w in range(8): perm += [w,15-w] + ([19-w] if w<4 else [])
o('v_mov_b32 v38, 31')
for i,g in enumerate(perm): o(f'v_writelane_b32 v38, {g}, {i}')
o('v_lshlrev_b32 v38, 2, v38')
o('v_sub_u32 v37, 252, v19')
o('s_waitcnt lgkmcnt(0)')
for a in range(3):
    o(f'v_min_u32 v{K0+a}, 63, v{D0+a}'); o(f'v_lshlrev_b32 v{K0+a}, 2, v{K0+a}')
    if a==2: o('v_cmpx_gt_u32 vcc, 32, v1')
    o(f'ds_add_rtn_u32 v{P0+a}, v{K0+a}, v22 offset:{HIST2}')
o('s_mov_b64 exec, -1')
o('s_waitcnt lgkmcnt(0)')
o(f'ds_read_b32 v36, v37 offset:{HIST2}')
for a in range(3): o(f'v_sub_u32 v{K0+a}, 252, v{K0+a}')
o('s_waitcnt lgkmcnt(0)')
o('v_mov_b32 v35, v36') if False else None
o('v_mov_b32 v39, v36')
scan64(36)
o('v_sub_u32 v36, v36, v39')
for a in range(3): o(f'ds_bpermute_b32 v{K0+a}, v{K0+a}, v36')
o('s_waitcnt lgkmcnt(0)')
for a in range(3):
    o(f'v_add_u32 v{P0+a}, v{P0+a}, v{K0+a}')
    o(f'v_add_u32 v21, {64*a}, v1')
    o(f'v_cmp_gt_u32 vcc, s{sNV}, v21')
    o(f'v_lshlrev_b32 v20, 2, v{P0+a}')
    o(f'v_lshrrev_b32 v{K0+a}, 3, v{P0+a}'); o(f'v_lshlrev_b32 v{K0+a}, 2, v{K0+a}')
    o('v_mov_b32 v40, 0xffff')
    o('v_cndmask_b32 v21, v40, v21, vcc')
    if a==2: o('v_cmpx_gt_u32 vcc, 32, v1')
    o(f'ds_write_b32 v20, v21 offset:{NODEOF}')
    o(f'ds_max_u32 v{K0+a}, v{D0+a} offset:{LG}')
o('s_mov_b64 exec, -1')
o('s_waitcnt lgkmcnt(0)')
o(f'ds_read_b32 v39, v38 offset:{LG}')
o('s_waitcnt lgkmcnt(0)')
o('v_add_u32 v39, 1, v39'); o('v_lshrrev_b32 v39, 1, v39')
o(f'ds_write_b32 v38, v39 offset:{LG}')
o('v_mov_b32 v40, v39')
scan64(39)
o('v_sub_u32 v40, v39, v40')
o('v_lshlrev_b32 v40, 7, v40'); o(f'v_add_u32 v40, {ELL}, v40')
o(f'ds_write_b32 v38, v40 offset:{GBASE}')
o(f'v_readlane_b32 s{sA}, v39, 19')
o('s_waitcnt lgkmcnt(0)')
for a in range(3): o(f'ds_read_b32 v{K0+a}, v{K0+a} offset:{GBASE}')
o(f's_cmp_le_u32 s{sA}, {ELLB-4}')
l=U('fits'); o(f's_cbranch_scc1 {l}')
o('v_mov_b32 v21, 1'); o(f'ds_write_b32 v{VZ}, v21 offset:{C_FB}')
lab(l)
o('s_waitcnt lgkmcnt(0)')
for a in range(3):
    o(f'v_and_b32 v21, 7, v{P0+a}'); o(f'v_lshl_add_u32 v21, v21, 3, v{K0+a}')
    o(f'ds_write_b32 v19, v21 offset:{CUR+a*256}')
o('s_waitcnt lgkmcnt(0)')
lds_inc(C_SORT,20)
o('s_branch L_e_wait')
lab('L_e_prefill')
lds_spin(C_G,4,20)
o(f's_sub_u32 s{sA}, s{sW}, 5'); o(f's_lshl_b32 s{sA}, s{sA}, 10'); o(f's_add_u32 s{sA}, s{sA}, {ELL}')
o(f'v_lshlrev_b32 v20, 4, v1'); o(f'v_add_u32 v20, s{sA}, v20')
o(f'v_mov_b32 v24, {N*256}'); o('v_mov_b32 v25, 0'); o(f'v_mov_b32 v26, {N*256}'); o('v_mov_b32 v27, 0')
for i in range(12): o(f'ds_write_b128 v20, v[24:27] offset:{i*3072}')
o('s_waitcnt lgkmcnt(0)')
lds_inc(C_P,20)
lab('L_e_wait')
lds_spin(C_SORT,1,20)
lds_spin(C_P,3,20)
stamp(8)
o(f'ds_read_b32 v20, v{VZ} offset:{C_FB}'); o('s_waitcnt lgkmcnt(0)')
o(f'v_readfirstlane_b32 s{sA}, v20'); o(f's_cmp_lg_u32 s{sA}, 0'); o('s_cbranch_scc1 L_e_done')
def f_slot(rec,sa):
    o(f'v_lshlrev_b32_sdwa v20, 2, v{rec} {SD}'); o(f'ds_read_b32 v{sa}, v20 offset:{CUR}')
each_rec(f_slot)
o('s_waitcnt lgkmcnt(0)')
def f_put(rec,sa):
    o(f'v_lshl_add_u32 v{sa}, v{sa-SA+RKB}, 6, v{sa}'); o(f'ds_write_b64 v{sa}, {vr(rec,2)}')
each_rec(f_put)
lab('L_e_done')
o('s_waitcnt lgkmcnt(0)')
stamp(9)
o(f's_cmp_lg_u32 s{sW}, 4')
o('s_cbranch_scc1 L_main_setup')
o('v_lshlrev_b32 v20, 4, v1')
o(f's_lshl_b32 s{sD}, s{sS}, 10'); o(f's_add_u32 s{sD}, s{sD}, {SEGT_FLAG2}')
o(f's_mov_b32 s{sSP}, 0')
lp=U('poll2'); dn=U('poll2d')
lab(lp)
o(f'buffer_load_dword v21, v20, {sr(rSEG,4)}, s{sD} offen sc1')
o('s_waitcnt vmcnt(0)')
o(f'v_cmp_ne_u32 vcc, s{sNONCE}, v21')
o(f's_cbranch_vccz {dn}')
o('s_sleep 2')
o(f's_add_u32 s{sSP}, s{sSP}, 1'); o(f's_cmp_lt_u32 s{sSP}, 0x10000'); o(f's_cbranch_scc1 {lp}')
lab(dn)
l=U('noep')
o('s_cmp_lg_u32 s2, 0'); o(f's_cbranch_scc1 {l}')
o('s_mov_b64 exec, 1')
o(f'v_mov_b32 v21, s{sNONCE}')
o(f'global_store_dword v{VZ}, v21, {sr(sEP,2)} sc1')
o('s_mov_b64 exec, -1')
lab(l)
LOFF,RP=2,3
S1A,S1B,S2A,S2B,ONE=4,8,12,16,20
WC=24; NUM=32; DEN=40; C=48; DX,DY=72,104; R0,R1=136,152
OFA,OFB,EA_,EB_,AD=168,170,172,174,176
NL=178; AUR=180; XR=188; TM=192
lab('L_main_setup')
o('s_setprio 0')
stamp(10)
o(f'v_and_b32 v{LOFF}, 7, v1'); o(f'v_lshlrev_b32 v{LOFF}, 4, v{LOFF}')
o('v_bfe_u32 v196, v1, 3, 2'); o('v_bfe_u32 v197, v1, 2, 1'); o('v_lshrrev_b32 v198, 5, v1'); o('v_and_b32 v199, 3, v1')
o('v_cmp_eq_u32 vcc, v197, v198'); o('v_mov_b32 v195, 7'); o('v_and_b32 v193, 1, v196')
o('v_cndmask_b32 v199, v195, v199, vcc')
LO,HI=0x00003f80,0x3f800000
o('v_cmp_gt_u32 vcc, 2, v196'); o(f'v_mov_b32 v194, {LO:#x}'); o(f'v_mov_b32 v195, {HI:#x}')
o('v_cndmask_b32 v192, v194, v195, vcc')
o('v_cndmask_b32 v191, v195, v194, vcc')
o('v_lshl_add_u32 v199, v193, 3, v199')
for i in range(4):
    o(f'v_cmp_eq_u32 vcc, {i}, v199'); o(f'v_cmp_eq_u32 s[98:99], {8+i}, v199'); o('s_nop 0')
    o(f'v_cndmask_b32 v{S1A+i}, 0, v192, vcc'); o(f'v_cndmask_b32 v{S2A+i}, 0, v191, vcc')
    o(f'v_cndmask_b32 v{S1B+i}, 0, v192, s[98:99]'); o(f'v_cndmask_b32 v{S2B+i}, 0, v191, s[98:99]')
o('v_cmp_gt_u32 vcc, 32, v1')
for i in range(1,4): o(f'v_mov_b32 v{ONE+i}, 0')
o(f'v_cndmask_b32 v{ONE}, 0, v194, vcc')
for i in range(4):
    o(f'v_lshlrev_b32 v{WC+2*i}, 16, v{250+i}'); o(f'v_and_b32 v{WC+2*i+1}, 0xffff0000, v{250+i}')
for i in range(8): o(f'v_mul_f32 v{WC+i}, {NLOG2E:#x}, v{WC+i}')
for i in range(8):
    o(f'v_mov_b32 v{C+i}, 0'); o(f'v_mov_b32 v{C+16+i}, 0')
o('s_waitcnt vmcnt(0) lgkmcnt(0)')
o('s_barrier')
stamp(11)
o(f'ds_read_b32 v194, v{VZ} offset:{C_FB}')
o(f's_lshl_b32 s{sA}, s{sW}, 2'); o(f'v_mov_b32 v195, s{sA}'); o(f'ds_read_b32 v{RP}, v195 offset:{GBASE}')
o('s_waitcnt lgkmcnt(0)')
o(f'v_readfirstlane_b32 s{sA}, v194'); o(f's_cmp_lg_u32 s{sA}, 0'); o('s_cbranch_scc1 L_fallback')
o('v_lshrrev_b32 v195, 3, v1'); o(f'v_lshl_add_u32 v{RP}, v195, 3, v{RP}')
def mfma(d,a,b,c): o(f'v_mfma_f32_32x32x16_bf16 {vr(d,16)}, {vr(a,4)}, {vr(b,4)}, {c}')
def unpack_list(D,R):
    f=lambda d,a,b,c: f'v_mfma_f32_32x32x16_bf16 {vr(d,16)}, {vr(a,4)}, {vr(b,4)}, {c}'
    return [f(D,S1A,R,vr(C,16)), f(D,S1B,R+4,vr(D,16)), f(D+16,S2A,R+8,vr(C+8,16)), f(D+16,S2B,R+12,vr(D+16,16))]
def gfma(D,Er):
    for sl in range(2):
        for j in range(4):
            g=D+8+8*sl+2*j
            sel='op_sel:[0,0,0] op_sel_hi:[0,1,1]' if sl==0 else 'op_sel:[1,0,0] op_sel_hi:[1,1,1]'
            o(f'v_pk_fma_f32 {vr(g,2)}, {vr(Er,2)}, {vr(WC+2*j,2)}, {vr(g,2)} {sel}')
def loads(R,OF):
    o(f'v_and_or_b32 v{AD}, v{OF}, s{sM}, v{LOFF}'); o(f'v_and_or_b32 v{AD+1}, v{OF+1}, s{sM}, v{LOFF}')
    o(f'buffer_load_dwordx4 {vr(R,4)}, v{AD}, {sr(rTR,4)}, 0 offen sc1')
    o(f'buffer_load_dwordx4 {vr(R+4,4)}, v{AD}, {sr(rTR,4)}, 0 offen offset:128 sc1')
    o(f'buffer_load_dwordx4 {vr(R+8,4)}, v{AD+1}, {sr(rTR,4)}, 0 offen sc1')
    o(f'buffer_load_dwordx4 {vr(R+12,4)}, v{AD+1}, {sr(rTR,4)}, 0 offen offset:128 sc1')
def rd_off(dst,b): o(f'ds_read2_b32 {vr(dst,2)}, v{RP} offset0:{b*32} offset1:{b*32+16}')
def rd_e(dst,b): o(f'ds_read2_b32 {vr(dst,2)}, v{RP} offset0:{b*32+1} offset1:{b*32+17}')
def dsreads(P):
    OFn=OFB if P==0 else OFA; En=EB_ if P==0 else EA_
    rd_off(OFn,P+3); rd_e(En,P+1)
    if P==1: o(f'v_add_u32 v{RP}, 256, v{RP}')
def accum(D):
    for sl in range(2):
        for j in range(4):
            g=D+8+8*sl+2*j
            o(f'v_pk_add_f32 {vr(DEN+2*j,2)}, {vr(DEN+2*j,2)}, {vr(g,2)}')
            v=(D+2*j) if sl==0 else (D+24+2*j)
            o(f'v_pk_fma_f32 {vr(NUM+2*j,2)}, {vr(g,2)}, {vr(v,2)}, {vr(NUM+2*j,2)}')
Ds=[DX,DY]; Rs=[R0,R1]; OFs=[OFA,OFB]; Es=[EA_,EB_]
rd_off(OFA,0); rd_off(OFB,1)
o('s_waitcnt lgkmcnt(0)')
loads(R0,OFA); loads(R1,OFB)
rd_off(OFA,2); rd_e(EA_,0)
sRD,sPAR,sG,sNBT=96,97,46,47
o(f's_mov_b32 s{sRD}, 0'); o(f's_mov_b32 s{sPAR}, 0')
lab('L_group')
o(f's_cmp_eq_u32 s{sRD}, 0'); o(f's_cselect_b32 s{sG}, s{sW}, 0')
o(f's_sub_u32 s92, 15, s{sW}'); o(f's_cmp_eq_u32 s{sRD}, 1'); o(f's_cselect_b32 s{sG}, s92, s{sG}')
o(f's_sub_u32 s92, 19, s{sW}'); o(f's_cmp_eq_u32 s{sRD}, 2'); o(f's_cselect_b32 s{sG}, s92, s{sG}')
o(f's_cmp_ge_u32 s{sRD}, 3'); o('s_cbranch_scc1 L_done')
o(f's_cmp_eq_u32 s{sRD}, 2'); o('s_cselect_b32 s92, 1, 0'); o(f's_cmp_ge_u32 s{sW}, 4'); o('s_cselect_b32 s93, 1, 0')
o('s_and_b32 s92, s92, s93'); o('s_cbranch_scc1 L_done')
o(f's_add_u32 s{sRD}, s{sRD}, 1')
o(f's_lshl_b32 s92, s{sG}, 2'); o(f'v_mov_b32 v{TM}, s92'); o(f'ds_read_b32 v{TM+1}, v{TM} offset:{LG}')
o(f's_lshl_b32 s92, s{sG}, 5')
o(f'v_lshrrev_b32 v{TM}, 3, v1'); o(f'v_lshl_add_u32 v{TM}, v{TM}, 2, s92')
o(f'ds_read_b32 v{NL}, v{TM} offset:{NODEOF}')
o('s_waitcnt lgkmcnt(0)')
o(f'v_readfirstlane_b32 s{sNBT}, v{TM+1}')
o(f's_min_u32 s{sNBT}, s{sNBT}, {ELLB}')
if PROF:
    o(f's_memrealtime s[100:101]'); o('s_waitcnt lgkmcnt(0)')
    o(f's_add_u32 m0, s{sRD}, 27'); o('s_nop 3'); o('v_writelane_b32 v255, s100, m0')
    o(f's_add_u32 m0, s{sRD}, 59'); o('s_nop 3'); o(f'v_writelane_b32 v255, s{sNBT}, m0')
o(f'v_cmp_gt_u32 vcc, 256, v{NL}'); o('s_nop 1'); o(f'v_cndmask_b32 v{TM}, 0, v{NL}, vcc')
o(f'v_lshl_add_u32 v{TM+1}, v{TM}, 8, v{LOFF}'); o(f'v_add_u32 v{TM+1}, {AU}, v{TM+1}')
o(f'ds_read_b128 {vr(AUR,4)}, v{TM+1}'); o(f'ds_read_b128 {vr(AUR+4,4)}, v{TM+1} offset:128')
o(f'v_bfe_u32 v{TM+2}, v1, 1, 2'); o(f's_lshl_b32 s92, s{sS}, 3'); o(f'v_add_u32 v{TM+2}, s92, v{TM+2}')
o(f'v_and_b32 v{TM+3}, 15, v{TM}')
o(f'v_xor_b32 v{TM+4}, v{TM+2}, v{TM+3}'); o(f'v_add_u32 v{TM+2}, 4, v{TM+2}'); o(f'v_xor_b32 v{TM+5}, v{TM+2}, v{TM+3}')
o(f'v_and_b32 v{TM+3}, 1, v1'); o(f'v_lshlrev_b32 v{TM+3}, 3, v{TM+3}'); o(f'v_lshl_add_u32 v{TM+3}, v{TM}, 9, v{TM+3}')
o(f'v_lshl_add_u32 v{TM+4}, v{TM+4}, 4, v{TM+3}'); o(f'v_lshl_add_u32 v{TM+5}, v{TM+5}, 4, v{TM+3}')
o(f'ds_read_b64 {vr(XR,2)}, v{TM+4} offset:{XT}'); o(f'ds_read_b64 {vr(XR+2,2)}, v{TM+5} offset:{XT}')
for i in range(8):
    o(f'v_mov_b32 v{NUM+i}, 0'); o(f'v_mov_b32 v{DEN+i}, 0')
o('s_waitcnt lgkmcnt(0)')
for i in range(8): o(f'v_lshlrev_b32 v{C+8+i}, 16, v{AUR+i}')
o(f's_cmp_eq_u32 s{sNBT}, 0'); o('s_cbranch_scc1 L_epi')
o(f's_cmp_eq_u32 s{sPAR}, 1'); o('s_cbranch_scc1 L_gs1')
def exps(D): return [f'v_exp_f32 v{D+8+i}, v{D+8+i}' for i in range(16)]
def rcps(D): return [f'v_rcp_f32 v{D+8+i}, v{D+8+i}' for i in range(16)]
for P in range(2):
    lab(f'L_gs{P}')
    o('s_waitcnt vmcnt(4)')
    for t in unpack_list(Ds[P],Rs[P]): o(t)
    o('s_waitcnt lgkmcnt(0)')
    loads(Rs[P],OFs[P])
    dsreads(P)
    o('s_nop 7')
    gfma(Ds[P],Es[P])
    o(f's_branch L_body{P}')
for P in range(2):
    Q=P^1
    lab(f'L_body{P}')
    o(f's_sub_u32 s{sNBT}, s{sNBT}, 1'); o(f's_cmp_eq_u32 s{sNBT}, 0'); o(f's_cbranch_scc1 L_last{P}')
    ex=exps(Ds[P]); un=unpack_list(Ds[Q],Rs[Q])
    o('s_waitcnt vmcnt(4)')
    for k in range(4):
        o(un[k])
        for t in ex[4*k:4*k+4]: o(t)
    o('s_nop 1')
    mfma(Ds[P]+8,ONE,ONE,vr(Ds[P]+8,16))
    o('s_waitcnt lgkmcnt(0)')
    loads(Rs[Q],OFs[Q])
    o('s_nop 2')
    dsreads(Q)
    for t in rcps(Ds[P]): o(t)
    gfma(Ds[Q],Es[Q])
    accum(Ds[P])
    if P==1: o('s_branch L_body0')
for P in range(2):
    lab(f'L_last{P}')
    for t in exps(Ds[P]): o(t)
    o('s_nop 1')
    mfma(Ds[P]+8,ONE,ONE,vr(Ds[P]+8,16))
    o('s_nop 7'); o('s_nop 3')
    for t in rcps(Ds[P]): o(t)
    accum(Ds[P])
    o(f's_mov_b32 s{sPAR}, {P^1}')
    if P==0: o('s_branch L_epi')
lab('L_epi')
o('s_mov_b32 s92, 0x358637bd')
for i in range(8): o(f'v_add_f32 v{DEN+i}, s92, v{DEN+i}')
for i in range(8): o(f'v_rcp_f32 v{DEN+i}, v{DEN+i}')
for i in range(8): o(f'v_and_b32 v{AUR+i}, 0xffff0000, v{AUR+i}')
for i in range(8): o(f'v_fmac_f32 v{AUR+i}, v{NUM+i}, v{DEN+i}')
for i in range(8): o(f'v_max_f32 v{AUR+i}, 0, v{AUR+i}')
for i in range(4):
    o(f'v_lshlrev_b32 v{TM}, 16, v{XR+i}'); o(f'v_and_b32 v{TM+1}, 0xffff0000, v{XR+i}')
    o(f'v_add_f32 v{AUR+2*i}, v{AUR+2*i}, v{TM}'); o(f'v_add_f32 v{AUR+2*i+1}, v{AUR+2*i+1}, v{TM+1}')
for i in range(4): o(f'v_cvt_pk_bf16_f32 v{AUR+i}, v{AUR+2*i}, v{AUR+2*i+1}')
o(f'v_add_u32 v{TM}, s{sNB}, v{NL}'); o(f'v_lshlrev_b32 v{TM}, 9, v{TM}')
o(f'v_lshrrev_b32 v{TM+1}, 1, v{LOFF}'); o(f'v_add_u32 v{TM}, v{TM}, v{TM+1}')
o(f'v_cmp_gt_u32 vcc, 256, v{NL}'); o(f'v_mov_b32 v{TM+1}, 0x40000000'); o('s_nop 0')
o(f'v_cndmask_b32 v{TM}, v{TM+1}, v{TM}, vcc')
o(f's_lshl_b32 s92, s{sS}, 7')
o(f'buffer_store_dwordx2 {vr(AUR,2)}, v{TM}, {sr(rOUT,4)}, s92 offen')
o(f'buffer_store_dwordx2 {vr(AUR+2,2)}, v{TM}, {sr(rOUT,4)}, s92 offen offset:64')
o('s_branch L_group')
lab('L_done')
stamp(12)
if PROF:
    o('s_waitcnt vmcnt(0)')
    srd_off(92,sWS,WS_PROF,0x100000)
    o(f's_lshl_b32 s96, s2, 3'); o(f's_add_u32 s96, s96, s{sW}'); o('s_lshl_b32 s96, s96, 8')
    o('v_lshlrev_b32 v2, 2, v1')
    o('buffer_store_dword v255, v2, s[92:95], s96 offen')
o('s_endpgm')
lab('L_codeend')
lab('L_fallback')
FN,FD,FA,FU,FW=10,11,12,13,14
o('v_lshlrev_b32 v5, 2, v1')
o(f's_lshl_b32 s92, s{sS}, 7')
o('v_lshlrev_b32 v6, 1, v1'); o(f'v_add_u32 v6, s92, v6')
srd(64,sWC,512)
o(f'buffer_load_ushort v{FW}, v6, s[64:67], 0 offen')
o('s_waitcnt vmcnt(0)')
o(f'v_lshlrev_b32 v{FW}, 16, v{FW}'); o(f'v_mul_f32 v{FW}, {NLOG2E:#x}, v{FW}')
o(f's_mov_b32 s46, s{sW}')
lab('L_fb_node')
o(f's_cmp_ge_u32 s46, s{sNV}'); o('s_cbranch_scc1 L_fb_end')
o(f's_lshl_b32 s92, s46, 8'); o(f's_add_u32 s92, s92, {AU}'); o(f'v_add_u32 v7, s92, v5'); o('ds_read_b32 v8, v7')
o('s_waitcnt lgkmcnt(0)')
o(f'v_lshlrev_b32 v{FA}, 16, v8'); o(f'v_and_b32 v{FU}, 0xffff0000, v8')
o(f'v_mov_b32 v{FN}, 0'); o(f'v_mov_b32 v{FD}, 0')
o(f's_add_u32 s47, s46, s{sNB}')
o('s_mov_b32 s93, 0')
lab('L_fb_e')
o('v_add_u32 v7, s93, v1'); o('v_lshlrev_b32 v8, 2, v7'); o('v_lshlrev_b32 v7, 1, v7')
o(f'buffer_load_dword v15, v8, {sr(rDST,4)}, 0 offen')
o(f'buffer_load_dword v16, v8, {sr(rSRC,4)}, 0 offen')
o(f'buffer_load_ushort v17, v7, {sr(rEA,4)}, 0 offen')
o('s_waitcnt vmcnt(0)')
o('v_cmp_eq_u32 vcc, s47, v15')
o('s_mov_b64 s[94:95], vcc')
lab('L_fb_m')
o('s_cmp_eq_u64 s[94:95], 0'); o('s_cbranch_scc1 L_fb_next')
o('s_ff1_i32_b64 s96, s[94:95]')
o('s_bitset0_b64 s[94:95], s96')
o('v_readlane_b32 s97, v16, s96'); o('v_readlane_b32 s92, v17, s96')
o('s_nop 1')
o('s_lshl_b32 s97, s97, 8'); o('s_lshl_b32 s92, s92, 16')
o('s_nop 4')
o(f'buffer_load_dword v18, v5, {sr(rTR,4)}, s97 offen sc1')
o('s_waitcnt vmcnt(0)')
o('v_lshlrev_b32 v19, 16, v18'); o('v_and_b32 v18, 0xffff0000, v18')
o(f'v_add_f32 v19, v19, v{FA}'); o(f'v_fmac_f32 v19, s92, v{FW}')
o('v_exp_f32 v19, v19'); o('s_nop 0'); o('v_add_f32 v19, 1.0, v19'); o('v_rcp_f32 v19, v19'); o('s_nop 0')
o(f'v_add_f32 v{FD}, v{FD}, v19'); o(f'v_fmac_f32 v{FN}, v19, v18')
o('s_branch L_fb_m')
lab('L_fb_next')
o('s_add_u32 s93, s93, 64'); o(f's_cmp_lt_u32 s93, {E}'); o('s_cbranch_scc1 L_fb_e')
o('s_mov_b32 s92, 0x358637bd')
o(f'v_add_f32 v{FD}, s92, v{FD}'); o(f'v_rcp_f32 v{FD}, v{FD}'); o('s_nop 0')
o(f'v_fmac_f32 v{FU}, v{FN}, v{FD}'); o(f'v_max_f32 v{FU}, 0, v{FU}')
o('s_lshl_b32 s92, s47, 9')
o(f'buffer_load_ushort v18, v6, {sr(rX,4)}, s92 offen')
o('s_waitcnt vmcnt(0)')
o(f'v_lshlrev_b32 v18, 16, v18'); o(f'v_add_f32 v{FU}, v{FU}, v18')
o(f'v_cvt_pk_bf16_f32 v18, v{FU}, v{FU}')
o(f'buffer_store_short v18, v6, {sr(rOUT,4)}, s92 offen')
o('s_add_u32 s46, s46, 8'); o('s_branch L_fb_node')
lab('L_fb_end')
lab('L_end')
o('s_endpgm')
L=[x for x in L if x is not None]
hdr=open('gather_scatter__edge_featured_mpnn_gatedgcn__graph.s.ref').read().split('; Override')[0]
out=hdr+f'''; Generated by dev/gen2.py (hand-written generator). One fused persistent launch, 1 workgroup per CU.
; @launch grid=(256,1,1) block=(512,1,1) lds={LDS_TOTAL}
.amdgcn_target "amdgcn-amd-amdhsa--gfx950"
.text
.globl {NAME}
.p2align 8
.type {NAME},@function
'''+'\n'.join(L)+f'''
.section .rodata,"a"
.p2align 6
.amdhsa_kernel {NAME}
  .amdhsa_next_free_vgpr 256
  .amdhsa_next_free_sgpr 102
  .amdhsa_accum_offset 256
  .amdhsa_group_segment_fixed_size 0
  .amdhsa_kernarg_size 96
  .amdhsa_user_sgpr_count 2
  .amdhsa_user_sgpr_kernarg_segment_ptr 1
  .amdhsa_system_sgpr_workgroup_id_x 1
.end_amdhsa_kernel
'''
fn=[a for a in sys.argv[1:] if not a.startswith('--')]
open(fn[0] if fn else 'k.s','w').write(out)
```

```python
import sys
NAME='gather_scatter__edge_featured_mpnn_gatedgcn__graph_kernel'
PROF = '--prof' in sys.argv
OPT = {a.split('=')[0][2:]:(a.split('=')[1] if '=' in a else '1') for a in sys.argv[1:] if a.startswith('--')}
N=10000; E=160000; RN=157; CH=625; CHCAP=704
SLICE=10240*256
WS_RECS=0xA00000; WS_SEGT=0xB80000; SEGT_FLAG2=0x20000; WS_EPOCH=0xBB0000; WS_PROF=0xC00000
HIST1=0; DEG=256; HIST2=1024; LG=1280; GBASE=1408; CUR=1536; NODEOF=2304; CNT=3840
C_W=CNT; C_G=CNT+4; C_T=CNT+8; C_E1=CNT+12; C_SORT=CNT+16; C_P=CNT+20; C_FB=CNT+24; C_X=CNT+28; C_G1=CNT+32; C_H=CNT+36; C_R=CNT+40; C_X2=CNT+44; C_S=CNT+48; C_RL=CNT+52; C_X1=CNT+56
XT=4096; WR=XT+81920; AU=WR; ELL=WR+40960; ELLB=288
LDS_TOTAL=163840
RST=WR+65536
assert ELL+ELLB*128==LDS_TOTAL
NLOG2E=0xbfb8aa3b
sEP=4
sI,sROT,sTL,sWROT=6,7,8,9
sM=10
sX,sEA,sSRC,sDST,sWA,sWB,sWC,sWU=16,18,20,22,24,26,28,30
sWV,sOUT,sDBG,sWS=32,34,36,38
sW,sS,sR,sNONCE,sNB,sNV=40,41,42,43,44,45
rX,rDST,rSRC,rEA,rW1,rW2,rTW,rTR,rREC,rSEG,rOUT=48,52,56,60,64,68,72,76,80,84,88
sA,sB,sC_,sD,sSP=92,93,94,95,96
L=[]
def o(t): L.append('  '+t)
def lab(t): L.append(t+':')
def vr(a,n): return f'v[{a}:{a+n-1}]' if n>1 else f'v{a}'
def sr(a,n): return f's[{a}:{a+n-1}]'
uid=[0]
def U(p):
    uid[0]+=1; return f'L_{p}_{uid[0]}'
def srd(r,base,size):
    o(f's_mov_b32 s{r}, s{base}'); o(f's_mov_b32 s{r+1}, s{base+1}')
    o(f's_mov_b32 s{r+2}, {size}'); o(f's_mov_b32 s{r+3}, 0x20000')
def srd_off(r,base,off,size):
    o(f's_add_u32 s{r}, s{base}, {off}'); o(f's_addc_u32 s{r+1}, s{base+1}, 0')
    o(f's_mov_b32 s{r+2}, {size}'); o(f's_mov_b32 s{r+3}, 0x20000')
def stamp(idx):
    if not PROF: return
    o(f's_memrealtime s[100:101]'); o('s_waitcnt lgkmcnt(0)'); o(f'v_writelane_b32 v255, s100, {idx}')
    o(f's_memtime s[100:101]'); o('s_waitcnt lgkmcnt(0)'); o(f'v_writelane_b32 v255, s100, {idx+32}')
VZ=248
def lds_spin(addr, need, vtmp):
    l=U('spin'); d=U('spind')
    o(f's_mov_b32 s{sSP}, 0')
    lab(l)
    o(f'ds_read_b32 v{vtmp}, v{VZ} offset:{addr}')
    o('s_waitcnt lgkmcnt(0)')
    o(f'v_readfirstlane_b32 s{sA}, v{vtmp}')
    o(f's_add_u32 s{sSP}, s{sSP}, 1')
    o(f's_cmp_ge_u32 s{sA}, {need}')
    o(f's_cbranch_scc1 {d}')
    o('s_sleep 1')
    o(f's_cmp_lt_u32 s{sSP}, 0x40000')
    o(f's_cbranch_scc1 {l}')
    lab(d)
def lds_inc(addr, vtmp, ret=False):
    o(f'v_mov_b32 v{vtmp}, 1')
    o('s_mov_b64 exec, 1')
    if ret:
        o(f'ds_add_rtn_u32 v{vtmp}, v{VZ}, v{vtmp} offset:{addr}')
        o('s_waitcnt lgkmcnt(0)')
        o(f'v_readfirstlane_b32 s{sA}, v{vtmp}')
    else:
        o(f'ds_add_u32 v{VZ}, v{vtmp} offset:{addr}')
    o('s_mov_b64 exec, -1')
def scan64(v):
    for sh in (1,2,4,8):
        o('s_nop 1'); o(f'v_add_u32_dpp v{v}, v{v}, v{v} row_shr:{sh} row_mask:0xf bank_mask:0xf')
    o('s_nop 1'); o(f'v_add_u32_dpp v{v}, v{v}, v{v} row_bcast:15 row_mask:0xa bank_mask:0xf')
    o('s_nop 1'); o(f'v_add_u32_dpp v{v}, v{v}, v{v} row_bcast:31 row_mask:0xc bank_mask:0xf')
    o('s_nop 1')
lab(NAME)
o('s_cmp_ge_u32 s2, 256')
o('s_cbranch_scc1 L_end')
o('s_load_dwordx16 s[16:31], s[0:1], 0')
o('s_load_dwordx8 s[32:39], s[0:1], 64')
o('v_and_b32 v1, 63, v0')
o('v_lshrrev_b32 v2, 6, v0')
o(f'v_mov_b32 v{VZ}, 0')
o(f'v_readfirstlane_b32 s{sW}, v2')
o('s_getpc_b64 s[12:13]')
lab('L_pc')
if 'nopf' not in OPT:
    o(f's_cmp_lg_u32 s{sW}, 7'); o('s_cbranch_scc1 L_nopf')
    o('s_lshr_b32 s3, s2, 3'); o('s_lshl_b32 s3, s3, 10')
    o('v_lshl_add_u32 v2, v1, 4, s3')
    o('v_cmp_gt_u32 vcc, L_codeend-L_pc-16, v2')
    o('s_and_saveexec_b64 s[98:99], vcc')
    o('s_cbranch_execz L_nopf2')
    o('global_load_dwordx4 v[240:243], v2, s[12:13]')
    lab('L_nopf2')
    o('s_mov_b64 exec, -1')
    lab('L_nopf')
o('v_lshlrev_b32 v17, 3, v0'); o('v_mov_b32 v20, 0'); o('v_mov_b32 v21, 0')
o('ds_write_b64 v17, v[20:21]')
o(f's_and_b32 s{sS}, s2, 7'); o(f's_lshr_b32 s{sS}, s{sS}, 1')
o(f's_lshr_b32 s{sR}, s2, 3'); o(f's_lshl_b32 s{sR}, s{sR}, 1'); o(f's_and_b32 s{sA}, s2, 1'); o(f's_or_b32 s{sR}, s{sR}, s{sA}')
o(f's_mul_i32 s{sNB}, s{sR}, {RN}')
o(f's_sub_u32 s{sNV}, {N}, s{sNB}'); o(f's_min_u32 s{sNV}, s{sNV}, {RN}')
if PROF: o('v_mov_b32 v255, 0')
for _v in (56,57,58,59,60,61,62,63,240,241,242,243): o(f'v_mov_b32 v{_v}, 0')
o(f's_mul_i32 s{sROT}, s{sS}, 5'); o(f's_add_u32 s{sROT}, s{sROT}, 1'); o(f's_lshr_b32 s{sROT}, s{sROT}, 1')
o(f's_lshr_b32 s{sWROT}, s2, 3')
o(f's_mov_b32 s{sM}, 0xffffff00')
def build_common():
    srd(rOUT,sOUT,N*512)
    o(f's_mul_i32 s{sA}, s{sS}, {SLICE}')
    o(f's_add_u32 s{rTW}, s{sWS}, s{sA}'); o(f's_addc_u32 s{rTW+1}, s{sWS+1}, 0')
    o(f's_add_u32 s{sA}, s{sNB}, s{sNV}'); o(f's_lshl_b32 s{rTW+2}, s{sA}, 8'); o(f's_mov_b32 s{rTW+3}, 0x20000')
    o(f's_mov_b32 s{rTR}, s{rTW}'); o(f's_mov_b32 s{rTR+1}, s{rTW+1}'); o(f's_mov_b32 s{rTR+2}, {(N+1)*256}'); o(f's_mov_b32 s{rTR+3}, 0x20000')
    srd_off(rSEG,sWS,WS_SEGT,0x21000)
    o(f's_add_u32 s{sEP}, s{sWS}, {WS_EPOCH}'); o(f's_addc_u32 s{sEP+1}, s{sWS+1}, 0')
    o(f's_load_dword s{sNONCE}, {sr(sEP,2)}, 0')
def wc_load():
    o('v_and_b32 v17, 7, v1'); o('v_lshlrev_b32 v17, 3, v17')
    o(f's_lshl_b32 s{sA}, s{sS}, 7'); o(f'v_add_u32 v17, s{sA}, v17')
    srd(rREC,sWC,512)
    o(f'buffer_load_dwordx2 v[250:251], v17, {sr(rREC,4)}, 0 offen')
    o(f'buffer_load_dwordx2 v[252:253], v17, {sr(rREC,4)}, 0 offen offset:64')
def wvoff(dst, wexpr_s):
    o('v_lshrrev_b32 v17, 3, v1')
    o(f's_lshl_b32 s{sA}, s{wexpr_s}, 3'); o(f'v_add_u32 v17, s{sA}, v17')
    o('v_bfe_u32 v20, v1, 4, 1')
    o(f's_and_b32 s{sA}, s{wexpr_s}, 1'); o(f's_lshl_b32 s{sA}, s{sA}, 1'); o(f'v_or_b32 v20, s{sA}, v20')
    o('v_bfe_u32 v19, v1, 1, 2'); o('v_xor_b32 v19, v19, v20'); o('v_lshlrev_b32 v19, 1, v19')
    o('v_and_b32 v20, 1, v1'); o('v_or_b32 v19, v19, v20')
    o('v_lshlrev_b32 v19, 4, v19'); o('v_lshl_add_u32 v19, v17, 9, v19')
    o(f's_lshl_b32 s{sA}, s{sS}, 7'); o(f'v_add_u32 v{dst}, s{sA}, v19')
o(f's_cmp_ge_u32 s{sW}, 4')
o('s_cbranch_scc1 L_e0')
o('v_lshrrev_b32 v17, 5, v1')
o(f's_lshl_b32 s{sA}, s{sW}, 1'); o(f'v_add_u32 v17, s{sA}, v17')
o('v_and_b32 v18, 31, v1'); o('v_and_b32 v19, 15, v17'); o('v_xor_b32 v22, v18, v19')
o('v_lshlrev_b32 v22, 4, v22'); o('v_lshl_add_u32 v22, v17, 9, v22')
o('v_add_u32 v17, 8, v17'); o('v_and_b32 v19, 15, v17'); o('v_xor_b32 v23, v18, v19')
o('v_lshlrev_b32 v23, 4, v23'); o('v_lshl_add_u32 v23, v17, 9, v23')
wvoff(249,sW)
o('s_waitcnt lgkmcnt(0)')
o('s_barrier')
stamp(0)
if 'stlb' in OPT:
    def touch(base, off_s=None, off_i=0):
        if off_s is None and off_i==0:
            o(f's_load_dword s13, {sr(base,2)}, 0'); return
        if off_s is not None:
            o(f's_add_u32 s14, s{base}, s{off_s}'); o(f's_addc_u32 s15, s{base+1}, 0')
            if off_i: o(f's_add_u32 s14, s14, {off_i}'); o('s_addc_u32 s15, s15, 0')
        else:
            o(f's_add_u32 s14, s{base}, {off_i}'); o(f's_addc_u32 s15, s{base+1}, 0')
        o('s_load_dword s13, s[14:15], 0')
    o(f's_lshl_b32 s3, s{sNB}, 9')
    touch(sX,3); touch(sWB); touch(sWV); touch(sWA); touch(sWU); touch(sOUT,3)
    touch(sWS,None,WS_RECS)
    o(f's_mul_i32 s3, s{sS}, {SLICE}')
    touch(sWS,3); touch(sWS,3,0x100000); touch(sWS,3,0x200000); touch(sWS,3,SLICE-256)
wc_load()
srd(rX,sX,N*512); srd(rW1,sWB,131072); srd(rW2,sWV,131072)
o(f's_lshl_b32 s{sC_}, s{sW}, 10')
o(f's_mov_b32 s{sTL}, s{sROT}')
o(f's_mov_b32 s{sI}, 0')
lab('L_dmaw')
o(f's_add_u32 s{sA}, s{sI}, s{sWROT}'); o(f's_and_b32 s{sA}, s{sA}, 7')
o(f's_lshl_b32 s{sB}, s{sA}, 14'); o(f's_lshl_b32 s{sA}, s{sA}, 12'); o(f's_add_u32 s{sA}, s{sA}, s{sC_}')
o(f's_add_u32 m0, s{sA}, {WR}'); o('s_nop 0')
o(f'buffer_load_dwordx4 v249, {sr(rW1,4)}, s{sB} offen lds')
o(f's_add_u32 m0, s{sA}, {WR+32768}'); o('s_nop 0')
o(f'buffer_load_dwordx4 v249, {sr(rW2,4)}, s{sB} offen lds')
o('s_waitcnt vmcnt(%s)' % OPT.get('pace','8'))
o(f's_add_u32 s{sI}, s{sI}, 1'); o(f's_cmp_lt_u32 s{sI}, 8'); o('s_cbranch_scc1 L_dmaw')
def xloop(lo,hi,name):
    o(f's_mov_b32 s{sI}, {lo}')
    lab(name)
    o(f's_lshr_b32 s{sTL}, s{sI}, 1'); o(f's_and_b32 s{sA}, s{sI}, 1'); o(f's_mul_i32 s{sA}, s{sA}, 5'); o(f's_add_u32 s{sTL}, s{sTL}, s{sA}')
    o(f's_lshl_b32 s{sA}, s{sTL}, 13'); o(f's_add_u32 s{sD}, s{sA}, s{sC_}'); o(f's_add_u32 m0, s{sD}, {XT}')
    o(f's_lshl_b32 s{sB}, s{sNB}, 9'); o(f's_add_u32 s{sB}, s{sB}, s{sA}')
    o(f'buffer_load_dwordx4 v22, {sr(rX,4)}, s{sB} offen lds')
    o(f's_add_u32 m0, s{sD}, {XT+4096}'); o('s_nop 0')
    o(f'buffer_load_dwordx4 v23, {sr(rX,4)}, s{sB} offen lds')
    o('s_waitcnt vmcnt(%s)' % OPT.get('pace','8'))
    o(f's_add_u32 s{sI}, s{sI}, 1'); o(f's_cmp_lt_u32 s{sI}, {hi}'); o(f's_cbranch_scc1 {name}')
xloop(0,4,'L_dmax1')
stamp(19)
build_common()
srd(rDST,sDST,E*4); srd(rSRC,sSRC,E*4); srd(rEA,sEA,E*2); srd_off(rREC,sWS,WS_RECS,256*CHCAP*8)
WF,AF,ACC,XA,XC,TRA,TOF,AUA=64,192,224,56,60,240,241,242
o(f's_and_b32 s{sD}, s{sW}, 1'); o(f's_lshl_b32 s{sD}, s{sD}, 1')
o('v_lshrrev_b32 v17, 4, v1')
o('v_bfe_u32 v18, v1, 2, 2')
o('v_lshl_add_u32 v19, v17, 3, v18')
o('v_lshlrev_b32 v19, 7, v19')
o('v_bfe_u32 v20, v1, 3, 1')
o('v_and_b32 v21, 1, v17'); o('v_lshl_or_b32 v20, v21, 1, v20')
o(f'v_xor_b32 v20, s{sD}, v20')
o('v_and_b32 v21, 3, v1'); o('v_lshl_add_u32 v19, v21, 3, v19'); o(f'v_add_u32 v19, {WR}, v19')
o(f'v_lshl_add_u32 v{TRA}, v20, 5, v19')
o('v_xor_b32 v20, 1, v20'); o(f'v_lshl_add_u32 v{TRA+3}, v20, 5, v19')
def wfrags():
    for m in range(2):
        for t in range(2):
            for ks in range(8):
                r=WF+64*m+32*t+4*ks; a=TRA if t==0 else TRA+3
                o(f'ds_read_b64_tr_b16 {vr(r,2)}, v{a} offset:{m*32768+ks*4096}')
                o(f'ds_read_b64_tr_b16 {vr(r+2,2)}, v{a} offset:{m*32768+ks*4096+512}')
o('v_and_b32 v18, 15, v1')
for k in range(4):
    o(f'v_and_b32 v19, 12, v18'); o(f'v_xor_b32 v19, {4*k}, v19')
    o('v_and_b32 v20, 3, v18'); o('v_xor_b32 v20, v20, v17')
    o('v_add_u32 v19, v19, v20'); o('v_lshlrev_b32 v19, 4, v19')
    o(f'v_lshl_add_u32 v{XA+k}, v18, 9, v19')
    o(f'v_add_u32 v{XA+k}, {XT}, v{XA+k}')
o('v_lshlrev_b32 v19, 10, v17')
o(f's_lshl_b32 s{sA}, s{sD}, 6')
o('v_lshl_add_u32 v19, v18, 2, v19'); o(f'v_add_u32 v{TOF}, s{sA}, v19')
o(f's_lshr_b32 s{sROT}, s{sW}, 1'); o(f's_mul_i32 s{sROT}, s{sROT}, 5')

o('s_waitcnt vmcnt(8) lgkmcnt(0)')
o(f's_mul_i32 s{sNONCE}, s{sNONCE}, 0x9E3779B1'); o(f's_add_u32 s{sNONCE}, s{sNONCE}, 0x7F4A7C15')
lds_inc(C_X,244)
lds_spin(C_X,4,244)
stamp(2)
wfrags()
o('s_waitcnt lgkmcnt(0)')
o(f's_lshl_b32 s{sC_}, s{sW}, 10')
lds_inc(C_W,244)
lds_spin(C_W,4,244)
srd(rW1,sWA,131072); srd(rW2,sWU,131072)
o(f's_mov_b32 s{sI}, 0')
lab('L_dmau')
o(f's_add_u32 s{sA}, s{sI}, s{sWROT}'); o(f's_and_b32 s{sA}, s{sA}, 7')
o(f's_lshl_b32 s{sB}, s{sA}, 14'); o(f's_lshl_b32 s{sA}, s{sA}, 12'); o(f's_add_u32 s{sA}, s{sA}, s{sC_}')
o(f's_add_u32 m0, s{sA}, {WR}'); o('s_nop 0')
o(f'buffer_load_dwordx4 v249, {sr(rW1,4)}, s{sB} offen lds')
o(f's_add_u32 m0, s{sA}, {WR+32768}'); o('s_nop 0')
o(f'buffer_load_dwordx4 v249, {sr(rW2,4)}, s{sB} offen lds')
o('s_waitcnt vmcnt(%s)' % OPT.get('pace','8'))
o(f's_add_u32 s{sI}, s{sI}, 1'); o(f's_cmp_lt_u32 s{sI}, 8'); o('s_cbranch_scc1 L_dmau')
xloop(4,10,'L_dmax2')
lds_inc(C_G1,244)
stamp(3)
o('s_waitcnt vmcnt(8)')
lds_inc(C_X1,244)
lds_spin(C_X1,4,244)
stamp(4)
o('s_branch L_g_gemm')
lab('L_e0')
if 'noprio' not in OPT: o('s_setprio 2')
o('v_subrev_u32 v14, 256, v0')
o(f's_mul_i32 s{sA}, s2, {CH}')
o(f'v_add_u32 v15, s{sA}, v14')
o('v_lshlrev_b32 v16, 1, v15'); o('v_lshlrev_b32 v15, 2, v15')
o(f'v_cmp_gt_u32 vcc, {CH-512}, v14')
o('v_add_u32 v18, 2048, v15'); o('v_add_u32 v19, 1024, v16')
o('v_mov_b32 v17, 0x40000000')
o('v_cndmask_b32 v18, v17, v18, vcc'); o('v_cndmask_b32 v19, v17, v19, vcc')
o('s_waitcnt lgkmcnt(0)')
ED,ES,EE=2,5,8
srd(rDST,sDST,E*4)
o(f'buffer_load_dword v{ED}, v15, {sr(rDST,4)}, 0 offen')
o(f'buffer_load_dword v{ED+1}, v15, {sr(rDST,4)}, 0 offen offset:1024')
o(f'buffer_load_dword v{ED+2}, v18, {sr(rDST,4)}, 0 offen')
srd(rSRC,sSRC,E*4)
o(f'buffer_load_dword v{ES}, v15, {sr(rSRC,4)}, 0 offen')
o(f'buffer_load_dword v{ES+1}, v15, {sr(rSRC,4)}, 0 offen offset:1024')
o(f'buffer_load_dword v{ES+2}, v18, {sr(rSRC,4)}, 0 offen')
srd(rEA,sEA,E*2)
o(f'buffer_load_ushort v{EE}, v16, {sr(rEA,4)}, 0 offen')
o(f'buffer_load_ushort v{EE+1}, v16, {sr(rEA,4)}, 0 offen offset:512')
o(f'buffer_load_ushort v{EE+2}, v19, {sr(rEA,4)}, 0 offen')
o('s_barrier')
stamp(0)
wc_load()
srd(rW1,sWA,131072); srd(rW2,sWU,131072)
o('s_lshr_b32 s3, s2, 3'); o('s_lshl_b32 s3, s3, 12')
o('v_lshrrev_b32 v17, 3, v1'); o('v_lshlrev_b32 v17, 9, v17'); o('v_and_b32 v19, 7, v1'); o('v_lshl_add_u32 v17, v19, 4, v17')
o(f's_lshl_b32 s{sA}, s{sS}, 7'); o(f'v_add_u32 v17, s{sA}, v17')
l=U('wu')
if 'nowu' not in OPT:
    o(f's_cmp_lg_u32 s{sW}, 4'); o(f's_cbranch_scc1 {l}_a')
    o(f'buffer_load_dwordx4 v[240:243], v17, {sr(rW1,4)}, s3 offen')
    lab(l+'_a')
    o(f's_cmp_lg_u32 s{sW}, 5'); o(f's_cbranch_scc1 {l}_b')
    o(f'buffer_load_dwordx4 v[240:243], v17, {sr(rW2,4)}, s3 offen')
    lab(l+'_b')
build_common()
srd(rX,sX,N*512); srd_off(rREC,sWS,WS_RECS,256*CHCAP*8)
if 'notlb' not in OPT:
    o(f's_cmp_lg_u32 s{sW}, 6'); o(f's_cbranch_scc1 {l}_c')
    o('v_lshlrev_b32 v17, 20, v1'); o('v_cmpx_gt_u32 vcc, 3, v1')
    o(f'buffer_load_dword v244, v17, {sr(rTR,4)}, 0 offen')
    o('s_mov_b64 exec, -1')
    lab(l+'_c')
    o(f's_cmp_lg_u32 s{sW}, 7'); o(f's_cbranch_scc1 {l}_d')
    o(f's_lshl_b32 s{sA}, s{sNB}, 9')
    o(f'buffer_load_dword v244, v{VZ}, {sr(rOUT,4)}, s{sA} offen')
    o(f'buffer_load_dword v245, v{VZ}, {sr(rREC,4)}, 0 offen')
    lab(l+'_d')
wvoff(249,sW)
o('v_subrev_u32 v247, 16384, v249')
o('s_waitcnt vmcnt(%d)' % (2 if ('nowu' in OPT or 'notlb' in OPT) else 3))
stamp(22)
o(f's_mov_b32 s{sA}, 106862')
RR,RK_,RW=36,24,28
for k in range(3):
    o(f'v_mul_lo_u32 v{RR+k}, v{ED+k}, s{sA}')
for k in range(3):
    o(f'v_lshrrev_b32 v{RR+k}, 24, v{RR+k}')
    o(f'v_mul_u32_u24 v17, {RN}, v{RR+k}'); o(f'v_sub_u32 v17, v{ED+k}, v17')
    o(f'v_lshl_or_b32 v{RW+2*k}, v{ES+k}, 8, v17'); o(f'v_lshlrev_b32 v{RW+2*k+1}, 16, v{EE+k}')
    o(f'v_lshlrev_b32 v{RR+k}, 2, v{RR+k}')
o('v_mov_b32 v16, 1')
o(f'ds_add_rtn_u32 v{RK_}, v{RR}, v16 offset:{HIST1}')
o(f'ds_add_rtn_u32 v{RK_+1}, v{RR+1}, v16 offset:{HIST1}')
o(f'v_cmpx_gt_u32 vcc, {CH-512}, v14')
o(f'ds_add_rtn_u32 v{RK_+2}, v{RR+2}, v16 offset:{HIST1}')
o('s_mov_b64 exec, -1')
o('s_waitcnt lgkmcnt(0)')
o(f's_mul_i32 s{sNONCE}, s{sNONCE}, 0x9E3779B1'); o(f's_add_u32 s{sNONCE}, s{sNONCE}, 0x7F4A7C15')
lds_inc(C_H,17)
lds_spin(C_H,4,17)
o('v_lshlrev_b32 v17, 2, v1')
o(f'ds_read_b32 v20, v17 offset:{HIST1}')
o('s_waitcnt lgkmcnt(0)')
o('v_add_u32 v21, 1, v20'); o('v_and_b32 v21, -2, v21'); o('v_mov_b32 v22, v21')
scan64(21)
o('v_sub_u32 v22, v21, v22')
for k in range(3): o(f'ds_bpermute_b32 v{RR+k}, v{RR+k}, v22')
o('s_waitcnt lgkmcnt(0)')
for k in range(3): o(f'v_add_lshl_u32 v{RR+k}, v{RR+k}, v{RK_+k}, 3')
for k in range(3): o(f'v_add_u32 v{RR+k}, {RST}, v{RR+k}')
o(f'ds_write_b64 v{RR}, {vr(RW,2)}')
o(f'ds_write_b64 v{RR+1}, {vr(RW+2,2)}')
o(f'v_cmpx_gt_u32 vcc, {CH-512}, v14')
o(f'ds_write_b64 v{RR+2}, {vr(RW+4,2)}')
o('s_mov_b64 exec, -1')
o('s_waitcnt lgkmcnt(0)')
lds_inc(C_S,17)
lds_spin(C_S,4,17)
o('v_lshlrev_b32 v17, 4, v14'); o(f'v_add_u32 v18, {RST}, v17')
if 'delay' in OPT: lds_spin(C_X2,4,36)
o('ds_read_b128 v[28:31], v18'); o('ds_read_b128 v[32:35], v18 offset:4096')
o(f's_mul_i32 s{sA}, s2, {CHCAP*8}'); o(f's_add_u32 s{sB}, s{sA}, 4096')
o(f's_and_b32 s{sC_}, s{sNONCE}, 0xffff'); o(f's_lshr_b32 s{sD}, s{sNONCE}, 16')
o('v_mov_b32 v19, 0xffff0000')
o('s_waitcnt lgkmcnt(0)')
o(f'v_and_or_b32 v29, v29, v19, s{sC_}'); o(f'v_and_or_b32 v31, v31, v19, s{sD}')
o(f'v_and_or_b32 v33, v33, v19, s{sC_}'); o(f'v_and_or_b32 v35, v35, v19, s{sD}')
if 'noEst' not in OPT:
    o(f'buffer_store_dwordx4 v[28:31], v17, {sr(rREC,4)}, s{sA} offen sc1')
    o(f'v_cmpx_gt_u32 vcc, {(CHCAP*8-4096)//16}, v14')
    o(f'buffer_store_dwordx4 v[32:35], v17, {sr(rREC,4)}, s{sB} offen sc1')
    o('s_mov_b64 exec, -1')
stamp(2)
l=U('nopub')
if 'noEst' in OPT: o(f's_branch {l}')
o(f's_cmp_lg_u32 s{sW}, 4'); o(f's_cbranch_scc1 {l}')
o('v_lshl_or_b32 v24, v20, 16, v22'); o(f'v_mov_b32 v25, s{sNONCE}')
o('v_lshlrev_b32 v17, 11, v1')
o(f's_lshl_b32 s{sA}, s2, 3')
o(f'buffer_store_dwordx2 v[24:25], v17, {sr(rSEG,4)}, s{sA} offen sc1')
lab(l)
stamp(3)
stamp(4)
o('s_branch L_main_setup' if 'xE' in OPT else 's_branch L_eteam_b')
lab('L_g_gemm')
if 'gprio' in OPT: o('s_setprio 3')
sTE=11
sTC=12
def xread(ks): return f'ds_read_b128 {vr(AF+4*ks,4)}, v{XC+(ks&3)} offset:{256 if ks>=4 else 0}'
def epi_list(which,a,t):
    e=[]
    for i in range(4): e.append(f'v_mul_f32 v{a+i}, {NLOG2E:#x}, v{a+i}')
    for i in range(4): e.append(f'v_cvt_pk_bf16_f32 v{a+i}, v{a+i}, v{a+4+i}')
    if which==1:
        for i in range(4): e.append(f'buffer_store_dword v{a+i}, v{TOF}, {sr(rTW,4)}, s{sB if t==1 else sD} offen offset:{i*256+64*t} sc1')
    else:
        for i in range(4): e.append(f'ds_write_b32 v{AUA if t==1 else AUA+2}, v{a+i} offset:{i*256+64*t}')
    return e
def addr_ops(which,tile_s,t):
    dst = sB if t==1 else sD
    if which==1: return [f's_lshl_b32 s{dst}, s{tile_s}, 4', f's_add_u32 s{dst}, s{dst}, s{sNB}', f's_lshl_b32 s{dst}, s{dst}, 8']
    return [f's_lshl_b32 s{dst}, s{tile_s}, 12', f's_add_u32 s{dst}, s{dst}, {AU}', f'v_add_u32 v{AUA if t==1 else AUA+2}, s{dst}, v{TOF}']
sTO=[13,14,15,46,47]
PK=8
def gemm_body(which, j):
    B0,V0,B1,V1=ACC,ACC+4,ACC+8,ACC+12
    if which==1:
        def epi1(a,jj,t):
            e=[f'v_mul_f32 v{a+i}, {NLOG2E:#x}, v{a+i}' for i in range(4)]
            e+=[f'v_cvt_pk_bf16_f32 v{PK+8*jj+4*t+i}, v{a+i}, v{a+4+i}' for i in range(4)]
            return e
        eP1=epi1(B1,j-1,1) if j>0 else []; eP0=epi1(B0,j,0)
        a1=[]; a0=[]
    else:
        eP1=epi_list(2,B1,1); eP0=epi_list(2,B0,0)
        a1=addr_ops(2,sTE,1); a0=addr_ops(2,sTC,0)
    fill=[[] for _ in range(16)]
    if which==2:
        fill[0]+=a1[0:2]; fill[1]+=a1[2:3]+a0[0:1]; fill[2]+=a0[1:3]
        fill[3]+=eP1[0:3]; fill[4]+=eP1[3:6]; fill[5]+=eP1[6:9]; fill[6]+=eP1[9:11]; fill[7]+=eP1[11:12]
    elif eP1:
        fill[3]+=eP1[0:2]; fill[4]+=eP1[2:4]; fill[5]+=eP1[4:6]; fill[6]+=eP1[6:8]
    if not (which==1 and j==4):
        for ks in range(8): fill[8+ks].append(xread(ks))
    if which==2:
        fill[11]+=eP0[0:3]; fill[12]+=eP0[3:6]; fill[13]+=eP0[6:9]; fill[14]+=eP0[9:11]; fill[15]+=eP0[11:12]
        tail=[f's_mov_b32 s{sTE}, s{sTC}', f's_add_u32 s{sTC}, s{sTC}, 1', f's_add_u32 s{sA}, s{sTC}, 1', f's_lshl_b32 s{sA}, s{sA}, 13']
        fill[9]+=tail[0:2]; fill[10]+=tail[2:4]
    else:
        fill[11]+=eP0[0:2]; fill[12]+=eP0[2:4]; fill[13]+=eP0[4:6]; fill[14]+=eP0[6:8]
        fill[9]+=[f's_add_u32 s{sTC}, s{sTC}, 8192']
    seq=[]
    for sl in range(16):
        for t in fill[sl]:
            if t.startswith('ds_read'): seq.append((sl,'r'))
            elif t.startswith('ds_write'): seq.append((sl,'w'))
    def waitcount(ks):
        if which==1: return 7-ks
        n=0; found=False; k=-1
        for (sl,kind) in seq:
            if kind=='r':
                k+=1
                if k==ks: found=True; continue
            if found: n+=1
        for (sl,kind) in seq:
            if sl<ks: n+=1
        return n
    for ph in range(2):
        for ks in range(8):
            ab,av=(B0,V0) if ph==0 else (B1,V1)
            wb=WF+32*ph+4*ks; wv=WF+64+32*ph+4*ks
            if ph==0: o(f's_waitcnt lgkmcnt({min(waitcount(ks),15)})')
            c1='0' if ks==0 else vr(ab,4); c2='0' if ks==0 else vr(av,4)
            f=fill[8*ph+ks]
            o(f'v_mfma_f32_16x16x32_bf16 {vr(ab,4)}, {vr(AF+4*ks,4)}, {vr(wb,4)}, {c1}')
            h=(len(f)+1)//2 if ph==0 else 0
            for t in f[:h]: o(t)
            o(f'v_mfma_f32_16x16x32_bf16 {vr(av,4)}, {vr(AF+4*ks,4)}, {vr(wv,4)}, {c2}')
            for t in f[h:]: o(t)
    if which==2:
        for k in range(4): o(f'v_add_u32 v{XC+k}, s{sA}, v{XA+k}')
    elif j<3:
        for k in range(4): o(f'v_add_u32 v{XC+k}, s{sTC}, v{XA+k}')
def table_stores():
    for j in range(5):
        o(f's_add_u32 s{sB}, s{sROT}, {j}'); o(f's_lshl_b32 s{sB}, s{sB}, 4'); o(f's_add_u32 s{sB}, s{sB}, s{sNB}'); o(f's_lshl_b32 s{sB}, s{sB}, 8')
        for t in range(2):
            for i in range(4):
                o(f'buffer_store_dword v{PK+8*j+4*t+i}, v{TOF}, {sr(rTW,4)}, s{sB} offen offset:{i*256+64*t} sc1')
def gemm1():
    o(f's_lshl_b32 s{sTC}, s{sROT}, 13')
    for k in range(4): o(f'v_add_u32 v{XC+k}, s{sTC}, v{XA+k}')
    for ks in range(8): o(xread(ks))
    o(f's_add_u32 s{sTC}, s{sTC}, 8192')
    for k in range(4): o(f'v_add_u32 v{XC+k}, s{sTC}, v{XA+k}')
    o('s_waitcnt lgkmcnt(0)')
    for j in range(5):
        if j==1:
            o('s_waitcnt vmcnt(0)')
            lds_inc(C_X2,244)
            o('s_waitcnt lgkmcnt(0)')
        if j==2:
            lds_spin(C_X2,4,244)
        gemm_body(1,j)
    o('s_nop 7')
    for i in range(4): o(f'v_mul_f32 v{ACC+8+i}, {NLOG2E:#x}, v{ACC+8+i}')
    for i in range(4): o(f'v_cvt_pk_bf16_f32 v{PK+32+4+i}, v{ACC+8+i}, v{ACC+12+i}')
def dummy_row():
    l=U('nodummy')
    o(f's_cmp_lg_u32 s{sR}, 63'); o(f's_cbranch_scc1 {l}')
    o(f's_cmp_lg_u32 s{sW}, 0'); o(f's_cbranch_scc1 {l}')
    o('v_mov_b32 v244, 0x7f7f'); o('v_lshlrev_b32 v245, 2, v1'); o(f'v_add_u32 v245, {N*256}, v245')
    o(f'buffer_store_dword v244, v245, {sr(rTR,4)}, 0 offen sc1')
    lab(l)
def gemm2():
    B0,V0,B1,V1=ACC,ACC+4,ACC+8,ACC+12
    for j in range(5):
        o(f's_add_u32 s{sTO[j]}, s{sROT}, {j}'); o(f's_lshl_b32 s{sTO[j]}, s{sTO[j]}, 4'); o(f's_add_u32 s{sTO[j]}, s{sTO[j]}, s{sNB}'); o(f's_lshl_b32 s{sTO[j]}, s{sTO[j]}, 8')
    o(f's_lshl_b32 s{sTC}, s{sROT}, 13')
    for k in range(4): o(f'v_add_u32 v{XC+k}, s{sTC}, v{XA+k}')
    for ks in range(8): o(xread(ks))
    o(f's_add_u32 s{sTC}, s{sTC}, 8192')
    for k in range(4): o(f'v_add_u32 v{XC+k}, s{sTC}, v{XA+k}')
    o(f's_lshl_b32 s{sA}, s{sROT}, 12'); o(f's_add_u32 s{sA}, s{sA}, {AU}'); o(f'v_add_u32 v{AUA}, s{sA}, v{TOF}')
    o('s_waitcnt lgkmcnt(0)')
    def epi(a,jj,t):
        e=[f'v_mul_f32 v{a+i}, {NLOG2E:#x}, v{a+i}' for i in range(4)]
        e+=[f'v_cvt_pk_bf16_f32 v{a+i}, v{a+i}, v{a+4+i}' for i in range(4)]
        e+=[f'ds_write_b32 v{AUA}, v{a+i} offset:{jj*4096+i*256+64*t}' for i in range(4)]
        return e
    def tst(jj): return [f'buffer_store_dword v{PK+8*jj+4*t+i}, v{TOF}, {sr(rTW,4)}, s{sTO[jj]} offen offset:{i*256+64*t} sc1' for t in range(2) for i in range(4)]
    stores={0:tst(0)+tst(1),1:tst(2)+tst(3),2:tst(4),3:[],4:[]}
    prev_tail=0
    for j in range(5):
        eP1=epi(B1,j-1,1) if j>0 else []; eP0=epi(B0,j,0)
        fill=[[] for _ in range(16)]
        if eP1:
            fill[3]+=eP1[0:3]; fill[4]+=eP1[3:6]; fill[5]+=eP1[6:9]; fill[6]+=eP1[9:11]; fill[7]+=eP1[11:12]
        if j<4:
            for ks in range(8): fill[8+ks].append(xread(ks))
        fill[11]+=eP0[0:3]; fill[12]+=eP0[3:6]; fill[13]+=eP0[6:9]; fill[14]+=eP0[9:11]; fill[15]+=eP0[11:12]
        if j<3: fill[9]+=[f's_add_u32 s{sTC}, s{sTC}, 8192']
        st=list(stores[j])
        for sl in range(16):
            if st: fill[sl].append(st.pop(0))
        seq=[(sl,('r' if t.startswith('ds_read') else 'w')) for sl in range(16) for t in fill[sl] if t.startswith('ds_')]
        for ph in range(2):
            for ks in range(8):
                ab,av=(B0,V0) if ph==0 else (B1,V1)
                wb=WF+32*ph+4*ks; wv=WF+64+32*ph+4*ks
                if ph==0 and j>0:
                    n=0; found=False; k=-1
                    for (sl,kind) in prevseq:
                        if kind=='r':
                            k+=1
                            if k==ks: found=True; continue
                        if found: n+=1
                    n+=sum(1 for (sl,kind) in seq if sl<ks)
                    o(f's_waitcnt lgkmcnt({min(n,15)})')
                c1='0' if ks==0 else vr(ab,4); c2='0' if ks==0 else vr(av,4)
                f=fill[8*ph+ks]
                o(f'v_mfma_f32_16x16x32_bf16 {vr(ab,4)}, {vr(AF+4*ks,4)}, {vr(wb,4)}, {c1}')
                h=(len(f)+1)//2 if ph==0 else 0
                for t in f[:h]: o(t)
                o(f'v_mfma_f32_16x16x32_bf16 {vr(av,4)}, {vr(AF+4*ks,4)}, {vr(wv,4)}, {c2}')
                for t in f[h:]: o(t)
        if j<3:
            for k in range(4): o(f'v_add_u32 v{XC+k}, s{sTC}, v{XA+k}')
        prevseq=seq
        if j==int(OPT.get('f2it','3')):
            l=U('nf2')
            o('s_waitcnt vmcnt(0)')
            lds_inc(C_T,244,ret=True)
            o(f's_cmp_lg_u32 s{sA}, 3'); o(f's_cbranch_scc1 {l}')
            o('s_mov_b64 exec, 1')
            for i in range(4): o(f'v_mov_b32 v{244+i}, s{sNONCE}')
            o(f's_lshl_b32 s{sA}, s{sS}, 6'); o(f's_add_u32 s{sA}, s{sA}, s{sR}'); o(f's_lshl_b32 s{sA}, s{sA}, 4')
            o(f's_add_u32 s{sA}, s{sA}, {SEGT_FLAG2}')
            o(f'buffer_store_dwordx4 v[244:247], v{VZ}, {sr(rSEG,4)}, s{sA} offen sc1')
            o('s_mov_b64 exec, -1')
            lab(l)
            if 'pre' in OPT:
                o(f's_lshl_b32 s{sA}, s{sNB}, 8'); o(f's_mul_i32 s{sB}, s{sW}, 10240'); o(f's_add_u32 s{sA}, s{sA}, s{sB}')
                o('v_lshlrev_b32 v245, 4, v1')
                for i in range(10):
                    o(f'buffer_load_dwordx4 v[232:235], v245, {sr(rTW,4)}, s{sA} offen sc1')
                    o(f's_add_u32 s{sA}, s{sA}, 1024')
    o('s_nop 7')
    for t in epi(B1,4,1): o(t)
gemm1()
stamp(5)
wfrags()
o('s_waitcnt lgkmcnt(0)')
lds_inc(C_G,244)
lds_spin(C_G,4,244)
stamp(18)
if 'xE' not in OPT and 'nogate' not in OPT: lds_spin(C_RL,4,244)
dummy_row()
stamp(6)
gemm2()
o('s_waitcnt lgkmcnt(0)')
stamp(7)
o('s_branch L_main_setup')
lab('L_eteam_b')
SG,RC0,RC1,SA,RKB=64,80,112,144,200
T=176
o(f's_sub_u32 s{sC_}, s{sW}, 4')
o('v_lshrrev_b32 v17, 3, v1')
o(f's_lshl_b32 s{sA}, s{sC_}, 3'); o(f'v_add_u32 v17, s{sA}, v17')
o(f'v_lshlrev_b32 v{T}, 3, v17')
o('v_and_b32 v18, 7, v1')
o(f'v_mul_u32_u24 v{T+1}, {CHCAP*8}, v17'); o(f'v_lshl_add_u32 v{T+1}, v18, 4, v{T+1}')
IX=T+2
o(f'v_lshlrev_b32 v{IX}, 1, v18'); o(f'v_add_u32 v{IX+1}, 1, v{IX}'); o(f'v_add_u32 v{IX+2}, 16, v{IX}'); o(f'v_add_u32 v{IX+3}, 17, v{IX}')
lds_spin(C_G1,4,17)
o(f's_lshl_b32 s{sD}, s{sR}, 11')
o(f's_mov_b32 s{sSP}, 0')
lp=U('poll1'); dn=U('poll1d')
lab(lp)
for p in range(8):
    o(f'buffer_load_dwordx2 {vr(SG+2*p,2)}, v{T}, {sr(rSEG,4)}, s{sD} offen offset:{p*256} sc1')
o(f'v_mov_b32 v19, s{sNONCE}')
o('s_waitcnt vmcnt(0)')
o(f'v_xor_b32 v20, v{SG+1}, v19')
for p in range(1,8):
    o(f'v_xor_b32 v21, v{SG+2*p+1}, v19'); o('v_or_b32 v20, v20, v21')
o('v_cmp_ne_u32 vcc, 0, v20')
o(f's_cbranch_vccz {dn}')
o('s_sleep 6')
o(f's_add_u32 s{sSP}, s{sSP}, 1'); o(f's_cmp_lt_u32 s{sSP}, 0x10000'); o(f's_cbranch_scc1 {lp}')
lab(dn)
stamp(5)
o('v_mov_b32 v20, 0')
for p in range(8):
    o(f'v_lshrrev_b32 v{SG+2*p+1}, 16, v{SG+2*p}')
    o(f'v_max_u32 v20, v20, v{SG+2*p+1}')
o('v_cmp_lt_u32 vcc, 32, v20')
l=U('nofb'); o(f's_cbranch_vccz {l}')
o('v_mov_b32 v21, 1'); o(f'ds_write_b32 v{VZ}, v21 offset:{C_FB}')
lab(l)
o(f's_mov_b32 s{sSP}, 0')
lr=U('recld'); dr=U('recok')
lab(lr)
for p in range(8):
    o(f'v_and_b32 v19, 0xffff, v{SG+2*p}')
    o(f'v_lshl_add_u32 v19, v19, 3, v{T+1}')
    o(f's_mov_b32 s{sA}, {p*32*CHCAP*8}')
    o(f'v_cmp_lt_u32 vcc, 16, v{SG+2*p+1}')
    o(f'buffer_load_dwordx4 {vr(RC0+4*p,4)}, v19, {sr(rREC,4)}, s{sA} offen sc1')
    l=U('ld1'); o(f's_cbranch_vccz {l}')
    o(f'buffer_load_dwordx4 {vr(RC1+4*p,4)}, v19, {sr(rREC,4)}, s{sA} offen offset:128 sc1')
    lab(l)
l=U('sig'); o(f's_cmp_lg_u32 s{sSP}, 0'); o(f's_cbranch_scc1 {l}_r')
lds_inc(C_RL,20)
o('s_waitcnt vmcnt(0)')
o(f's_branch {l}')
lab(l+'_r')
o('s_waitcnt vmcnt(0)')
lab(l)
o('v_mov_b32 v21, 0x05040100'); o('v_mov_b32 v22, 0'); o(f'v_mov_b32 v23, s{sNONCE}')
for p in range(8):
    for st in range(2):
        rec=(RC0 if st==0 else RC1)+4*p
        if st==1:
            l=U('v1'); o(f'v_cmp_lt_u32 vcc, 16, v{SG+2*p+1}'); o(f's_cbranch_vccz {l}')
        o(f'v_cmpx_lt_u32 vcc, v{IX+2*st}, v{SG+2*p+1}')
        o(f'v_perm_b32 v20, v{rec+3}, v{rec+1}, v21'); o('v_xor_b32 v20, v20, v23'); o('v_or_b32 v22, v22, v20')
        o('s_mov_b64 exec, -1')
        if st==1: lab(l)
o('v_cmp_ne_u32 vcc, 0, v22')
o(f's_cbranch_vccz {dr}')
o('s_sleep 2')
o(f's_add_u32 s{sSP}, s{sSP}, 1'); o(f's_cmp_lt_u32 s{sSP}, 0x10000'); o(f's_cbranch_scc1 {lr}')
lab(dr)
stamp(6)
def each_rec(fn):
    for p in range(8):
        for st in range(2):
            if st==1:
                l=U('st1'); o(f'v_cmp_lt_u32 vcc, 16, v{SG+2*p+1}'); o(f's_cbranch_vccz {l}')
            for i in range(2):
                rec=(RC0 if st==0 else RC1)+4*p+2*i
                o(f'v_cmpx_lt_u32 vcc, v{IX+2*st+i}, v{SG+2*p+1}')
                fn(rec, SA+4*p+2*st+i)
            o('s_mov_b64 exec, -1')
            if st==1: lab(l)
SD='dst_sel:DWORD dst_unused:UNUSED_PAD src0_sel:DWORD src1_sel:BYTE_0'
o('v_mov_b32 v22, 1'); o('v_mov_b32 v23, 64')
def f_hist(rec,sa):
    o(f'v_lshlrev_b32_sdwa v20, 2, v{rec} {SD}'); o(f'ds_add_rtn_u32 v{sa-SA+RKB}, v20, v22 offset:{DEG}')
each_rec(f_hist)
o('s_waitcnt lgkmcnt(0)')
lds_inc(C_E1,20)
stamp(7)
o(f's_cmp_lg_u32 s{sW}, 4')
o('s_cbranch_scc1 L_e_prefill')
lds_spin(C_E1,4,20)
D0,K0,P0=24,28,32
o('v_lshlrev_b32 v19, 2, v1')
for a in range(3): o(f'ds_read_b32 v{D0+a}, v19 offset:{DEG+a*256}')
perm=[]
for w in range(8): perm += ([w,w+4,11-w] if w<4 else [19-w,23-w]) if 'oldperm' not in OPT else ([w,15-w] + ([19-w] if w<4 else []))
o('v_mov_b32 v38, 31')
for i,g in enumerate(perm): o(f'v_writelane_b32 v38, {g}, {i}')
o('v_lshlrev_b32 v38, 2, v38')
o('v_sub_u32 v37, 252, v19')
o('s_waitcnt lgkmcnt(0)')
for a in range(3):
    o(f'v_min_u32 v{K0+a}, 63, v{D0+a}'); o(f'v_lshlrev_b32 v{K0+a}, 2, v{K0+a}')
    if a==2: o('v_cmpx_gt_u32 vcc, 32, v1')
    o(f'ds_add_rtn_u32 v{P0+a}, v{K0+a}, v22 offset:{HIST2}')
o('s_mov_b64 exec, -1')
o('s_waitcnt lgkmcnt(0)')
o(f'ds_read_b32 v36, v37 offset:{HIST2}')
for a in range(3): o(f'v_sub_u32 v{K0+a}, 252, v{K0+a}')
o('s_waitcnt lgkmcnt(0)')
o('v_mov_b32 v35, v36') if False else None
o('v_mov_b32 v39, v36')
scan64(36)
o('v_sub_u32 v36, v36, v39')
for a in range(3): o(f'ds_bpermute_b32 v{K0+a}, v{K0+a}, v36')
o('s_waitcnt lgkmcnt(0)')
for a in range(3):
    o(f'v_add_u32 v{P0+a}, v{P0+a}, v{K0+a}')
    o(f'v_add_u32 v21, {64*a}, v1')
    o(f'v_cmp_gt_u32 vcc, s{sNV}, v21')
    o(f'v_lshlrev_b32 v20, 3, v{P0+a}')
    o(f'v_lshrrev_b32 v{K0+a}, 3, v{P0+a}'); o(f'v_lshlrev_b32 v{K0+a}, 2, v{K0+a}')
    o('v_mov_b32 v40, 0x200000')
    o('v_and_b32 v43, 15, v21'); o('v_lshlrev_b32 v43, 4, v43'); o('v_lshl_add_u32 v43, v21, 9, v43')
    o('v_cndmask_b32 v42, v40, v21, vcc')
    if a==2: o('v_cmpx_gt_u32 vcc, 32, v1')
    o(f'ds_write_b64 v20, v[42:43] offset:{NODEOF}')
    o(f'ds_max_u32 v{K0+a}, v{D0+a} offset:{LG}')
o('s_mov_b64 exec, -1')
o('s_waitcnt lgkmcnt(0)')
o(f'ds_read_b32 v39, v38 offset:{LG}')
o('s_waitcnt lgkmcnt(0)')
o('v_add_u32 v39, 1, v39'); o('v_lshrrev_b32 v39, 1, v39')
o('v_mov_b32 v40, v39')
scan64(39)
o('v_sub_u32 v40, v39, v40')
o('v_lshlrev_b32 v40, 7, v40'); o(f'v_add_u32 v40, {ELL}, v40')
o(f'ds_write_b32 v38, v40 offset:{GBASE}')
o(f'v_readlane_b32 s{sA}, v39, 19')
o('s_waitcnt lgkmcnt(0)')
for a in range(3): o(f'ds_read_b32 v{K0+a}, v{K0+a} offset:{GBASE}')
o(f's_cmp_le_u32 s{sA}, {ELLB-4}')
l=U('fits'); o(f's_cbranch_scc1 {l}')
o('v_mov_b32 v21, 1'); o(f'ds_write_b32 v{VZ}, v21 offset:{C_FB}')
lab(l)
o('s_waitcnt lgkmcnt(0)')
for a in range(3):
    o(f'v_and_b32 v21, 7, v{P0+a}'); o(f'v_lshl_add_u32 v21, v21, 3, v{K0+a}')
    o(f'ds_write_b32 v19, v21 offset:{CUR+a*256}')
o('s_waitcnt lgkmcnt(0)')
lds_inc(C_SORT,20)
o('s_branch L_e_wait')
lab('L_e_prefill')
lds_spin(C_G,4,20)
o(f's_sub_u32 s{sA}, s{sW}, 5'); o(f's_lshl_b32 s{sA}, s{sA}, 10'); o(f's_add_u32 s{sA}, s{sA}, {ELL}')
o(f'v_lshlrev_b32 v20, 4, v1'); o(f'v_add_u32 v20, s{sA}, v20')
o(f'v_mov_b32 v24, {N*256}'); o('v_mov_b32 v25, 0'); o(f'v_mov_b32 v26, {N*256}'); o('v_mov_b32 v27, 0')
for i in range(12): o(f'ds_write_b128 v20, v[24:27] offset:{i*3072}')
o('s_waitcnt lgkmcnt(0)')
lds_inc(C_P,20)
lab('L_e_wait')
lds_spin(C_SORT,1,20)
lds_spin(C_P,3,20)
stamp(8)
o(f'ds_read_b32 v20, v{VZ} offset:{C_FB}'); o('s_waitcnt lgkmcnt(0)')
o(f'v_readfirstlane_b32 s{sA}, v20'); o(f's_cmp_lg_u32 s{sA}, 0'); o('s_cbranch_scc1 L_e_done')
def f_slot(rec,sa):
    o(f'v_lshlrev_b32_sdwa v20, 2, v{rec} {SD}'); o(f'ds_read_b32 v{sa}, v20 offset:{CUR}')
each_rec(f_slot)
o('s_waitcnt lgkmcnt(0)')
def f_put(rec,sa):
    o(f'v_lshl_add_u32 v{sa}, v{sa-SA+RKB}, 6, v{sa}'); o(f'v_and_b32 v{rec+1}, v24, v{rec+1}'); o(f'ds_write_b64 v{sa}, {vr(rec,2)}')
o('v_mov_b32 v24, 0xffff0000')
each_rec(f_put)
lab('L_e_done')
o('s_waitcnt lgkmcnt(0)')
stamp(9)
o(f's_cmp_lg_u32 s{sW}, 4')
o('s_cbranch_scc1 L_main_setup')
o('v_lshlrev_b32 v20, 4, v1')
o(f's_lshl_b32 s{sD}, s{sS}, 10'); o(f's_add_u32 s{sD}, s{sD}, {SEGT_FLAG2}')
o(f's_mov_b32 s{sSP}, 0')
lp=U('poll2'); dn=U('poll2d')
lab(lp)
o(f'buffer_load_dword v21, v20, {sr(rSEG,4)}, s{sD} offen sc1')
o('s_waitcnt vmcnt(0)')
o(f'v_cmp_ne_u32 vcc, s{sNONCE}, v21')
o(f's_cbranch_vccz {dn}')
o('s_sleep 2')
o(f's_add_u32 s{sSP}, s{sSP}, 1'); o(f's_cmp_lt_u32 s{sSP}, 0x10000'); o(f's_cbranch_scc1 {lp}')
lab(dn)
l=U('noep')
o('s_cmp_lg_u32 s2, 0'); o(f's_cbranch_scc1 {l}')
o('s_mov_b64 exec, 1')
o(f'v_mov_b32 v21, s{sNONCE}')
o(f'global_store_dword v{VZ}, v21, {sr(sEP,2)} sc1')
o('s_mov_b64 exec, -1')
lab(l)
LOFF,RP=2,3
S1A,S1B,S2A,S2B,ONE=4,8,12,16,20
WC=24; NUM=32; DEN=40; C=48; DX,DY=72,104; R0,R1=136,152
OFA,OFB,EA_,EB_,AD=168,170,172,174,176
lab('L_main_setup')
o('s_setprio 0')
stamp(10)
o(f'v_and_b32 v{LOFF}, 7, v1'); o(f'v_lshlrev_b32 v{LOFF}, 4, v{LOFF}')
o('v_bfe_u32 v196, v1, 3, 2'); o('v_bfe_u32 v197, v1, 2, 1'); o('v_lshrrev_b32 v198, 5, v1'); o('v_and_b32 v199, 3, v1')
o('v_cmp_eq_u32 vcc, v197, v198'); o('v_mov_b32 v195, 7'); o('v_and_b32 v193, 1, v196')
o('v_cndmask_b32 v199, v195, v199, vcc')
LO,HI=0x00003f80,0x3f800000
o('v_cmp_gt_u32 vcc, 2, v196'); o(f'v_mov_b32 v194, {LO:#x}'); o(f'v_mov_b32 v195, {HI:#x}')
o('v_cndmask_b32 v192, v194, v195, vcc')
o('v_cndmask_b32 v191, v195, v194, vcc')
o('v_lshl_add_u32 v199, v193, 3, v199')
for i in range(4):
    o(f'v_cmp_eq_u32 vcc, {i}, v199'); o(f'v_cmp_eq_u32 s[98:99], {8+i}, v199'); o('s_nop 0')
    o(f'v_cndmask_b32 v{S1A+i}, 0, v192, vcc'); o(f'v_cndmask_b32 v{S2A+i}, 0, v191, vcc')
    o(f'v_cndmask_b32 v{S1B+i}, 0, v192, s[98:99]'); o(f'v_cndmask_b32 v{S2B+i}, 0, v191, s[98:99]')
o('v_cmp_gt_u32 vcc, 32, v1')
for i in range(1,4): o(f'v_mov_b32 v{ONE+i}, 0')
o(f'v_cndmask_b32 v{ONE}, 0, v194, vcc')
for i in range(4):
    o(f'v_lshlrev_b32 v{WC+2*i}, 16, v{250+i}'); o(f'v_and_b32 v{WC+2*i+1}, 0xffff0000, v{250+i}')
for i in range(8): o(f'v_mul_f32 v{WC+i}, {NLOG2E:#x}, v{WC+i}')
for i in range(8):
    o(f'v_mov_b32 v{C+i}, 0'); o(f'v_mov_b32 v{C+16+i}, 0')
LOFF_=LOFF
sPAR,sNBT,sODD,sG1,sG2,sLN=97,47,96,46,13,14
NLN,LT,OA,AUN,XRN,UF,XF,VAUK,VKA,VOK=178,180,181,182,190,194,202,210,211,212
TM=214
o(f'v_add_u32 v{VAUK}, {AU}, v{LOFF}')
o(f'v_bfe_u32 v{TM}, v1, 1, 2'); o(f's_lshl_b32 s92, s{sS}, 3'); o(f'v_add_u32 v{TM}, s92, v{TM}'); o(f'v_lshlrev_b32 v{TM}, 4, v{TM}')
o(f'v_and_b32 v{TM+1}, 1, v1'); o(f'v_lshl_add_u32 v{VKA}, v{TM+1}, 3, v{TM}')
o(f's_lshl_b32 s92, s{sNB}, 9'); o(f's_lshl_b32 s93, s{sS}, 7'); o('s_add_u32 s92, s92, s93')
o(f'v_lshrrev_b32 v{TM}, 1, v{LOFF}'); o(f'v_add_u32 v{VOK}, s92, v{TM}')
o(f'v_lshrrev_b32 v{TM+2}, 3, v1'); o(f'v_lshlrev_b32 v{TM+2}, 3, v{TM+2}')
o(f's_sub_u32 s12, 19, s{sW}'); o(f's_cmp_lt_u32 s{sW}, 4'); o(f's_cselect_b32 s12, s{sW}, s12')
o(f's_add_u32 s{sG1}, s{sW}, 4'); o(f's_sub_u32 s92, 23, s{sW}'); o(f's_sub_u32 s{sG2}, 11, s{sW}')
o(f's_cmp_ge_u32 s{sW}, 4'); o(f's_cselect_b32 s{sG1}, s92, s{sG1}'); o(f's_cselect_b32 s{sG2}, -1, s{sG2}')
def node_prefetch(gs):
    o(f's_lshl_b32 s92, s{gs}, 6'); o(f'v_add_u32 v{TM}, s92, v{TM+2}'); o(f'ds_read_b64 {vr(NLN,2)}, v{TM} offset:{NODEOF}')
    o(f's_lshl_b32 s92, s{gs}, 2'); o(f'v_mov_b32 v{TM+1}, s92'); o(f'ds_read_b32 v{LT}, v{TM+1} offset:{LG}')
def raw_prefetch():
    o(f'v_lshl_add_u32 v{TM}, v{NLN}, 8, v{VAUK}')
    o(f'v_xor_b32 v{TM+1}, v{NLN+1}, v{VKA}'); o(f'v_xor_b32 v{TM+3}, 64, v{TM+1}')
    o(f'ds_read_b128 {vr(AUN,4)}, v{TM}'); o(f'ds_read_b128 {vr(AUN+4,4)}, v{TM} offset:128')
    o(f'ds_read_b64 {vr(XRN,2)}, v{TM+1} offset:{XT}'); o(f'ds_read_b64 {vr(XRN+2,2)}, v{TM+3} offset:{XT}')
o(f's_xor_b32 s15, s{sR}, 1'); o(f's_mul_i32 s15, s15, {RN*256}'); o(f's_mul_i32 s92, s{sW}, 5120'); o('s_add_u32 s15, s15, s92')
o(f'v_lshlrev_b32 v{TM+4}, 4, v1')
o('s_waitcnt vmcnt(0) lgkmcnt(0)')
o('s_barrier')
stamp(11)
if 'xE' in OPT: o('s_branch L_done')
if 'pre2' in OPT:
    for i in range(5):
        o(f'buffer_load_dwordx4 v[232:235], v{TM+4}, {sr(rTR,4)}, s15 offen sc1')
        o('s_add_u32 s15, s15, 1024')
o(f'ds_read_b32 v{TM+5}, v{VZ} offset:{C_FB}')
o(f's_lshl_b32 s{sA}, s12, 2'); o(f'v_mov_b32 v{TM+6}, s{sA}'); o(f'ds_read_b32 v{RP}, v{TM+6} offset:{GBASE}')
node_prefetch(12)
l=U('ap'); o(f's_cmp_ge_u32 s{sW}, 4'); o(f's_cbranch_scc1 {l}'); o('s_setprio 1'); lab(l)
o('s_waitcnt lgkmcnt(0)')
o(f'v_readfirstlane_b32 s{sA}, v{TM+5}'); o(f's_cmp_lg_u32 s{sA}, 0'); o('s_cbranch_scc1 L_fallback')
o(f'v_add_u32 v{RP}, v{RP}, v{TM+2}')
o(f'v_readfirstlane_b32 s{sLN}, v{LT}')
def mfma(d,a,b,c): o(f'v_mfma_f32_32x32x16_bf16 {vr(d,16)}, {vr(a,4)}, {vr(b,4)}, {c}')
def unpack_list(D,R):
    f=lambda d,a,b,c: f'v_mfma_f32_32x32x16_bf16 {vr(d,16)}, {vr(a,4)}, {vr(b,4)}, {c}'
    return [f(D,S1A,R,vr(C,16)), f(D,S1B,R+4,vr(D,16)), f(D+16,S2A,R+8,vr(C+8,16)), f(D+16,S2B,R+12,vr(D+16,16))]
def gfma(D,Er):
    for sl in range(2):
        for j in range(4):
            g=D+8+8*sl+2*j
            sel='op_sel:[0,0,0] op_sel_hi:[0,1,1]' if sl==0 else 'op_sel:[1,0,0] op_sel_hi:[1,1,1]'
            o(f'v_pk_fma_f32 {vr(g,2)}, {vr(Er,2)}, {vr(WC+2*j,2)}, {vr(g,2)} {sel}')
def loads(R,OF):
    o(f'v_and_or_b32 v{AD}, v{OF}, s{sM}, v{LOFF}'); o(f'v_and_or_b32 v{AD+1}, v{OF+1}, s{sM}, v{LOFF}')
    o(f'buffer_load_dwordx4 {vr(R,4)}, v{AD}, {sr(rTR,4)}, 0 offen sc1')
    o(f'buffer_load_dwordx4 {vr(R+4,4)}, v{AD}, {sr(rTR,4)}, 0 offen offset:128 sc1')
    o(f'buffer_load_dwordx4 {vr(R+8,4)}, v{AD+1}, {sr(rTR,4)}, 0 offen sc1')
    o(f'buffer_load_dwordx4 {vr(R+12,4)}, v{AD+1}, {sr(rTR,4)}, 0 offen offset:128 sc1')
def rd_off(dst,b): o(f'ds_read2_b32 {vr(dst,2)}, v{RP} offset0:{b*32} offset1:{b*32+16}')
def rd_e(dst,b): o(f'ds_read2_b32 {vr(dst,2)}, v{RP} offset0:{b*32+1} offset1:{b*32+17}')
def dsreads(P):
    OFn=OFB if P==0 else OFA; En=EB_ if P==0 else EA_
    rd_off(OFn,P+3); rd_e(En,P+1)
    if P==1: o(f'v_add_u32 v{RP}, 256, v{RP}')
def accum(D):
    for sl in range(2):
        for j in range(4):
            g=D+8+8*sl+2*j
            o(f'v_pk_add_f32 {vr(DEN+2*j,2)}, {vr(DEN+2*j,2)}, {vr(g,2)}')
            v=(D+2*j) if sl==0 else (D+24+2*j)
            o(f'v_pk_fma_f32 {vr(NUM+2*j,2)}, {vr(g,2)}, {vr(v,2)}, {vr(NUM+2*j,2)}')
Ds=[DX,DY]; Rs=[R0,R1]; OFs=[OFA,OFB]; Es=[EA_,EB_]
rd_off(OFA,0); rd_off(OFB,1)
raw_prefetch()
o('s_waitcnt lgkmcnt(4)')
loads(R0,OFA); loads(R1,OFB)
rd_off(OFA,2); rd_e(EA_,0)
o(f's_mov_b32 s{sPAR}, 0')
if PROF: o('s_mov_b32 s3, 0')
lab('L_group')
o(f's_min_u32 s{sLN}, s{sLN}, {2*ELLB}')
o(f's_and_b32 s{sODD}, s{sLN}, 1'); o(f's_add_u32 s{sNBT}, s{sLN}, 1'); o(f's_lshr_b32 s{sNBT}, s{sNBT}, 1')
o(f'v_lshl_add_u32 v{OA}, v{NLN}, 9, v{VOK}')
mfma(NUM,C,C,'0')
o('s_waitcnt lgkmcnt(0)')
for i in range(8): o(f'v_lshlrev_b32 v{C+8+i}, 16, v{AUN+i}')
l=U('nonext')
o(f's_cmp_eq_u32 s{sG1}, -1'); o(f's_cbranch_scc1 {l}')
node_prefetch(sG1)
lab(l)
for i in range(8): o(f'v_and_b32 v{UF+i}, 0xffff0000, v{AUN+i}')
for i in range(4):
    o(f'v_lshlrev_b32 v{XF+2*i}, 16, v{XRN+i}'); o(f'v_and_b32 v{XF+2*i+1}, 0xffff0000, v{XRN+i}')
if PROF:
    o(f's_memtime s[100:101]'); o('s_waitcnt lgkmcnt(0)')
    o(f's_add_u32 m0, s3, 36'); o('s_nop 3'); o('v_writelane_b32 v255, s100, m0')
    o(f's_add_u32 m0, s3, 60'); o('s_nop 3'); o(f'v_writelane_b32 v255, s{sLN}, m0')
o(f's_cmp_eq_u32 s{sNBT}, 0'); o('s_cbranch_scc1 L_epi')
o(f's_cmp_eq_u32 s{sPAR}, 1'); o('s_cbranch_scc1 L_gs1')
def exps(D): return [f'v_exp_f32 v{D+8+i}, v{D+8+i}' for i in range(16)]
def rcps(D): return [f'v_rcp_f32 v{D+8+i}, v{D+8+i}' for i in range(16)]
for P in range(2):
    lab(f'L_gs{P}')
    o('s_waitcnt vmcnt(4)')
    for t in unpack_list(Ds[P],Rs[P]): o(t)
    o('s_waitcnt lgkmcnt(0)')
    loads(Rs[P],OFs[P])
    dsreads(P)
    o('s_nop 7')
    gfma(Ds[P],Es[P])
    o(f's_branch L_body{P}')
for P in range(2):
    Q=P^1
    lab(f'L_body{P}')
    o(f's_sub_u32 s{sNBT}, s{sNBT}, 1'); o(f's_cmp_eq_u32 s{sNBT}, 0'); o(f's_cbranch_scc1 L_last{P}')
    ex=exps(Ds[P]); un=unpack_list(Ds[Q],Rs[Q])
    o('s_waitcnt vmcnt(4)')
    for k in range(4):
        o(un[k])
        for t in ex[4*k:4*k+4]: o(t)
    o('s_nop 1')
    mfma(Ds[P]+8,ONE,ONE,vr(Ds[P]+8,16))
    o('s_waitcnt lgkmcnt(0)')
    loads(Rs[Q],OFs[Q])
    o('s_nop 2')
    dsreads(Q)
    for t in rcps(Ds[P]): o(t)
    gfma(Ds[Q],Es[Q])
    accum(Ds[P])
    if P==1: o('s_branch L_body0')
for P in range(2):
    lab(f'L_last{P}')
    D=Ds[P]
    o(f's_cmp_eq_u32 s{sODD}, 1'); o(f's_cbranch_scc1 L_half{P}')
    for t in exps(D): o(t)
    o('s_nop 1')
    mfma(D+8,ONE,ONE,vr(D+8,16))
    o('s_nop 7'); o('s_nop 3')
    for t in rcps(D): o(t)
    accum(D)
    o(f's_mov_b32 s{sPAR}, {P^1}')
    o('s_branch L_epi')
    lab(f'L_half{P}')
    for t in exps(D)[:8]: o(t)
    for j in range(4): o(f'v_pk_add_f32 {vr(D+8+2*j,2)}, {vr(D+8+2*j,2)}, 1.0 op_sel_hi:[1,0]')
    for t in rcps(D)[:8]: o(t)
    for j in range(4):
        g=D+8+2*j
        o(f'v_pk_add_f32 {vr(DEN+2*j,2)}, {vr(DEN+2*j,2)}, {vr(g,2)}')
        o(f'v_pk_fma_f32 {vr(NUM+2*j,2)}, {vr(g,2)}, {vr(D+2*j,2)}, {vr(NUM+2*j,2)}')
    o(f's_mov_b32 s{sPAR}, {P^1}')
    if P==0: o('s_branch L_epi')
lab('L_epi')
if PROF:
    o(f's_memtime s[100:101]'); o('s_waitcnt lgkmcnt(0)')
    o(f's_add_u32 m0, s3, 40'); o('s_nop 3'); o('v_writelane_b32 v255, s100, m0')
l=U('nonext2')
o(f's_cmp_eq_u32 s{sG1}, -1'); o(f's_cbranch_scc1 {l}')
o('s_waitcnt lgkmcnt(0)')
o(f'v_readfirstlane_b32 s{sLN}, v{LT}')
raw_prefetch()
lab(l)
o('s_mov_b32 s92, 0x358637bd'); o('s_mov_b32 s93, 0x358637bd')
for j in range(4): o(f'v_pk_add_f32 {vr(DEN+2*j,2)}, {vr(DEN+2*j,2)}, s[92:93]')
for i in range(8): o(f'v_rcp_f32 v{DEN+i}, v{DEN+i}')
o('s_nop 0')
for j in range(4): o(f'v_pk_fma_f32 {vr(UF+2*j,2)}, {vr(NUM+2*j,2)}, {vr(DEN+2*j,2)}, {vr(UF+2*j,2)}')
for i in range(8): o(f'v_max_f32 v{UF+i}, 0, v{UF+i}')
for j in range(4): o(f'v_pk_add_f32 {vr(UF+2*j,2)}, {vr(UF+2*j,2)}, {vr(XF+2*j,2)}')
for i in range(4): o(f'v_cvt_pk_bf16_f32 v{UF+i}, v{UF+2*i}, v{UF+2*i+1}')
o(f'buffer_store_dwordx2 {vr(UF,2)}, v{OA}, {sr(rOUT,4)}, 0 offen')
o(f'buffer_store_dwordx2 {vr(UF+2,2)}, v{OA}, {sr(rOUT,4)}, 0 offen offset:64')
if PROF:
    o(f's_memtime s[100:101]'); o('s_waitcnt lgkmcnt(0)')
    o(f's_add_u32 m0, s3, 56'); o('s_nop 3'); o('v_writelane_b32 v255, s100, m0')
    o('s_add_u32 s3, s3, 1')
o(f's_cmp_eq_u32 s{sG1}, -1'); o('s_cbranch_scc1 L_done')
o(f's_mov_b32 s{sG1}, s{sG2}'); o(f's_mov_b32 s{sG2}, -1')
o('s_branch L_group')
lab('L_done')
stamp(12)
if PROF:
    o('s_waitcnt vmcnt(0)')
    srd_off(92,sWS,WS_PROF,0x100000)
    o(f's_lshl_b32 s96, s2, 3'); o(f's_add_u32 s96, s96, s{sW}'); o('s_lshl_b32 s96, s96, 8')
    o('v_lshlrev_b32 v2, 2, v1')
    o('buffer_store_dword v255, v2, s[92:95], s96 offen')
o('s_endpgm')
lab('L_codeend')
lab('L_fallback')
FN,FD,FA,FU,FW=10,11,12,13,14
o('v_lshlrev_b32 v5, 2, v1')
o(f's_lshl_b32 s92, s{sS}, 7')
o('v_lshlrev_b32 v6, 1, v1'); o(f'v_add_u32 v6, s92, v6')
srd(64,sWC,512)
o(f'buffer_load_ushort v{FW}, v6, s[64:67], 0 offen')
o('s_waitcnt vmcnt(0)')
o(f'v_lshlrev_b32 v{FW}, 16, v{FW}'); o(f'v_mul_f32 v{FW}, {NLOG2E:#x}, v{FW}')
o(f's_mov_b32 s46, s{sW}')
lab('L_fb_node')
o(f's_cmp_ge_u32 s46, s{sNV}'); o('s_cbranch_scc1 L_fb_end')
o(f's_lshl_b32 s92, s46, 8'); o(f's_add_u32 s92, s92, {AU}'); o(f'v_add_u32 v7, s92, v5'); o('ds_read_b32 v8, v7')
o('s_waitcnt lgkmcnt(0)')
o(f'v_lshlrev_b32 v{FA}, 16, v8'); o(f'v_and_b32 v{FU}, 0xffff0000, v8')
o(f'v_mov_b32 v{FN}, 0'); o(f'v_mov_b32 v{FD}, 0')
o(f's_add_u32 s47, s46, s{sNB}')
o('s_mov_b32 s93, 0')
lab('L_fb_e')
o('v_add_u32 v7, s93, v1'); o('v_lshlrev_b32 v8, 2, v7'); o('v_lshlrev_b32 v7, 1, v7')
o(f'buffer_load_dword v15, v8, {sr(rDST,4)}, 0 offen')
o(f'buffer_load_dword v16, v8, {sr(rSRC,4)}, 0 offen')
o(f'buffer_load_ushort v17, v7, {sr(rEA,4)}, 0 offen')
o('s_waitcnt vmcnt(0)')
o('v_cmp_eq_u32 vcc, s47, v15')
o('s_mov_b64 s[94:95], vcc')
lab('L_fb_m')
o('s_cmp_eq_u64 s[94:95], 0'); o('s_cbranch_scc1 L_fb_next')
o('s_ff1_i32_b64 s96, s[94:95]')
o('s_bitset0_b64 s[94:95], s96')
o('v_readlane_b32 s97, v16, s96'); o('v_readlane_b32 s92, v17, s96')
o('s_nop 1')
o('s_lshl_b32 s97, s97, 8'); o('s_lshl_b32 s92, s92, 16')
o('s_nop 4')
o(f'buffer_load_dword v18, v5, {sr(rTR,4)}, s97 offen sc1')
o('s_waitcnt vmcnt(0)')
o('v_lshlrev_b32 v19, 16, v18'); o('v_and_b32 v18, 0xffff0000, v18')
o(f'v_add_f32 v19, v19, v{FA}'); o(f'v_fmac_f32 v19, s92, v{FW}')
o('v_exp_f32 v19, v19'); o('s_nop 0'); o('v_add_f32 v19, 1.0, v19'); o('v_rcp_f32 v19, v19'); o('s_nop 0')
o(f'v_add_f32 v{FD}, v{FD}, v19'); o(f'v_fmac_f32 v{FN}, v19, v18')
o('s_branch L_fb_m')
lab('L_fb_next')
o('s_add_u32 s93, s93, 64'); o(f's_cmp_lt_u32 s93, {E}'); o('s_cbranch_scc1 L_fb_e')
o('s_mov_b32 s92, 0x358637bd')
o(f'v_add_f32 v{FD}, s92, v{FD}'); o(f'v_rcp_f32 v{FD}, v{FD}'); o('s_nop 0')
o(f'v_fmac_f32 v{FU}, v{FN}, v{FD}'); o(f'v_max_f32 v{FU}, 0, v{FU}')
o('s_lshl_b32 s92, s47, 9')
o(f'buffer_load_ushort v18, v6, {sr(rX,4)}, s92 offen')
o('s_waitcnt vmcnt(0)')
o(f'v_lshlrev_b32 v18, 16, v18'); o(f'v_add_f32 v{FU}, v{FU}, v18')
o(f'v_cvt_pk_bf16_f32 v18, v{FU}, v{FU}')
o(f'buffer_store_short v18, v6, {sr(rOUT,4)}, s92 offen')
o('s_add_u32 s46, s46, 8'); o('s_branch L_fb_node')
lab('L_fb_end')
lab('L_end')
o('s_endpgm')
L=[x for x in L if x is not None]
hdr=open('gather_scatter__edge_featured_mpnn_gatedgcn__graph.s.ref').read().split('; Override')[0]
out=hdr+f'''; Generated by dev/gen2.py (hand-written generator). One fused persistent launch, 1 workgroup per CU.
; @launch grid=(256,1,1) block=(512,1,1) lds={LDS_TOTAL}
.amdgcn_target "amdgcn-amd-amdhsa--gfx950"
.text
.globl {NAME}
.p2align 8
.type {NAME},@function
'''+'\n'.join(L)+f'''
.section .rodata,"a"
.p2align 6
.amdhsa_kernel {NAME}
  .amdhsa_next_free_vgpr 256
  .amdhsa_next_free_sgpr 102
  .amdhsa_accum_offset 256
  .amdhsa_group_segment_fixed_size 0
  .amdhsa_kernarg_size 96
  .amdhsa_user_sgpr_count 2
  .amdhsa_user_sgpr_kernarg_segment_ptr 1
  .amdhsa_system_sgpr_workgroup_id_x 1
.end_amdhsa_kernel
'''
fn=[a for a in sys.argv[1:] if not a.startswith('--')]
open(fn[0] if fn else 'k.s','w').write(out)
```

```python
import sys
NAME='gather_scatter__edge_featured_mpnn_gatedgcn__graph_kernel'
PROF = '--prof' in sys.argv
OPT = {a.split('=')[0][2:]:(a.split('=')[1] if '=' in a else '1') for a in sys.argv[1:] if a.startswith('--')}
N=10000; E=160000; RN=157; CH=625; CHCAP=704
SLICE=10240*256
WS_RECS=0xA00000; WS_SEGT=0xB80000; SEGT_FLAG2=0x20000; WS_EPOCH=0xBB0000; WS_PROF=0xC00000
HIST1=0; DEG=256; HIST2=1024; LG=1280; GBASE=1408; CUR=1536; NODEOF=2304; CNT=3840
C_W=CNT; C_G=CNT+4; C_T=CNT+8; C_E1=CNT+12; C_SORT=CNT+16; C_P=CNT+20; C_FB=CNT+24; C_X=CNT+28; C_G1=CNT+32; C_H=CNT+36; C_R=CNT+40; C_X2=CNT+44; C_S=CNT+48; C_RL=CNT+52; C_X1=CNT+56
XT=4096; WR=XT+81920; AU=WR; ELL=WR+40960; ELLB=288
LDS_TOTAL=163840
RST=WR+65536
assert ELL+ELLB*128==LDS_TOTAL
NLOG2E=0xbfb8aa3b
sEP=4
sI,sROT,sTL,sWROT=6,7,8,9
sM=10
sX,sEA,sSRC,sDST,sWA,sWB,sWC,sWU=16,18,20,22,24,26,28,30
sWV,sOUT,sDBG,sWS=32,34,36,38
sW,sS,sR,sNONCE,sNB,sNV=40,41,42,43,44,45
rX,rDST,rSRC,rEA,rW1,rW2,rTW,rTR,rREC,rSEG,rOUT=48,52,56,60,64,68,72,76,80,84,88
sA,sB,sC_,sD,sSP=92,93,94,95,96
L=[]
def o(t): L.append('  '+t)
def lab(t): L.append(t+':')
def vr(a,n): return f'v[{a}:{a+n-1}]' if n>1 else f'v{a}'
def sr(a,n): return f's[{a}:{a+n-1}]'
uid=[0]
def U(p):
    uid[0]+=1; return f'L_{p}_{uid[0]}'
def srd(r,base,size):
    o(f's_mov_b32 s{r}, s{base}'); o(f's_mov_b32 s{r+1}, s{base+1}')
    o(f's_mov_b32 s{r+2}, {size}'); o(f's_mov_b32 s{r+3}, 0x20000')
def srd_off(r,base,off,size):
    o(f's_add_u32 s{r}, s{base}, {off}'); o(f's_addc_u32 s{r+1}, s{base+1}, 0')
    o(f's_mov_b32 s{r+2}, {size}'); o(f's_mov_b32 s{r+3}, 0x20000')
def dstamp(slot, neg=False):
    if 'dbgt' not in OPT: return
    o('s_memrealtime s[100:101]'); o('s_waitcnt lgkmcnt(0)')
    if neg: o('s_not_b32 s100, s100')
    o('v_mov_b32 v254, s100'); o(f'v_mov_b32 v246, {slot*4}')
    o('s_mov_b64 exec, 1'); o(f'global_atomic_umax v246, v254, {sr(sDBG,2)}'); o('s_mov_b64 exec, -1')
def stamp(idx):
    if not PROF: return
    o(f's_memrealtime s[100:101]'); o('s_waitcnt lgkmcnt(0)'); o(f'v_writelane_b32 v255, s100, {idx}')
    o(f's_memtime s[100:101]'); o('s_waitcnt lgkmcnt(0)'); o(f'v_writelane_b32 v255, s100, {idx+32}')
VZ=248
def lds_spin(addr, need, vtmp):
    l=U('spin'); d=U('spind')
    o(f's_mov_b32 s{sSP}, 0')
    lab(l)
    o(f'ds_read_b32 v{vtmp}, v{VZ} offset:{addr}')
    o('s_waitcnt lgkmcnt(0)')
    o(f'v_readfirstlane_b32 s{sA}, v{vtmp}')
    o(f's_add_u32 s{sSP}, s{sSP}, 1')
    o(f's_cmp_ge_u32 s{sA}, {need}')
    o(f's_cbranch_scc1 {d}')
    o('s_sleep 1')
    o(f's_cmp_lt_u32 s{sSP}, 0x40000')
    o(f's_cbranch_scc1 {l}')
    lab(d)
def lds_inc(addr, vtmp, ret=False):
    o(f'v_mov_b32 v{vtmp}, 1')
    o('s_mov_b64 exec, 1')
    if ret:
        o(f'ds_add_rtn_u32 v{vtmp}, v{VZ}, v{vtmp} offset:{addr}')
        o('s_waitcnt lgkmcnt(0)')
        o(f'v_readfirstlane_b32 s{sA}, v{vtmp}')
    else:
        o(f'ds_add_u32 v{VZ}, v{vtmp} offset:{addr}')
    o('s_mov_b64 exec, -1')
def scan64(v):
    for sh in (1,2,4,8):
        o('s_nop 1'); o(f'v_add_u32_dpp v{v}, v{v}, v{v} row_shr:{sh} row_mask:0xf bank_mask:0xf')
    o('s_nop 1'); o(f'v_add_u32_dpp v{v}, v{v}, v{v} row_bcast:15 row_mask:0xa bank_mask:0xf')
    o('s_nop 1'); o(f'v_add_u32_dpp v{v}, v{v}, v{v} row_bcast:31 row_mask:0xc bank_mask:0xf')
    o('s_nop 1')
lab(NAME)
if 'dbgt' in OPT: o('s_memrealtime s[8:9]') if False else o('s_memrealtime s[100:101]')
o('s_cmp_ge_u32 s2, 256')
o('s_cbranch_scc1 L_end')
o('s_load_dwordx16 s[16:31], s[0:1], 0')
o('s_load_dwordx8 s[32:39], s[0:1], 64')
o('v_and_b32 v1, 63, v0')
o('v_lshrrev_b32 v2, 6, v0')
o(f'v_mov_b32 v{VZ}, 0')
o(f'v_readfirstlane_b32 s{sW}, v2')
o('s_getpc_b64 s[12:13]')
lab('L_pc')
if 'nopf' not in OPT:
    o(f's_cmp_lg_u32 s{sW}, 7'); o('s_cbranch_scc1 L_nopf')
    o('s_lshr_b32 s3, s2, 3'); o('s_lshl_b32 s3, s3, 10')
    o('v_lshl_add_u32 v2, v1, 4, s3')
    o('v_cmp_gt_u32 vcc, L_codeend-L_pc-16, v2')
    o('s_and_saveexec_b64 s[98:99], vcc')
    o('s_cbranch_execz L_nopf2')
    o('global_load_dwordx4 v[240:243], v2, s[12:13]')
    lab('L_nopf2')
    o('s_mov_b64 exec, -1')
    lab('L_nopf')
o('v_lshlrev_b32 v17, 3, v0'); o('v_mov_b32 v20, 0'); o('v_mov_b32 v21, 0')
o('ds_write_b64 v17, v[20:21]')
o(f's_and_b32 s{sS}, s2, 7'); o(f's_lshr_b32 s{sS}, s{sS}, 1')
o(f's_lshr_b32 s{sR}, s2, 3'); o(f's_lshl_b32 s{sR}, s{sR}, 1'); o(f's_and_b32 s{sA}, s2, 1'); o(f's_or_b32 s{sR}, s{sR}, s{sA}')
o(f's_mul_i32 s{sNB}, s{sR}, {RN}')
o(f's_sub_u32 s{sNV}, {N}, s{sNB}'); o(f's_min_u32 s{sNV}, s{sNV}, {RN}')
if PROF: o('v_mov_b32 v255, 0')
for _v in (56,57,58,59,60,61,62,63,240,241,242,243): o(f'v_mov_b32 v{_v}, 0')
o(f's_mul_i32 s{sROT}, s{sS}, 5'); o(f's_add_u32 s{sROT}, s{sROT}, 1'); o(f's_lshr_b32 s{sROT}, s{sROT}, 1')
o(f's_lshr_b32 s{sWROT}, s2, 3')
o(f's_mov_b32 s{sM}, 0xffffff00')
def build_common():
    srd(rOUT,sOUT,N*512)
    o(f's_mul_i32 s{sA}, s{sS}, {SLICE}')
    o(f's_add_u32 s{rTW}, s{sWS}, s{sA}'); o(f's_addc_u32 s{rTW+1}, s{sWS+1}, 0')
    o(f's_add_u32 s{sA}, s{sNB}, s{sNV}'); o(f's_lshl_b32 s{rTW+2}, s{sA}, 8'); o(f's_mov_b32 s{rTW+3}, 0x20000')
    o(f's_mov_b32 s{rTR}, s{rTW}'); o(f's_mov_b32 s{rTR+1}, s{rTW+1}'); o(f's_mov_b32 s{rTR+2}, {(N+1)*256}'); o(f's_mov_b32 s{rTR+3}, 0x20000')
    srd_off(rSEG,sWS,WS_SEGT,0x21000)
    o(f's_add_u32 s{sEP}, s{sWS}, {WS_EPOCH}'); o(f's_addc_u32 s{sEP+1}, s{sWS+1}, 0')
    o(f's_load_dword s{sNONCE}, {sr(sEP,2)}, 0')
def wc_load():
    o('v_and_b32 v17, 7, v1'); o('v_lshlrev_b32 v17, 3, v17')
    o(f's_lshl_b32 s{sA}, s{sS}, 7'); o(f'v_add_u32 v17, s{sA}, v17')
    srd(rREC,sWC,512)
    o(f'buffer_load_dwordx2 v[250:251], v17, {sr(rREC,4)}, 0 offen')
    o(f'buffer_load_dwordx2 v[252:253], v17, {sr(rREC,4)}, 0 offen offset:64')
def wvoff(dst, wexpr_s):
    o('v_lshrrev_b32 v17, 3, v1')
    o(f's_lshl_b32 s{sA}, s{wexpr_s}, 3'); o(f'v_add_u32 v17, s{sA}, v17')
    o('v_bfe_u32 v20, v1, 4, 1')
    o(f's_and_b32 s{sA}, s{wexpr_s}, 1'); o(f's_lshl_b32 s{sA}, s{sA}, 1'); o(f'v_or_b32 v20, s{sA}, v20')
    o('v_bfe_u32 v19, v1, 1, 2'); o('v_xor_b32 v19, v19, v20'); o('v_lshlrev_b32 v19, 1, v19')
    o('v_and_b32 v20, 1, v1'); o('v_or_b32 v19, v19, v20')
    o('v_lshlrev_b32 v19, 4, v19'); o('v_lshl_add_u32 v19, v17, 9, v19')
    o(f's_lshl_b32 s{sA}, s{sS}, 7'); o(f'v_add_u32 v{dst}, s{sA}, v19')
o(f's_cmp_ge_u32 s{sW}, 4')
o('s_cbranch_scc1 L_e0')
o('v_lshrrev_b32 v17, 5, v1')
o(f's_lshl_b32 s{sA}, s{sW}, 1'); o(f'v_add_u32 v17, s{sA}, v17')
o('v_and_b32 v18, 31, v1'); o('v_and_b32 v19, 15, v17'); o('v_xor_b32 v22, v18, v19')
o('v_lshlrev_b32 v22, 4, v22'); o('v_lshl_add_u32 v22, v17, 9, v22')
o('v_add_u32 v17, 8, v17'); o('v_and_b32 v19, 15, v17'); o('v_xor_b32 v23, v18, v19')
o('v_lshlrev_b32 v23, 4, v23'); o('v_lshl_add_u32 v23, v17, 9, v23')
wvoff(249,sW)
o('s_waitcnt lgkmcnt(0)')
if 'dbgt' in OPT:
    o('s_not_b32 s100, s100'); o('v_mov_b32 v254, s100'); o('v_mov_b32 v246, 0'); o('s_mov_b64 exec, 1'); o(f'global_atomic_umax v246, v254, {sr(sDBG,2)}'); o('s_mov_b64 exec, -1')
    dstamp(1,True); dstamp(2)
o('s_barrier')
stamp(0)
if 'stlb' in OPT:
    def touch(base, off_s=None, off_i=0):
        if off_s is None and off_i==0:
            o(f's_load_dword s13, {sr(base,2)}, 0'); return
        if off_s is not None:
            o(f's_add_u32 s14, s{base}, s{off_s}'); o(f's_addc_u32 s15, s{base+1}, 0')
            if off_i: o(f's_add_u32 s14, s14, {off_i}'); o('s_addc_u32 s15, s15, 0')
        else:
            o(f's_add_u32 s14, s{base}, {off_i}'); o(f's_addc_u32 s15, s{base+1}, 0')
        o('s_load_dword s13, s[14:15], 0')
    o(f's_lshl_b32 s3, s{sNB}, 9')
    touch(sX,3); touch(sWB); touch(sWV); touch(sWA); touch(sWU); touch(sOUT,3)
    touch(sWS,None,WS_RECS)
    o(f's_mul_i32 s3, s{sS}, {SLICE}')
    touch(sWS,3); touch(sWS,3,0x100000); touch(sWS,3,0x200000); touch(sWS,3,SLICE-256)
wc_load()
srd(rX,sX,N*512); srd(rW1,sWB,131072); srd(rW2,sWV,131072)
o(f's_lshl_b32 s{sC_}, s{sW}, 10')
o(f's_mov_b32 s{sTL}, s{sROT}')
o(f's_mov_b32 s{sI}, 0')
lab('L_dmaw')
o(f's_add_u32 s{sA}, s{sI}, s{sWROT}'); o(f's_and_b32 s{sA}, s{sA}, 7')
o(f's_lshl_b32 s{sB}, s{sA}, 14'); o(f's_lshl_b32 s{sA}, s{sA}, 12'); o(f's_add_u32 s{sA}, s{sA}, s{sC_}')
o(f's_add_u32 m0, s{sA}, {WR}'); o('s_nop 0')
o(f'buffer_load_dwordx4 v249, {sr(rW1,4)}, s{sB} offen lds')
o(f's_add_u32 m0, s{sA}, {WR+32768}'); o('s_nop 0')
o(f'buffer_load_dwordx4 v249, {sr(rW2,4)}, s{sB} offen lds')
o('s_waitcnt vmcnt(%s)' % OPT.get('pace','8'))
o(f's_add_u32 s{sI}, s{sI}, 1'); o(f's_cmp_lt_u32 s{sI}, 8'); o('s_cbranch_scc1 L_dmaw')
def xloop(lo,hi,name):
    o(f's_mov_b32 s{sI}, {lo}')
    lab(name)
    o(f's_lshr_b32 s{sTL}, s{sI}, 1'); o(f's_and_b32 s{sA}, s{sI}, 1'); o(f's_mul_i32 s{sA}, s{sA}, 5'); o(f's_add_u32 s{sTL}, s{sTL}, s{sA}')
    o(f's_lshl_b32 s{sA}, s{sTL}, 13'); o(f's_add_u32 s{sD}, s{sA}, s{sC_}'); o(f's_add_u32 m0, s{sD}, {XT}')
    o(f's_lshl_b32 s{sB}, s{sNB}, 9'); o(f's_add_u32 s{sB}, s{sB}, s{sA}')
    o(f'buffer_load_dwordx4 v22, {sr(rX,4)}, s{sB} offen lds')
    o(f's_add_u32 m0, s{sD}, {XT+4096}'); o('s_nop 0')
    o(f'buffer_load_dwordx4 v23, {sr(rX,4)}, s{sB} offen lds')
    o('s_waitcnt vmcnt(%s)' % OPT.get('pace','8'))
    o(f's_add_u32 s{sI}, s{sI}, 1'); o(f's_cmp_lt_u32 s{sI}, {hi}'); o(f's_cbranch_scc1 {name}')
xloop(0,4,'L_dmax1')
stamp(19)
build_common()
srd(rDST,sDST,E*4); srd(rSRC,sSRC,E*4); srd(rEA,sEA,E*2); srd_off(rREC,sWS,WS_RECS,256*CHCAP*8)
WF,AF,ACC,XA,XC,TRA,TOF,AUA=64,192,224,56,60,240,241,242
o(f's_and_b32 s{sD}, s{sW}, 1'); o(f's_lshl_b32 s{sD}, s{sD}, 1')
o('v_lshrrev_b32 v17, 4, v1')
o('v_bfe_u32 v18, v1, 2, 2')
o('v_lshl_add_u32 v19, v17, 3, v18')
o('v_lshlrev_b32 v19, 7, v19')
o('v_bfe_u32 v20, v1, 3, 1')
o('v_and_b32 v21, 1, v17'); o('v_lshl_or_b32 v20, v21, 1, v20')
o(f'v_xor_b32 v20, s{sD}, v20')
o('v_and_b32 v21, 3, v1'); o('v_lshl_add_u32 v19, v21, 3, v19'); o(f'v_add_u32 v19, {WR}, v19')
o(f'v_lshl_add_u32 v{TRA}, v20, 5, v19')
o('v_xor_b32 v20, 1, v20'); o(f'v_lshl_add_u32 v{TRA+3}, v20, 5, v19')
def wfrags():
    for m in range(2):
        for t in range(2):
            for ks in range(8):
                r=WF+64*m+32*t+4*ks; a=TRA if t==0 else TRA+3
                o(f'ds_read_b64_tr_b16 {vr(r,2)}, v{a} offset:{m*32768+ks*4096}')
                o(f'ds_read_b64_tr_b16 {vr(r+2,2)}, v{a} offset:{m*32768+ks*4096+512}')
o('v_and_b32 v18, 15, v1')
for k in range(4):
    o(f'v_and_b32 v19, 12, v18'); o(f'v_xor_b32 v19, {4*k}, v19')
    o('v_and_b32 v20, 3, v18'); o('v_xor_b32 v20, v20, v17')
    o('v_add_u32 v19, v19, v20'); o('v_lshlrev_b32 v19, 4, v19')
    o(f'v_lshl_add_u32 v{XA+k}, v18, 9, v19')
    o(f'v_add_u32 v{XA+k}, {XT}, v{XA+k}')
o('v_lshlrev_b32 v19, 10, v17')
o(f's_lshl_b32 s{sA}, s{sD}, 6')
o('v_lshl_add_u32 v19, v18, 2, v19'); o(f'v_add_u32 v{TOF}, s{sA}, v19')
o(f's_lshr_b32 s{sROT}, s{sW}, 1'); o(f's_mul_i32 s{sROT}, s{sROT}, 5')

o('s_waitcnt vmcnt(8) lgkmcnt(0)')
o(f's_mul_i32 s{sNONCE}, s{sNONCE}, 0x9E3779B1'); o(f's_add_u32 s{sNONCE}, s{sNONCE}, 0x7F4A7C15')
lds_inc(C_X,244)
lds_spin(C_X,4,244)
stamp(2)
wfrags()
o('s_waitcnt lgkmcnt(0)')
o(f's_lshl_b32 s{sC_}, s{sW}, 10')
lds_inc(C_W,244)
lds_spin(C_W,4,244)
srd(rW1,sWA,131072); srd(rW2,sWU,131072)
o(f's_mov_b32 s{sI}, 0')
lab('L_dmau')
o(f's_add_u32 s{sA}, s{sI}, s{sWROT}'); o(f's_and_b32 s{sA}, s{sA}, 7')
o(f's_lshl_b32 s{sB}, s{sA}, 14'); o(f's_lshl_b32 s{sA}, s{sA}, 12'); o(f's_add_u32 s{sA}, s{sA}, s{sC_}')
o(f's_add_u32 m0, s{sA}, {WR}'); o('s_nop 0')
o(f'buffer_load_dwordx4 v249, {sr(rW1,4)}, s{sB} offen lds')
o(f's_add_u32 m0, s{sA}, {WR+32768}'); o('s_nop 0')
o(f'buffer_load_dwordx4 v249, {sr(rW2,4)}, s{sB} offen lds')
o('s_waitcnt vmcnt(%s)' % OPT.get('pace','8'))
o(f's_add_u32 s{sI}, s{sI}, 1'); o(f's_cmp_lt_u32 s{sI}, 8'); o('s_cbranch_scc1 L_dmau')
xloop(4,10,'L_dmax2')
lds_inc(C_G1,244)
stamp(3)
o('s_waitcnt vmcnt(8)')
lds_inc(C_X1,244)
lds_spin(C_X1,4,244)
stamp(4)
o('s_branch L_g_gemm')
lab('L_e0')
if 'noprio' not in OPT: o('s_setprio 2')
o('v_subrev_u32 v14, 256, v0')
o(f's_mul_i32 s{sA}, s2, {CH}')
o(f'v_add_u32 v15, s{sA}, v14')
o('v_lshlrev_b32 v16, 1, v15'); o('v_lshlrev_b32 v15, 2, v15')
o(f'v_cmp_gt_u32 vcc, {CH-512}, v14')
o('v_add_u32 v18, 2048, v15'); o('v_add_u32 v19, 1024, v16')
o('v_mov_b32 v17, 0x40000000')
o('v_cndmask_b32 v18, v17, v18, vcc'); o('v_cndmask_b32 v19, v17, v19, vcc')
o('s_waitcnt lgkmcnt(0)')
ED,ES,EE=2,5,8
srd(rDST,sDST,E*4)
o(f'buffer_load_dword v{ED}, v15, {sr(rDST,4)}, 0 offen')
o(f'buffer_load_dword v{ED+1}, v15, {sr(rDST,4)}, 0 offen offset:1024')
o(f'buffer_load_dword v{ED+2}, v18, {sr(rDST,4)}, 0 offen')
srd(rSRC,sSRC,E*4)
o(f'buffer_load_dword v{ES}, v15, {sr(rSRC,4)}, 0 offen')
o(f'buffer_load_dword v{ES+1}, v15, {sr(rSRC,4)}, 0 offen offset:1024')
o(f'buffer_load_dword v{ES+2}, v18, {sr(rSRC,4)}, 0 offen')
srd(rEA,sEA,E*2)
o(f'buffer_load_ushort v{EE}, v16, {sr(rEA,4)}, 0 offen')
o(f'buffer_load_ushort v{EE+1}, v16, {sr(rEA,4)}, 0 offen offset:512')
o(f'buffer_load_ushort v{EE+2}, v19, {sr(rEA,4)}, 0 offen')
o('s_barrier')
stamp(0)
wc_load()
srd(rW1,sWA,131072); srd(rW2,sWU,131072)
o('s_lshr_b32 s3, s2, 3'); o('s_lshl_b32 s3, s3, 12')
o('v_lshrrev_b32 v17, 3, v1'); o('v_lshlrev_b32 v17, 9, v17'); o('v_and_b32 v19, 7, v1'); o('v_lshl_add_u32 v17, v19, 4, v17')
o(f's_lshl_b32 s{sA}, s{sS}, 7'); o(f'v_add_u32 v17, s{sA}, v17')
l=U('wu')
if 'nowu' not in OPT:
    o(f's_cmp_lg_u32 s{sW}, 4'); o(f's_cbranch_scc1 {l}_a')
    o(f'buffer_load_dwordx4 v[240:243], v17, {sr(rW1,4)}, s3 offen')
    lab(l+'_a')
    o(f's_cmp_lg_u32 s{sW}, 5'); o(f's_cbranch_scc1 {l}_b')
    o(f'buffer_load_dwordx4 v[240:243], v17, {sr(rW2,4)}, s3 offen')
    lab(l+'_b')
build_common()
srd(rX,sX,N*512); srd_off(rREC,sWS,WS_RECS,256*CHCAP*8)
if 'notlb' not in OPT:
    o(f's_cmp_lg_u32 s{sW}, 6'); o(f's_cbranch_scc1 {l}_c')
    o('v_lshlrev_b32 v17, 20, v1'); o('v_cmpx_gt_u32 vcc, 3, v1')
    o(f'buffer_load_dword v244, v17, {sr(rTR,4)}, 0 offen')
    o('s_mov_b64 exec, -1')
    lab(l+'_c')
    o(f's_cmp_lg_u32 s{sW}, 7'); o(f's_cbranch_scc1 {l}_d')
    o(f's_lshl_b32 s{sA}, s{sNB}, 9')
    o(f'buffer_load_dword v244, v{VZ}, {sr(rOUT,4)}, s{sA} offen')
    o(f'buffer_load_dword v245, v{VZ}, {sr(rREC,4)}, 0 offen')
    lab(l+'_d')
wvoff(249,sW)
o('v_subrev_u32 v247, 16384, v249')
o('s_waitcnt vmcnt(%d)' % (2 if ('nowu' in OPT or 'notlb' in OPT) else 3))
stamp(22)
o(f's_mov_b32 s{sA}, 106862')
RR,RK_,RW=36,24,28
for k in range(3):
    o(f'v_mul_lo_u32 v{RR+k}, v{ED+k}, s{sA}')
for k in range(3):
    o(f'v_lshrrev_b32 v{RR+k}, 24, v{RR+k}')
    o(f'v_mul_u32_u24 v17, {RN}, v{RR+k}'); o(f'v_sub_u32 v17, v{ED+k}, v17')
    o(f'v_lshl_or_b32 v{RW+2*k}, v{ES+k}, 8, v17'); o(f'v_lshlrev_b32 v{RW+2*k+1}, 16, v{EE+k}')
    o(f'v_lshlrev_b32 v{RR+k}, 2, v{RR+k}')
o('v_mov_b32 v16, 1')
o(f'ds_add_rtn_u32 v{RK_}, v{RR}, v16 offset:{HIST1}')
o(f'ds_add_rtn_u32 v{RK_+1}, v{RR+1}, v16 offset:{HIST1}')
o(f'v_cmpx_gt_u32 vcc, {CH-512}, v14')
o(f'ds_add_rtn_u32 v{RK_+2}, v{RR+2}, v16 offset:{HIST1}')
o('s_mov_b64 exec, -1')
o('s_waitcnt lgkmcnt(0)')
o(f's_mul_i32 s{sNONCE}, s{sNONCE}, 0x9E3779B1'); o(f's_add_u32 s{sNONCE}, s{sNONCE}, 0x7F4A7C15')
lds_inc(C_H,17)
lds_spin(C_H,4,17)
o('v_lshlrev_b32 v17, 2, v1')
o(f'ds_read_b32 v20, v17 offset:{HIST1}')
o('s_waitcnt lgkmcnt(0)')
o('v_add_u32 v21, 1, v20'); o('v_and_b32 v21, -2, v21'); o('v_mov_b32 v22, v21')
scan64(21)
o('v_sub_u32 v22, v21, v22')
for k in range(3): o(f'ds_bpermute_b32 v{RR+k}, v{RR+k}, v22')
o('s_waitcnt lgkmcnt(0)')
for k in range(3): o(f'v_add_lshl_u32 v{RR+k}, v{RR+k}, v{RK_+k}, 3')
for k in range(3): o(f'v_add_u32 v{RR+k}, {RST}, v{RR+k}')
o(f'ds_write_b64 v{RR}, {vr(RW,2)}')
o(f'ds_write_b64 v{RR+1}, {vr(RW+2,2)}')
o(f'v_cmpx_gt_u32 vcc, {CH-512}, v14')
o(f'ds_write_b64 v{RR+2}, {vr(RW+4,2)}')
o('s_mov_b64 exec, -1')
o('s_waitcnt lgkmcnt(0)')
lds_inc(C_S,17)
lds_spin(C_S,4,17)
o('v_lshlrev_b32 v17, 4, v14'); o(f'v_add_u32 v18, {RST}, v17')
if 'delay' in OPT: lds_spin(C_X2,4,36)
o('ds_read_b128 v[28:31], v18'); o('ds_read_b128 v[32:35], v18 offset:4096')
o(f's_mul_i32 s{sA}, s2, {CHCAP*8}'); o(f's_add_u32 s{sB}, s{sA}, 4096')
o(f's_and_b32 s{sC_}, s{sNONCE}, 0xffff'); o(f's_lshr_b32 s{sD}, s{sNONCE}, 16')
o('v_mov_b32 v19, 0xffff0000')
o('s_waitcnt lgkmcnt(0)')
o(f'v_and_or_b32 v29, v29, v19, s{sC_}'); o(f'v_and_or_b32 v31, v31, v19, s{sD}')
o(f'v_and_or_b32 v33, v33, v19, s{sC_}'); o(f'v_and_or_b32 v35, v35, v19, s{sD}')
if 'noEst' not in OPT:
    o(f'buffer_store_dwordx4 v[28:31], v17, {sr(rREC,4)}, s{sA} offen sc1')
    o(f'v_cmpx_gt_u32 vcc, {(CHCAP*8-4096)//16}, v14')
    o(f'buffer_store_dwordx4 v[32:35], v17, {sr(rREC,4)}, s{sB} offen sc1')
    o('s_mov_b64 exec, -1')
stamp(2)
l=U('nopub')
if 'noEst' in OPT: o(f's_branch {l}')
o(f's_cmp_lg_u32 s{sW}, 4'); o(f's_cbranch_scc1 {l}')
o('v_lshl_or_b32 v24, v20, 16, v22'); o(f'v_mov_b32 v25, s{sNONCE}')
o('v_lshlrev_b32 v17, 11, v1')
o(f's_lshl_b32 s{sA}, s2, 3')
o(f'buffer_store_dwordx2 v[24:25], v17, {sr(rSEG,4)}, s{sA} offen sc1')
lab(l)
stamp(3)
stamp(4)
o('s_branch L_main_setup' if 'xE' in OPT else 's_branch L_eteam_b')
lab('L_g_gemm')
if 'gprio' in OPT: o('s_setprio 3')
sTE=11
sTC=12
def xread(ks): return f'ds_read_b128 {vr(AF+4*ks,4)}, v{XC+(ks&3)} offset:{256 if ks>=4 else 0}'
def epi_list(which,a,t):
    e=[]
    for i in range(4): e.append(f'v_mul_f32 v{a+i}, {NLOG2E:#x}, v{a+i}')
    for i in range(4): e.append(f'v_cvt_pk_bf16_f32 v{a+i}, v{a+i}, v{a+4+i}')
    if which==1:
        for i in range(4): e.append(f'buffer_store_dword v{a+i}, v{TOF}, {sr(rTW,4)}, s{sB if t==1 else sD} offen offset:{i*256+64*t} sc1')
    else:
        for i in range(4): e.append(f'ds_write_b32 v{AUA if t==1 else AUA+2}, v{a+i} offset:{i*256+64*t}')
    return e
def addr_ops(which,tile_s,t):
    dst = sB if t==1 else sD
    if which==1: return [f's_lshl_b32 s{dst}, s{tile_s}, 4', f's_add_u32 s{dst}, s{dst}, s{sNB}', f's_lshl_b32 s{dst}, s{dst}, 8']
    return [f's_lshl_b32 s{dst}, s{tile_s}, 12', f's_add_u32 s{dst}, s{dst}, {AU}', f'v_add_u32 v{AUA if t==1 else AUA+2}, s{dst}, v{TOF}']
sTO=[13,14,15,46,47]
PK=8
def gemm_body(which, j):
    B0,V0,B1,V1=ACC,ACC+4,ACC+8,ACC+12
    if which==1:
        def epi1(a,jj,t):
            e=[f'v_mul_f32 v{a+i}, {NLOG2E:#x}, v{a+i}' for i in range(4)]
            e+=[f'v_cvt_pk_bf16_f32 v{PK+8*jj+4*t+i}, v{a+i}, v{a+4+i}' for i in range(4)]
            return e
        eP1=epi1(B1,j-1,1) if j>0 else []; eP0=epi1(B0,j,0)
        a1=[]; a0=[]
    else:
        eP1=epi_list(2,B1,1); eP0=epi_list(2,B0,0)
        a1=addr_ops(2,sTE,1); a0=addr_ops(2,sTC,0)
    fill=[[] for _ in range(16)]
    if which==2:
        fill[0]+=a1[0:2]; fill[1]+=a1[2:3]+a0[0:1]; fill[2]+=a0[1:3]
        fill[3]+=eP1[0:3]; fill[4]+=eP1[3:6]; fill[5]+=eP1[6:9]; fill[6]+=eP1[9:11]; fill[7]+=eP1[11:12]
    elif eP1:
        fill[3]+=eP1[0:2]; fill[4]+=eP1[2:4]; fill[5]+=eP1[4:6]; fill[6]+=eP1[6:8]
    if not (which==1 and j==4):
        for ks in range(8): fill[8+ks].append(xread(ks))
    if which==2:
        fill[11]+=eP0[0:3]; fill[12]+=eP0[3:6]; fill[13]+=eP0[6:9]; fill[14]+=eP0[9:11]; fill[15]+=eP0[11:12]
        tail=[f's_mov_b32 s{sTE}, s{sTC}', f's_add_u32 s{sTC}, s{sTC}, 1', f's_add_u32 s{sA}, s{sTC}, 1', f's_lshl_b32 s{sA}, s{sA}, 13']
        fill[9]+=tail[0:2]; fill[10]+=tail[2:4]
    else:
        fill[11]+=eP0[0:2]; fill[12]+=eP0[2:4]; fill[13]+=eP0[4:6]; fill[14]+=eP0[6:8]
        fill[9]+=[f's_add_u32 s{sTC}, s{sTC}, 8192']
    seq=[]
    for sl in range(16):
        for t in fill[sl]:
            if t.startswith('ds_read'): seq.append((sl,'r'))
            elif t.startswith('ds_write'): seq.append((sl,'w'))
    def waitcount(ks):
        if which==1: return 7-ks
        n=0; found=False; k=-1
        for (sl,kind) in seq:
            if kind=='r':
                k+=1
                if k==ks: found=True; continue
            if found: n+=1
        for (sl,kind) in seq:
            if sl<ks: n+=1
        return n
    for ph in range(2):
        for ks in range(8):
            ab,av=(B0,V0) if ph==0 else (B1,V1)
            wb=WF+32*ph+4*ks; wv=WF+64+32*ph+4*ks
            if ph==0: o(f's_waitcnt lgkmcnt({min(waitcount(ks),15)})')
            c1='0' if ks==0 else vr(ab,4); c2='0' if ks==0 else vr(av,4)
            f=fill[8*ph+ks]
            o(f'v_mfma_f32_16x16x32_bf16 {vr(ab,4)}, {vr(AF+4*ks,4)}, {vr(wb,4)}, {c1}')
            h=(len(f)+1)//2 if ph==0 else 0
            for t in f[:h]: o(t)
            o(f'v_mfma_f32_16x16x32_bf16 {vr(av,4)}, {vr(AF+4*ks,4)}, {vr(wv,4)}, {c2}')
            for t in f[h:]: o(t)
    if which==2:
        for k in range(4): o(f'v_add_u32 v{XC+k}, s{sA}, v{XA+k}')
    elif j<3:
        for k in range(4): o(f'v_add_u32 v{XC+k}, s{sTC}, v{XA+k}')
def table_stores():
    for j in range(5):
        o(f's_add_u32 s{sB}, s{sROT}, {j}'); o(f's_lshl_b32 s{sB}, s{sB}, 4'); o(f's_add_u32 s{sB}, s{sB}, s{sNB}'); o(f's_lshl_b32 s{sB}, s{sB}, 8')
        for t in range(2):
            for i in range(4):
                o(f'buffer_store_dword v{PK+8*j+4*t+i}, v{TOF}, {sr(rTW,4)}, s{sB} offen offset:{i*256+64*t} sc1')
def gemm1():
    o(f's_lshl_b32 s{sTC}, s{sROT}, 13')
    for k in range(4): o(f'v_add_u32 v{XC+k}, s{sTC}, v{XA+k}')
    for ks in range(8): o(xread(ks))
    o(f's_add_u32 s{sTC}, s{sTC}, 8192')
    for k in range(4): o(f'v_add_u32 v{XC+k}, s{sTC}, v{XA+k}')
    o('s_waitcnt lgkmcnt(0)')
    for j in range(5):
        if j==1:
            o('s_waitcnt vmcnt(0)')
            lds_inc(C_X2,244)
            o('s_waitcnt lgkmcnt(0)')
        if j==2:
            lds_spin(C_X2,4,244)
        gemm_body(1,j)
    o('s_nop 7')
    for i in range(4): o(f'v_mul_f32 v{ACC+8+i}, {NLOG2E:#x}, v{ACC+8+i}')
    for i in range(4): o(f'v_cvt_pk_bf16_f32 v{PK+32+4+i}, v{ACC+8+i}, v{ACC+12+i}')
def dummy_row():
    l=U('nodummy')
    o(f's_cmp_lg_u32 s{sR}, 63'); o(f's_cbranch_scc1 {l}')
    o(f's_cmp_lg_u32 s{sW}, 0'); o(f's_cbranch_scc1 {l}')
    o('v_mov_b32 v244, 0x7f7f'); o('v_lshlrev_b32 v245, 2, v1'); o(f'v_add_u32 v245, {N*256}, v245')
    o(f'buffer_store_dword v244, v245, {sr(rTR,4)}, 0 offen sc1')
    lab(l)
def gemm2():
    B0,V0,B1,V1=ACC,ACC+4,ACC+8,ACC+12
    for j in range(5):
        o(f's_add_u32 s{sTO[j]}, s{sROT}, {j}'); o(f's_lshl_b32 s{sTO[j]}, s{sTO[j]}, 4'); o(f's_add_u32 s{sTO[j]}, s{sTO[j]}, s{sNB}'); o(f's_lshl_b32 s{sTO[j]}, s{sTO[j]}, 8')
    o(f's_lshl_b32 s{sTC}, s{sROT}, 13')
    for k in range(4): o(f'v_add_u32 v{XC+k}, s{sTC}, v{XA+k}')
    for ks in range(8): o(xread(ks))
    o(f's_add_u32 s{sTC}, s{sTC}, 8192')
    for k in range(4): o(f'v_add_u32 v{XC+k}, s{sTC}, v{XA+k}')
    o(f's_lshl_b32 s{sA}, s{sROT}, 12'); o(f's_add_u32 s{sA}, s{sA}, {AU}'); o(f'v_add_u32 v{AUA}, s{sA}, v{TOF}')
    o('s_waitcnt lgkmcnt(0)')
    def epi(a,jj,t):
        e=[f'v_mul_f32 v{a+i}, {NLOG2E:#x}, v{a+i}' for i in range(4)]
        e+=[f'v_cvt_pk_bf16_f32 v{a+i}, v{a+i}, v{a+4+i}' for i in range(4)]
        e+=[f'ds_write_b32 v{AUA}, v{a+i} offset:{jj*4096+i*256+64*t}' for i in range(4)]
        return e
    def tst(jj): return [f'buffer_store_dword v{PK+8*jj+4*t+i}, v{TOF}, {sr(rTW,4)}, s{sTO[jj]} offen offset:{i*256+64*t} sc1' for t in range(2) for i in range(4)]
    stores={0:tst(0)+tst(1),1:tst(2)+tst(3),2:tst(4),3:[],4:[]}
    prev_tail=0
    for j in range(5):
        eP1=epi(B1,j-1,1) if j>0 else []; eP0=epi(B0,j,0)
        fill=[[] for _ in range(16)]
        if eP1:
            fill[3]+=eP1[0:3]; fill[4]+=eP1[3:6]; fill[5]+=eP1[6:9]; fill[6]+=eP1[9:11]; fill[7]+=eP1[11:12]
        if j<4:
            for ks in range(8): fill[8+ks].append(xread(ks))
        fill[11]+=eP0[0:3]; fill[12]+=eP0[3:6]; fill[13]+=eP0[6:9]; fill[14]+=eP0[9:11]; fill[15]+=eP0[11:12]
        if j<3: fill[9]+=[f's_add_u32 s{sTC}, s{sTC}, 8192']
        st=list(stores[j])
        for sl in range(16):
            if st: fill[sl].append(st.pop(0))
        seq=[(sl,('r' if t.startswith('ds_read') else 'w')) for sl in range(16) for t in fill[sl] if t.startswith('ds_')]
        for ph in range(2):
            for ks in range(8):
                ab,av=(B0,V0) if ph==0 else (B1,V1)
                wb=WF+32*ph+4*ks; wv=WF+64+32*ph+4*ks
                if ph==0 and j>0:
                    n=0; found=False; k=-1
                    for (sl,kind) in prevseq:
                        if kind=='r':
                            k+=1
                            if k==ks: found=True; continue
                        if found: n+=1
                    n+=sum(1 for (sl,kind) in seq if sl<ks)
                    o(f's_waitcnt lgkmcnt({min(n,15)})')
                c1='0' if ks==0 else vr(ab,4); c2='0' if ks==0 else vr(av,4)
                f=fill[8*ph+ks]
                o(f'v_mfma_f32_16x16x32_bf16 {vr(ab,4)}, {vr(AF+4*ks,4)}, {vr(wb,4)}, {c1}')
                h=(len(f)+1)//2 if ph==0 else 0
                for t in f[:h]: o(t)
                o(f'v_mfma_f32_16x16x32_bf16 {vr(av,4)}, {vr(AF+4*ks,4)}, {vr(wv,4)}, {c2}')
                for t in f[h:]: o(t)
        if j<3:
            for k in range(4): o(f'v_add_u32 v{XC+k}, s{sTC}, v{XA+k}')
        prevseq=seq
        if j==int(OPT.get('f2it','3')):
            l=U('nf2')
            o('s_waitcnt vmcnt(0)')
            lds_inc(C_T,244,ret=True)
            o(f's_cmp_lg_u32 s{sA}, 3'); o(f's_cbranch_scc1 {l}')
            o('s_mov_b64 exec, 1')
            for i in range(4): o(f'v_mov_b32 v{244+i}, s{sNONCE}')
            o(f's_lshl_b32 s{sA}, s{sS}, 6'); o(f's_add_u32 s{sA}, s{sA}, s{sR}'); o(f's_lshl_b32 s{sA}, s{sA}, 4')
            o(f's_add_u32 s{sA}, s{sA}, {SEGT_FLAG2}')
            o(f'buffer_store_dwordx4 v[244:247], v{VZ}, {sr(rSEG,4)}, s{sA} offen sc1')
            o('s_mov_b64 exec, -1')
            lab(l)
            if 'pre' in OPT:
                o(f's_lshl_b32 s{sA}, s{sNB}, 8'); o(f's_mul_i32 s{sB}, s{sW}, 10240'); o(f's_add_u32 s{sA}, s{sA}, s{sB}')
                o('v_lshlrev_b32 v245, 4, v1')
                for i in range(10):
                    o(f'buffer_load_dwordx4 v[232:235], v245, {sr(rTW,4)}, s{sA} offen sc1')
                    o(f's_add_u32 s{sA}, s{sA}, 1024')
    o('s_nop 7')
    for t in epi(B1,4,1): o(t)
gemm1()
stamp(5)
wfrags()
o('s_waitcnt lgkmcnt(0)')
lds_inc(C_G,244)
lds_spin(C_G,4,244)
stamp(18)
if 'xE' not in OPT and 'nogate' not in OPT: lds_spin(C_RL,4,244)
dummy_row()
stamp(6)
gemm2()
o('s_waitcnt lgkmcnt(0)')
stamp(7)
o('s_branch L_main_setup')
lab('L_eteam_b')
SG,RC0,RC1,SA,RKB=64,80,112,144,200
T=176
o(f's_sub_u32 s{sC_}, s{sW}, 4')
o('v_lshrrev_b32 v17, 3, v1')
o(f's_lshl_b32 s{sA}, s{sC_}, 3'); o(f'v_add_u32 v17, s{sA}, v17')
o(f'v_lshlrev_b32 v{T}, 3, v17')
o('v_and_b32 v18, 7, v1')
o(f'v_mul_u32_u24 v{T+1}, {CHCAP*8}, v17'); o(f'v_lshl_add_u32 v{T+1}, v18, 4, v{T+1}')
IX=T+2
o(f'v_lshlrev_b32 v{IX}, 1, v18'); o(f'v_add_u32 v{IX+1}, 1, v{IX}'); o(f'v_add_u32 v{IX+2}, 16, v{IX}'); o(f'v_add_u32 v{IX+3}, 17, v{IX}')
lds_spin(C_G1,4,17)
o(f's_lshl_b32 s{sD}, s{sR}, 11')
o(f's_mov_b32 s{sSP}, 0')
lp=U('poll1'); dn=U('poll1d')
lab(lp)
for p in range(8):
    o(f'buffer_load_dwordx2 {vr(SG+2*p,2)}, v{T}, {sr(rSEG,4)}, s{sD} offen offset:{p*256} sc1')
o(f'v_mov_b32 v19, s{sNONCE}')
o('s_waitcnt vmcnt(0)')
o(f'v_xor_b32 v20, v{SG+1}, v19')
for p in range(1,8):
    o(f'v_xor_b32 v21, v{SG+2*p+1}, v19'); o('v_or_b32 v20, v20, v21')
o('v_cmp_ne_u32 vcc, 0, v20')
o(f's_cbranch_vccz {dn}')
o('s_sleep 6')
o(f's_add_u32 s{sSP}, s{sSP}, 1'); o(f's_cmp_lt_u32 s{sSP}, 0x10000'); o(f's_cbranch_scc1 {lp}')
lab(dn)
stamp(5)
o('v_mov_b32 v20, 0')
for p in range(8):
    o(f'v_lshrrev_b32 v{SG+2*p+1}, 16, v{SG+2*p}')
    o(f'v_max_u32 v20, v20, v{SG+2*p+1}')
o('v_cmp_lt_u32 vcc, 32, v20')
l=U('nofb'); o(f's_cbranch_vccz {l}')
o('v_mov_b32 v21, 1'); o(f'ds_write_b32 v{VZ}, v21 offset:{C_FB}')
lab(l)
o(f's_mov_b32 s{sSP}, 0')
lr=U('recld'); dr=U('recok')
lab(lr)
for p in range(8):
    o(f'v_and_b32 v19, 0xffff, v{SG+2*p}')
    o(f'v_lshl_add_u32 v19, v19, 3, v{T+1}')
    o(f's_mov_b32 s{sA}, {p*32*CHCAP*8}')
    o(f'v_cmp_lt_u32 vcc, 16, v{SG+2*p+1}')
    o(f'buffer_load_dwordx4 {vr(RC0+4*p,4)}, v19, {sr(rREC,4)}, s{sA} offen sc1')
    l=U('ld1'); o(f's_cbranch_vccz {l}')
    o(f'buffer_load_dwordx4 {vr(RC1+4*p,4)}, v19, {sr(rREC,4)}, s{sA} offen offset:128 sc1')
    lab(l)
l=U('sig'); o(f's_cmp_lg_u32 s{sSP}, 0'); o(f's_cbranch_scc1 {l}_r')
lds_inc(C_RL,20)
o('s_waitcnt vmcnt(0)')
o(f's_branch {l}')
lab(l+'_r')
o('s_waitcnt vmcnt(0)')
lab(l)
o('v_mov_b32 v21, 0x05040100'); o('v_mov_b32 v22, 0'); o(f'v_mov_b32 v23, s{sNONCE}')
for p in range(8):
    for st in range(2):
        rec=(RC0 if st==0 else RC1)+4*p
        if st==1:
            l=U('v1'); o(f'v_cmp_lt_u32 vcc, 16, v{SG+2*p+1}'); o(f's_cbranch_vccz {l}')
        o(f'v_cmpx_lt_u32 vcc, v{IX+2*st}, v{SG+2*p+1}')
        o(f'v_perm_b32 v20, v{rec+3}, v{rec+1}, v21'); o('v_xor_b32 v20, v20, v23'); o('v_or_b32 v22, v22, v20')
        o('s_mov_b64 exec, -1')
        if st==1: lab(l)
o('v_cmp_ne_u32 vcc, 0, v22')
o(f's_cbranch_vccz {dr}')
o('s_sleep 2')
o(f's_add_u32 s{sSP}, s{sSP}, 1'); o(f's_cmp_lt_u32 s{sSP}, 0x10000'); o(f's_cbranch_scc1 {lr}')
lab(dr)
stamp(6)
def each_rec(fn):
    for p in range(8):
        for st in range(2):
            if st==1:
                l=U('st1'); o(f'v_cmp_lt_u32 vcc, 16, v{SG+2*p+1}'); o(f's_cbranch_vccz {l}')
            for i in range(2):
                rec=(RC0 if st==0 else RC1)+4*p+2*i
                o(f'v_cmpx_lt_u32 vcc, v{IX+2*st+i}, v{SG+2*p+1}')
                fn(rec, SA+4*p+2*st+i)
            o('s_mov_b64 exec, -1')
            if st==1: lab(l)
SD='dst_sel:DWORD dst_unused:UNUSED_PAD src0_sel:DWORD src1_sel:BYTE_0'
o('v_mov_b32 v22, 1'); o('v_mov_b32 v23, 64')
def f_hist(rec,sa):
    o(f'v_lshlrev_b32_sdwa v20, 2, v{rec} {SD}'); o(f'ds_add_rtn_u32 v{sa-SA+RKB}, v20, v22 offset:{DEG}')
each_rec(f_hist)
o('s_waitcnt lgkmcnt(0)')
lds_inc(C_E1,20)
stamp(7)
o(f's_cmp_lg_u32 s{sW}, 4')
o('s_cbranch_scc1 L_e_prefill')
lds_spin(C_E1,4,20)
D0,K0,P0=24,28,32
o('v_lshlrev_b32 v19, 2, v1')
for a in range(3): o(f'ds_read_b32 v{D0+a}, v19 offset:{DEG+a*256}')
perm=[]
for w in range(8): perm += ([w,w+4,11-w] if w<4 else [19-w,23-w]) if 'oldperm' not in OPT else ([w,15-w] + ([19-w] if w<4 else []))
o('v_mov_b32 v38, 31')
for i,g in enumerate(perm): o(f'v_writelane_b32 v38, {g}, {i}')
o('v_lshlrev_b32 v38, 2, v38')
o('v_sub_u32 v37, 252, v19')
o('s_waitcnt lgkmcnt(0)')
for a in range(3):
    o(f'v_min_u32 v{K0+a}, 63, v{D0+a}'); o(f'v_lshlrev_b32 v{K0+a}, 2, v{K0+a}')
    if a==2: o('v_cmpx_gt_u32 vcc, 32, v1')
    o(f'ds_add_rtn_u32 v{P0+a}, v{K0+a}, v22 offset:{HIST2}')
o('s_mov_b64 exec, -1')
o('s_waitcnt lgkmcnt(0)')
o(f'ds_read_b32 v36, v37 offset:{HIST2}')
for a in range(3): o(f'v_sub_u32 v{K0+a}, 252, v{K0+a}')
o('s_waitcnt lgkmcnt(0)')
o('v_mov_b32 v35, v36') if False else None
o('v_mov_b32 v39, v36')
scan64(36)
o('v_sub_u32 v36, v36, v39')
for a in range(3): o(f'ds_bpermute_b32 v{K0+a}, v{K0+a}, v36')
o('s_waitcnt lgkmcnt(0)')
for a in range(3):
    o(f'v_add_u32 v{P0+a}, v{P0+a}, v{K0+a}')
    o(f'v_add_u32 v21, {64*a}, v1')
    o(f'v_cmp_gt_u32 vcc, s{sNV}, v21')
    o(f'v_lshlrev_b32 v20, 3, v{P0+a}')
    o(f'v_lshrrev_b32 v{K0+a}, 3, v{P0+a}'); o(f'v_lshlrev_b32 v{K0+a}, 2, v{K0+a}')
    o('v_mov_b32 v40, 0x200000')
    o('v_and_b32 v43, 15, v21'); o('v_lshlrev_b32 v43, 4, v43'); o('v_lshl_add_u32 v43, v21, 9, v43')
    o('v_cndmask_b32 v42, v40, v21, vcc')
    if a==2: o('v_cmpx_gt_u32 vcc, 32, v1')
    o(f'ds_write_b64 v20, v[42:43] offset:{NODEOF}')
    o(f'ds_max_u32 v{K0+a}, v{D0+a} offset:{LG}')
o('s_mov_b64 exec, -1')
o('s_waitcnt lgkmcnt(0)')
o(f'ds_read_b32 v39, v38 offset:{LG}')
o('s_waitcnt lgkmcnt(0)')
o('v_add_u32 v39, 1, v39'); o('v_lshrrev_b32 v39, 1, v39')
o('v_mov_b32 v40, v39')
scan64(39)
o('v_sub_u32 v40, v39, v40')
o('v_lshlrev_b32 v40, 7, v40'); o(f'v_add_u32 v40, {ELL}, v40')
o(f'ds_write_b32 v38, v40 offset:{GBASE}')
o(f'v_readlane_b32 s{sA}, v39, 19')
o('s_waitcnt lgkmcnt(0)')
for a in range(3): o(f'ds_read_b32 v{K0+a}, v{K0+a} offset:{GBASE}')
o(f's_cmp_le_u32 s{sA}, {ELLB-4}')
l=U('fits'); o(f's_cbranch_scc1 {l}')
o('v_mov_b32 v21, 1'); o(f'ds_write_b32 v{VZ}, v21 offset:{C_FB}')
lab(l)
o('s_waitcnt lgkmcnt(0)')
for a in range(3):
    o(f'v_and_b32 v21, 7, v{P0+a}'); o(f'v_lshl_add_u32 v21, v21, 3, v{K0+a}')
    o(f'ds_write_b32 v19, v21 offset:{CUR+a*256}')
o('s_waitcnt lgkmcnt(0)')
lds_inc(C_SORT,20)
o('s_branch L_e_wait')
lab('L_e_prefill')
lds_spin(C_G,4,20)
o(f's_sub_u32 s{sA}, s{sW}, 5'); o(f's_lshl_b32 s{sA}, s{sA}, 10'); o(f's_add_u32 s{sA}, s{sA}, {ELL}')
o(f'v_lshlrev_b32 v20, 4, v1'); o(f'v_add_u32 v20, s{sA}, v20')
o(f'v_mov_b32 v24, {N*256}'); o('v_mov_b32 v25, 0'); o(f'v_mov_b32 v26, {N*256}'); o('v_mov_b32 v27, 0')
for i in range(12): o(f'ds_write_b128 v20, v[24:27] offset:{i*3072}')
o('s_waitcnt lgkmcnt(0)')
lds_inc(C_P,20)
lab('L_e_wait')
lds_spin(C_SORT,1,20)
lds_spin(C_P,3,20)
stamp(8)
o(f'ds_read_b32 v20, v{VZ} offset:{C_FB}'); o('s_waitcnt lgkmcnt(0)')
o(f'v_readfirstlane_b32 s{sA}, v20'); o(f's_cmp_lg_u32 s{sA}, 0'); o('s_cbranch_scc1 L_e_done')
def f_slot(rec,sa):
    o(f'v_lshlrev_b32_sdwa v20, 2, v{rec} {SD}'); o(f'ds_read_b32 v{sa}, v20 offset:{CUR}')
each_rec(f_slot)
o('s_waitcnt lgkmcnt(0)')
def f_put(rec,sa):
    o(f'v_lshl_add_u32 v{sa}, v{sa-SA+RKB}, 6, v{sa}'); o(f'v_and_b32 v{rec+1}, v24, v{rec+1}'); o(f'ds_write_b64 v{sa}, {vr(rec,2)}')
o('v_mov_b32 v24, 0xffff0000')
each_rec(f_put)
lab('L_e_done')
o('s_waitcnt lgkmcnt(0)')
stamp(9)
o(f's_cmp_lg_u32 s{sW}, 4')
o('s_cbranch_scc1 L_main_setup')
o('v_lshlrev_b32 v20, 4, v1')
o(f's_lshl_b32 s{sD}, s{sS}, 10'); o(f's_add_u32 s{sD}, s{sD}, {SEGT_FLAG2}')
o(f's_mov_b32 s{sSP}, 0')
lp=U('poll2'); dn=U('poll2d')
lab(lp)
o(f'buffer_load_dword v21, v20, {sr(rSEG,4)}, s{sD} offen sc1')
o('s_waitcnt vmcnt(0)')
o(f'v_cmp_ne_u32 vcc, s{sNONCE}, v21')
o(f's_cbranch_vccz {dn}')
o('s_sleep 2')
o(f's_add_u32 s{sSP}, s{sSP}, 1'); o(f's_cmp_lt_u32 s{sSP}, 0x10000'); o(f's_cbranch_scc1 {lp}')
lab(dn)
l=U('noep')
o('s_cmp_lg_u32 s2, 0'); o(f's_cbranch_scc1 {l}')
o('s_mov_b64 exec, 1')
o(f'v_mov_b32 v21, s{sNONCE}')
o(f'global_store_dword v{VZ}, v21, {sr(sEP,2)} sc1')
o('s_mov_b64 exec, -1')
lab(l)
LOFF,RP=2,3
S1A,S1B,S2A,S2B,ONE=4,8,12,16,20
WC=24; NUM=32; DEN=40; C=48; DX,DY=72,104; R0,R1=136,152
OFA,OFB,EA_,EB_,AD=168,170,172,174,176
lab('L_main_setup')
o('s_setprio 0')
stamp(10)
o(f'v_and_b32 v{LOFF}, 7, v1'); o(f'v_lshlrev_b32 v{LOFF}, 4, v{LOFF}')
o('v_bfe_u32 v196, v1, 3, 2'); o('v_bfe_u32 v197, v1, 2, 1'); o('v_lshrrev_b32 v198, 5, v1'); o('v_and_b32 v199, 3, v1')
o('v_cmp_eq_u32 vcc, v197, v198'); o('v_mov_b32 v195, 7'); o('v_and_b32 v193, 1, v196')
o('v_cndmask_b32 v199, v195, v199, vcc')
LO,HI=0x00003f80,0x3f800000
o('v_cmp_gt_u32 vcc, 2, v196'); o(f'v_mov_b32 v194, {LO:#x}'); o(f'v_mov_b32 v195, {HI:#x}')
o('v_cndmask_b32 v192, v194, v195, vcc')
o('v_cndmask_b32 v191, v195, v194, vcc')
o('v_lshl_add_u32 v199, v193, 3, v199')
for i in range(4):
    o(f'v_cmp_eq_u32 vcc, {i}, v199'); o(f'v_cmp_eq_u32 s[98:99], {8+i}, v199'); o('s_nop 0')
    o(f'v_cndmask_b32 v{S1A+i}, 0, v192, vcc'); o(f'v_cndmask_b32 v{S2A+i}, 0, v191, vcc')
    o(f'v_cndmask_b32 v{S1B+i}, 0, v192, s[98:99]'); o(f'v_cndmask_b32 v{S2B+i}, 0, v191, s[98:99]')
o('v_cmp_gt_u32 vcc, 32, v1')
for i in range(1,4): o(f'v_mov_b32 v{ONE+i}, 0')
o(f'v_cndmask_b32 v{ONE}, 0, v194, vcc')
for i in range(4):
    o(f'v_lshlrev_b32 v{WC+2*i}, 16, v{250+i}'); o(f'v_and_b32 v{WC+2*i+1}, 0xffff0000, v{250+i}')
for i in range(8): o(f'v_mul_f32 v{WC+i}, {NLOG2E:#x}, v{WC+i}')
for i in range(8):
    o(f'v_mov_b32 v{C+i}, 0'); o(f'v_mov_b32 v{C+16+i}, 0')
LOFF_=LOFF
sPAR,sNBT,sODD,sG1,sG2,sLN=97,47,96,46,13,14
NLN,LT,OA,AUN,XRN,UF,XF,VAUK,VKA,VOK=178,180,181,182,190,194,202,210,211,212
TM=214
o(f'v_add_u32 v{VAUK}, {AU}, v{LOFF}')
o(f'v_bfe_u32 v{TM}, v1, 1, 2'); o(f's_lshl_b32 s92, s{sS}, 3'); o(f'v_add_u32 v{TM}, s92, v{TM}'); o(f'v_lshlrev_b32 v{TM}, 4, v{TM}')
o(f'v_and_b32 v{TM+1}, 1, v1'); o(f'v_lshl_add_u32 v{VKA}, v{TM+1}, 3, v{TM}')
o(f's_lshl_b32 s92, s{sNB}, 9'); o(f's_lshl_b32 s93, s{sS}, 7'); o('s_add_u32 s92, s92, s93')
o(f'v_lshrrev_b32 v{TM}, 1, v{LOFF}'); o(f'v_add_u32 v{VOK}, s92, v{TM}')
o(f'v_lshrrev_b32 v{TM+2}, 3, v1'); o(f'v_lshlrev_b32 v{TM+2}, 3, v{TM+2}')
o(f's_sub_u32 s12, 19, s{sW}'); o(f's_cmp_lt_u32 s{sW}, 4'); o(f's_cselect_b32 s12, s{sW}, s12')
o(f's_add_u32 s{sG1}, s{sW}, 4'); o(f's_sub_u32 s92, 23, s{sW}'); o(f's_sub_u32 s{sG2}, 11, s{sW}')
o(f's_cmp_ge_u32 s{sW}, 4'); o(f's_cselect_b32 s{sG1}, s92, s{sG1}'); o(f's_cselect_b32 s{sG2}, -1, s{sG2}')
def node_prefetch(gs):
    o(f's_lshl_b32 s92, s{gs}, 6'); o(f'v_add_u32 v{TM}, s92, v{TM+2}'); o(f'ds_read_b64 {vr(NLN,2)}, v{TM} offset:{NODEOF}')
    o(f's_lshl_b32 s92, s{gs}, 2'); o(f'v_mov_b32 v{TM+1}, s92'); o(f'ds_read_b32 v{LT}, v{TM+1} offset:{LG}')
def raw_prefetch():
    o(f'v_lshl_add_u32 v{TM}, v{NLN}, 8, v{VAUK}')
    o(f'v_xor_b32 v{TM+1}, v{NLN+1}, v{VKA}'); o(f'v_xor_b32 v{TM+3}, 64, v{TM+1}')
    o(f'ds_read_b128 {vr(AUN,4)}, v{TM}'); o(f'ds_read_b128 {vr(AUN+4,4)}, v{TM} offset:128')
    o(f'ds_read_b64 {vr(XRN,2)}, v{TM+1} offset:{XT}'); o(f'ds_read_b64 {vr(XRN+2,2)}, v{TM+3} offset:{XT}')
o(f's_xor_b32 s15, s{sR}, 1'); o(f's_mul_i32 s15, s15, {RN*256}'); o(f's_mul_i32 s92, s{sW}, 5120'); o('s_add_u32 s15, s15, s92')
o(f'v_lshlrev_b32 v{TM+4}, 4, v1')
o('s_waitcnt vmcnt(0) lgkmcnt(0)')
o('s_barrier')
dstamp(3)
stamp(11)
if 'xE' in OPT: o('s_branch L_done')
if 'pre2' in OPT:
    for i in range(5):
        o(f'buffer_load_dwordx4 v[232:235], v{TM+4}, {sr(rTR,4)}, s15 offen sc1')
        o('s_add_u32 s15, s15, 1024')
o(f'ds_read_b32 v{TM+5}, v{VZ} offset:{C_FB}')
o(f's_lshl_b32 s{sA}, s12, 2'); o(f'v_mov_b32 v{TM+6}, s{sA}'); o(f'ds_read_b32 v{RP}, v{TM+6} offset:{GBASE}')
node_prefetch(12)
l=U('ap'); o(f's_cmp_ge_u32 s{sW}, 4'); o(f's_cbranch_scc1 {l}'); o('s_setprio 1'); lab(l)
o('s_waitcnt lgkmcnt(0)')
o(f'v_readfirstlane_b32 s{sA}, v{TM+5}'); o(f's_cmp_lg_u32 s{sA}, 0'); o('s_cbranch_scc1 L_fallback')
o(f'v_add_u32 v{RP}, v{RP}, v{TM+2}')
o(f'v_readfirstlane_b32 s{sLN}, v{LT}')
def mfma(d,a,b,c): o(f'v_mfma_f32_32x32x16_bf16 {vr(d,16)}, {vr(a,4)}, {vr(b,4)}, {c}')
def unpack_list(D,R):
    f=lambda d,a,b,c: f'v_mfma_f32_32x32x16_bf16 {vr(d,16)}, {vr(a,4)}, {vr(b,4)}, {c}'
    return [f(D,S1A,R,vr(C,16)), f(D,S1B,R+4,vr(D,16)), f(D+16,S2A,R+8,vr(C+8,16)), f(D+16,S2B,R+12,vr(D+16,16))]
def gfma(D,Er):
    for sl in range(2):
        for j in range(4):
            g=D+8+8*sl+2*j
            sel='op_sel:[0,0,0] op_sel_hi:[0,1,1]' if sl==0 else 'op_sel:[1,0,0] op_sel_hi:[1,1,1]'
            o(f'v_pk_fma_f32 {vr(g,2)}, {vr(Er,2)}, {vr(WC+2*j,2)}, {vr(g,2)} {sel}')
def loads(R,OF):
    o(f'v_and_or_b32 v{AD}, v{OF}, s{sM}, v{LOFF}'); o(f'v_and_or_b32 v{AD+1}, v{OF+1}, s{sM}, v{LOFF}')
    o(f'buffer_load_dwordx4 {vr(R,4)}, v{AD}, {sr(rTR,4)}, 0 offen sc1')
    o(f'buffer_load_dwordx4 {vr(R+4,4)}, v{AD}, {sr(rTR,4)}, 0 offen offset:128 sc1')
    o(f'buffer_load_dwordx4 {vr(R+8,4)}, v{AD+1}, {sr(rTR,4)}, 0 offen sc1')
    o(f'buffer_load_dwordx4 {vr(R+12,4)}, v{AD+1}, {sr(rTR,4)}, 0 offen offset:128 sc1')
def rd_off(dst,b): o(f'ds_read2_b32 {vr(dst,2)}, v{RP} offset0:{b*32} offset1:{b*32+16}')
def rd_e(dst,b): o(f'ds_read2_b32 {vr(dst,2)}, v{RP} offset0:{b*32+1} offset1:{b*32+17}')
def dsreads(P):
    OFn=OFB if P==0 else OFA; En=EB_ if P==0 else EA_
    rd_off(OFn,P+3); rd_e(En,P+1)
    if P==1: o(f'v_add_u32 v{RP}, 256, v{RP}')
def accum(D):
    for sl in range(2):
        for j in range(4):
            g=D+8+8*sl+2*j
            o(f'v_pk_add_f32 {vr(DEN+2*j,2)}, {vr(DEN+2*j,2)}, {vr(g,2)}')
            v=(D+2*j) if sl==0 else (D+24+2*j)
            o(f'v_pk_fma_f32 {vr(NUM+2*j,2)}, {vr(g,2)}, {vr(v,2)}, {vr(NUM+2*j,2)}')
Ds=[DX,DY]; Rs=[R0,R1]; OFs=[OFA,OFB]; Es=[EA_,EB_]
rd_off(OFA,0); rd_off(OFB,1)
raw_prefetch()
o('s_waitcnt lgkmcnt(4)')
loads(R0,OFA); loads(R1,OFB)
rd_off(OFA,2); rd_e(EA_,0)
o(f's_mov_b32 s{sPAR}, 0')
if PROF: o('s_mov_b32 s3, 0')
lab('L_group')
o(f's_min_u32 s{sLN}, s{sLN}, {2*ELLB}')
o(f's_and_b32 s{sODD}, s{sLN}, 1'); o(f's_add_u32 s{sNBT}, s{sLN}, 1'); o(f's_lshr_b32 s{sNBT}, s{sNBT}, 1')
o(f'v_lshl_add_u32 v{OA}, v{NLN}, 9, v{VOK}')
mfma(NUM,C,C,'0')
o('s_waitcnt lgkmcnt(0)')
for i in range(8): o(f'v_lshlrev_b32 v{C+8+i}, 16, v{AUN+i}')
l=U('nonext')
o(f's_cmp_eq_u32 s{sG1}, -1'); o(f's_cbranch_scc1 {l}')
node_prefetch(sG1)
lab(l)
for i in range(8): o(f'v_and_b32 v{UF+i}, 0xffff0000, v{AUN+i}')
for i in range(4):
    o(f'v_lshlrev_b32 v{XF+2*i}, 16, v{XRN+i}'); o(f'v_and_b32 v{XF+2*i+1}, 0xffff0000, v{XRN+i}')
if PROF:
    o(f's_memtime s[100:101]'); o('s_waitcnt lgkmcnt(0)')
    o(f's_add_u32 m0, s3, 36'); o('s_nop 3'); o('v_writelane_b32 v255, s100, m0')
    o(f's_add_u32 m0, s3, 60'); o('s_nop 3'); o(f'v_writelane_b32 v255, s{sLN}, m0')
o(f's_cmp_eq_u32 s{sNBT}, 0'); o('s_cbranch_scc1 L_epi')
o(f's_cmp_eq_u32 s{sPAR}, 1'); o('s_cbranch_scc1 L_gs1')
def exps(D): return [f'v_exp_f32 v{D+8+i}, v{D+8+i}' for i in range(16)]
def rcps(D): return [f'v_rcp_f32 v{D+8+i}, v{D+8+i}' for i in range(16)]
for P in range(2):
    lab(f'L_gs{P}')
    o('s_waitcnt vmcnt(4)')
    for t in unpack_list(Ds[P],Rs[P]): o(t)
    o('s_waitcnt lgkmcnt(0)')
    loads(Rs[P],OFs[P])
    dsreads(P)
    o('s_nop 7')
    gfma(Ds[P],Es[P])
    o(f's_branch L_body{P}')
for P in range(2):
    Q=P^1
    lab(f'L_body{P}')
    o(f's_sub_u32 s{sNBT}, s{sNBT}, 1'); o(f's_cmp_eq_u32 s{sNBT}, 0'); o(f's_cbranch_scc1 L_last{P}')
    ex=exps(Ds[P]); un=unpack_list(Ds[Q],Rs[Q])
    o('s_waitcnt vmcnt(4)')
    for k in range(4):
        o(un[k])
        for t in ex[4*k:4*k+4]: o(t)
    o('s_nop 1')
    mfma(Ds[P]+8,ONE,ONE,vr(Ds[P]+8,16))
    o('s_waitcnt lgkmcnt(0)')
    loads(Rs[Q],OFs[Q])
    o('s_nop 2')
    dsreads(Q)
    for t in rcps(Ds[P]): o(t)
    gfma(Ds[Q],Es[Q])
    accum(Ds[P])
    if P==1: o('s_branch L_body0')
for P in range(2):
    lab(f'L_last{P}')
    D=Ds[P]
    o(f's_cmp_eq_u32 s{sODD}, 1'); o(f's_cbranch_scc1 L_half{P}')
    for t in exps(D): o(t)
    o('s_nop 1')
    mfma(D+8,ONE,ONE,vr(D+8,16))
    o('s_nop 7'); o('s_nop 3')
    for t in rcps(D): o(t)
    accum(D)
    o(f's_mov_b32 s{sPAR}, {P^1}')
    o('s_branch L_epi')
    lab(f'L_half{P}')
    for t in exps(D)[:8]: o(t)
    for j in range(4): o(f'v_pk_add_f32 {vr(D+8+2*j,2)}, {vr(D+8+2*j,2)}, 1.0 op_sel_hi:[1,0]')
    for t in rcps(D)[:8]: o(t)
    for j in range(4):
        g=D+8+2*j
        o(f'v_pk_add_f32 {vr(DEN+2*j,2)}, {vr(DEN+2*j,2)}, {vr(g,2)}')
        o(f'v_pk_fma_f32 {vr(NUM+2*j,2)}, {vr(g,2)}, {vr(D+2*j,2)}, {vr(NUM+2*j,2)}')
    o(f's_mov_b32 s{sPAR}, {P^1}')
    if P==0: o('s_branch L_epi')
lab('L_epi')
if PROF:
    o(f's_memtime s[100:101]'); o('s_waitcnt lgkmcnt(0)')
    o(f's_add_u32 m0, s3, 40'); o('s_nop 3'); o('v_writelane_b32 v255, s100, m0')
l=U('nonext2')
o(f's_cmp_eq_u32 s{sG1}, -1'); o(f's_cbranch_scc1 {l}')
o('s_waitcnt lgkmcnt(0)')
o(f'v_readfirstlane_b32 s{sLN}, v{LT}')
raw_prefetch()
lab(l)
o('s_mov_b32 s92, 0x358637bd'); o('s_mov_b32 s93, 0x358637bd')
for j in range(4): o(f'v_pk_add_f32 {vr(DEN+2*j,2)}, {vr(DEN+2*j,2)}, s[92:93]')
for i in range(8): o(f'v_rcp_f32 v{DEN+i}, v{DEN+i}')
o('s_nop 0')
for j in range(4): o(f'v_pk_fma_f32 {vr(UF+2*j,2)}, {vr(NUM+2*j,2)}, {vr(DEN+2*j,2)}, {vr(UF+2*j,2)}')
for i in range(8): o(f'v_max_f32 v{UF+i}, 0, v{UF+i}')
for j in range(4): o(f'v_pk_add_f32 {vr(UF+2*j,2)}, {vr(UF+2*j,2)}, {vr(XF+2*j,2)}')
for i in range(4): o(f'v_cvt_pk_bf16_f32 v{UF+i}, v{UF+2*i}, v{UF+2*i+1}')
o(f'buffer_store_dwordx2 {vr(UF,2)}, v{OA}, {sr(rOUT,4)}, 0 offen')
o(f'buffer_store_dwordx2 {vr(UF+2,2)}, v{OA}, {sr(rOUT,4)}, 0 offen offset:64')
if PROF:
    o(f's_memtime s[100:101]'); o('s_waitcnt lgkmcnt(0)')
    o(f's_add_u32 m0, s3, 56'); o('s_nop 3'); o('v_writelane_b32 v255, s100, m0')
    o('s_add_u32 s3, s3, 1')
o(f's_cmp_eq_u32 s{sG1}, -1'); o('s_cbranch_scc1 L_done')
o(f's_mov_b32 s{sG1}, s{sG2}'); o(f's_mov_b32 s{sG2}, -1')
o('s_branch L_group')
lab('L_done')
dstamp(4)
stamp(12)
if PROF:
    o('s_waitcnt vmcnt(0)')
    srd_off(92,sWS,WS_PROF,0x100000)
    o(f's_lshl_b32 s96, s2, 3'); o(f's_add_u32 s96, s96, s{sW}'); o('s_lshl_b32 s96, s96, 8')
    o('v_lshlrev_b32 v2, 2, v1')
    o('buffer_store_dword v255, v2, s[92:95], s96 offen')
o('s_endpgm')
lab('L_codeend')
lab('L_fallback')
FN,FD,FA,FU,FW=10,11,12,13,14
o('v_lshlrev_b32 v5, 2, v1')
o(f's_lshl_b32 s92, s{sS}, 7')
o('v_lshlrev_b32 v6, 1, v1'); o(f'v_add_u32 v6, s92, v6')
srd(64,sWC,512)
o(f'buffer_load_ushort v{FW}, v6, s[64:67], 0 offen')
o('s_waitcnt vmcnt(0)')
o(f'v_lshlrev_b32 v{FW}, 16, v{FW}'); o(f'v_mul_f32 v{FW}, {NLOG2E:#x}, v{FW}')
o(f's_mov_b32 s46, s{sW}')
lab('L_fb_node')
o(f's_cmp_ge_u32 s46, s{sNV}'); o('s_cbranch_scc1 L_fb_end')
o(f's_lshl_b32 s92, s46, 8'); o(f's_add_u32 s92, s92, {AU}'); o(f'v_add_u32 v7, s92, v5'); o('ds_read_b32 v8, v7')
o('s_waitcnt lgkmcnt(0)')
o(f'v_lshlrev_b32 v{FA}, 16, v8'); o(f'v_and_b32 v{FU}, 0xffff0000, v8')
o(f'v_mov_b32 v{FN}, 0'); o(f'v_mov_b32 v{FD}, 0')
o(f's_add_u32 s47, s46, s{sNB}')
o('s_mov_b32 s93, 0')
lab('L_fb_e')
o('v_add_u32 v7, s93, v1'); o('v_lshlrev_b32 v8, 2, v7'); o('v_lshlrev_b32 v7, 1, v7')
o(f'buffer_load_dword v15, v8, {sr(rDST,4)}, 0 offen')
o(f'buffer_load_dword v16, v8, {sr(rSRC,4)}, 0 offen')
o(f'buffer_load_ushort v17, v7, {sr(rEA,4)}, 0 offen')
o('s_waitcnt vmcnt(0)')
o('v_cmp_eq_u32 vcc, s47, v15')
o('s_mov_b64 s[94:95], vcc')
lab('L_fb_m')
o('s_cmp_eq_u64 s[94:95], 0'); o('s_cbranch_scc1 L_fb_next')
o('s_ff1_i32_b64 s96, s[94:95]')
o('s_bitset0_b64 s[94:95], s96')
o('v_readlane_b32 s97, v16, s96'); o('v_readlane_b32 s92, v17, s96')
o('s_nop 1')
o('s_lshl_b32 s97, s97, 8'); o('s_lshl_b32 s92, s92, 16')
o('s_nop 4')
o(f'buffer_load_dword v18, v5, {sr(rTR,4)}, s97 offen sc1')
o('s_waitcnt vmcnt(0)')
o('v_lshlrev_b32 v19, 16, v18'); o('v_and_b32 v18, 0xffff0000, v18')
o(f'v_add_f32 v19, v19, v{FA}'); o(f'v_fmac_f32 v19, s92, v{FW}')
o('v_exp_f32 v19, v19'); o('s_nop 0'); o('v_add_f32 v19, 1.0, v19'); o('v_rcp_f32 v19, v19'); o('s_nop 0')
o(f'v_add_f32 v{FD}, v{FD}, v19'); o(f'v_fmac_f32 v{FN}, v19, v18')
o('s_branch L_fb_m')
lab('L_fb_next')
o('s_add_u32 s93, s93, 64'); o(f's_cmp_lt_u32 s93, {E}'); o('s_cbranch_scc1 L_fb_e')
o('s_mov_b32 s92, 0x358637bd')
o(f'v_add_f32 v{FD}, s92, v{FD}'); o(f'v_rcp_f32 v{FD}, v{FD}'); o('s_nop 0')
o(f'v_fmac_f32 v{FU}, v{FN}, v{FD}'); o(f'v_max_f32 v{FU}, 0, v{FU}')
o('s_lshl_b32 s92, s47, 9')
o(f'buffer_load_ushort v18, v6, {sr(rX,4)}, s92 offen')
o('s_waitcnt vmcnt(0)')
o(f'v_lshlrev_b32 v18, 16, v18'); o(f'v_add_f32 v{FU}, v{FU}, v18')
o(f'v_cvt_pk_bf16_f32 v18, v{FU}, v{FU}')
o(f'buffer_store_short v18, v6, {sr(rOUT,4)}, s92 offen')
o('s_add_u32 s46, s46, 8'); o('s_branch L_fb_node')
lab('L_fb_end')
lab('L_end')
o('s_endpgm')
L=[x for x in L if x is not None]
hdr=open('gather_scatter__edge_featured_mpnn_gatedgcn__graph.s.ref').read().split('; Override')[0]
out=hdr+f'''; Generated by dev/gen2.py (hand-written generator). One fused persistent launch, 1 workgroup per CU.
; @launch grid=(256,1,1) block=(512,1,1) lds={LDS_TOTAL}
.amdgcn_target "amdgcn-amd-amdhsa--gfx950"
.text
.globl {NAME}
.p2align 8
.type {NAME},@function
'''+'\n'.join(L)+f'''
.section .rodata,"a"
.p2align 6
.amdhsa_kernel {NAME}
  .amdhsa_next_free_vgpr 256
  .amdhsa_next_free_sgpr 102
  .amdhsa_accum_offset 256
  .amdhsa_group_segment_fixed_size 0
  .amdhsa_kernarg_size 96
  .amdhsa_user_sgpr_count 2
  .amdhsa_user_sgpr_kernarg_segment_ptr 1
  .amdhsa_system_sgpr_workgroup_id_x 1
.end_amdhsa_kernel
'''
fn=[a for a in sys.argv[1:] if not a.startswith('--')]
open(fn[0] if fn else 'k.s','w').write(out)
```

```python
import sys
NAME='gather_scatter__edge_featured_mpnn_gatedgcn__graph_kernel'
PROF = '--prof' in sys.argv
OPT = {a.split('=')[0][2:]:(a.split('=')[1] if '=' in a else '1') for a in sys.argv[1:] if a.startswith('--')}
N=10000; E=160000; RN=157; CH=625; CHCAP=704
SLICE=10240*256
WS_RECS=0xA00000; WS_SEGT=0xB80000; SEGT_FLAG2=0x20000; WS_EPOCH=0xBB0000; WS_PROF=0xC00000
HIST1=0; DEG=256; HIST2=1024; LG=1280; GBASE=1408; CUR=1536; NODEOF=2304; CNT=3840
C_W=CNT; C_G=CNT+4; C_T=CNT+8; C_E1=CNT+12; C_SORT=CNT+16; C_P=CNT+20; C_FB=CNT+24; C_X=CNT+28; C_G1=CNT+32; C_H=CNT+36; C_R=CNT+40; C_X2=CNT+44; C_S=CNT+48; C_RL=CNT+52; C_X1=CNT+56
XT=4096; WR=XT+81920; AU=WR; ELL=WR+40960; ELLB=288
LDS_TOTAL=163840
RST=WR+65536
assert ELL+ELLB*128==LDS_TOTAL
NLOG2E=0xbfb8aa3b
sEP=4
sI,sROT,sTL,sWROT=6,7,8,9
sM=10
sX,sEA,sSRC,sDST,sWA,sWB,sWC,sWU=16,18,20,22,24,26,28,30
sWV,sOUT,sDBG,sWS=32,34,36,38
sW,sS,sR,sNONCE,sNB,sNV=40,41,42,43,44,45
rX,rDST,rSRC,rEA,rW1,rW2,rTW,rTR,rREC,rSEG,rOUT=48,52,56,60,64,68,72,76,80,84,88
sA,sB,sC_,sD,sSP=92,93,94,95,96
L=[]
def o(t): L.append('  '+t)
def lab(t): L.append(t+':')
def vr(a,n): return f'v[{a}:{a+n-1}]' if n>1 else f'v{a}'
def sr(a,n): return f's[{a}:{a+n-1}]'
uid=[0]
def U(p):
    uid[0]+=1; return f'L_{p}_{uid[0]}'
def srd(r,base,size):
    o(f's_mov_b32 s{r}, s{base}'); o(f's_mov_b32 s{r+1}, s{base+1}')
    o(f's_mov_b32 s{r+2}, {size}'); o(f's_mov_b32 s{r+3}, 0x20000')
def srd_off(r,base,off,size):
    o(f's_add_u32 s{r}, s{base}, {off}'); o(f's_addc_u32 s{r+1}, s{base+1}, 0')
    o(f's_mov_b32 s{r+2}, {size}'); o(f's_mov_b32 s{r+3}, 0x20000')
def dstamp(slot, reg=None):
    if 'dbgt' not in OPT: return
    l=U('ds')
    if reg is None: o('s_memrealtime s[100:101]'); o('s_waitcnt lgkmcnt(0)')
    o(f's_cmp_lg_u32 s{sW}, {7 if slot==3 else 0}'); o(f's_cbranch_scc1 {l}')
    o('s_mul_i32 s3, s2, 772'); o('s_lshr_b32 s3, s3, 16')
    o('s_mul_i32 s101, s3, 85'); o('s_cmp_lg_u32 s101, s2'); o(f's_cbranch_scc1 {l}')
    o('s_lshl_b32 s3, s3, 4'); o(f's_add_u32 s3, s3, {slot*4}')
    o('v_mov_b32 v254, s100'); o('v_mov_b32 v246, s3')
    o('s_mov_b64 exec, 1'); o(f'global_store_dword v246, v254, {sr(sDBG,2)}'); o('s_mov_b64 exec, -1')
    lab(l)
def stamp(idx):
    if not PROF: return
    o(f's_memrealtime s[100:101]'); o('s_waitcnt lgkmcnt(0)'); o(f'v_writelane_b32 v255, s100, {idx}')
    o(f's_memtime s[100:101]'); o('s_waitcnt lgkmcnt(0)'); o(f'v_writelane_b32 v255, s100, {idx+32}')
VZ=248
def lds_spin(addr, need, vtmp):
    l=U('spin'); d=U('spind')
    o(f's_mov_b32 s{sSP}, 0')
    lab(l)
    o(f'ds_read_b32 v{vtmp}, v{VZ} offset:{addr}')
    o('s_waitcnt lgkmcnt(0)')
    o(f'v_readfirstlane_b32 s{sA}, v{vtmp}')
    o(f's_add_u32 s{sSP}, s{sSP}, 1')
    o(f's_cmp_ge_u32 s{sA}, {need}')
    o(f's_cbranch_scc1 {d}')
    o('s_sleep 1')
    o(f's_cmp_lt_u32 s{sSP}, 0x40000')
    o(f's_cbranch_scc1 {l}')
    lab(d)
def lds_inc(addr, vtmp, ret=False):
    o(f'v_mov_b32 v{vtmp}, 1')
    o('s_mov_b64 exec, 1')
    if ret:
        o(f'ds_add_rtn_u32 v{vtmp}, v{VZ}, v{vtmp} offset:{addr}')
        o('s_waitcnt lgkmcnt(0)')
        o(f'v_readfirstlane_b32 s{sA}, v{vtmp}')
    else:
        o(f'ds_add_u32 v{VZ}, v{vtmp} offset:{addr}')
    o('s_mov_b64 exec, -1')
def scan64(v):
    for sh in (1,2,4,8):
        o('s_nop 1'); o(f'v_add_u32_dpp v{v}, v{v}, v{v} row_shr:{sh} row_mask:0xf bank_mask:0xf')
    o('s_nop 1'); o(f'v_add_u32_dpp v{v}, v{v}, v{v} row_bcast:15 row_mask:0xa bank_mask:0xf')
    o('s_nop 1'); o(f'v_add_u32_dpp v{v}, v{v}, v{v} row_bcast:31 row_mask:0xc bank_mask:0xf')
    o('s_nop 1')
lab(NAME)
if 'dbgt' in OPT: o('s_memrealtime s[8:9]') if False else o('s_memrealtime s[100:101]')
o('s_cmp_ge_u32 s2, 256')
o('s_cbranch_scc1 L_end')
o('s_load_dwordx16 s[16:31], s[0:1], 0')
o('s_load_dwordx8 s[32:39], s[0:1], 64')
o('v_and_b32 v1, 63, v0')
o('v_lshrrev_b32 v2, 6, v0')
o(f'v_mov_b32 v{VZ}, 0')
o(f'v_readfirstlane_b32 s{sW}, v2')
o('s_getpc_b64 s[12:13]')
lab('L_pc')
if 'nopf' not in OPT:
    o(f's_cmp_lg_u32 s{sW}, 7'); o('s_cbranch_scc1 L_nopf')
    o('s_lshr_b32 s3, s2, 3'); o('s_lshl_b32 s3, s3, 10')
    o('v_lshl_add_u32 v2, v1, 4, s3')
    o('v_cmp_gt_u32 vcc, L_codeend-L_pc-16, v2')
    o('s_and_saveexec_b64 s[98:99], vcc')
    o('s_cbranch_execz L_nopf2')
    o('global_load_dwordx4 v[240:243], v2, s[12:13]')
    lab('L_nopf2')
    o('s_mov_b64 exec, -1')
    lab('L_nopf')
o('v_lshlrev_b32 v17, 3, v0'); o('v_mov_b32 v20, 0'); o('v_mov_b32 v21, 0')
o('ds_write_b64 v17, v[20:21]')
o(f's_and_b32 s{sS}, s2, 7'); o(f's_lshr_b32 s{sS}, s{sS}, 1')
o(f's_lshr_b32 s{sR}, s2, 3'); o(f's_lshl_b32 s{sR}, s{sR}, 1'); o(f's_and_b32 s{sA}, s2, 1'); o(f's_or_b32 s{sR}, s{sR}, s{sA}')
o(f's_mul_i32 s{sNB}, s{sR}, {RN}')
o(f's_sub_u32 s{sNV}, {N}, s{sNB}'); o(f's_min_u32 s{sNV}, s{sNV}, {RN}')
if PROF: o('v_mov_b32 v255, 0')
for _v in (56,57,58,59,60,61,62,63,240,241,242,243): o(f'v_mov_b32 v{_v}, 0')
o(f's_mul_i32 s{sROT}, s{sS}, 5'); o(f's_add_u32 s{sROT}, s{sROT}, 1'); o(f's_lshr_b32 s{sROT}, s{sROT}, 1')
o(f's_lshr_b32 s{sWROT}, s2, 3')
o(f's_mov_b32 s{sM}, 0xffffff00')
def build_common():
    srd(rOUT,sOUT,N*512)
    o(f's_mul_i32 s{sA}, s{sS}, {SLICE}')
    o(f's_add_u32 s{rTW}, s{sWS}, s{sA}'); o(f's_addc_u32 s{rTW+1}, s{sWS+1}, 0')
    o(f's_add_u32 s{sA}, s{sNB}, s{sNV}'); o(f's_lshl_b32 s{rTW+2}, s{sA}, 8'); o(f's_mov_b32 s{rTW+3}, 0x20000')
    o(f's_mov_b32 s{rTR}, s{rTW}'); o(f's_mov_b32 s{rTR+1}, s{rTW+1}'); o(f's_mov_b32 s{rTR+2}, {(N+1)*256}'); o(f's_mov_b32 s{rTR+3}, 0x20000')
    srd_off(rSEG,sWS,WS_SEGT,0x21000)
    o(f's_add_u32 s{sEP}, s{sWS}, {WS_EPOCH}'); o(f's_addc_u32 s{sEP+1}, s{sWS+1}, 0')
    o(f's_load_dword s{sNONCE}, {sr(sEP,2)}, 0')
def wc_load():
    o('v_and_b32 v17, 7, v1'); o('v_lshlrev_b32 v17, 3, v17')
    o(f's_lshl_b32 s{sA}, s{sS}, 7'); o(f'v_add_u32 v17, s{sA}, v17')
    srd(rREC,sWC,512)
    o(f'buffer_load_dwordx2 v[250:251], v17, {sr(rREC,4)}, 0 offen')
    o(f'buffer_load_dwordx2 v[252:253], v17, {sr(rREC,4)}, 0 offen offset:64')
def wvoff(dst, wexpr_s):
    o('v_lshrrev_b32 v17, 3, v1')
    o(f's_lshl_b32 s{sA}, s{wexpr_s}, 3'); o(f'v_add_u32 v17, s{sA}, v17')
    o('v_bfe_u32 v20, v1, 4, 1')
    o(f's_and_b32 s{sA}, s{wexpr_s}, 1'); o(f's_lshl_b32 s{sA}, s{sA}, 1'); o(f'v_or_b32 v20, s{sA}, v20')
    o('v_bfe_u32 v19, v1, 1, 2'); o('v_xor_b32 v19, v19, v20'); o('v_lshlrev_b32 v19, 1, v19')
    o('v_and_b32 v20, 1, v1'); o('v_or_b32 v19, v19, v20')
    o('v_lshlrev_b32 v19, 4, v19'); o('v_lshl_add_u32 v19, v17, 9, v19')
    o(f's_lshl_b32 s{sA}, s{sS}, 7'); o(f'v_add_u32 v{dst}, s{sA}, v19')
o(f's_cmp_ge_u32 s{sW}, 4')
o('s_cbranch_scc1 L_e0')
o('v_lshrrev_b32 v17, 5, v1')
o(f's_lshl_b32 s{sA}, s{sW}, 1'); o(f'v_add_u32 v17, s{sA}, v17')
o('v_and_b32 v18, 31, v1'); o('v_and_b32 v19, 15, v17'); o('v_xor_b32 v22, v18, v19')
o('v_lshlrev_b32 v22, 4, v22'); o('v_lshl_add_u32 v22, v17, 9, v22')
o('v_add_u32 v17, 8, v17'); o('v_and_b32 v19, 15, v17'); o('v_xor_b32 v23, v18, v19')
o('v_lshlrev_b32 v23, 4, v23'); o('v_lshl_add_u32 v23, v17, 9, v23')
wvoff(249,sW)
o('s_waitcnt lgkmcnt(0)')
dstamp(0,reg=True)
dstamp(1)
o('s_barrier')
stamp(0)
if 'stlb' in OPT:
    def touch(base, off_s=None, off_i=0):
        if off_s is None and off_i==0:
            o(f's_load_dword s13, {sr(base,2)}, 0'); return
        if off_s is not None:
            o(f's_add_u32 s14, s{base}, s{off_s}'); o(f's_addc_u32 s15, s{base+1}, 0')
            if off_i: o(f's_add_u32 s14, s14, {off_i}'); o('s_addc_u32 s15, s15, 0')
        else:
            o(f's_add_u32 s14, s{base}, {off_i}'); o(f's_addc_u32 s15, s{base+1}, 0')
        o('s_load_dword s13, s[14:15], 0')
    o(f's_lshl_b32 s3, s{sNB}, 9')
    touch(sX,3); touch(sWB); touch(sWV); touch(sWA); touch(sWU); touch(sOUT,3)
    touch(sWS,None,WS_RECS)
    o(f's_mul_i32 s3, s{sS}, {SLICE}')
    touch(sWS,3); touch(sWS,3,0x100000); touch(sWS,3,0x200000); touch(sWS,3,SLICE-256)
wc_load()
srd(rX,sX,N*512); srd(rW1,sWB,131072); srd(rW2,sWV,131072)
o(f's_lshl_b32 s{sC_}, s{sW}, 10')
o(f's_mov_b32 s{sTL}, s{sROT}')
o(f's_mov_b32 s{sI}, 0')
lab('L_dmaw')
o(f's_add_u32 s{sA}, s{sI}, s{sWROT}'); o(f's_and_b32 s{sA}, s{sA}, 7')
o(f's_lshl_b32 s{sB}, s{sA}, 14'); o(f's_lshl_b32 s{sA}, s{sA}, 12'); o(f's_add_u32 s{sA}, s{sA}, s{sC_}')
o(f's_add_u32 m0, s{sA}, {WR}'); o('s_nop 0')
o(f'buffer_load_dwordx4 v249, {sr(rW1,4)}, s{sB} offen lds')
o(f's_add_u32 m0, s{sA}, {WR+32768}'); o('s_nop 0')
o(f'buffer_load_dwordx4 v249, {sr(rW2,4)}, s{sB} offen lds')
o('s_waitcnt vmcnt(%s)' % OPT.get('pace','8'))
o(f's_add_u32 s{sI}, s{sI}, 1'); o(f's_cmp_lt_u32 s{sI}, 8'); o('s_cbranch_scc1 L_dmaw')
def xloop(lo,hi,name):
    o(f's_mov_b32 s{sI}, {lo}')
    lab(name)
    o(f's_lshr_b32 s{sTL}, s{sI}, 1'); o(f's_and_b32 s{sA}, s{sI}, 1'); o(f's_mul_i32 s{sA}, s{sA}, 5'); o(f's_add_u32 s{sTL}, s{sTL}, s{sA}')
    o(f's_lshl_b32 s{sA}, s{sTL}, 13'); o(f's_add_u32 s{sD}, s{sA}, s{sC_}'); o(f's_add_u32 m0, s{sD}, {XT}')
    o(f's_lshl_b32 s{sB}, s{sNB}, 9'); o(f's_add_u32 s{sB}, s{sB}, s{sA}')
    o(f'buffer_load_dwordx4 v22, {sr(rX,4)}, s{sB} offen lds')
    o(f's_add_u32 m0, s{sD}, {XT+4096}'); o('s_nop 0')
    o(f'buffer_load_dwordx4 v23, {sr(rX,4)}, s{sB} offen lds')
    o('s_waitcnt vmcnt(%s)' % OPT.get('pace','8'))
    o(f's_add_u32 s{sI}, s{sI}, 1'); o(f's_cmp_lt_u32 s{sI}, {hi}'); o(f's_cbranch_scc1 {name}')
xloop(0,4,'L_dmax1')
stamp(19)
build_common()
srd(rDST,sDST,E*4); srd(rSRC,sSRC,E*4); srd(rEA,sEA,E*2); srd_off(rREC,sWS,WS_RECS,256*CHCAP*8)
WF,AF,ACC,XA,XC,TRA,TOF,AUA=64,192,224,56,60,240,241,242
o(f's_and_b32 s{sD}, s{sW}, 1'); o(f's_lshl_b32 s{sD}, s{sD}, 1')
o('v_lshrrev_b32 v17, 4, v1')
o('v_bfe_u32 v18, v1, 2, 2')
o('v_lshl_add_u32 v19, v17, 3, v18')
o('v_lshlrev_b32 v19, 7, v19')
o('v_bfe_u32 v20, v1, 3, 1')
o('v_and_b32 v21, 1, v17'); o('v_lshl_or_b32 v20, v21, 1, v20')
o(f'v_xor_b32 v20, s{sD}, v20')
o('v_and_b32 v21, 3, v1'); o('v_lshl_add_u32 v19, v21, 3, v19'); o(f'v_add_u32 v19, {WR}, v19')
o(f'v_lshl_add_u32 v{TRA}, v20, 5, v19')
o('v_xor_b32 v20, 1, v20'); o(f'v_lshl_add_u32 v{TRA+3}, v20, 5, v19')
def wfrags():
    for m in range(2):
        for t in range(2):
            for ks in range(8):
                r=WF+64*m+32*t+4*ks; a=TRA if t==0 else TRA+3
                o(f'ds_read_b64_tr_b16 {vr(r,2)}, v{a} offset:{m*32768+ks*4096}')
                o(f'ds_read_b64_tr_b16 {vr(r+2,2)}, v{a} offset:{m*32768+ks*4096+512}')
o('v_and_b32 v18, 15, v1')
for k in range(4):
    o(f'v_and_b32 v19, 12, v18'); o(f'v_xor_b32 v19, {4*k}, v19')
    o('v_and_b32 v20, 3, v18'); o('v_xor_b32 v20, v20, v17')
    o('v_add_u32 v19, v19, v20'); o('v_lshlrev_b32 v19, 4, v19')
    o(f'v_lshl_add_u32 v{XA+k}, v18, 9, v19')
    o(f'v_add_u32 v{XA+k}, {XT}, v{XA+k}')
o('v_lshlrev_b32 v19, 10, v17')
o(f's_lshl_b32 s{sA}, s{sD}, 6')
o('v_lshl_add_u32 v19, v18, 2, v19'); o(f'v_add_u32 v{TOF}, s{sA}, v19')
o(f's_lshr_b32 s{sROT}, s{sW}, 1'); o(f's_mul_i32 s{sROT}, s{sROT}, 5')

o('s_waitcnt vmcnt(8) lgkmcnt(0)')
o(f's_mul_i32 s{sNONCE}, s{sNONCE}, 0x9E3779B1'); o(f's_add_u32 s{sNONCE}, s{sNONCE}, 0x7F4A7C15')
lds_inc(C_X,244)
lds_spin(C_X,4,244)
stamp(2)
wfrags()
o('s_waitcnt lgkmcnt(0)')
o(f's_lshl_b32 s{sC_}, s{sW}, 10')
lds_inc(C_W,244)
lds_spin(C_W,4,244)
srd(rW1,sWA,131072); srd(rW2,sWU,131072)
o(f's_mov_b32 s{sI}, 0')
lab('L_dmau')
o(f's_add_u32 s{sA}, s{sI}, s{sWROT}'); o(f's_and_b32 s{sA}, s{sA}, 7')
o(f's_lshl_b32 s{sB}, s{sA}, 14'); o(f's_lshl_b32 s{sA}, s{sA}, 12'); o(f's_add_u32 s{sA}, s{sA}, s{sC_}')
o(f's_add_u32 m0, s{sA}, {WR}'); o('s_nop 0')
o(f'buffer_load_dwordx4 v249, {sr(rW1,4)}, s{sB} offen lds')
o(f's_add_u32 m0, s{sA}, {WR+32768}'); o('s_nop 0')
o(f'buffer_load_dwordx4 v249, {sr(rW2,4)}, s{sB} offen lds')
o('s_waitcnt vmcnt(%s)' % OPT.get('pace','8'))
o(f's_add_u32 s{sI}, s{sI}, 1'); o(f's_cmp_lt_u32 s{sI}, 8'); o('s_cbranch_scc1 L_dmau')
xloop(4,10,'L_dmax2')
lds_inc(C_G1,244)
stamp(3)
o('s_waitcnt vmcnt(8)')
lds_inc(C_X1,244)
lds_spin(C_X1,4,244)
stamp(4)
o('s_branch L_g_gemm')
lab('L_e0')
if 'noprio' not in OPT: o('s_setprio 2')
o('v_subrev_u32 v14, 256, v0')
o(f's_mul_i32 s{sA}, s2, {CH}')
o(f'v_add_u32 v15, s{sA}, v14')
o('v_lshlrev_b32 v16, 1, v15'); o('v_lshlrev_b32 v15, 2, v15')
o(f'v_cmp_gt_u32 vcc, {CH-512}, v14')
o('v_add_u32 v18, 2048, v15'); o('v_add_u32 v19, 1024, v16')
o('v_mov_b32 v17, 0x40000000')
o('v_cndmask_b32 v18, v17, v18, vcc'); o('v_cndmask_b32 v19, v17, v19, vcc')
o('s_waitcnt lgkmcnt(0)')
ED,ES,EE=2,5,8
srd(rDST,sDST,E*4)
o(f'buffer_load_dword v{ED}, v15, {sr(rDST,4)}, 0 offen')
o(f'buffer_load_dword v{ED+1}, v15, {sr(rDST,4)}, 0 offen offset:1024')
o(f'buffer_load_dword v{ED+2}, v18, {sr(rDST,4)}, 0 offen')
srd(rSRC,sSRC,E*4)
o(f'buffer_load_dword v{ES}, v15, {sr(rSRC,4)}, 0 offen')
o(f'buffer_load_dword v{ES+1}, v15, {sr(rSRC,4)}, 0 offen offset:1024')
o(f'buffer_load_dword v{ES+2}, v18, {sr(rSRC,4)}, 0 offen')
srd(rEA,sEA,E*2)
o(f'buffer_load_ushort v{EE}, v16, {sr(rEA,4)}, 0 offen')
o(f'buffer_load_ushort v{EE+1}, v16, {sr(rEA,4)}, 0 offen offset:512')
o(f'buffer_load_ushort v{EE+2}, v19, {sr(rEA,4)}, 0 offen')
o('s_barrier')
stamp(0)
wc_load()
srd(rW1,sWA,131072); srd(rW2,sWU,131072)
o('s_lshr_b32 s3, s2, 3'); o('s_lshl_b32 s3, s3, 12')
o('v_lshrrev_b32 v17, 3, v1'); o('v_lshlrev_b32 v17, 9, v17'); o('v_and_b32 v19, 7, v1'); o('v_lshl_add_u32 v17, v19, 4, v17')
o(f's_lshl_b32 s{sA}, s{sS}, 7'); o(f'v_add_u32 v17, s{sA}, v17')
l=U('wu')
if 'nowu' not in OPT:
    o(f's_cmp_lg_u32 s{sW}, 4'); o(f's_cbranch_scc1 {l}_a')
    o(f'buffer_load_dwordx4 v[240:243], v17, {sr(rW1,4)}, s3 offen')
    lab(l+'_a')
    o(f's_cmp_lg_u32 s{sW}, 5'); o(f's_cbranch_scc1 {l}_b')
    o(f'buffer_load_dwordx4 v[240:243], v17, {sr(rW2,4)}, s3 offen')
    lab(l+'_b')
build_common()
srd(rX,sX,N*512); srd_off(rREC,sWS,WS_RECS,256*CHCAP*8)
if 'notlb' not in OPT:
    o(f's_cmp_lg_u32 s{sW}, 6'); o(f's_cbranch_scc1 {l}_c')
    o('v_lshlrev_b32 v17, 20, v1'); o('v_cmpx_gt_u32 vcc, 3, v1')
    o(f'buffer_load_dword v244, v17, {sr(rTR,4)}, 0 offen')
    o('s_mov_b64 exec, -1')
    lab(l+'_c')
    o(f's_cmp_lg_u32 s{sW}, 7'); o(f's_cbranch_scc1 {l}_d')
    o(f's_lshl_b32 s{sA}, s{sNB}, 9')
    o(f'buffer_load_dword v244, v{VZ}, {sr(rOUT,4)}, s{sA} offen')
    o(f'buffer_load_dword v245, v{VZ}, {sr(rREC,4)}, 0 offen')
    lab(l+'_d')
wvoff(249,sW)
o('v_subrev_u32 v247, 16384, v249')
o('s_waitcnt vmcnt(%d)' % (2 if ('nowu' in OPT or 'notlb' in OPT) else 3))
stamp(22)
o(f's_mov_b32 s{sA}, 106862')
RR,RK_,RW=36,24,28
for k in range(3):
    o(f'v_mul_lo_u32 v{RR+k}, v{ED+k}, s{sA}')
for k in range(3):
    o(f'v_lshrrev_b32 v{RR+k}, 24, v{RR+k}')
    o(f'v_mul_u32_u24 v17, {RN}, v{RR+k}'); o(f'v_sub_u32 v17, v{ED+k}, v17')
    o(f'v_lshl_or_b32 v{RW+2*k}, v{ES+k}, 8, v17'); o(f'v_lshlrev_b32 v{RW+2*k+1}, 16, v{EE+k}')
    o(f'v_lshlrev_b32 v{RR+k}, 2, v{RR+k}')
o('v_mov_b32 v16, 1')
o(f'ds_add_rtn_u32 v{RK_}, v{RR}, v16 offset:{HIST1}')
o(f'ds_add_rtn_u32 v{RK_+1}, v{RR+1}, v16 offset:{HIST1}')
o(f'v_cmpx_gt_u32 vcc, {CH-512}, v14')
o(f'ds_add_rtn_u32 v{RK_+2}, v{RR+2}, v16 offset:{HIST1}')
o('s_mov_b64 exec, -1')
o('s_waitcnt lgkmcnt(0)')
o(f's_mul_i32 s{sNONCE}, s{sNONCE}, 0x9E3779B1'); o(f's_add_u32 s{sNONCE}, s{sNONCE}, 0x7F4A7C15')
lds_inc(C_H,17)
lds_spin(C_H,4,17)
o('v_lshlrev_b32 v17, 2, v1')
o(f'ds_read_b32 v20, v17 offset:{HIST1}')
o('s_waitcnt lgkmcnt(0)')
o('v_add_u32 v21, 1, v20'); o('v_and_b32 v21, -2, v21'); o('v_mov_b32 v22, v21')
scan64(21)
o('v_sub_u32 v22, v21, v22')
for k in range(3): o(f'ds_bpermute_b32 v{RR+k}, v{RR+k}, v22')
o('s_waitcnt lgkmcnt(0)')
for k in range(3): o(f'v_add_lshl_u32 v{RR+k}, v{RR+k}, v{RK_+k}, 3')
for k in range(3): o(f'v_add_u32 v{RR+k}, {RST}, v{RR+k}')
o(f'ds_write_b64 v{RR}, {vr(RW,2)}')
o(f'ds_write_b64 v{RR+1}, {vr(RW+2,2)}')
o(f'v_cmpx_gt_u32 vcc, {CH-512}, v14')
o(f'ds_write_b64 v{RR+2}, {vr(RW+4,2)}')
o('s_mov_b64 exec, -1')
o('s_waitcnt lgkmcnt(0)')
lds_inc(C_S,17)
lds_spin(C_S,4,17)
o('v_lshlrev_b32 v17, 4, v14'); o(f'v_add_u32 v18, {RST}, v17')
if 'delay' in OPT: lds_spin(C_X2,4,36)
o('ds_read_b128 v[28:31], v18'); o('ds_read_b128 v[32:35], v18 offset:4096')
o(f's_mul_i32 s{sA}, s2, {CHCAP*8}'); o(f's_add_u32 s{sB}, s{sA}, 4096')
o(f's_and_b32 s{sC_}, s{sNONCE}, 0xffff'); o(f's_lshr_b32 s{sD}, s{sNONCE}, 16')
o('v_mov_b32 v19, 0xffff0000')
o('s_waitcnt lgkmcnt(0)')
o(f'v_and_or_b32 v29, v29, v19, s{sC_}'); o(f'v_and_or_b32 v31, v31, v19, s{sD}')
o(f'v_and_or_b32 v33, v33, v19, s{sC_}'); o(f'v_and_or_b32 v35, v35, v19, s{sD}')
if 'noEst' not in OPT:
    o(f'buffer_store_dwordx4 v[28:31], v17, {sr(rREC,4)}, s{sA} offen sc1')
    o(f'v_cmpx_gt_u32 vcc, {(CHCAP*8-4096)//16}, v14')
    o(f'buffer_store_dwordx4 v[32:35], v17, {sr(rREC,4)}, s{sB} offen sc1')
    o('s_mov_b64 exec, -1')
stamp(2)
l=U('nopub')
if 'noEst' in OPT: o(f's_branch {l}')
o(f's_cmp_lg_u32 s{sW}, 4'); o(f's_cbranch_scc1 {l}')
o('v_lshl_or_b32 v24, v20, 16, v22'); o(f'v_mov_b32 v25, s{sNONCE}')
o('v_lshlrev_b32 v17, 11, v1')
o(f's_lshl_b32 s{sA}, s2, 3')
o(f'buffer_store_dwordx2 v[24:25], v17, {sr(rSEG,4)}, s{sA} offen sc1')
lab(l)
stamp(3)
stamp(4)
o('s_branch L_main_setup' if 'xE' in OPT else 's_branch L_eteam_b')
lab('L_g_gemm')
if 'gprio' in OPT: o('s_setprio 3')
sTE=11
sTC=12
def xread(ks): return f'ds_read_b128 {vr(AF+4*ks,4)}, v{XC+(ks&3)} offset:{256 if ks>=4 else 0}'
def epi_list(which,a,t):
    e=[]
    for i in range(4): e.append(f'v_mul_f32 v{a+i}, {NLOG2E:#x}, v{a+i}')
    for i in range(4): e.append(f'v_cvt_pk_bf16_f32 v{a+i}, v{a+i}, v{a+4+i}')
    if which==1:
        for i in range(4): e.append(f'buffer_store_dword v{a+i}, v{TOF}, {sr(rTW,4)}, s{sB if t==1 else sD} offen offset:{i*256+64*t} sc1')
    else:
        for i in range(4): e.append(f'ds_write_b32 v{AUA if t==1 else AUA+2}, v{a+i} offset:{i*256+64*t}')
    return e
def addr_ops(which,tile_s,t):
    dst = sB if t==1 else sD
    if which==1: return [f's_lshl_b32 s{dst}, s{tile_s}, 4', f's_add_u32 s{dst}, s{dst}, s{sNB}', f's_lshl_b32 s{dst}, s{dst}, 8']
    return [f's_lshl_b32 s{dst}, s{tile_s}, 12', f's_add_u32 s{dst}, s{dst}, {AU}', f'v_add_u32 v{AUA if t==1 else AUA+2}, s{dst}, v{TOF}']
sTO=[13,14,15,46,47]
PK=8
def gemm_body(which, j):
    B0,V0,B1,V1=ACC,ACC+4,ACC+8,ACC+12
    if which==1:
        def epi1(a,jj,t):
            e=[f'v_mul_f32 v{a+i}, {NLOG2E:#x}, v{a+i}' for i in range(4)]
            e+=[f'v_cvt_pk_bf16_f32 v{PK+8*jj+4*t+i}, v{a+i}, v{a+4+i}' for i in range(4)]
            return e
        eP1=epi1(B1,j-1,1) if j>0 else []; eP0=epi1(B0,j,0)
        a1=[]; a0=[]
    else:
        eP1=epi_list(2,B1,1); eP0=epi_list(2,B0,0)
        a1=addr_ops(2,sTE,1); a0=addr_ops(2,sTC,0)
    fill=[[] for _ in range(16)]
    if which==2:
        fill[0]+=a1[0:2]; fill[1]+=a1[2:3]+a0[0:1]; fill[2]+=a0[1:3]
        fill[3]+=eP1[0:3]; fill[4]+=eP1[3:6]; fill[5]+=eP1[6:9]; fill[6]+=eP1[9:11]; fill[7]+=eP1[11:12]
    elif eP1:
        fill[3]+=eP1[0:2]; fill[4]+=eP1[2:4]; fill[5]+=eP1[4:6]; fill[6]+=eP1[6:8]
    if not (which==1 and j==4):
        for ks in range(8): fill[8+ks].append(xread(ks))
    if which==2:
        fill[11]+=eP0[0:3]; fill[12]+=eP0[3:6]; fill[13]+=eP0[6:9]; fill[14]+=eP0[9:11]; fill[15]+=eP0[11:12]
        tail=[f's_mov_b32 s{sTE}, s{sTC}', f's_add_u32 s{sTC}, s{sTC}, 1', f's_add_u32 s{sA}, s{sTC}, 1', f's_lshl_b32 s{sA}, s{sA}, 13']
        fill[9]+=tail[0:2]; fill[10]+=tail[2:4]
    else:
        fill[11]+=eP0[0:2]; fill[12]+=eP0[2:4]; fill[13]+=eP0[4:6]; fill[14]+=eP0[6:8]
        fill[9]+=[f's_add_u32 s{sTC}, s{sTC}, 8192']
    seq=[]
    for sl in range(16):
        for t in fill[sl]:
            if t.startswith('ds_read'): seq.append((sl,'r'))
            elif t.startswith('ds_write'): seq.append((sl,'w'))
    def waitcount(ks):
        if which==1: return 7-ks
        n=0; found=False; k=-1
        for (sl,kind) in seq:
            if kind=='r':
                k+=1
                if k==ks: found=True; continue
            if found: n+=1
        for (sl,kind) in seq:
            if sl<ks: n+=1
        return n
    for ph in range(2):
        for ks in range(8):
            ab,av=(B0,V0) if ph==0 else (B1,V1)
            wb=WF+32*ph+4*ks; wv=WF+64+32*ph+4*ks
            if ph==0: o(f's_waitcnt lgkmcnt({min(waitcount(ks),15)})')
            c1='0' if ks==0 else vr(ab,4); c2='0' if ks==0 else vr(av,4)
            f=fill[8*ph+ks]
            o(f'v_mfma_f32_16x16x32_bf16 {vr(ab,4)}, {vr(AF+4*ks,4)}, {vr(wb,4)}, {c1}')
            h=(len(f)+1)//2 if ph==0 else 0
            for t in f[:h]: o(t)
            o(f'v_mfma_f32_16x16x32_bf16 {vr(av,4)}, {vr(AF+4*ks,4)}, {vr(wv,4)}, {c2}')
            for t in f[h:]: o(t)
    if which==2:
        for k in range(4): o(f'v_add_u32 v{XC+k}, s{sA}, v{XA+k}')
    elif j<3:
        for k in range(4): o(f'v_add_u32 v{XC+k}, s{sTC}, v{XA+k}')
def table_stores():
    for j in range(5):
        o(f's_add_u32 s{sB}, s{sROT}, {j}'); o(f's_lshl_b32 s{sB}, s{sB}, 4'); o(f's_add_u32 s{sB}, s{sB}, s{sNB}'); o(f's_lshl_b32 s{sB}, s{sB}, 8')
        for t in range(2):
            for i in range(4):
                o(f'buffer_store_dword v{PK+8*j+4*t+i}, v{TOF}, {sr(rTW,4)}, s{sB} offen offset:{i*256+64*t} sc1')
def gemm1():
    o(f's_lshl_b32 s{sTC}, s{sROT}, 13')
    for k in range(4): o(f'v_add_u32 v{XC+k}, s{sTC}, v{XA+k}')
    for ks in range(8): o(xread(ks))
    o(f's_add_u32 s{sTC}, s{sTC}, 8192')
    for k in range(4): o(f'v_add_u32 v{XC+k}, s{sTC}, v{XA+k}')
    o('s_waitcnt lgkmcnt(0)')
    for j in range(5):
        if j==1:
            o('s_waitcnt vmcnt(0)')
            lds_inc(C_X2,244)
            o('s_waitcnt lgkmcnt(0)')
        if j==2:
            lds_spin(C_X2,4,244)
        gemm_body(1,j)
    o('s_nop 7')
    for i in range(4): o(f'v_mul_f32 v{ACC+8+i}, {NLOG2E:#x}, v{ACC+8+i}')
    for i in range(4): o(f'v_cvt_pk_bf16_f32 v{PK+32+4+i}, v{ACC+8+i}, v{ACC+12+i}')
def dummy_row():
    l=U('nodummy')
    o(f's_cmp_lg_u32 s{sR}, 63'); o(f's_cbranch_scc1 {l}')
    o(f's_cmp_lg_u32 s{sW}, 0'); o(f's_cbranch_scc1 {l}')
    o('v_mov_b32 v244, 0x7f7f'); o('v_lshlrev_b32 v245, 2, v1'); o(f'v_add_u32 v245, {N*256}, v245')
    o(f'buffer_store_dword v244, v245, {sr(rTR,4)}, 0 offen sc1')
    lab(l)
def gemm2():
    B0,V0,B1,V1=ACC,ACC+4,ACC+8,ACC+12
    for j in range(5):
        o(f's_add_u32 s{sTO[j]}, s{sROT}, {j}'); o(f's_lshl_b32 s{sTO[j]}, s{sTO[j]}, 4'); o(f's_add_u32 s{sTO[j]}, s{sTO[j]}, s{sNB}'); o(f's_lshl_b32 s{sTO[j]}, s{sTO[j]}, 8')
    o(f's_lshl_b32 s{sTC}, s{sROT}, 13')
    for k in range(4): o(f'v_add_u32 v{XC+k}, s{sTC}, v{XA+k}')
    for ks in range(8): o(xread(ks))
    o(f's_add_u32 s{sTC}, s{sTC}, 8192')
    for k in range(4): o(f'v_add_u32 v{XC+k}, s{sTC}, v{XA+k}')
    o(f's_lshl_b32 s{sA}, s{sROT}, 12'); o(f's_add_u32 s{sA}, s{sA}, {AU}'); o(f'v_add_u32 v{AUA}, s{sA}, v{TOF}')
    o('s_waitcnt lgkmcnt(0)')
    def epi(a,jj,t):
        e=[f'v_mul_f32 v{a+i}, {NLOG2E:#x}, v{a+i}' for i in range(4)]
        e+=[f'v_cvt_pk_bf16_f32 v{a+i}, v{a+i}, v{a+4+i}' for i in range(4)]
        e+=[f'ds_write_b32 v{AUA}, v{a+i} offset:{jj*4096+i*256+64*t}' for i in range(4)]
        return e
    def tst(jj): return [f'buffer_store_dword v{PK+8*jj+4*t+i}, v{TOF}, {sr(rTW,4)}, s{sTO[jj]} offen offset:{i*256+64*t} sc1' for t in range(2) for i in range(4)]
    stores={0:tst(0)+tst(1),1:tst(2)+tst(3),2:tst(4),3:[],4:[]}
    prev_tail=0
    for j in range(5):
        eP1=epi(B1,j-1,1) if j>0 else []; eP0=epi(B0,j,0)
        fill=[[] for _ in range(16)]
        if eP1:
            fill[3]+=eP1[0:3]; fill[4]+=eP1[3:6]; fill[5]+=eP1[6:9]; fill[6]+=eP1[9:11]; fill[7]+=eP1[11:12]
        if j<4:
            for ks in range(8): fill[8+ks].append(xread(ks))
        fill[11]+=eP0[0:3]; fill[12]+=eP0[3:6]; fill[13]+=eP0[6:9]; fill[14]+=eP0[9:11]; fill[15]+=eP0[11:12]
        if j<3: fill[9]+=[f's_add_u32 s{sTC}, s{sTC}, 8192']
        st=list(stores[j])
        for sl in range(16):
            if st: fill[sl].append(st.pop(0))
        seq=[(sl,('r' if t.startswith('ds_read') else 'w')) for sl in range(16) for t in fill[sl] if t.startswith('ds_')]
        for ph in range(2):
            for ks in range(8):
                ab,av=(B0,V0) if ph==0 else (B1,V1)
                wb=WF+32*ph+4*ks; wv=WF+64+32*ph+4*ks
                if ph==0 and j>0:
                    n=0; found=False; k=-1
                    for (sl,kind) in prevseq:
                        if kind=='r':
                            k+=1
                            if k==ks: found=True; continue
                        if found: n+=1
                    n+=sum(1 for (sl,kind) in seq if sl<ks)
                    o(f's_waitcnt lgkmcnt({min(n,15)})')
                c1='0' if ks==0 else vr(ab,4); c2='0' if ks==0 else vr(av,4)
                f=fill[8*ph+ks]
                o(f'v_mfma_f32_16x16x32_bf16 {vr(ab,4)}, {vr(AF+4*ks,4)}, {vr(wb,4)}, {c1}')
                h=(len(f)+1)//2 if ph==0 else 0
                for t in f[:h]: o(t)
                o(f'v_mfma_f32_16x16x32_bf16 {vr(av,4)}, {vr(AF+4*ks,4)}, {vr(wv,4)}, {c2}')
                for t in f[h:]: o(t)
        if j<3:
            for k in range(4): o(f'v_add_u32 v{XC+k}, s{sTC}, v{XA+k}')
        prevseq=seq
        if j==int(OPT.get('f2it','3')):
            l=U('nf2')
            o('s_waitcnt vmcnt(0)')
            lds_inc(C_T,244,ret=True)
            o(f's_cmp_lg_u32 s{sA}, 3'); o(f's_cbranch_scc1 {l}')
            o('s_mov_b64 exec, 1')
            for i in range(4): o(f'v_mov_b32 v{244+i}, s{sNONCE}')
            o(f's_lshl_b32 s{sA}, s{sS}, 6'); o(f's_add_u32 s{sA}, s{sA}, s{sR}'); o(f's_lshl_b32 s{sA}, s{sA}, 4')
            o(f's_add_u32 s{sA}, s{sA}, {SEGT_FLAG2}')
            o(f'buffer_store_dwordx4 v[244:247], v{VZ}, {sr(rSEG,4)}, s{sA} offen sc1')
            o('s_mov_b64 exec, -1')
            lab(l)
            if 'pre' in OPT:
                o(f's_lshl_b32 s{sA}, s{sNB}, 8'); o(f's_mul_i32 s{sB}, s{sW}, 10240'); o(f's_add_u32 s{sA}, s{sA}, s{sB}')
                o('v_lshlrev_b32 v245, 4, v1')
                for i in range(10):
                    o(f'buffer_load_dwordx4 v[232:235], v245, {sr(rTW,4)}, s{sA} offen sc1')
                    o(f's_add_u32 s{sA}, s{sA}, 1024')
    o('s_nop 7')
    for t in epi(B1,4,1): o(t)
gemm1()
stamp(5)
wfrags()
o('s_waitcnt lgkmcnt(0)')
lds_inc(C_G,244)
lds_spin(C_G,4,244)
stamp(18)
if 'xE' not in OPT and 'nogate' not in OPT: lds_spin(C_RL,4,244)
dummy_row()
stamp(6)
gemm2()
o('s_waitcnt lgkmcnt(0)')
stamp(7)
o('s_branch L_main_setup')
lab('L_eteam_b')
SG,RC0,RC1,SA,RKB=64,80,112,144,200
T=176
o(f's_sub_u32 s{sC_}, s{sW}, 4')
o('v_lshrrev_b32 v17, 3, v1')
o(f's_lshl_b32 s{sA}, s{sC_}, 3'); o(f'v_add_u32 v17, s{sA}, v17')
o(f'v_lshlrev_b32 v{T}, 3, v17')
o('v_and_b32 v18, 7, v1')
o(f'v_mul_u32_u24 v{T+1}, {CHCAP*8}, v17'); o(f'v_lshl_add_u32 v{T+1}, v18, 4, v{T+1}')
IX=T+2
o(f'v_lshlrev_b32 v{IX}, 1, v18'); o(f'v_add_u32 v{IX+1}, 1, v{IX}'); o(f'v_add_u32 v{IX+2}, 16, v{IX}'); o(f'v_add_u32 v{IX+3}, 17, v{IX}')
lds_spin(C_G1,4,17)
o(f's_lshl_b32 s{sD}, s{sR}, 11')
o(f's_mov_b32 s{sSP}, 0')
lp=U('poll1'); dn=U('poll1d')
lab(lp)
for p in range(8):
    o(f'buffer_load_dwordx2 {vr(SG+2*p,2)}, v{T}, {sr(rSEG,4)}, s{sD} offen offset:{p*256} sc1')
o(f'v_mov_b32 v19, s{sNONCE}')
o('s_waitcnt vmcnt(0)')
o(f'v_xor_b32 v20, v{SG+1}, v19')
for p in range(1,8):
    o(f'v_xor_b32 v21, v{SG+2*p+1}, v19'); o('v_or_b32 v20, v20, v21')
o('v_cmp_ne_u32 vcc, 0, v20')
o(f's_cbranch_vccz {dn}')
o('s_sleep 6')
o(f's_add_u32 s{sSP}, s{sSP}, 1'); o(f's_cmp_lt_u32 s{sSP}, 0x10000'); o(f's_cbranch_scc1 {lp}')
lab(dn)
stamp(5)
o('v_mov_b32 v20, 0')
for p in range(8):
    o(f'v_lshrrev_b32 v{SG+2*p+1}, 16, v{SG+2*p}')
    o(f'v_max_u32 v20, v20, v{SG+2*p+1}')
o('v_cmp_lt_u32 vcc, 32, v20')
l=U('nofb'); o(f's_cbranch_vccz {l}')
o('v_mov_b32 v21, 1'); o(f'ds_write_b32 v{VZ}, v21 offset:{C_FB}')
lab(l)
o(f's_mov_b32 s{sSP}, 0')
lr=U('recld'); dr=U('recok')
lab(lr)
for p in range(8):
    o(f'v_and_b32 v19, 0xffff, v{SG+2*p}')
    o(f'v_lshl_add_u32 v19, v19, 3, v{T+1}')
    o(f's_mov_b32 s{sA}, {p*32*CHCAP*8}')
    o(f'v_cmp_lt_u32 vcc, 16, v{SG+2*p+1}')
    o(f'buffer_load_dwordx4 {vr(RC0+4*p,4)}, v19, {sr(rREC,4)}, s{sA} offen sc1')
    l=U('ld1'); o(f's_cbranch_vccz {l}')
    o(f'buffer_load_dwordx4 {vr(RC1+4*p,4)}, v19, {sr(rREC,4)}, s{sA} offen offset:128 sc1')
    lab(l)
l=U('sig'); o(f's_cmp_lg_u32 s{sSP}, 0'); o(f's_cbranch_scc1 {l}_r')
lds_inc(C_RL,20)
o('s_waitcnt vmcnt(0)')
o(f's_branch {l}')
lab(l+'_r')
o('s_waitcnt vmcnt(0)')
lab(l)
o('v_mov_b32 v21, 0x05040100'); o('v_mov_b32 v22, 0'); o(f'v_mov_b32 v23, s{sNONCE}')
for p in range(8):
    for st in range(2):
        rec=(RC0 if st==0 else RC1)+4*p
        if st==1:
            l=U('v1'); o(f'v_cmp_lt_u32 vcc, 16, v{SG+2*p+1}'); o(f's_cbranch_vccz {l}')
        o(f'v_cmpx_lt_u32 vcc, v{IX+2*st}, v{SG+2*p+1}')
        o(f'v_perm_b32 v20, v{rec+3}, v{rec+1}, v21'); o('v_xor_b32 v20, v20, v23'); o('v_or_b32 v22, v22, v20')
        o('s_mov_b64 exec, -1')
        if st==1: lab(l)
o('v_cmp_ne_u32 vcc, 0, v22')
o(f's_cbranch_vccz {dr}')
o('s_sleep 2')
o(f's_add_u32 s{sSP}, s{sSP}, 1'); o(f's_cmp_lt_u32 s{sSP}, 0x10000'); o(f's_cbranch_scc1 {lr}')
lab(dr)
stamp(6)
def each_rec(fn):
    for p in range(8):
        for st in range(2):
            if st==1:
                l=U('st1'); o(f'v_cmp_lt_u32 vcc, 16, v{SG+2*p+1}'); o(f's_cbranch_vccz {l}')
            for i in range(2):
                rec=(RC0 if st==0 else RC1)+4*p+2*i
                o(f'v_cmpx_lt_u32 vcc, v{IX+2*st+i}, v{SG+2*p+1}')
                fn(rec, SA+4*p+2*st+i)
            o('s_mov_b64 exec, -1')
            if st==1: lab(l)
SD='dst_sel:DWORD dst_unused:UNUSED_PAD src0_sel:DWORD src1_sel:BYTE_0'
o('v_mov_b32 v22, 1'); o('v_mov_b32 v23, 64')
def f_hist(rec,sa):
    o(f'v_lshlrev_b32_sdwa v20, 2, v{rec} {SD}'); o(f'ds_add_rtn_u32 v{sa-SA+RKB}, v20, v22 offset:{DEG}')
each_rec(f_hist)
o('s_waitcnt lgkmcnt(0)')
lds_inc(C_E1,20)
stamp(7)
o(f's_cmp_lg_u32 s{sW}, 4')
o('s_cbranch_scc1 L_e_prefill')
lds_spin(C_E1,4,20)
D0,K0,P0=24,28,32
o('v_lshlrev_b32 v19, 2, v1')
for a in range(3): o(f'ds_read_b32 v{D0+a}, v19 offset:{DEG+a*256}')
perm=[]
for w in range(8): perm += ([w,w+4,11-w] if w<4 else [19-w,23-w]) if 'oldperm' not in OPT else ([w,15-w] + ([19-w] if w<4 else []))
o('v_mov_b32 v38, 31')
for i,g in enumerate(perm): o(f'v_writelane_b32 v38, {g}, {i}')
o('v_lshlrev_b32 v38, 2, v38')
o('v_sub_u32 v37, 252, v19')
o('s_waitcnt lgkmcnt(0)')
for a in range(3):
    o(f'v_min_u32 v{K0+a}, 63, v{D0+a}'); o(f'v_lshlrev_b32 v{K0+a}, 2, v{K0+a}')
    if a==2: o('v_cmpx_gt_u32 vcc, 32, v1')
    o(f'ds_add_rtn_u32 v{P0+a}, v{K0+a}, v22 offset:{HIST2}')
o('s_mov_b64 exec, -1')
o('s_waitcnt lgkmcnt(0)')
o(f'ds_read_b32 v36, v37 offset:{HIST2}')
for a in range(3): o(f'v_sub_u32 v{K0+a}, 252, v{K0+a}')
o('s_waitcnt lgkmcnt(0)')
o('v_mov_b32 v35, v36') if False else None
o('v_mov_b32 v39, v36')
scan64(36)
o('v_sub_u32 v36, v36, v39')
for a in range(3): o(f'ds_bpermute_b32 v{K0+a}, v{K0+a}, v36')
o('s_waitcnt lgkmcnt(0)')
for a in range(3):
    o(f'v_add_u32 v{P0+a}, v{P0+a}, v{K0+a}')
    o(f'v_add_u32 v21, {64*a}, v1')
    o(f'v_cmp_gt_u32 vcc, s{sNV}, v21')
    o(f'v_lshlrev_b32 v20, 3, v{P0+a}')
    o(f'v_lshrrev_b32 v{K0+a}, 3, v{P0+a}'); o(f'v_lshlrev_b32 v{K0+a}, 2, v{K0+a}')
    o('v_mov_b32 v40, 0x200000')
    o('v_and_b32 v43, 15, v21'); o('v_lshlrev_b32 v43, 4, v43'); o('v_lshl_add_u32 v43, v21, 9, v43')
    o('v_cndmask_b32 v42, v40, v21, vcc')
    if a==2: o('v_cmpx_gt_u32 vcc, 32, v1')
    o(f'ds_write_b64 v20, v[42:43] offset:{NODEOF}')
    o(f'ds_max_u32 v{K0+a}, v{D0+a} offset:{LG}')
o('s_mov_b64 exec, -1')
o('s_waitcnt lgkmcnt(0)')
o(f'ds_read_b32 v39, v38 offset:{LG}')
o('s_waitcnt lgkmcnt(0)')
o('v_add_u32 v39, 1, v39'); o('v_lshrrev_b32 v39, 1, v39')
o('v_mov_b32 v40, v39')
scan64(39)
o('v_sub_u32 v40, v39, v40')
o('v_lshlrev_b32 v40, 7, v40'); o(f'v_add_u32 v40, {ELL}, v40')
o(f'ds_write_b32 v38, v40 offset:{GBASE}')
o(f'v_readlane_b32 s{sA}, v39, 19')
o('s_waitcnt lgkmcnt(0)')
for a in range(3): o(f'ds_read_b32 v{K0+a}, v{K0+a} offset:{GBASE}')
o(f's_cmp_le_u32 s{sA}, {ELLB-4}')
l=U('fits'); o(f's_cbranch_scc1 {l}')
o('v_mov_b32 v21, 1'); o(f'ds_write_b32 v{VZ}, v21 offset:{C_FB}')
lab(l)
o('s_waitcnt lgkmcnt(0)')
for a in range(3):
    o(f'v_and_b32 v21, 7, v{P0+a}'); o(f'v_lshl_add_u32 v21, v21, 3, v{K0+a}')
    o(f'ds_write_b32 v19, v21 offset:{CUR+a*256}')
o('s_waitcnt lgkmcnt(0)')
lds_inc(C_SORT,20)
o('s_branch L_e_wait')
lab('L_e_prefill')
lds_spin(C_G,4,20)
o(f's_sub_u32 s{sA}, s{sW}, 5'); o(f's_lshl_b32 s{sA}, s{sA}, 10'); o(f's_add_u32 s{sA}, s{sA}, {ELL}')
o(f'v_lshlrev_b32 v20, 4, v1'); o(f'v_add_u32 v20, s{sA}, v20')
o(f'v_mov_b32 v24, {N*256}'); o('v_mov_b32 v25, 0'); o(f'v_mov_b32 v26, {N*256}'); o('v_mov_b32 v27, 0')
for i in range(12): o(f'ds_write_b128 v20, v[24:27] offset:{i*3072}')
o('s_waitcnt lgkmcnt(0)')
lds_inc(C_P,20)
lab('L_e_wait')
lds_spin(C_SORT,1,20)
lds_spin(C_P,3,20)
stamp(8)
o(f'ds_read_b32 v20, v{VZ} offset:{C_FB}'); o('s_waitcnt lgkmcnt(0)')
o(f'v_readfirstlane_b32 s{sA}, v20'); o(f's_cmp_lg_u32 s{sA}, 0'); o('s_cbranch_scc1 L_e_done')
def f_slot(rec,sa):
    o(f'v_lshlrev_b32_sdwa v20, 2, v{rec} {SD}'); o(f'ds_read_b32 v{sa}, v20 offset:{CUR}')
each_rec(f_slot)
o('s_waitcnt lgkmcnt(0)')
def f_put(rec,sa):
    o(f'v_lshl_add_u32 v{sa}, v{sa-SA+RKB}, 6, v{sa}'); o(f'v_and_b32 v{rec+1}, v24, v{rec+1}'); o(f'ds_write_b64 v{sa}, {vr(rec,2)}')
o('v_mov_b32 v24, 0xffff0000')
each_rec(f_put)
lab('L_e_done')
o('s_waitcnt lgkmcnt(0)')
stamp(9)
o(f's_cmp_lg_u32 s{sW}, 4')
o('s_cbranch_scc1 L_main_setup')
o('v_lshlrev_b32 v20, 4, v1')
o(f's_lshl_b32 s{sD}, s{sS}, 10'); o(f's_add_u32 s{sD}, s{sD}, {SEGT_FLAG2}')
o(f's_mov_b32 s{sSP}, 0')
lp=U('poll2'); dn=U('poll2d')
lab(lp)
o(f'buffer_load_dword v21, v20, {sr(rSEG,4)}, s{sD} offen sc1')
o('s_waitcnt vmcnt(0)')
o(f'v_cmp_ne_u32 vcc, s{sNONCE}, v21')
o(f's_cbranch_vccz {dn}')
o('s_sleep 2')
o(f's_add_u32 s{sSP}, s{sSP}, 1'); o(f's_cmp_lt_u32 s{sSP}, 0x10000'); o(f's_cbranch_scc1 {lp}')
lab(dn)
l=U('noep')
o('s_cmp_lg_u32 s2, 0'); o(f's_cbranch_scc1 {l}')
o('s_mov_b64 exec, 1')
o(f'v_mov_b32 v21, s{sNONCE}')
o(f'global_store_dword v{VZ}, v21, {sr(sEP,2)} sc1')
o('s_mov_b64 exec, -1')
lab(l)
LOFF,RP=2,3
S1A,S1B,S2A,S2B,ONE=4,8,12,16,20
WC=24; NUM=32; DEN=40; C=48; DX,DY=72,104; R0,R1=136,152
OFA,OFB,EA_,EB_,AD=168,170,172,174,176
lab('L_main_setup')
o('s_setprio 0')
stamp(10)
o(f'v_and_b32 v{LOFF}, 7, v1'); o(f'v_lshlrev_b32 v{LOFF}, 4, v{LOFF}')
o('v_bfe_u32 v196, v1, 3, 2'); o('v_bfe_u32 v197, v1, 2, 1'); o('v_lshrrev_b32 v198, 5, v1'); o('v_and_b32 v199, 3, v1')
o('v_cmp_eq_u32 vcc, v197, v198'); o('v_mov_b32 v195, 7'); o('v_and_b32 v193, 1, v196')
o('v_cndmask_b32 v199, v195, v199, vcc')
LO,HI=0x00003f80,0x3f800000
o('v_cmp_gt_u32 vcc, 2, v196'); o(f'v_mov_b32 v194, {LO:#x}'); o(f'v_mov_b32 v195, {HI:#x}')
o('v_cndmask_b32 v192, v194, v195, vcc')
o('v_cndmask_b32 v191, v195, v194, vcc')
o('v_lshl_add_u32 v199, v193, 3, v199')
for i in range(4):
    o(f'v_cmp_eq_u32 vcc, {i}, v199'); o(f'v_cmp_eq_u32 s[98:99], {8+i}, v199'); o('s_nop 0')
    o(f'v_cndmask_b32 v{S1A+i}, 0, v192, vcc'); o(f'v_cndmask_b32 v{S2A+i}, 0, v191, vcc')
    o(f'v_cndmask_b32 v{S1B+i}, 0, v192, s[98:99]'); o(f'v_cndmask_b32 v{S2B+i}, 0, v191, s[98:99]')
o('v_cmp_gt_u32 vcc, 32, v1')
for i in range(1,4): o(f'v_mov_b32 v{ONE+i}, 0')
o(f'v_cndmask_b32 v{ONE}, 0, v194, vcc')
for i in range(4):
    o(f'v_lshlrev_b32 v{WC+2*i}, 16, v{250+i}'); o(f'v_and_b32 v{WC+2*i+1}, 0xffff0000, v{250+i}')
for i in range(8): o(f'v_mul_f32 v{WC+i}, {NLOG2E:#x}, v{WC+i}')
for i in range(8):
    o(f'v_mov_b32 v{C+i}, 0'); o(f'v_mov_b32 v{C+16+i}, 0')
LOFF_=LOFF
sPAR,sNBT,sODD,sG1,sG2,sLN=97,47,96,46,13,14
NLN,LT,OA,AUN,XRN,UF,XF,VAUK,VKA,VOK=178,180,181,182,190,194,202,210,211,212
TM=214
o(f'v_add_u32 v{VAUK}, {AU}, v{LOFF}')
o(f'v_bfe_u32 v{TM}, v1, 1, 2'); o(f's_lshl_b32 s92, s{sS}, 3'); o(f'v_add_u32 v{TM}, s92, v{TM}'); o(f'v_lshlrev_b32 v{TM}, 4, v{TM}')
o(f'v_and_b32 v{TM+1}, 1, v1'); o(f'v_lshl_add_u32 v{VKA}, v{TM+1}, 3, v{TM}')
o(f's_lshl_b32 s92, s{sNB}, 9'); o(f's_lshl_b32 s93, s{sS}, 7'); o('s_add_u32 s92, s92, s93')
o(f'v_lshrrev_b32 v{TM}, 1, v{LOFF}'); o(f'v_add_u32 v{VOK}, s92, v{TM}')
o(f'v_lshrrev_b32 v{TM+2}, 3, v1'); o(f'v_lshlrev_b32 v{TM+2}, 3, v{TM+2}')
o(f's_sub_u32 s12, 19, s{sW}'); o(f's_cmp_lt_u32 s{sW}, 4'); o(f's_cselect_b32 s12, s{sW}, s12')
o(f's_add_u32 s{sG1}, s{sW}, 4'); o(f's_sub_u32 s92, 23, s{sW}'); o(f's_sub_u32 s{sG2}, 11, s{sW}')
o(f's_cmp_ge_u32 s{sW}, 4'); o(f's_cselect_b32 s{sG1}, s92, s{sG1}'); o(f's_cselect_b32 s{sG2}, -1, s{sG2}')
def node_prefetch(gs):
    o(f's_lshl_b32 s92, s{gs}, 6'); o(f'v_add_u32 v{TM}, s92, v{TM+2}'); o(f'ds_read_b64 {vr(NLN,2)}, v{TM} offset:{NODEOF}')
    o(f's_lshl_b32 s92, s{gs}, 2'); o(f'v_mov_b32 v{TM+1}, s92'); o(f'ds_read_b32 v{LT}, v{TM+1} offset:{LG}')
def raw_prefetch():
    o(f'v_lshl_add_u32 v{TM}, v{NLN}, 8, v{VAUK}')
    o(f'v_xor_b32 v{TM+1}, v{NLN+1}, v{VKA}'); o(f'v_xor_b32 v{TM+3}, 64, v{TM+1}')
    o(f'ds_read_b128 {vr(AUN,4)}, v{TM}'); o(f'ds_read_b128 {vr(AUN+4,4)}, v{TM} offset:128')
    o(f'ds_read_b64 {vr(XRN,2)}, v{TM+1} offset:{XT}'); o(f'ds_read_b64 {vr(XRN+2,2)}, v{TM+3} offset:{XT}')
o(f's_xor_b32 s15, s{sR}, 1'); o(f's_mul_i32 s15, s15, {RN*256}'); o(f's_mul_i32 s92, s{sW}, 5120'); o('s_add_u32 s15, s15, s92')
o(f'v_lshlrev_b32 v{TM+4}, 4, v1')
o('s_waitcnt vmcnt(0) lgkmcnt(0)')
o('s_barrier')
dstamp(2)
stamp(11)
if 'xE' in OPT: o('s_branch L_done')
if 'pre2' in OPT:
    for i in range(5):
        o(f'buffer_load_dwordx4 v[232:235], v{TM+4}, {sr(rTR,4)}, s15 offen sc1')
        o('s_add_u32 s15, s15, 1024')
o(f'ds_read_b32 v{TM+5}, v{VZ} offset:{C_FB}')
o(f's_lshl_b32 s{sA}, s12, 2'); o(f'v_mov_b32 v{TM+6}, s{sA}'); o(f'ds_read_b32 v{RP}, v{TM+6} offset:{GBASE}')
node_prefetch(12)
l=U('ap'); o(f's_cmp_ge_u32 s{sW}, 4'); o(f's_cbranch_scc1 {l}'); o('s_setprio 1'); lab(l)
o('s_waitcnt lgkmcnt(0)')
o(f'v_readfirstlane_b32 s{sA}, v{TM+5}'); o(f's_cmp_lg_u32 s{sA}, 0'); o('s_cbranch_scc1 L_fallback')
o(f'v_add_u32 v{RP}, v{RP}, v{TM+2}')
o(f'v_readfirstlane_b32 s{sLN}, v{LT}')
def mfma(d,a,b,c): o(f'v_mfma_f32_32x32x16_bf16 {vr(d,16)}, {vr(a,4)}, {vr(b,4)}, {c}')
def unpack_list(D,R):
    f=lambda d,a,b,c: f'v_mfma_f32_32x32x16_bf16 {vr(d,16)}, {vr(a,4)}, {vr(b,4)}, {c}'
    return [f(D,S1A,R,vr(C,16)), f(D,S1B,R+4,vr(D,16)), f(D+16,S2A,R+8,vr(C+8,16)), f(D+16,S2B,R+12,vr(D+16,16))]
def gfma(D,Er):
    for sl in range(2):
        for j in range(4):
            g=D+8+8*sl+2*j
            sel='op_sel:[0,0,0] op_sel_hi:[0,1,1]' if sl==0 else 'op_sel:[1,0,0] op_sel_hi:[1,1,1]'
            o(f'v_pk_fma_f32 {vr(g,2)}, {vr(Er,2)}, {vr(WC+2*j,2)}, {vr(g,2)} {sel}')
def loads(R,OF):
    o(f'v_and_or_b32 v{AD}, v{OF}, s{sM}, v{LOFF}'); o(f'v_and_or_b32 v{AD+1}, v{OF+1}, s{sM}, v{LOFF}')
    o(f'buffer_load_dwordx4 {vr(R,4)}, v{AD}, {sr(rTR,4)}, 0 offen sc1')
    o(f'buffer_load_dwordx4 {vr(R+4,4)}, v{AD}, {sr(rTR,4)}, 0 offen offset:128 sc1')
    o(f'buffer_load_dwordx4 {vr(R+8,4)}, v{AD+1}, {sr(rTR,4)}, 0 offen sc1')
    o(f'buffer_load_dwordx4 {vr(R+12,4)}, v{AD+1}, {sr(rTR,4)}, 0 offen offset:128 sc1')
def rd_off(dst,b): o(f'ds_read2_b32 {vr(dst,2)}, v{RP} offset0:{b*32} offset1:{b*32+16}')
def rd_e(dst,b): o(f'ds_read2_b32 {vr(dst,2)}, v{RP} offset0:{b*32+1} offset1:{b*32+17}')
def dsreads(P):
    OFn=OFB if P==0 else OFA; En=EB_ if P==0 else EA_
    rd_off(OFn,P+3); rd_e(En,P+1)
    if P==1: o(f'v_add_u32 v{RP}, 256, v{RP}')
def accum(D):
    for sl in range(2):
        for j in range(4):
            g=D+8+8*sl+2*j
            o(f'v_pk_add_f32 {vr(DEN+2*j,2)}, {vr(DEN+2*j,2)}, {vr(g,2)}')
            v=(D+2*j) if sl==0 else (D+24+2*j)
            o(f'v_pk_fma_f32 {vr(NUM+2*j,2)}, {vr(g,2)}, {vr(v,2)}, {vr(NUM+2*j,2)}')
Ds=[DX,DY]; Rs=[R0,R1]; OFs=[OFA,OFB]; Es=[EA_,EB_]
rd_off(OFA,0); rd_off(OFB,1)
raw_prefetch()
o('s_waitcnt lgkmcnt(4)')
loads(R0,OFA); loads(R1,OFB)
rd_off(OFA,2); rd_e(EA_,0)
o(f's_mov_b32 s{sPAR}, 0')
if PROF: o('s_mov_b32 s3, 0')
lab('L_group')
o(f's_min_u32 s{sLN}, s{sLN}, {2*ELLB}')
o(f's_and_b32 s{sODD}, s{sLN}, 1'); o(f's_add_u32 s{sNBT}, s{sLN}, 1'); o(f's_lshr_b32 s{sNBT}, s{sNBT}, 1')
o(f'v_lshl_add_u32 v{OA}, v{NLN}, 9, v{VOK}')
mfma(NUM,C,C,'0')
o('s_waitcnt lgkmcnt(0)')
for i in range(8): o(f'v_lshlrev_b32 v{C+8+i}, 16, v{AUN+i}')
l=U('nonext')
o(f's_cmp_eq_u32 s{sG1}, -1'); o(f's_cbranch_scc1 {l}')
node_prefetch(sG1)
lab(l)
for i in range(8): o(f'v_and_b32 v{UF+i}, 0xffff0000, v{AUN+i}')
for i in range(4):
    o(f'v_lshlrev_b32 v{XF+2*i}, 16, v{XRN+i}'); o(f'v_and_b32 v{XF+2*i+1}, 0xffff0000, v{XRN+i}')
if PROF:
    o(f's_memtime s[100:101]'); o('s_waitcnt lgkmcnt(0)')
    o(f's_add_u32 m0, s3, 36'); o('s_nop 3'); o('v_writelane_b32 v255, s100, m0')
    o(f's_add_u32 m0, s3, 60'); o('s_nop 3'); o(f'v_writelane_b32 v255, s{sLN}, m0')
o(f's_cmp_eq_u32 s{sNBT}, 0'); o('s_cbranch_scc1 L_epi')
o(f's_cmp_eq_u32 s{sPAR}, 1'); o('s_cbranch_scc1 L_gs1')
def exps(D): return [f'v_exp_f32 v{D+8+i}, v{D+8+i}' for i in range(16)]
def rcps(D): return [f'v_rcp_f32 v{D+8+i}, v{D+8+i}' for i in range(16)]
for P in range(2):
    lab(f'L_gs{P}')
    o('s_waitcnt vmcnt(4)')
    for t in unpack_list(Ds[P],Rs[P]): o(t)
    o('s_waitcnt lgkmcnt(0)')
    loads(Rs[P],OFs[P])
    dsreads(P)
    o('s_nop 7')
    gfma(Ds[P],Es[P])
    o(f's_branch L_body{P}')
for P in range(2):
    Q=P^1
    lab(f'L_body{P}')
    o(f's_sub_u32 s{sNBT}, s{sNBT}, 1'); o(f's_cmp_eq_u32 s{sNBT}, 0'); o(f's_cbranch_scc1 L_last{P}')
    ex=exps(Ds[P]); un=unpack_list(Ds[Q],Rs[Q])
    o('s_waitcnt vmcnt(4)')
    for k in range(4):
        o(un[k])
        for t in ex[4*k:4*k+4]: o(t)
    o('s_nop 1')
    mfma(Ds[P]+8,ONE,ONE,vr(Ds[P]+8,16))
    o('s_waitcnt lgkmcnt(0)')
    loads(Rs[Q],OFs[Q])
    o('s_nop 2')
    dsreads(Q)
    for t in rcps(Ds[P]): o(t)
    gfma(Ds[Q],Es[Q])
    accum(Ds[P])
    if P==1: o('s_branch L_body0')
for P in range(2):
    lab(f'L_last{P}')
    D=Ds[P]
    o(f's_cmp_eq_u32 s{sODD}, 1'); o(f's_cbranch_scc1 L_half{P}')
    for t in exps(D): o(t)
    o('s_nop 1')
    mfma(D+8,ONE,ONE,vr(D+8,16))
    o('s_nop 7'); o('s_nop 3')
    for t in rcps(D): o(t)
    accum(D)
    o(f's_mov_b32 s{sPAR}, {P^1}')
    o('s_branch L_epi')
    lab(f'L_half{P}')
    for t in exps(D)[:8]: o(t)
    for j in range(4): o(f'v_pk_add_f32 {vr(D+8+2*j,2)}, {vr(D+8+2*j,2)}, 1.0 op_sel_hi:[1,0]')
    for t in rcps(D)[:8]: o(t)
    for j in range(4):
        g=D+8+2*j
        o(f'v_pk_add_f32 {vr(DEN+2*j,2)}, {vr(DEN+2*j,2)}, {vr(g,2)}')
        o(f'v_pk_fma_f32 {vr(NUM+2*j,2)}, {vr(g,2)}, {vr(D+2*j,2)}, {vr(NUM+2*j,2)}')
    o(f's_mov_b32 s{sPAR}, {P^1}')
    if P==0: o('s_branch L_epi')
lab('L_epi')
if PROF:
    o(f's_memtime s[100:101]'); o('s_waitcnt lgkmcnt(0)')
    o(f's_add_u32 m0, s3, 40'); o('s_nop 3'); o('v_writelane_b32 v255, s100, m0')
l=U('nonext2')
o(f's_cmp_eq_u32 s{sG1}, -1'); o(f's_cbranch_scc1 {l}')
o('s_waitcnt lgkmcnt(0)')
o(f'v_readfirstlane_b32 s{sLN}, v{LT}')
raw_prefetch()
lab(l)
o('s_mov_b32 s92, 0x358637bd'); o('s_mov_b32 s93, 0x358637bd')
for j in range(4): o(f'v_pk_add_f32 {vr(DEN+2*j,2)}, {vr(DEN+2*j,2)}, s[92:93]')
for i in range(8): o(f'v_rcp_f32 v{DEN+i}, v{DEN+i}')
o('s_nop 0')
for j in range(4): o(f'v_pk_fma_f32 {vr(UF+2*j,2)}, {vr(NUM+2*j,2)}, {vr(DEN+2*j,2)}, {vr(UF+2*j,2)}')
for i in range(8): o(f'v_max_f32 v{UF+i}, 0, v{UF+i}')
for j in range(4): o(f'v_pk_add_f32 {vr(UF+2*j,2)}, {vr(UF+2*j,2)}, {vr(XF+2*j,2)}')
for i in range(4): o(f'v_cvt_pk_bf16_f32 v{UF+i}, v{UF+2*i}, v{UF+2*i+1}')
o(f'buffer_store_dwordx2 {vr(UF,2)}, v{OA}, {sr(rOUT,4)}, 0 offen')
o(f'buffer_store_dwordx2 {vr(UF+2,2)}, v{OA}, {sr(rOUT,4)}, 0 offen offset:64')
if PROF:
    o(f's_memtime s[100:101]'); o('s_waitcnt lgkmcnt(0)')
    o(f's_add_u32 m0, s3, 56'); o('s_nop 3'); o('v_writelane_b32 v255, s100, m0')
    o('s_add_u32 s3, s3, 1')
o(f's_cmp_eq_u32 s{sG1}, -1'); o('s_cbranch_scc1 L_done')
o(f's_mov_b32 s{sG1}, s{sG2}'); o(f's_mov_b32 s{sG2}, -1')
o('s_branch L_group')
lab('L_done')
dstamp(3)
stamp(12)
if PROF:
    o('s_waitcnt vmcnt(0)')
    srd_off(92,sWS,WS_PROF,0x100000)
    o(f's_lshl_b32 s96, s2, 3'); o(f's_add_u32 s96, s96, s{sW}'); o('s_lshl_b32 s96, s96, 8')
    o('v_lshlrev_b32 v2, 2, v1')
    o('buffer_store_dword v255, v2, s[92:95], s96 offen')
o('s_endpgm')
lab('L_codeend')
lab('L_fallback')
FN,FD,FA,FU,FW=10,11,12,13,14
o('v_lshlrev_b32 v5, 2, v1')
o(f's_lshl_b32 s92, s{sS}, 7')
o('v_lshlrev_b32 v6, 1, v1'); o(f'v_add_u32 v6, s92, v6')
srd(64,sWC,512)
o(f'buffer_load_ushort v{FW}, v6, s[64:67], 0 offen')
o('s_waitcnt vmcnt(0)')
o(f'v_lshlrev_b32 v{FW}, 16, v{FW}'); o(f'v_mul_f32 v{FW}, {NLOG2E:#x}, v{FW}')
o(f's_mov_b32 s46, s{sW}')
lab('L_fb_node')
o(f's_cmp_ge_u32 s46, s{sNV}'); o('s_cbranch_scc1 L_fb_end')
o(f's_lshl_b32 s92, s46, 8'); o(f's_add_u32 s92, s92, {AU}'); o(f'v_add_u32 v7, s92, v5'); o('ds_read_b32 v8, v7')
o('s_waitcnt lgkmcnt(0)')
o(f'v_lshlrev_b32 v{FA}, 16, v8'); o(f'v_and_b32 v{FU}, 0xffff0000, v8')
o(f'v_mov_b32 v{FN}, 0'); o(f'v_mov_b32 v{FD}, 0')
o(f's_add_u32 s47, s46, s{sNB}')
o('s_mov_b32 s93, 0')
lab('L_fb_e')
o('v_add_u32 v7, s93, v1'); o('v_lshlrev_b32 v8, 2, v7'); o('v_lshlrev_b32 v7, 1, v7')
o(f'buffer_load_dword v15, v8, {sr(rDST,4)}, 0 offen')
o(f'buffer_load_dword v16, v8, {sr(rSRC,4)}, 0 offen')
o(f'buffer_load_ushort v17, v7, {sr(rEA,4)}, 0 offen')
o('s_waitcnt vmcnt(0)')
o('v_cmp_eq_u32 vcc, s47, v15')
o('s_mov_b64 s[94:95], vcc')
lab('L_fb_m')
o('s_cmp_eq_u64 s[94:95], 0'); o('s_cbranch_scc1 L_fb_next')
o('s_ff1_i32_b64 s96, s[94:95]')
o('s_bitset0_b64 s[94:95], s96')
o('v_readlane_b32 s97, v16, s96'); o('v_readlane_b32 s92, v17, s96')
o('s_nop 1')
o('s_lshl_b32 s97, s97, 8'); o('s_lshl_b32 s92, s92, 16')
o('s_nop 4')
o(f'buffer_load_dword v18, v5, {sr(rTR,4)}, s97 offen sc1')
o('s_waitcnt vmcnt(0)')
o('v_lshlrev_b32 v19, 16, v18'); o('v_and_b32 v18, 0xffff0000, v18')
o(f'v_add_f32 v19, v19, v{FA}'); o(f'v_fmac_f32 v19, s92, v{FW}')
o('v_exp_f32 v19, v19'); o('s_nop 0'); o('v_add_f32 v19, 1.0, v19'); o('v_rcp_f32 v19, v19'); o('s_nop 0')
o(f'v_add_f32 v{FD}, v{FD}, v19'); o(f'v_fmac_f32 v{FN}, v19, v18')
o('s_branch L_fb_m')
lab('L_fb_next')
o('s_add_u32 s93, s93, 64'); o(f's_cmp_lt_u32 s93, {E}'); o('s_cbranch_scc1 L_fb_e')
o('s_mov_b32 s92, 0x358637bd')
o(f'v_add_f32 v{FD}, s92, v{FD}'); o(f'v_rcp_f32 v{FD}, v{FD}'); o('s_nop 0')
o(f'v_fmac_f32 v{FU}, v{FN}, v{FD}'); o(f'v_max_f32 v{FU}, 0, v{FU}')
o('s_lshl_b32 s92, s47, 9')
o(f'buffer_load_ushort v18, v6, {sr(rX,4)}, s92 offen')
o('s_waitcnt vmcnt(0)')
o(f'v_lshlrev_b32 v18, 16, v18'); o(f'v_add_f32 v{FU}, v{FU}, v18')
o(f'v_cvt_pk_bf16_f32 v18, v{FU}, v{FU}')
o(f'buffer_store_short v18, v6, {sr(rOUT,4)}, s92 offen')
o('s_add_u32 s46, s46, 8'); o('s_branch L_fb_node')
lab('L_fb_end')
lab('L_end')
o('s_endpgm')
L=[x for x in L if x is not None]
hdr=open('gather_scatter__edge_featured_mpnn_gatedgcn__graph.s.ref').read().split('; Override')[0]
out=hdr+f'''; Generated by dev/gen2.py (hand-written generator). One fused persistent launch, 1 workgroup per CU.
; @launch grid=(256,1,1) block=(512,1,1) lds={LDS_TOTAL}
.amdgcn_target "amdgcn-amd-amdhsa--gfx950"
.text
.globl {NAME}
.p2align 8
.type {NAME},@function
'''+'\n'.join(L)+f'''
.section .rodata,"a"
.p2align 6
.amdhsa_kernel {NAME}
  .amdhsa_next_free_vgpr 256
  .amdhsa_next_free_sgpr 102
  .amdhsa_accum_offset 256
  .amdhsa_group_segment_fixed_size 0
  .amdhsa_kernarg_size 96
  .amdhsa_user_sgpr_count 2
  .amdhsa_user_sgpr_kernarg_segment_ptr 1
  .amdhsa_system_sgpr_workgroup_id_x 1
.end_amdhsa_kernel
'''
fn=[a for a in sys.argv[1:] if not a.startswith('--')]
open(fn[0] if fn else 'k.s','w').write(out)
```

```python
import sys
NAME='gather_scatter__edge_featured_mpnn_gatedgcn__graph_kernel'
PROF = '--prof' in sys.argv
OPT = {a.split('=')[0][2:]:(a.split('=')[1] if '=' in a else '1') for a in sys.argv[1:] if a.startswith('--')}
N=10000; E=160000; RN=157; CH=625; CHCAP=704
SLICE=10240*256
WS_RECS=0xA00000; WS_SEGT=0xB80000; SEGT_FLAG2=0x20000; WS_EPOCH=0xBB0000; WS_PROF=0xC00000
HIST1=0; DEG=256; HIST2=1024; LG=1280; GBASE=1408; CUR=1536; NODEOF=2304; CNT=3840
C_W=CNT; C_G=CNT+4; C_T=CNT+8; C_E1=CNT+12; C_SORT=CNT+16; C_P=CNT+20; C_FB=CNT+24; C_X=CNT+28; C_G1=CNT+32; C_H=CNT+36; C_R=CNT+40; C_X2=CNT+44; C_S=CNT+48; C_RL=CNT+52; C_X1=CNT+56
XT=4096; WR=XT+81920; AU=WR; ELL=WR+40960; ELLB=288
LDS_TOTAL=163840
RST=WR+65536
assert ELL+ELLB*128==LDS_TOTAL
NLOG2E=0xbfb8aa3b
sEP=4
sI,sROT,sTL,sWROT=6,7,8,9
sM=10
sX,sEA,sSRC,sDST,sWA,sWB,sWC,sWU=16,18,20,22,24,26,28,30
sWV,sOUT,sDBG,sWS=32,34,36,38
sW,sS,sR,sNONCE,sNB,sNV=40,41,42,43,44,45
rX,rDST,rSRC,rEA,rW1,rW2,rTW,rTR,rREC,rSEG,rOUT=48,52,56,60,64,68,72,76,80,84,88
sA,sB,sC_,sD,sSP=92,93,94,95,96
L=[]
def o(t): L.append('  '+t)
def lab(t): L.append(t+':')
def vr(a,n): return f'v[{a}:{a+n-1}]' if n>1 else f'v{a}'
def sr(a,n): return f's[{a}:{a+n-1}]'
uid=[0]
def U(p):
    uid[0]+=1; return f'L_{p}_{uid[0]}'
def srd(r,base,size):
    o(f's_mov_b32 s{r}, s{base}'); o(f's_mov_b32 s{r+1}, s{base+1}')
    o(f's_mov_b32 s{r+2}, {size}'); o(f's_mov_b32 s{r+3}, 0x20000')
def srd_off(r,base,off,size):
    o(f's_add_u32 s{r}, s{base}, {off}'); o(f's_addc_u32 s{r+1}, s{base+1}, 0')
    o(f's_mov_b32 s{r+2}, {size}'); o(f's_mov_b32 s{r+3}, 0x20000')
def stamp(idx):
    if not PROF: return
    o(f's_memrealtime s[100:101]'); o('s_waitcnt lgkmcnt(0)'); o(f'v_writelane_b32 v255, s100, {idx}')
    o(f's_memtime s[100:101]'); o('s_waitcnt lgkmcnt(0)'); o(f'v_writelane_b32 v255, s100, {idx+32}')
VZ=248
def lds_spin(addr, need, vtmp):
    l=U('spin'); d=U('spind')
    o(f's_mov_b32 s{sSP}, 0')
    lab(l)
    o(f'ds_read_b32 v{vtmp}, v{VZ} offset:{addr}')
    o('s_waitcnt lgkmcnt(0)')
    o(f'v_readfirstlane_b32 s{sA}, v{vtmp}')
    o(f's_add_u32 s{sSP}, s{sSP}, 1')
    o(f's_cmp_ge_u32 s{sA}, {need}')
    o(f's_cbranch_scc1 {d}')
    o('s_sleep 1')
    o(f's_cmp_lt_u32 s{sSP}, 0x40000')
    o(f's_cbranch_scc1 {l}')
    lab(d)
def lds_inc(addr, vtmp, ret=False):
    o(f'v_mov_b32 v{vtmp}, 1')
    o('s_mov_b64 exec, 1')
    if ret:
        o(f'ds_add_rtn_u32 v{vtmp}, v{VZ}, v{vtmp} offset:{addr}')
        o('s_waitcnt lgkmcnt(0)')
        o(f'v_readfirstlane_b32 s{sA}, v{vtmp}')
    else:
        o(f'ds_add_u32 v{VZ}, v{vtmp} offset:{addr}')
    o('s_mov_b64 exec, -1')
def scan64(v):
    for sh in (1,2,4,8):
        o('s_nop 1'); o(f'v_add_u32_dpp v{v}, v{v}, v{v} row_shr:{sh} row_mask:0xf bank_mask:0xf')
    o('s_nop 1'); o(f'v_add_u32_dpp v{v}, v{v}, v{v} row_bcast:15 row_mask:0xa bank_mask:0xf')
    o('s_nop 1'); o(f'v_add_u32_dpp v{v}, v{v}, v{v} row_bcast:31 row_mask:0xc bank_mask:0xf')
    o('s_nop 1')
lab(NAME)
o('s_cmp_ge_u32 s2, 256')
o('s_cbranch_scc1 L_end')
o('s_load_dwordx16 s[16:31], s[0:1], 0')
o('s_load_dwordx8 s[32:39], s[0:1], 64')
o('v_and_b32 v1, 63, v0')
o('v_lshrrev_b32 v2, 6, v0')
o(f'v_mov_b32 v{VZ}, 0')
o(f'v_readfirstlane_b32 s{sW}, v2')
o('s_getpc_b64 s[12:13]')
lab('L_pc')
if 'nopf' not in OPT:
    o(f's_cmp_lg_u32 s{sW}, 7'); o('s_cbranch_scc1 L_nopf')
    o('s_lshr_b32 s3, s2, 3'); o('s_lshl_b32 s3, s3, 10')
    o('v_lshl_add_u32 v2, v1, 4, s3')
    o('v_cmp_gt_u32 vcc, L_codeend-L_pc-16, v2')
    o('s_and_saveexec_b64 s[98:99], vcc')
    o('s_cbranch_execz L_nopf2')
    o('global_load_dwordx4 v[240:243], v2, s[12:13]')
    lab('L_nopf2')
    o('s_mov_b64 exec, -1')
    lab('L_nopf')
o('v_lshlrev_b32 v17, 3, v0'); o('v_mov_b32 v20, 0'); o('v_mov_b32 v21, 0')
o('ds_write_b64 v17, v[20:21]')
o(f's_and_b32 s{sS}, s2, 7'); o(f's_lshr_b32 s{sS}, s{sS}, 1')
o(f's_lshr_b32 s{sR}, s2, 3'); o(f's_lshl_b32 s{sR}, s{sR}, 1'); o(f's_and_b32 s{sA}, s2, 1'); o(f's_or_b32 s{sR}, s{sR}, s{sA}')
o(f's_mul_i32 s{sNB}, s{sR}, {RN}')
o(f's_sub_u32 s{sNV}, {N}, s{sNB}'); o(f's_min_u32 s{sNV}, s{sNV}, {RN}')
if PROF: o('v_mov_b32 v255, 0')
for _v in (56,57,58,59,60,61,62,63,240,241,242,243): o(f'v_mov_b32 v{_v}, 0')
o(f's_mul_i32 s{sROT}, s{sS}, 5'); o(f's_add_u32 s{sROT}, s{sROT}, 1'); o(f's_lshr_b32 s{sROT}, s{sROT}, 1')
o(f's_lshr_b32 s{sWROT}, s2, 3')
o(f's_mov_b32 s{sM}, 0xffffff00')
def build_common():
    srd(rOUT,sOUT,N*512)
    o(f's_mul_i32 s{sA}, s{sS}, {SLICE}')
    o(f's_add_u32 s{rTW}, s{sWS}, s{sA}'); o(f's_addc_u32 s{rTW+1}, s{sWS+1}, 0')
    o(f's_add_u32 s{sA}, s{sNB}, s{sNV}'); o(f's_lshl_b32 s{rTW+2}, s{sA}, 8'); o(f's_mov_b32 s{rTW+3}, 0x20000')
    o(f's_mov_b32 s{rTR}, s{rTW}'); o(f's_mov_b32 s{rTR+1}, s{rTW+1}'); o(f's_mov_b32 s{rTR+2}, {(N+1)*256}'); o(f's_mov_b32 s{rTR+3}, 0x20000')
    srd_off(rSEG,sWS,WS_SEGT,0x21000)
    o(f's_add_u32 s{sEP}, s{sWS}, {WS_EPOCH}'); o(f's_addc_u32 s{sEP+1}, s{sWS+1}, 0')
    o(f's_load_dword s{sNONCE}, {sr(sEP,2)}, 0')
def wc_load():
    o('v_and_b32 v17, 7, v1'); o('v_lshlrev_b32 v17, 3, v17')
    o(f's_lshl_b32 s{sA}, s{sS}, 7'); o(f'v_add_u32 v17, s{sA}, v17')
    srd(rREC,sWC,512)
    o(f'buffer_load_dwordx2 v[250:251], v17, {sr(rREC,4)}, 0 offen')
    o(f'buffer_load_dwordx2 v[252:253], v17, {sr(rREC,4)}, 0 offen offset:64')
def wvoff(dst, wexpr_s):
    o('v_lshrrev_b32 v17, 3, v1')
    o(f's_lshl_b32 s{sA}, s{wexpr_s}, 3'); o(f'v_add_u32 v17, s{sA}, v17')
    o('v_bfe_u32 v20, v1, 4, 1')
    o(f's_and_b32 s{sA}, s{wexpr_s}, 1'); o(f's_lshl_b32 s{sA}, s{sA}, 1'); o(f'v_or_b32 v20, s{sA}, v20')
    o('v_bfe_u32 v19, v1, 1, 2'); o('v_xor_b32 v19, v19, v20'); o('v_lshlrev_b32 v19, 1, v19')
    o('v_and_b32 v20, 1, v1'); o('v_or_b32 v19, v19, v20')
    o('v_lshlrev_b32 v19, 4, v19'); o('v_lshl_add_u32 v19, v17, 9, v19')
    o(f's_lshl_b32 s{sA}, s{sS}, 7'); o(f'v_add_u32 v{dst}, s{sA}, v19')
o(f's_cmp_ge_u32 s{sW}, 4')
o('s_cbranch_scc1 L_e0')
o('v_lshrrev_b32 v17, 5, v1')
o(f's_lshl_b32 s{sA}, s{sW}, 1'); o(f'v_add_u32 v17, s{sA}, v17')
o('v_and_b32 v18, 31, v1'); o('v_and_b32 v19, 15, v17'); o('v_xor_b32 v22, v18, v19')
o('v_lshlrev_b32 v22, 4, v22'); o('v_lshl_add_u32 v22, v17, 9, v22')
o('v_add_u32 v17, 8, v17'); o('v_and_b32 v19, 15, v17'); o('v_xor_b32 v23, v18, v19')
o('v_lshlrev_b32 v23, 4, v23'); o('v_lshl_add_u32 v23, v17, 9, v23')
wvoff(249,sW)
o('s_waitcnt lgkmcnt(0)')
o('s_barrier')
stamp(0)
if 'stlb' in OPT:
    def touch(base, off_s=None, off_i=0):
        if off_s is None and off_i==0:
            o(f's_load_dword s13, {sr(base,2)}, 0'); return
        if off_s is not None:
            o(f's_add_u32 s14, s{base}, s{off_s}'); o(f's_addc_u32 s15, s{base+1}, 0')
            if off_i: o(f's_add_u32 s14, s14, {off_i}'); o('s_addc_u32 s15, s15, 0')
        else:
            o(f's_add_u32 s14, s{base}, {off_i}'); o(f's_addc_u32 s15, s{base+1}, 0')
        o('s_load_dword s13, s[14:15], 0')
    o(f's_lshl_b32 s3, s{sNB}, 9')
    touch(sX,3); touch(sWB); touch(sWV); touch(sWA); touch(sWU); touch(sOUT,3)
    touch(sWS,None,WS_RECS)
    o(f's_mul_i32 s3, s{sS}, {SLICE}')
    touch(sWS,3); touch(sWS,3,0x100000); touch(sWS,3,0x200000); touch(sWS,3,SLICE-256)
wc_load()
srd(rX,sX,N*512); srd(rW1,sWB,131072); srd(rW2,sWV,131072)
o(f's_lshl_b32 s{sC_}, s{sW}, 10')
o(f's_mov_b32 s{sTL}, s{sROT}')
o(f's_mov_b32 s{sI}, 0')
lab('L_dmaw')
o(f's_add_u32 s{sA}, s{sI}, s{sWROT}'); o(f's_and_b32 s{sA}, s{sA}, 7')
o(f's_lshl_b32 s{sB}, s{sA}, 14'); o(f's_lshl_b32 s{sA}, s{sA}, 12'); o(f's_add_u32 s{sA}, s{sA}, s{sC_}')
o(f's_add_u32 m0, s{sA}, {WR}'); o('s_nop 0')
o(f'buffer_load_dwordx4 v249, {sr(rW1,4)}, s{sB} offen lds')
o(f's_add_u32 m0, s{sA}, {WR+32768}'); o('s_nop 0')
o(f'buffer_load_dwordx4 v249, {sr(rW2,4)}, s{sB} offen lds')
o('s_waitcnt vmcnt(%s)' % OPT.get('pace','8'))
o(f's_add_u32 s{sI}, s{sI}, 1'); o(f's_cmp_lt_u32 s{sI}, 8'); o('s_cbranch_scc1 L_dmaw')
def xloop(lo,hi,name):
    o(f's_mov_b32 s{sI}, {lo}')
    lab(name)
    o(f's_lshr_b32 s{sTL}, s{sI}, 1'); o(f's_and_b32 s{sA}, s{sI}, 1'); o(f's_mul_i32 s{sA}, s{sA}, 5'); o(f's_add_u32 s{sTL}, s{sTL}, s{sA}')
    o(f's_lshl_b32 s{sA}, s{sTL}, 13'); o(f's_add_u32 s{sD}, s{sA}, s{sC_}'); o(f's_add_u32 m0, s{sD}, {XT}')
    o(f's_lshl_b32 s{sB}, s{sNB}, 9'); o(f's_add_u32 s{sB}, s{sB}, s{sA}')
    o(f'buffer_load_dwordx4 v22, {sr(rX,4)}, s{sB} offen lds')
    o(f's_add_u32 m0, s{sD}, {XT+4096}'); o('s_nop 0')
    o(f'buffer_load_dwordx4 v23, {sr(rX,4)}, s{sB} offen lds')
    o('s_waitcnt vmcnt(%s)' % OPT.get('pace','8'))
    o(f's_add_u32 s{sI}, s{sI}, 1'); o(f's_cmp_lt_u32 s{sI}, {hi}'); o(f's_cbranch_scc1 {name}')
xloop(0,4,'L_dmax1')
stamp(19)
build_common()
srd(rDST,sDST,E*4); srd(rSRC,sSRC,E*4); srd(rEA,sEA,E*2); srd_off(rREC,sWS,WS_RECS,256*CHCAP*8)
WF,AF,ACC,XA,XC,TRA,TOF,AUA=64,192,224,56,60,240,241,242
o(f's_and_b32 s{sD}, s{sW}, 1'); o(f's_lshl_b32 s{sD}, s{sD}, 1')
o('v_lshrrev_b32 v17, 4, v1')
o('v_bfe_u32 v18, v1, 2, 2')
o('v_lshl_add_u32 v19, v17, 3, v18')
o('v_lshlrev_b32 v19, 7, v19')
o('v_bfe_u32 v20, v1, 3, 1')
o('v_and_b32 v21, 1, v17'); o('v_lshl_or_b32 v20, v21, 1, v20')
o(f'v_xor_b32 v20, s{sD}, v20')
o('v_and_b32 v21, 3, v1'); o('v_lshl_add_u32 v19, v21, 3, v19'); o(f'v_add_u32 v19, {WR}, v19')
o(f'v_lshl_add_u32 v{TRA}, v20, 5, v19')
o('v_xor_b32 v20, 1, v20'); o(f'v_lshl_add_u32 v{TRA+3}, v20, 5, v19')
def wfrags():
    for m in range(2):
        for t in range(2):
            for ks in range(8):
                r=WF+64*m+32*t+4*ks; a=TRA if t==0 else TRA+3
                o(f'ds_read_b64_tr_b16 {vr(r,2)}, v{a} offset:{m*32768+ks*4096}')
                o(f'ds_read_b64_tr_b16 {vr(r+2,2)}, v{a} offset:{m*32768+ks*4096+512}')
o('v_and_b32 v18, 15, v1')
for k in range(4):
    o(f'v_and_b32 v19, 12, v18'); o(f'v_xor_b32 v19, {4*k}, v19')
    o('v_and_b32 v20, 3, v18'); o('v_xor_b32 v20, v20, v17')
    o('v_add_u32 v19, v19, v20'); o('v_lshlrev_b32 v19, 4, v19')
    o(f'v_lshl_add_u32 v{XA+k}, v18, 9, v19')
    o(f'v_add_u32 v{XA+k}, {XT}, v{XA+k}')
o('v_lshlrev_b32 v19, 10, v17')
o(f's_lshl_b32 s{sA}, s{sD}, 6')
o('v_lshl_add_u32 v19, v18, 2, v19'); o(f'v_add_u32 v{TOF}, s{sA}, v19')
o(f's_lshr_b32 s{sROT}, s{sW}, 1'); o(f's_mul_i32 s{sROT}, s{sROT}, 5')

o('s_waitcnt vmcnt(8) lgkmcnt(0)')
o(f's_mul_i32 s{sNONCE}, s{sNONCE}, 0x9E3779B1'); o(f's_add_u32 s{sNONCE}, s{sNONCE}, 0x7F4A7C15')
lds_inc(C_X,244)
lds_spin(C_X,4,244)
stamp(2)
wfrags()
o('s_waitcnt lgkmcnt(0)')
o(f's_lshl_b32 s{sC_}, s{sW}, 10')
lds_inc(C_W,244)
lds_spin(C_W,4,244)
srd(rW1,sWA,131072); srd(rW2,sWU,131072)
o(f's_mov_b32 s{sI}, 0')
lab('L_dmau')
o(f's_add_u32 s{sA}, s{sI}, s{sWROT}'); o(f's_and_b32 s{sA}, s{sA}, 7')
o(f's_lshl_b32 s{sB}, s{sA}, 14'); o(f's_lshl_b32 s{sA}, s{sA}, 12'); o(f's_add_u32 s{sA}, s{sA}, s{sC_}')
o(f's_add_u32 m0, s{sA}, {WR}'); o('s_nop 0')
o(f'buffer_load_dwordx4 v249, {sr(rW1,4)}, s{sB} offen lds')
o(f's_add_u32 m0, s{sA}, {WR+32768}'); o('s_nop 0')
o(f'buffer_load_dwordx4 v249, {sr(rW2,4)}, s{sB} offen lds')
o('s_waitcnt vmcnt(%s)' % OPT.get('pace','8'))
o(f's_add_u32 s{sI}, s{sI}, 1'); o(f's_cmp_lt_u32 s{sI}, 8'); o('s_cbranch_scc1 L_dmau')
xloop(4,10,'L_dmax2')
lds_inc(C_G1,244)
stamp(3)
o('s_waitcnt vmcnt(8)')
lds_inc(C_X1,244)
lds_spin(C_X1,4,244)
stamp(4)
o('s_branch L_g_gemm')
lab('L_e0')
if 'noprio' not in OPT: o('s_setprio 2')
o('v_subrev_u32 v14, 256, v0')
o(f's_mul_i32 s{sA}, s2, {CH}')
o(f'v_add_u32 v15, s{sA}, v14')
o('v_lshlrev_b32 v16, 1, v15'); o('v_lshlrev_b32 v15, 2, v15')
o(f'v_cmp_gt_u32 vcc, {CH-512}, v14')
o('v_add_u32 v18, 2048, v15'); o('v_add_u32 v19, 1024, v16')
o('v_mov_b32 v17, 0x40000000')
o('v_cndmask_b32 v18, v17, v18, vcc'); o('v_cndmask_b32 v19, v17, v19, vcc')
o('s_waitcnt lgkmcnt(0)')
ED,ES,EE=2,5,8
srd(rDST,sDST,E*4)
o(f'buffer_load_dword v{ED}, v15, {sr(rDST,4)}, 0 offen')
o(f'buffer_load_dword v{ED+1}, v15, {sr(rDST,4)}, 0 offen offset:1024')
o(f'buffer_load_dword v{ED+2}, v18, {sr(rDST,4)}, 0 offen')
srd(rSRC,sSRC,E*4)
o(f'buffer_load_dword v{ES}, v15, {sr(rSRC,4)}, 0 offen')
o(f'buffer_load_dword v{ES+1}, v15, {sr(rSRC,4)}, 0 offen offset:1024')
o(f'buffer_load_dword v{ES+2}, v18, {sr(rSRC,4)}, 0 offen')
srd(rEA,sEA,E*2)
o(f'buffer_load_ushort v{EE}, v16, {sr(rEA,4)}, 0 offen')
o(f'buffer_load_ushort v{EE+1}, v16, {sr(rEA,4)}, 0 offen offset:512')
o(f'buffer_load_ushort v{EE+2}, v19, {sr(rEA,4)}, 0 offen')
o('s_barrier')
stamp(0)
wc_load()
srd(rW1,sWA,131072); srd(rW2,sWU,131072)
o('s_lshr_b32 s3, s2, 3'); o('s_lshl_b32 s3, s3, 12')
o('v_lshrrev_b32 v17, 3, v1'); o('v_lshlrev_b32 v17, 9, v17'); o('v_and_b32 v19, 7, v1'); o('v_lshl_add_u32 v17, v19, 4, v17')
o(f's_lshl_b32 s{sA}, s{sS}, 7'); o(f'v_add_u32 v17, s{sA}, v17')
l=U('wu')
if 'nowu' not in OPT:
    o(f's_cmp_lg_u32 s{sW}, 4'); o(f's_cbranch_scc1 {l}_a')
    o(f'buffer_load_dwordx4 v[240:243], v17, {sr(rW1,4)}, s3 offen')
    lab(l+'_a')
    o(f's_cmp_lg_u32 s{sW}, 5'); o(f's_cbranch_scc1 {l}_b')
    o(f'buffer_load_dwordx4 v[240:243], v17, {sr(rW2,4)}, s3 offen')
    lab(l+'_b')
build_common()
srd(rX,sX,N*512); srd_off(rREC,sWS,WS_RECS,256*CHCAP*8)
if 'notlb' not in OPT:
    o(f's_cmp_lg_u32 s{sW}, 6'); o(f's_cbranch_scc1 {l}_c')
    o('v_lshlrev_b32 v17, 20, v1'); o('v_cmpx_gt_u32 vcc, 3, v1')
    o(f'buffer_load_dword v244, v17, {sr(rTR,4)}, 0 offen')
    o('s_mov_b64 exec, -1')
    lab(l+'_c')
    o(f's_cmp_lg_u32 s{sW}, 7'); o(f's_cbranch_scc1 {l}_d')
    o(f's_lshl_b32 s{sA}, s{sNB}, 9')
    o(f'buffer_load_dword v244, v{VZ}, {sr(rOUT,4)}, s{sA} offen')
    o(f'buffer_load_dword v245, v{VZ}, {sr(rREC,4)}, 0 offen')
    lab(l+'_d')
wvoff(249,sW)
o('v_subrev_u32 v247, 16384, v249')
o('s_waitcnt vmcnt(%d)' % (2 if ('nowu' in OPT or 'notlb' in OPT) else 3))
stamp(22)
o(f's_mov_b32 s{sA}, 106862')
RR,RK_,RW=36,24,28
for k in range(3):
    o(f'v_mul_lo_u32 v{RR+k}, v{ED+k}, s{sA}')
for k in range(3):
    o(f'v_lshrrev_b32 v{RR+k}, 24, v{RR+k}')
    o(f'v_mul_u32_u24 v17, {RN}, v{RR+k}'); o(f'v_sub_u32 v17, v{ED+k}, v17')
    o(f'v_lshl_or_b32 v{RW+2*k}, v{ES+k}, 8, v17'); o(f'v_lshlrev_b32 v{RW+2*k+1}, 16, v{EE+k}')
    o(f'v_lshlrev_b32 v{RR+k}, 2, v{RR+k}')
o('v_mov_b32 v16, 1')
o(f'ds_add_rtn_u32 v{RK_}, v{RR}, v16 offset:{HIST1}')
o(f'ds_add_rtn_u32 v{RK_+1}, v{RR+1}, v16 offset:{HIST1}')
o(f'v_cmpx_gt_u32 vcc, {CH-512}, v14')
o(f'ds_add_rtn_u32 v{RK_+2}, v{RR+2}, v16 offset:{HIST1}')
o('s_mov_b64 exec, -1')
o('s_waitcnt lgkmcnt(0)')
o(f's_mul_i32 s{sNONCE}, s{sNONCE}, 0x9E3779B1'); o(f's_add_u32 s{sNONCE}, s{sNONCE}, 0x7F4A7C15')
lds_inc(C_H,17)
lds_spin(C_H,4,17)
o('v_lshlrev_b32 v17, 2, v1')
o(f'ds_read_b32 v20, v17 offset:{HIST1}')
o('s_waitcnt lgkmcnt(0)')
o('v_add_u32 v21, 1, v20'); o('v_and_b32 v21, -2, v21'); o('v_mov_b32 v22, v21')
scan64(21)
o('v_sub_u32 v22, v21, v22')
for k in range(3): o(f'ds_bpermute_b32 v{RR+k}, v{RR+k}, v22')
o('s_waitcnt lgkmcnt(0)')
for k in range(3): o(f'v_add_lshl_u32 v{RR+k}, v{RR+k}, v{RK_+k}, 3')
for k in range(3): o(f'v_add_u32 v{RR+k}, {RST}, v{RR+k}')
o(f'ds_write_b64 v{RR}, {vr(RW,2)}')
o(f'ds_write_b64 v{RR+1}, {vr(RW+2,2)}')
o(f'v_cmpx_gt_u32 vcc, {CH-512}, v14')
o(f'ds_write_b64 v{RR+2}, {vr(RW+4,2)}')
o('s_mov_b64 exec, -1')
o('s_waitcnt lgkmcnt(0)')
lds_inc(C_S,17)
lds_spin(C_S,4,17)
o('v_lshlrev_b32 v17, 4, v14'); o(f'v_add_u32 v18, {RST}, v17')
if 'delay' in OPT: lds_spin(C_X2,4,36)
o('ds_read_b128 v[28:31], v18'); o('ds_read_b128 v[32:35], v18 offset:4096')
o(f's_mul_i32 s{sA}, s2, {CHCAP*8}'); o(f's_add_u32 s{sB}, s{sA}, 4096')
o(f's_and_b32 s{sC_}, s{sNONCE}, 0xffff'); o(f's_lshr_b32 s{sD}, s{sNONCE}, 16')
o('v_mov_b32 v19, 0xffff0000')
o('s_waitcnt lgkmcnt(0)')
o(f'v_and_or_b32 v29, v29, v19, s{sC_}'); o(f'v_and_or_b32 v31, v31, v19, s{sD}')
o(f'v_and_or_b32 v33, v33, v19, s{sC_}'); o(f'v_and_or_b32 v35, v35, v19, s{sD}')
if 'noEst' not in OPT:
    o(f'buffer_store_dwordx4 v[28:31], v17, {sr(rREC,4)}, s{sA} offen sc1')
    o(f'v_cmpx_gt_u32 vcc, {(CHCAP*8-4096)//16}, v14')
    o(f'buffer_store_dwordx4 v[32:35], v17, {sr(rREC,4)}, s{sB} offen sc1')
    o('s_mov_b64 exec, -1')
stamp(2)
l=U('nopub')
if 'noEst' in OPT: o(f's_branch {l}')
o(f's_cmp_lg_u32 s{sW}, 4'); o(f's_cbranch_scc1 {l}')
o('v_lshl_or_b32 v24, v20, 16, v22'); o(f'v_mov_b32 v25, s{sNONCE}')
o('v_lshlrev_b32 v17, 11, v1')
o(f's_lshl_b32 s{sA}, s2, 3')
o(f'buffer_store_dwordx2 v[24:25], v17, {sr(rSEG,4)}, s{sA} offen sc1')
lab(l)
stamp(3)
stamp(4)
o('s_branch L_main_setup' if 'xE' in OPT else 's_branch L_eteam_b')
lab('L_g_gemm')
if 'gprio' in OPT: o('s_setprio 3')
sTE=11
sTC=12
def xread(ks): return f'ds_read_b128 {vr(AF+4*ks,4)}, v{XC+(ks&3)} offset:{256 if ks>=4 else 0}'
def epi_list(which,a,t):
    e=[]
    for i in range(4): e.append(f'v_mul_f32 v{a+i}, {NLOG2E:#x}, v{a+i}')
    for i in range(4): e.append(f'v_cvt_pk_bf16_f32 v{a+i}, v{a+i}, v{a+4+i}')
    if which==1:
        for i in range(4): e.append(f'buffer_store_dword v{a+i}, v{TOF}, {sr(rTW,4)}, s{sB if t==1 else sD} offen offset:{i*256+64*t} sc1')
    else:
        for i in range(4): e.append(f'ds_write_b32 v{AUA if t==1 else AUA+2}, v{a+i} offset:{i*256+64*t}')
    return e
def addr_ops(which,tile_s,t):
    dst = sB if t==1 else sD
    if which==1: return [f's_lshl_b32 s{dst}, s{tile_s}, 4', f's_add_u32 s{dst}, s{dst}, s{sNB}', f's_lshl_b32 s{dst}, s{dst}, 8']
    return [f's_lshl_b32 s{dst}, s{tile_s}, 12', f's_add_u32 s{dst}, s{dst}, {AU}', f'v_add_u32 v{AUA if t==1 else AUA+2}, s{dst}, v{TOF}']
sTO=[13,14,15,46,47]
PK=8
def gemm_body(which, j):
    B0,V0,B1,V1=ACC,ACC+4,ACC+8,ACC+12
    if which==1:
        def epi1(a,jj,t):
            e=[f'v_mul_f32 v{a+i}, {NLOG2E:#x}, v{a+i}' for i in range(4)]
            e+=[f'v_cvt_pk_bf16_f32 v{PK+8*jj+4*t+i}, v{a+i}, v{a+4+i}' for i in range(4)]
            return e
        eP1=epi1(B1,j-1,1) if j>0 else []; eP0=epi1(B0,j,0)
        a1=[]; a0=[]
    else:
        eP1=epi_list(2,B1,1); eP0=epi_list(2,B0,0)
        a1=addr_ops(2,sTE,1); a0=addr_ops(2,sTC,0)
    fill=[[] for _ in range(16)]
    if which==2:
        fill[0]+=a1[0:2]; fill[1]+=a1[2:3]+a0[0:1]; fill[2]+=a0[1:3]
        fill[3]+=eP1[0:3]; fill[4]+=eP1[3:6]; fill[5]+=eP1[6:9]; fill[6]+=eP1[9:11]; fill[7]+=eP1[11:12]
    elif eP1:
        fill[3]+=eP1[0:2]; fill[4]+=eP1[2:4]; fill[5]+=eP1[4:6]; fill[6]+=eP1[6:8]
    if not (which==1 and j==4):
        for ks in range(8): fill[8+ks].append(xread(ks))
    if which==2:
        fill[11]+=eP0[0:3]; fill[12]+=eP0[3:6]; fill[13]+=eP0[6:9]; fill[14]+=eP0[9:11]; fill[15]+=eP0[11:12]
        tail=[f's_mov_b32 s{sTE}, s{sTC}', f's_add_u32 s{sTC}, s{sTC}, 1', f's_add_u32 s{sA}, s{sTC}, 1', f's_lshl_b32 s{sA}, s{sA}, 13']
        fill[9]+=tail[0:2]; fill[10]+=tail[2:4]
    else:
        fill[11]+=eP0[0:2]; fill[12]+=eP0[2:4]; fill[13]+=eP0[4:6]; fill[14]+=eP0[6:8]
        fill[9]+=[f's_add_u32 s{sTC}, s{sTC}, 8192']
    seq=[]
    for sl in range(16):
        for t in fill[sl]:
            if t.startswith('ds_read'): seq.append((sl,'r'))
            elif t.startswith('ds_write'): seq.append((sl,'w'))
    def waitcount(ks):
        if which==1: return 7-ks
        n=0; found=False; k=-1
        for (sl,kind) in seq:
            if kind=='r':
                k+=1
                if k==ks: found=True; continue
            if found: n+=1
        for (sl,kind) in seq:
            if sl<ks: n+=1
        return n
    for ph in range(2):
        for ks in range(8):
            ab,av=(B0,V0) if ph==0 else (B1,V1)
            wb=WF+32*ph+4*ks; wv=WF+64+32*ph+4*ks
            if ph==0: o(f's_waitcnt lgkmcnt({min(waitcount(ks),15)})')
            c1='0' if ks==0 else vr(ab,4); c2='0' if ks==0 else vr(av,4)
            f=fill[8*ph+ks]
            o(f'v_mfma_f32_16x16x32_bf16 {vr(ab,4)}, {vr(AF+4*ks,4)}, {vr(wb,4)}, {c1}')
            h=(len(f)+1)//2 if ph==0 else 0
            for t in f[:h]: o(t)
            o(f'v_mfma_f32_16x16x32_bf16 {vr(av,4)}, {vr(AF+4*ks,4)}, {vr(wv,4)}, {c2}')
            for t in f[h:]: o(t)
    if which==2:
        for k in range(4): o(f'v_add_u32 v{XC+k}, s{sA}, v{XA+k}')
    elif j<3:
        for k in range(4): o(f'v_add_u32 v{XC+k}, s{sTC}, v{XA+k}')
def table_stores():
    for j in range(5):
        o(f's_add_u32 s{sB}, s{sROT}, {j}'); o(f's_lshl_b32 s{sB}, s{sB}, 4'); o(f's_add_u32 s{sB}, s{sB}, s{sNB}'); o(f's_lshl_b32 s{sB}, s{sB}, 8')
        for t in range(2):
            for i in range(4):
                o(f'buffer_store_dword v{PK+8*j+4*t+i}, v{TOF}, {sr(rTW,4)}, s{sB} offen offset:{i*256+64*t} sc1')
def gemm1():
    o(f's_lshl_b32 s{sTC}, s{sROT}, 13')
    for k in range(4): o(f'v_add_u32 v{XC+k}, s{sTC}, v{XA+k}')
    for ks in range(8): o(xread(ks))
    o(f's_add_u32 s{sTC}, s{sTC}, 8192')
    for k in range(4): o(f'v_add_u32 v{XC+k}, s{sTC}, v{XA+k}')
    o('s_waitcnt lgkmcnt(0)')
    for j in range(5):
        if j==1:
            o('s_waitcnt vmcnt(0)')
            lds_inc(C_X2,244)
            o('s_waitcnt lgkmcnt(0)')
        if j==2:
            lds_spin(C_X2,4,244)
        gemm_body(1,j)
    o('s_nop 7')
    for i in range(4): o(f'v_mul_f32 v{ACC+8+i}, {NLOG2E:#x}, v{ACC+8+i}')
    for i in range(4): o(f'v_cvt_pk_bf16_f32 v{PK+32+4+i}, v{ACC+8+i}, v{ACC+12+i}')
def dummy_row():
    l=U('nodummy')
    o(f's_cmp_lg_u32 s{sR}, 63'); o(f's_cbranch_scc1 {l}')
    o(f's_cmp_lg_u32 s{sW}, 0'); o(f's_cbranch_scc1 {l}')
    o('v_mov_b32 v244, 0x7f7f'); o('v_lshlrev_b32 v245, 2, v1'); o(f'v_add_u32 v245, {N*256}, v245')
    o(f'buffer_store_dword v244, v245, {sr(rTR,4)}, 0 offen sc1')
    lab(l)
def gemm2():
    B0,V0,B1,V1=ACC,ACC+4,ACC+8,ACC+12
    for j in range(5):
        o(f's_add_u32 s{sTO[j]}, s{sROT}, {j}'); o(f's_lshl_b32 s{sTO[j]}, s{sTO[j]}, 4'); o(f's_add_u32 s{sTO[j]}, s{sTO[j]}, s{sNB}'); o(f's_lshl_b32 s{sTO[j]}, s{sTO[j]}, 8')
    o(f's_lshl_b32 s{sTC}, s{sROT}, 13')
    for k in range(4): o(f'v_add_u32 v{XC+k}, s{sTC}, v{XA+k}')
    for ks in range(8): o(xread(ks))
    o(f's_add_u32 s{sTC}, s{sTC}, 8192')
    for k in range(4): o(f'v_add_u32 v{XC+k}, s{sTC}, v{XA+k}')
    o(f's_lshl_b32 s{sA}, s{sROT}, 12'); o(f's_add_u32 s{sA}, s{sA}, {AU}'); o(f'v_add_u32 v{AUA}, s{sA}, v{TOF}')
    o('s_waitcnt lgkmcnt(0)')
    def epi(a,jj,t):
        e=[f'v_mul_f32 v{a+i}, {NLOG2E:#x}, v{a+i}' for i in range(4)]
        e+=[f'v_cvt_pk_bf16_f32 v{a+i}, v{a+i}, v{a+4+i}' for i in range(4)]
        e+=[f'ds_write_b32 v{AUA}, v{a+i} offset:{jj*4096+i*256+64*t}' for i in range(4)]
        return e
    def tst(jj): return [f'buffer_store_dword v{PK+8*jj+4*t+i}, v{TOF}, {sr(rTW,4)}, s{sTO[jj]} offen offset:{i*256+64*t} sc1' for t in range(2) for i in range(4)]
    stores={0:tst(0)+tst(1),1:tst(2)+tst(3),2:tst(4),3:[],4:[]}
    prev_tail=0
    for j in range(5):
        eP1=epi(B1,j-1,1) if j>0 else []; eP0=epi(B0,j,0)
        fill=[[] for _ in range(16)]
        if eP1:
            fill[3]+=eP1[0:3]; fill[4]+=eP1[3:6]; fill[5]+=eP1[6:9]; fill[6]+=eP1[9:11]; fill[7]+=eP1[11:12]
        if j<4:
            for ks in range(8): fill[8+ks].append(xread(ks))
        fill[11]+=eP0[0:3]; fill[12]+=eP0[3:6]; fill[13]+=eP0[6:9]; fill[14]+=eP0[9:11]; fill[15]+=eP0[11:12]
        if j<3: fill[9]+=[f's_add_u32 s{sTC}, s{sTC}, 8192']
        st=list(stores[j])
        for sl in range(16):
            if st: fill[sl].append(st.pop(0))
        seq=[(sl,('r' if t.startswith('ds_read') else 'w')) for sl in range(16) for t in fill[sl] if t.startswith('ds_')]
        for ph in range(2):
            for ks in range(8):
                ab,av=(B0,V0) if ph==0 else (B1,V1)
                wb=WF+32*ph+4*ks; wv=WF+64+32*ph+4*ks
                if ph==0 and j>0:
                    n=0; found=False; k=-1
                    for (sl,kind) in prevseq:
                        if kind=='r':
                            k+=1
                            if k==ks: found=True; continue
                        if found: n+=1
                    n+=sum(1 for (sl,kind) in seq if sl<ks)
                    o(f's_waitcnt lgkmcnt({min(n,15)})')
                c1='0' if ks==0 else vr(ab,4); c2='0' if ks==0 else vr(av,4)
                f=fill[8*ph+ks]
                o(f'v_mfma_f32_16x16x32_bf16 {vr(ab,4)}, {vr(AF+4*ks,4)}, {vr(wb,4)}, {c1}')
                h=(len(f)+1)//2 if ph==0 else 0
                for t in f[:h]: o(t)
                o(f'v_mfma_f32_16x16x32_bf16 {vr(av,4)}, {vr(AF+4*ks,4)}, {vr(wv,4)}, {c2}')
                for t in f[h:]: o(t)
        if j<3:
            for k in range(4): o(f'v_add_u32 v{XC+k}, s{sTC}, v{XA+k}')
        prevseq=seq
        if j==int(OPT.get('f2it','3')):
            l=U('nf2')
            o('s_waitcnt vmcnt(0)')
            lds_inc(C_T,244,ret=True)
            o(f's_cmp_lg_u32 s{sA}, 3'); o(f's_cbranch_scc1 {l}')
            o('s_mov_b64 exec, 1')
            for i in range(4): o(f'v_mov_b32 v{244+i}, s{sNONCE}')
            o(f's_lshl_b32 s{sA}, s{sS}, 6'); o(f's_add_u32 s{sA}, s{sA}, s{sR}'); o(f's_lshl_b32 s{sA}, s{sA}, 4')
            o(f's_add_u32 s{sA}, s{sA}, {SEGT_FLAG2}')
            o(f'buffer_store_dwordx4 v[244:247], v{VZ}, {sr(rSEG,4)}, s{sA} offen sc1')
            o('s_mov_b64 exec, -1')
            lab(l)
    o('s_nop 7')
    for t in epi(B1,4,1): o(t)
    if 'nopre' not in OPT:
        o(f's_lshl_b32 s{sA}, s{sNB}, 8'); o(f's_mul_i32 s{sB}, s{sW}, 10240'); o(f's_add_u32 s{sA}, s{sA}, s{sB}')
        o('v_lshlrev_b32 v245, 4, v1')
        for i in range(10):
            o(f'buffer_load_dwordx4 v[44:47], v245, {sr(rTW,4)}, s{sA} offen sc1')
            o(f's_add_u32 s{sA}, s{sA}, 1024')
gemm1()
stamp(5)
wfrags()
o('s_waitcnt lgkmcnt(0)')
lds_inc(C_G,244)
lds_spin(C_G,4,244)
stamp(18)
if 'xE' not in OPT and 'nogate' not in OPT: lds_spin(C_RL,4,244)
dummy_row()
stamp(6)
gemm2()
o('s_waitcnt lgkmcnt(0)')
stamp(7)
o('s_branch L_main_setup')
lab('L_eteam_b')
SG,RC0,RC1,SA,RKB=64,80,112,144,200
T=176
o(f's_sub_u32 s{sC_}, s{sW}, 4')
o('v_lshrrev_b32 v17, 3, v1')
o(f's_lshl_b32 s{sA}, s{sC_}, 3'); o(f'v_add_u32 v17, s{sA}, v17')
o(f'v_lshlrev_b32 v{T}, 3, v17')
o('v_and_b32 v18, 7, v1')
o(f'v_mul_u32_u24 v{T+1}, {CHCAP*8}, v17'); o(f'v_lshl_add_u32 v{T+1}, v18, 4, v{T+1}')
IX=T+2
o(f'v_lshlrev_b32 v{IX}, 1, v18'); o(f'v_add_u32 v{IX+1}, 1, v{IX}'); o(f'v_add_u32 v{IX+2}, 16, v{IX}'); o(f'v_add_u32 v{IX+3}, 17, v{IX}')
lds_spin(C_G1,4,17)
o(f's_lshl_b32 s{sD}, s{sR}, 11')
o(f's_mov_b32 s{sSP}, 0')
lp=U('poll1'); dn=U('poll1d')
lab(lp)
for p in range(8):
    o(f'buffer_load_dwordx2 {vr(SG+2*p,2)}, v{T}, {sr(rSEG,4)}, s{sD} offen offset:{p*256} sc1')
o(f'v_mov_b32 v19, s{sNONCE}')
o('s_waitcnt vmcnt(0)')
o(f'v_xor_b32 v20, v{SG+1}, v19')
for p in range(1,8):
    o(f'v_xor_b32 v21, v{SG+2*p+1}, v19'); o('v_or_b32 v20, v20, v21')
o('v_cmp_ne_u32 vcc, 0, v20')
o(f's_cbranch_vccz {dn}')
o('s_sleep 6')
o(f's_add_u32 s{sSP}, s{sSP}, 1'); o(f's_cmp_lt_u32 s{sSP}, 0x10000'); o(f's_cbranch_scc1 {lp}')
lab(dn)
stamp(5)
o('v_mov_b32 v20, 0')
for p in range(8):
    o(f'v_lshrrev_b32 v{SG+2*p+1}, 16, v{SG+2*p}')
    o(f'v_max_u32 v20, v20, v{SG+2*p+1}')
o('v_cmp_lt_u32 vcc, 32, v20')
l=U('nofb'); o(f's_cbranch_vccz {l}')
o('v_mov_b32 v21, 1'); o(f'ds_write_b32 v{VZ}, v21 offset:{C_FB}')
lab(l)
o(f's_mov_b32 s{sSP}, 0')
lr=U('recld'); dr=U('recok')
lab(lr)
for p in range(8):
    o(f'v_and_b32 v19, 0xffff, v{SG+2*p}')
    o(f'v_lshl_add_u32 v19, v19, 3, v{T+1}')
    o(f's_mov_b32 s{sA}, {p*32*CHCAP*8}')
    o(f'v_cmp_lt_u32 vcc, 16, v{SG+2*p+1}')
    o(f'buffer_load_dwordx4 {vr(RC0+4*p,4)}, v19, {sr(rREC,4)}, s{sA} offen sc1')
    l=U('ld1'); o(f's_cbranch_vccz {l}')
    o(f'buffer_load_dwordx4 {vr(RC1+4*p,4)}, v19, {sr(rREC,4)}, s{sA} offen offset:128 sc1')
    lab(l)
l=U('sig'); o(f's_cmp_lg_u32 s{sSP}, 0'); o(f's_cbranch_scc1 {l}_r')
lds_inc(C_RL,20)
o('s_waitcnt vmcnt(0)')
o(f's_branch {l}')
lab(l+'_r')
o('s_waitcnt vmcnt(0)')
lab(l)
o('v_mov_b32 v21, 0x05040100'); o('v_mov_b32 v22, 0'); o(f'v_mov_b32 v23, s{sNONCE}')
for p in range(8):
    for st in range(2):
        rec=(RC0 if st==0 else RC1)+4*p
        if st==1:
            l=U('v1'); o(f'v_cmp_lt_u32 vcc, 16, v{SG+2*p+1}'); o(f's_cbranch_vccz {l}')
        o(f'v_cmpx_lt_u32 vcc, v{IX+2*st}, v{SG+2*p+1}')
        o(f'v_perm_b32 v20, v{rec+3}, v{rec+1}, v21'); o('v_xor_b32 v20, v20, v23'); o('v_or_b32 v22, v22, v20')
        o('s_mov_b64 exec, -1')
        if st==1: lab(l)
o('v_cmp_ne_u32 vcc, 0, v22')
o(f's_cbranch_vccz {dr}')
o('s_sleep 2')
o(f's_add_u32 s{sSP}, s{sSP}, 1'); o(f's_cmp_lt_u32 s{sSP}, 0x10000'); o(f's_cbranch_scc1 {lr}')
lab(dr)
stamp(6)
def each_rec(fn):
    for p in range(8):
        for st in range(2):
            if st==1:
                l=U('st1'); o(f'v_cmp_lt_u32 vcc, 16, v{SG+2*p+1}'); o(f's_cbranch_vccz {l}')
            for i in range(2):
                rec=(RC0 if st==0 else RC1)+4*p+2*i
                o(f'v_cmpx_lt_u32 vcc, v{IX+2*st+i}, v{SG+2*p+1}')
                fn(rec, SA+4*p+2*st+i)
            o('s_mov_b64 exec, -1')
            if st==1: lab(l)
SD='dst_sel:DWORD dst_unused:UNUSED_PAD src0_sel:DWORD src1_sel:BYTE_0'
o('v_mov_b32 v22, 1'); o('v_mov_b32 v23, 64')
def f_hist(rec,sa):
    o(f'v_lshlrev_b32_sdwa v20, 2, v{rec} {SD}'); o(f'ds_add_rtn_u32 v{sa-SA+RKB}, v20, v22 offset:{DEG}')
each_rec(f_hist)
o('s_waitcnt lgkmcnt(0)')
lds_inc(C_E1,20)
stamp(7)
o(f's_cmp_lg_u32 s{sW}, 4')
o('s_cbranch_scc1 L_e_prefill')
lds_spin(C_E1,4,20)
D0,K0,P0=24,28,32
o('v_lshlrev_b32 v19, 2, v1')
for a in range(3): o(f'ds_read_b32 v{D0+a}, v19 offset:{DEG+a*256}')
perm=[]
for w in range(8): perm += ([w,w+4,11-w] if w<4 else [19-w,23-w]) if 'oldperm' not in OPT else ([w,15-w] + ([19-w] if w<4 else []))
o('v_mov_b32 v38, 31')
for i,g in enumerate(perm): o(f'v_writelane_b32 v38, {g}, {i}')
o('v_lshlrev_b32 v38, 2, v38')
o('v_sub_u32 v37, 252, v19')
o('s_waitcnt lgkmcnt(0)')
for a in range(3):
    o(f'v_min_u32 v{K0+a}, 63, v{D0+a}'); o(f'v_lshlrev_b32 v{K0+a}, 2, v{K0+a}')
    if a==2: o('v_cmpx_gt_u32 vcc, 32, v1')
    o(f'ds_add_rtn_u32 v{P0+a}, v{K0+a}, v22 offset:{HIST2}')
o('s_mov_b64 exec, -1')
o('s_waitcnt lgkmcnt(0)')
o(f'ds_read_b32 v36, v37 offset:{HIST2}')
for a in range(3): o(f'v_sub_u32 v{K0+a}, 252, v{K0+a}')
o('s_waitcnt lgkmcnt(0)')
o('v_mov_b32 v35, v36') if False else None
o('v_mov_b32 v39, v36')
scan64(36)
o('v_sub_u32 v36, v36, v39')
for a in range(3): o(f'ds_bpermute_b32 v{K0+a}, v{K0+a}, v36')
o('s_waitcnt lgkmcnt(0)')
for a in range(3):
    o(f'v_add_u32 v{P0+a}, v{P0+a}, v{K0+a}')
    o(f'v_add_u32 v21, {64*a}, v1')
    o(f'v_cmp_gt_u32 vcc, s{sNV}, v21')
    o(f'v_lshlrev_b32 v20, 3, v{P0+a}')
    o(f'v_lshrrev_b32 v{K0+a}, 3, v{P0+a}'); o(f'v_lshlrev_b32 v{K0+a}, 2, v{K0+a}')
    o('v_mov_b32 v40, 0x200000')
    o('v_and_b32 v43, 15, v21'); o('v_lshlrev_b32 v43, 4, v43'); o('v_lshl_add_u32 v43, v21, 9, v43')
    o('v_cndmask_b32 v42, v40, v21, vcc')
    if a==2: o('v_cmpx_gt_u32 vcc, 32, v1')
    o(f'ds_write_b64 v20, v[42:43] offset:{NODEOF}')
    o(f'ds_max_u32 v{K0+a}, v{D0+a} offset:{LG}')
o('s_mov_b64 exec, -1')
o('s_waitcnt lgkmcnt(0)')
o(f'ds_read_b32 v39, v38 offset:{LG}')
o('s_waitcnt lgkmcnt(0)')
o('v_add_u32 v39, 1, v39'); o('v_lshrrev_b32 v39, 1, v39')
o('v_mov_b32 v40, v39')
scan64(39)
o('v_sub_u32 v40, v39, v40')
o('v_lshlrev_b32 v40, 7, v40'); o(f'v_add_u32 v40, {ELL}, v40')
o(f'ds_write_b32 v38, v40 offset:{GBASE}')
o(f'v_readlane_b32 s{sA}, v39, 19')
o('s_waitcnt lgkmcnt(0)')
for a in range(3): o(f'ds_read_b32 v{K0+a}, v{K0+a} offset:{GBASE}')
o(f's_cmp_le_u32 s{sA}, {ELLB-4}')
l=U('fits'); o(f's_cbranch_scc1 {l}')
o('v_mov_b32 v21, 1'); o(f'ds_write_b32 v{VZ}, v21 offset:{C_FB}')
lab(l)
o('s_waitcnt lgkmcnt(0)')
for a in range(3):
    o(f'v_and_b32 v21, 7, v{P0+a}'); o(f'v_lshl_add_u32 v21, v21, 3, v{K0+a}')
    o(f'ds_write_b32 v19, v21 offset:{CUR+a*256}')
o('s_waitcnt lgkmcnt(0)')
lds_inc(C_SORT,20)
o('s_branch L_e_wait')
lab('L_e_prefill')
lds_spin(C_G,4,20)
o(f's_sub_u32 s{sA}, s{sW}, 5'); o(f's_lshl_b32 s{sA}, s{sA}, 10'); o(f's_add_u32 s{sA}, s{sA}, {ELL}')
o(f'v_lshlrev_b32 v20, 4, v1'); o(f'v_add_u32 v20, s{sA}, v20')
o(f'v_mov_b32 v24, {N*256}'); o('v_mov_b32 v25, 0'); o(f'v_mov_b32 v26, {N*256}'); o('v_mov_b32 v27, 0')
for i in range(12): o(f'ds_write_b128 v20, v[24:27] offset:{i*3072}')
o('s_waitcnt lgkmcnt(0)')
lds_inc(C_P,20)
lab('L_e_wait')
lds_spin(C_SORT,1,20)
lds_spin(C_P,3,20)
stamp(8)
o(f'ds_read_b32 v20, v{VZ} offset:{C_FB}'); o('s_waitcnt lgkmcnt(0)')
o(f'v_readfirstlane_b32 s{sA}, v20'); o(f's_cmp_lg_u32 s{sA}, 0'); o('s_cbranch_scc1 L_e_done')
def f_slot(rec,sa):
    o(f'v_lshlrev_b32_sdwa v20, 2, v{rec} {SD}'); o(f'ds_read_b32 v{sa}, v20 offset:{CUR}')
each_rec(f_slot)
o('s_waitcnt lgkmcnt(0)')
def f_put(rec,sa):
    o(f'v_lshl_add_u32 v{sa}, v{sa-SA+RKB}, 6, v{sa}'); o(f'v_and_b32 v{rec+1}, v24, v{rec+1}'); o(f'ds_write_b64 v{sa}, {vr(rec,2)}')
o('v_mov_b32 v24, 0xffff0000')
each_rec(f_put)
lab('L_e_done')
o('s_waitcnt lgkmcnt(0)')
stamp(9)
o(f's_cmp_lg_u32 s{sW}, 4')
o('s_cbranch_scc1 L_main_setup')
o('v_lshlrev_b32 v20, 4, v1')
o(f's_lshl_b32 s{sD}, s{sS}, 10'); o(f's_add_u32 s{sD}, s{sD}, {SEGT_FLAG2}')
o(f's_mov_b32 s{sSP}, 0')
lp=U('poll2'); dn=U('poll2d')
lab(lp)
o(f'buffer_load_dword v21, v20, {sr(rSEG,4)}, s{sD} offen sc1')
o('s_waitcnt vmcnt(0)')
o(f'v_cmp_ne_u32 vcc, s{sNONCE}, v21')
o(f's_cbranch_vccz {dn}')
o('s_sleep 2')
o(f's_add_u32 s{sSP}, s{sSP}, 1'); o(f's_cmp_lt_u32 s{sSP}, 0x10000'); o(f's_cbranch_scc1 {lp}')
lab(dn)
l=U('noep')
o('s_cmp_lg_u32 s2, 0'); o(f's_cbranch_scc1 {l}')
o('s_mov_b64 exec, 1')
o(f'v_mov_b32 v21, s{sNONCE}')
o(f'global_store_dword v{VZ}, v21, {sr(sEP,2)} sc1')
o('s_mov_b64 exec, -1')
lab(l)
LOFF,RP=2,3
S1A,S1B,S2A,S2B,ONE=4,8,12,16,20
WC=24; NUM=32; DEN=40; C=48; DX,DY=72,104; R0,R1=136,152
OFA,OFB,EA_,EB_,AD=168,170,172,174,176
lab('L_main_setup')
o('s_setprio 0')
stamp(10)
o(f'v_and_b32 v{LOFF}, 7, v1'); o(f'v_lshlrev_b32 v{LOFF}, 4, v{LOFF}')
o('v_bfe_u32 v196, v1, 3, 2'); o('v_bfe_u32 v197, v1, 2, 1'); o('v_lshrrev_b32 v198, 5, v1'); o('v_and_b32 v199, 3, v1')
o('v_cmp_eq_u32 vcc, v197, v198'); o('v_mov_b32 v195, 7'); o('v_and_b32 v193, 1, v196')
o('v_cndmask_b32 v199, v195, v199, vcc')
LO,HI=0x00003f80,0x3f800000
o('v_cmp_gt_u32 vcc, 2, v196'); o(f'v_mov_b32 v194, {LO:#x}'); o(f'v_mov_b32 v195, {HI:#x}')
o('v_cndmask_b32 v192, v194, v195, vcc')
o('v_cndmask_b32 v191, v195, v194, vcc')
o('v_lshl_add_u32 v199, v193, 3, v199')
for i in range(4):
    o(f'v_cmp_eq_u32 vcc, {i}, v199'); o(f'v_cmp_eq_u32 s[98:99], {8+i}, v199'); o('s_nop 0')
    o(f'v_cndmask_b32 v{S1A+i}, 0, v192, vcc'); o(f'v_cndmask_b32 v{S2A+i}, 0, v191, vcc')
    o(f'v_cndmask_b32 v{S1B+i}, 0, v192, s[98:99]'); o(f'v_cndmask_b32 v{S2B+i}, 0, v191, s[98:99]')
o('v_cmp_gt_u32 vcc, 32, v1')
for i in range(1,4): o(f'v_mov_b32 v{ONE+i}, 0')
o(f'v_cndmask_b32 v{ONE}, 0, v194, vcc')
for i in range(4):
    o(f'v_lshlrev_b32 v{WC+2*i}, 16, v{250+i}'); o(f'v_and_b32 v{WC+2*i+1}, 0xffff0000, v{250+i}')
for i in range(8): o(f'v_mul_f32 v{WC+i}, {NLOG2E:#x}, v{WC+i}')
for i in range(8):
    o(f'v_mov_b32 v{C+i}, 0'); o(f'v_mov_b32 v{C+16+i}, 0')
LOFF_=LOFF
sPAR,sNBT,sODD,sG1,sG2,sLN=97,47,96,46,13,14
NLN,LT,OA,AUN,XRN,UF,XF,VAUK,VKA,VOK=178,180,181,182,190,194,202,210,211,212
TM=214
o(f'v_add_u32 v{VAUK}, {AU}, v{LOFF}')
o(f'v_bfe_u32 v{TM}, v1, 1, 2'); o(f's_lshl_b32 s92, s{sS}, 3'); o(f'v_add_u32 v{TM}, s92, v{TM}'); o(f'v_lshlrev_b32 v{TM}, 4, v{TM}')
o(f'v_and_b32 v{TM+1}, 1, v1'); o(f'v_lshl_add_u32 v{VKA}, v{TM+1}, 3, v{TM}')
o(f's_lshl_b32 s92, s{sNB}, 9'); o(f's_lshl_b32 s93, s{sS}, 7'); o('s_add_u32 s92, s92, s93')
o(f'v_lshrrev_b32 v{TM}, 1, v{LOFF}'); o(f'v_add_u32 v{VOK}, s92, v{TM}')
o(f'v_lshrrev_b32 v{TM+2}, 3, v1'); o(f'v_lshlrev_b32 v{TM+2}, 3, v{TM+2}')
o(f's_sub_u32 s12, 19, s{sW}'); o(f's_cmp_lt_u32 s{sW}, 4'); o(f's_cselect_b32 s12, s{sW}, s12')
o(f's_add_u32 s{sG1}, s{sW}, 4'); o(f's_sub_u32 s92, 23, s{sW}'); o(f's_sub_u32 s{sG2}, 11, s{sW}')
o(f's_cmp_ge_u32 s{sW}, 4'); o(f's_cselect_b32 s{sG1}, s92, s{sG1}'); o(f's_cselect_b32 s{sG2}, -1, s{sG2}')
def node_prefetch(gs):
    o(f's_lshl_b32 s92, s{gs}, 6'); o(f'v_add_u32 v{TM}, s92, v{TM+2}'); o(f'ds_read_b64 {vr(NLN,2)}, v{TM} offset:{NODEOF}')
    o(f's_lshl_b32 s92, s{gs}, 2'); o(f'v_mov_b32 v{TM+1}, s92'); o(f'ds_read_b32 v{LT}, v{TM+1} offset:{LG}')
def raw_prefetch():
    o(f'v_lshl_add_u32 v{TM}, v{NLN}, 8, v{VAUK}')
    o(f'v_xor_b32 v{TM+1}, v{NLN+1}, v{VKA}'); o(f'v_xor_b32 v{TM+3}, 64, v{TM+1}')
    o(f'ds_read_b128 {vr(AUN,4)}, v{TM}'); o(f'ds_read_b128 {vr(AUN+4,4)}, v{TM} offset:128')
    o(f'ds_read_b64 {vr(XRN,2)}, v{TM+1} offset:{XT}'); o(f'ds_read_b64 {vr(XRN+2,2)}, v{TM+3} offset:{XT}')
o(f's_xor_b32 s15, s{sR}, 1'); o(f's_mul_i32 s15, s15, {RN*256}'); o(f's_mul_i32 s92, s{sW}, 5120'); o('s_add_u32 s15, s15, s92')
o(f'v_lshlrev_b32 v{TM+4}, 4, v1')
o('s_waitcnt vmcnt(0) lgkmcnt(0)')
o('s_barrier')
stamp(11)
if 'xE' in OPT: o('s_branch L_done')
if 'pre2' in OPT:
    for i in range(5):
        o(f'buffer_load_dwordx4 v[232:235], v{TM+4}, {sr(rTR,4)}, s15 offen sc1')
        o('s_add_u32 s15, s15, 1024')
o(f'ds_read_b32 v{TM+5}, v{VZ} offset:{C_FB}')
o(f's_lshl_b32 s{sA}, s12, 2'); o(f'v_mov_b32 v{TM+6}, s{sA}'); o(f'ds_read_b32 v{RP}, v{TM+6} offset:{GBASE}')
node_prefetch(12)
l=U('ap'); o(f's_cmp_ge_u32 s{sW}, 4'); o(f's_cbranch_scc1 {l}'); o('s_setprio 1'); lab(l)
o('s_waitcnt lgkmcnt(0)')
o(f'v_readfirstlane_b32 s{sA}, v{TM+5}'); o(f's_cmp_lg_u32 s{sA}, 0'); o('s_cbranch_scc1 L_fallback')
o(f'v_add_u32 v{RP}, v{RP}, v{TM+2}')
o(f'v_readfirstlane_b32 s{sLN}, v{LT}')
def mfma(d,a,b,c): o(f'v_mfma_f32_32x32x16_bf16 {vr(d,16)}, {vr(a,4)}, {vr(b,4)}, {c}')
def unpack_list(D,R):
    f=lambda d,a,b,c: f'v_mfma_f32_32x32x16_bf16 {vr(d,16)}, {vr(a,4)}, {vr(b,4)}, {c}'
    return [f(D,S1A,R,vr(C,16)), f(D,S1B,R+4,vr(D,16)), f(D+16,S2A,R+8,vr(C+8,16)), f(D+16,S2B,R+12,vr(D+16,16))]
def gfma(D,Er):
    for sl in range(2):
        for j in range(4):
            g=D+8+8*sl+2*j
            sel='op_sel:[0,0,0] op_sel_hi:[0,1,1]' if sl==0 else 'op_sel:[1,0,0] op_sel_hi:[1,1,1]'
            o(f'v_pk_fma_f32 {vr(g,2)}, {vr(Er,2)}, {vr(WC+2*j,2)}, {vr(g,2)} {sel}')
def loads(R,OF):
    o(f'v_and_or_b32 v{AD}, v{OF}, s{sM}, v{LOFF}'); o(f'v_and_or_b32 v{AD+1}, v{OF+1}, s{sM}, v{LOFF}')
    o(f'buffer_load_dwordx4 {vr(R,4)}, v{AD}, {sr(rTR,4)}, 0 offen sc1')
    o(f'buffer_load_dwordx4 {vr(R+4,4)}, v{AD}, {sr(rTR,4)}, 0 offen offset:128 sc1')
    o(f'buffer_load_dwordx4 {vr(R+8,4)}, v{AD+1}, {sr(rTR,4)}, 0 offen sc1')
    o(f'buffer_load_dwordx4 {vr(R+12,4)}, v{AD+1}, {sr(rTR,4)}, 0 offen offset:128 sc1')
def rd_off(dst,b): o(f'ds_read2_b32 {vr(dst,2)}, v{RP} offset0:{b*32} offset1:{b*32+16}')
def rd_e(dst,b): o(f'ds_read2_b32 {vr(dst,2)}, v{RP} offset0:{b*32+1} offset1:{b*32+17}')
def dsreads(P):
    OFn=OFB if P==0 else OFA; En=EB_ if P==0 else EA_
    rd_off(OFn,P+3); rd_e(En,P+1)
    if P==1: o(f'v_add_u32 v{RP}, 256, v{RP}')
def accum(D):
    for sl in range(2):
        for j in range(4):
            g=D+8+8*sl+2*j
            o(f'v_pk_add_f32 {vr(DEN+2*j,2)}, {vr(DEN+2*j,2)}, {vr(g,2)}')
            v=(D+2*j) if sl==0 else (D+24+2*j)
            o(f'v_pk_fma_f32 {vr(NUM+2*j,2)}, {vr(g,2)}, {vr(v,2)}, {vr(NUM+2*j,2)}')
Ds=[DX,DY]; Rs=[R0,R1]; OFs=[OFA,OFB]; Es=[EA_,EB_]
rd_off(OFA,0); rd_off(OFB,1)
raw_prefetch()
o('s_waitcnt lgkmcnt(4)')
loads(R0,OFA); loads(R1,OFB)
rd_off(OFA,2); rd_e(EA_,0)
o(f's_mov_b32 s{sPAR}, 0')
if PROF: o('s_mov_b32 s3, 0')
lab('L_group')
o(f's_min_u32 s{sLN}, s{sLN}, {2*ELLB}')
o(f's_and_b32 s{sODD}, s{sLN}, 1'); o(f's_add_u32 s{sNBT}, s{sLN}, 1'); o(f's_lshr_b32 s{sNBT}, s{sNBT}, 1')
o(f'v_lshl_add_u32 v{OA}, v{NLN}, 9, v{VOK}')
mfma(NUM,C,C,'0')
o('s_waitcnt lgkmcnt(0)')
for i in range(8): o(f'v_lshlrev_b32 v{C+8+i}, 16, v{AUN+i}')
l=U('nonext')
o(f's_cmp_eq_u32 s{sG1}, -1'); o(f's_cbranch_scc1 {l}')
node_prefetch(sG1)
lab(l)
for i in range(8): o(f'v_and_b32 v{UF+i}, 0xffff0000, v{AUN+i}')
for i in range(4):
    o(f'v_lshlrev_b32 v{XF+2*i}, 16, v{XRN+i}'); o(f'v_and_b32 v{XF+2*i+1}, 0xffff0000, v{XRN+i}')
if PROF:
    o(f's_memtime s[100:101]'); o('s_waitcnt lgkmcnt(0)')
    o(f's_add_u32 m0, s3, 36'); o('s_nop 3'); o('v_writelane_b32 v255, s100, m0')
    o(f's_add_u32 m0, s3, 60'); o('s_nop 3'); o(f'v_writelane_b32 v255, s{sLN}, m0')
o(f's_cmp_eq_u32 s{sNBT}, 0'); o('s_cbranch_scc1 L_epi')
o(f's_cmp_eq_u32 s{sPAR}, 1'); o('s_cbranch_scc1 L_gs1')
def exps(D): return [f'v_exp_f32 v{D+8+i}, v{D+8+i}' for i in range(16)]
def rcps(D): return [f'v_rcp_f32 v{D+8+i}, v{D+8+i}' for i in range(16)]
for P in range(2):
    lab(f'L_gs{P}')
    o('s_waitcnt vmcnt(4)')
    for t in unpack_list(Ds[P],Rs[P]): o(t)
    o('s_waitcnt lgkmcnt(0)')
    loads(Rs[P],OFs[P])
    dsreads(P)
    o('s_nop 7')
    gfma(Ds[P],Es[P])
    o(f's_branch L_body{P}')
for P in range(2):
    Q=P^1
    lab(f'L_body{P}')
    o(f's_sub_u32 s{sNBT}, s{sNBT}, 1'); o(f's_cmp_eq_u32 s{sNBT}, 0'); o(f's_cbranch_scc1 L_last{P}')
    ex=exps(Ds[P]); un=unpack_list(Ds[Q],Rs[Q])
    o('s_waitcnt vmcnt(4)')
    for k in range(4):
        o(un[k])
        for t in ex[4*k:4*k+4]: o(t)
    o('s_nop 1')
    mfma(Ds[P]+8,ONE,ONE,vr(Ds[P]+8,16))
    o('s_waitcnt lgkmcnt(0)')
    loads(Rs[Q],OFs[Q])
    o('s_nop 2')
    dsreads(Q)
    for t in rcps(Ds[P]): o(t)
    gfma(Ds[Q],Es[Q])
    accum(Ds[P])
    if P==1: o('s_branch L_body0')
for P in range(2):
    lab(f'L_last{P}')
    D=Ds[P]
    o(f's_cmp_eq_u32 s{sODD}, 1'); o(f's_cbranch_scc1 L_half{P}')
    for t in exps(D): o(t)
    o('s_nop 1')
    mfma(D+8,ONE,ONE,vr(D+8,16))
    o('s_nop 7'); o('s_nop 3')
    for t in rcps(D): o(t)
    accum(D)
    o(f's_mov_b32 s{sPAR}, {P^1}')
    o('s_branch L_epi')
    lab(f'L_half{P}')
    for t in exps(D)[:8]: o(t)
    for j in range(4): o(f'v_pk_add_f32 {vr(D+8+2*j,2)}, {vr(D+8+2*j,2)}, 1.0 op_sel_hi:[1,0]')
    for t in rcps(D)[:8]: o(t)
    for j in range(4):
        g=D+8+2*j
        o(f'v_pk_add_f32 {vr(DEN+2*j,2)}, {vr(DEN+2*j,2)}, {vr(g,2)}')
        o(f'v_pk_fma_f32 {vr(NUM+2*j,2)}, {vr(g,2)}, {vr(D+2*j,2)}, {vr(NUM+2*j,2)}')
    o(f's_mov_b32 s{sPAR}, {P^1}')
    if P==0: o('s_branch L_epi')
lab('L_epi')
if PROF:
    o(f's_memtime s[100:101]'); o('s_waitcnt lgkmcnt(0)')
    o(f's_add_u32 m0, s3, 40'); o('s_nop 3'); o('v_writelane_b32 v255, s100, m0')
l=U('nonext2')
o(f's_cmp_eq_u32 s{sG1}, -1'); o(f's_cbranch_scc1 {l}')
o('s_waitcnt lgkmcnt(0)')
o(f'v_readfirstlane_b32 s{sLN}, v{LT}')
raw_prefetch()
lab(l)
o('s_mov_b32 s92, 0x358637bd'); o('s_mov_b32 s93, 0x358637bd')
for j in range(4): o(f'v_pk_add_f32 {vr(DEN+2*j,2)}, {vr(DEN+2*j,2)}, s[92:93]')
for i in range(8): o(f'v_rcp_f32 v{DEN+i}, v{DEN+i}')
o('s_nop 0')
for j in range(4): o(f'v_pk_fma_f32 {vr(UF+2*j,2)}, {vr(NUM+2*j,2)}, {vr(DEN+2*j,2)}, {vr(UF+2*j,2)}')
for i in range(8): o(f'v_max_f32 v{UF+i}, 0, v{UF+i}')
for j in range(4): o(f'v_pk_add_f32 {vr(UF+2*j,2)}, {vr(UF+2*j,2)}, {vr(XF+2*j,2)}')
for i in range(4): o(f'v_cvt_pk_bf16_f32 v{UF+i}, v{UF+2*i}, v{UF+2*i+1}')
o(f'buffer_store_dwordx2 {vr(UF,2)}, v{OA}, {sr(rOUT,4)}, 0 offen')
o(f'buffer_store_dwordx2 {vr(UF+2,2)}, v{OA}, {sr(rOUT,4)}, 0 offen offset:64')
if PROF:
    o(f's_memtime s[100:101]'); o('s_waitcnt lgkmcnt(0)')
    o(f's_add_u32 m0, s3, 56'); o('s_nop 3'); o('v_writelane_b32 v255, s100, m0')
    o('s_add_u32 s3, s3, 1')
o(f's_cmp_eq_u32 s{sG1}, -1'); o('s_cbranch_scc1 L_done')
o(f's_mov_b32 s{sG1}, s{sG2}'); o(f's_mov_b32 s{sG2}, -1')
o('s_branch L_group')
lab('L_done')
stamp(12)
if PROF:
    o('s_waitcnt vmcnt(0)')
    srd_off(92,sWS,WS_PROF,0x100000)
    o(f's_lshl_b32 s96, s2, 3'); o(f's_add_u32 s96, s96, s{sW}'); o('s_lshl_b32 s96, s96, 8')
    o('v_lshlrev_b32 v2, 2, v1')
    o('buffer_store_dword v255, v2, s[92:95], s96 offen')
o('s_endpgm')
lab('L_codeend')
lab('L_fallback')
FN,FD,FA,FU,FW=10,11,12,13,14
o('v_lshlrev_b32 v5, 2, v1')
o(f's_lshl_b32 s92, s{sS}, 7')
o('v_lshlrev_b32 v6, 1, v1'); o(f'v_add_u32 v6, s92, v6')
srd(64,sWC,512)
o(f'buffer_load_ushort v{FW}, v6, s[64:67], 0 offen')
o('s_waitcnt vmcnt(0)')
o(f'v_lshlrev_b32 v{FW}, 16, v{FW}'); o(f'v_mul_f32 v{FW}, {NLOG2E:#x}, v{FW}')
o(f's_mov_b32 s46, s{sW}')
lab('L_fb_node')
o(f's_cmp_ge_u32 s46, s{sNV}'); o('s_cbranch_scc1 L_fb_end')
o(f's_lshl_b32 s92, s46, 8'); o(f's_add_u32 s92, s92, {AU}'); o(f'v_add_u32 v7, s92, v5'); o('ds_read_b32 v8, v7')
o('s_waitcnt lgkmcnt(0)')
o(f'v_lshlrev_b32 v{FA}, 16, v8'); o(f'v_and_b32 v{FU}, 0xffff0000, v8')
o(f'v_mov_b32 v{FN}, 0'); o(f'v_mov_b32 v{FD}, 0')
o(f's_add_u32 s47, s46, s{sNB}')
o('s_mov_b32 s93, 0')
lab('L_fb_e')
o('v_add_u32 v7, s93, v1'); o('v_lshlrev_b32 v8, 2, v7'); o('v_lshlrev_b32 v7, 1, v7')
o(f'buffer_load_dword v15, v8, {sr(rDST,4)}, 0 offen')
o(f'buffer_load_dword v16, v8, {sr(rSRC,4)}, 0 offen')
o(f'buffer_load_ushort v17, v7, {sr(rEA,4)}, 0 offen')
o('s_waitcnt vmcnt(0)')
o('v_cmp_eq_u32 vcc, s47, v15')
o('s_mov_b64 s[94:95], vcc')
lab('L_fb_m')
o('s_cmp_eq_u64 s[94:95], 0'); o('s_cbranch_scc1 L_fb_next')
o('s_ff1_i32_b64 s96, s[94:95]')
o('s_bitset0_b64 s[94:95], s96')
o('v_readlane_b32 s97, v16, s96'); o('v_readlane_b32 s92, v17, s96')
o('s_nop 1')
o('s_lshl_b32 s97, s97, 8'); o('s_lshl_b32 s92, s92, 16')
o('s_nop 4')
o(f'buffer_load_dword v18, v5, {sr(rTR,4)}, s97 offen sc1')
o('s_waitcnt vmcnt(0)')
o('v_lshlrev_b32 v19, 16, v18'); o('v_and_b32 v18, 0xffff0000, v18')
o(f'v_add_f32 v19, v19, v{FA}'); o(f'v_fmac_f32 v19, s92, v{FW}')
o('v_exp_f32 v19, v19'); o('s_nop 0'); o('v_add_f32 v19, 1.0, v19'); o('v_rcp_f32 v19, v19'); o('s_nop 0')
o(f'v_add_f32 v{FD}, v{FD}, v19'); o(f'v_fmac_f32 v{FN}, v19, v18')
o('s_branch L_fb_m')
lab('L_fb_next')
o('s_add_u32 s93, s93, 64'); o(f's_cmp_lt_u32 s93, {E}'); o('s_cbranch_scc1 L_fb_e')
o('s_mov_b32 s92, 0x358637bd')
o(f'v_add_f32 v{FD}, s92, v{FD}'); o(f'v_rcp_f32 v{FD}, v{FD}'); o('s_nop 0')
o(f'v_fmac_f32 v{FU}, v{FN}, v{FD}'); o(f'v_max_f32 v{FU}, 0, v{FU}')
o('s_lshl_b32 s92, s47, 9')
o(f'buffer_load_ushort v18, v6, {sr(rX,4)}, s92 offen')
o('s_waitcnt vmcnt(0)')
o(f'v_lshlrev_b32 v18, 16, v18'); o(f'v_add_f32 v{FU}, v{FU}, v18')
o(f'v_cvt_pk_bf16_f32 v18, v{FU}, v{FU}')
o(f'buffer_store_short v18, v6, {sr(rOUT,4)}, s92 offen')
o('s_add_u32 s46, s46, 8'); o('s_branch L_fb_node')
lab('L_fb_end')
lab('L_end')
o('s_endpgm')
L=[x for x in L if x is not None]
hdr=open('gather_scatter__edge_featured_mpnn_gatedgcn__graph.s.ref').read().split('; Override')[0]
out=hdr+f'''; Generated by dev/gen2.py (hand-written generator). One fused persistent launch, 1 workgroup per CU.
; @launch grid=(256,1,1) block=(512,1,1) lds={LDS_TOTAL}
.amdgcn_target "amdgcn-amd-amdhsa--gfx950"
.text
.globl {NAME}
.p2align 8
.type {NAME},@function
'''+'\n'.join(L)+f'''
.section .rodata,"a"
.p2align 6
.amdhsa_kernel {NAME}
  .amdhsa_next_free_vgpr 256
  .amdhsa_next_free_sgpr 102
  .amdhsa_accum_offset 256
  .amdhsa_group_segment_fixed_size 0
  .amdhsa_kernarg_size 96
  .amdhsa_user_sgpr_count 2
  .amdhsa_user_sgpr_kernarg_segment_ptr 1
  .amdhsa_system_sgpr_workgroup_id_x 1
.end_amdhsa_kernel
'''
fn=[a for a in sys.argv[1:] if not a.startswith('--')]
open(fn[0] if fn else 'k.s','w').write(out)
```

```python
import sys
NAME='gather_scatter__edge_featured_mpnn_gatedgcn__graph_kernel'
PROF = '--prof' in sys.argv
OPT = {a.split('=')[0][2:]:(a.split('=')[1] if '=' in a else '1') for a in sys.argv[1:] if a.startswith('--')}
N=10000; E=160000; RN=157; CH=625; CHCAP=704
SLICE=10240*256
WS_RECS=0xA00000; WS_SEGT=0xB80000; SEGT_FLAG2=0x20000; WS_EPOCH=0xBB0000; WS_PROF=0xC00000
HIST1=0; DEG=256; HIST2=1024; LG=1280; GBASE=1408; CUR=1536; NODEOF=2304; CNT=3840
C_W=CNT; C_G=CNT+4; C_T=CNT+8; C_E1=CNT+12; C_SORT=CNT+16; C_P=CNT+20; C_FB=CNT+24; C_X=CNT+28; C_G1=CNT+32; C_H=CNT+36; C_R=CNT+40; C_X2=CNT+44; C_S=CNT+48; C_RL=CNT+52; C_X1=CNT+56
XT=4096; WR=XT+81920; AU=WR; ELL=WR+40960; ELLB=288
LDS_TOTAL=163840
RST=WR+65536
assert ELL+ELLB*128==LDS_TOTAL
NLOG2E=0xbfb8aa3b
sEP=4
sI,sROT,sTL,sWROT=6,7,8,9
sM=10
sX,sEA,sSRC,sDST,sWA,sWB,sWC,sWU=16,18,20,22,24,26,28,30
sWV,sOUT,sDBG,sWS=32,34,36,38
sW,sS,sR,sNONCE,sNB,sNV=40,41,42,43,44,45
rX,rDST,rSRC,rEA,rW1,rW2,rTW,rTR,rREC,rSEG,rOUT=48,52,56,60,64,68,72,76,80,84,88
sA,sB,sC_,sD,sSP=92,93,94,95,96
L=[]
def o(t): L.append('  '+t)
def lab(t): L.append(t+':')
def vr(a,n): return f'v[{a}:{a+n-1}]' if n>1 else f'v{a}'
def sr(a,n): return f's[{a}:{a+n-1}]'
uid=[0]
def U(p):
    uid[0]+=1; return f'L_{p}_{uid[0]}'
def srd(r,base,size):
    o(f's_mov_b32 s{r}, s{base}'); o(f's_mov_b32 s{r+1}, s{base+1}')
    o(f's_mov_b32 s{r+2}, {size}'); o(f's_mov_b32 s{r+3}, 0x20000')
def srd_off(r,base,off,size):
    o(f's_add_u32 s{r}, s{base}, {off}'); o(f's_addc_u32 s{r+1}, s{base+1}, 0')
    o(f's_mov_b32 s{r+2}, {size}'); o(f's_mov_b32 s{r+3}, 0x20000')
def stamp(idx):
    if not PROF: return
    o(f's_memrealtime s[100:101]'); o('s_waitcnt lgkmcnt(0)'); o(f'v_writelane_b32 v255, s100, {idx}')
    o(f's_memtime s[100:101]'); o('s_waitcnt lgkmcnt(0)'); o(f'v_writelane_b32 v255, s100, {idx+32}')
VZ=248
def lds_spin(addr, need, vtmp):
    l=U('spin'); d=U('spind')
    o(f's_mov_b32 s{sSP}, 0')
    lab(l)
    o(f'ds_read_b32 v{vtmp}, v{VZ} offset:{addr}')
    o('s_waitcnt lgkmcnt(0)')
    o(f'v_readfirstlane_b32 s{sA}, v{vtmp}')
    o(f's_add_u32 s{sSP}, s{sSP}, 1')
    o(f's_cmp_ge_u32 s{sA}, {need}')
    o(f's_cbranch_scc1 {d}')
    o('s_sleep 1')
    o(f's_cmp_lt_u32 s{sSP}, 0x40000')
    o(f's_cbranch_scc1 {l}')
    lab(d)
def lds_inc(addr, vtmp, ret=False):
    o(f'v_mov_b32 v{vtmp}, 1')
    o('s_mov_b64 exec, 1')
    if ret:
        o(f'ds_add_rtn_u32 v{vtmp}, v{VZ}, v{vtmp} offset:{addr}')
        o('s_waitcnt lgkmcnt(0)')
        o(f'v_readfirstlane_b32 s{sA}, v{vtmp}')
    else:
        o(f'ds_add_u32 v{VZ}, v{vtmp} offset:{addr}')
    o('s_mov_b64 exec, -1')
def scan64(v):
    for sh in (1,2,4,8):
        o('s_nop 1'); o(f'v_add_u32_dpp v{v}, v{v}, v{v} row_shr:{sh} row_mask:0xf bank_mask:0xf')
    o('s_nop 1'); o(f'v_add_u32_dpp v{v}, v{v}, v{v} row_bcast:15 row_mask:0xa bank_mask:0xf')
    o('s_nop 1'); o(f'v_add_u32_dpp v{v}, v{v}, v{v} row_bcast:31 row_mask:0xc bank_mask:0xf')
    o('s_nop 1')
lab(NAME)
o('s_cmp_ge_u32 s2, 256')
o('s_cbranch_scc1 L_end')
o('s_load_dwordx16 s[16:31], s[0:1], 0')
o('s_load_dwordx8 s[32:39], s[0:1], 64')
o('v_and_b32 v1, 63, v0')
o('v_lshrrev_b32 v2, 6, v0')
o(f'v_mov_b32 v{VZ}, 0')
o(f'v_readfirstlane_b32 s{sW}, v2')
o('s_getpc_b64 s[12:13]')
lab('L_pc')
if 'nopf' not in OPT:
    o(f's_cmp_lg_u32 s{sW}, 7'); o('s_cbranch_scc1 L_nopf')
    o('s_lshr_b32 s3, s2, 3'); o('s_lshl_b32 s3, s3, 10')
    o('v_lshl_add_u32 v2, v1, 4, s3')
    o('v_cmp_gt_u32 vcc, L_codeend-L_pc-16, v2')
    o('s_and_saveexec_b64 s[98:99], vcc')
    o('s_cbranch_execz L_nopf2')
    o('global_load_dwordx4 v[240:243], v2, s[12:13]')
    lab('L_nopf2')
    o('s_mov_b64 exec, -1')
    lab('L_nopf')
o('v_lshlrev_b32 v17, 3, v0'); o('v_mov_b32 v20, 0'); o('v_mov_b32 v21, 0')
o('ds_write_b64 v17, v[20:21]')
o(f's_and_b32 s{sS}, s2, 7'); o(f's_lshr_b32 s{sS}, s{sS}, 1')
o(f's_lshr_b32 s{sR}, s2, 3'); o(f's_lshl_b32 s{sR}, s{sR}, 1'); o(f's_and_b32 s{sA}, s2, 1'); o(f's_or_b32 s{sR}, s{sR}, s{sA}')
o(f's_mul_i32 s{sNB}, s{sR}, {RN}')
o(f's_sub_u32 s{sNV}, {N}, s{sNB}'); o(f's_min_u32 s{sNV}, s{sNV}, {RN}')
if PROF: o('v_mov_b32 v255, 0')
for _v in (56,57,58,59,60,61,62,63,240,241,242,243): o(f'v_mov_b32 v{_v}, 0')
o(f's_mul_i32 s{sROT}, s{sS}, 5'); o(f's_add_u32 s{sROT}, s{sROT}, 1'); o(f's_lshr_b32 s{sROT}, s{sROT}, 1')
o(f's_lshr_b32 s{sWROT}, s2, 3')
o(f's_mov_b32 s{sM}, 0xffffff00')
def build_common():
    srd(rOUT,sOUT,N*512)
    o(f's_mul_i32 s{sA}, s{sS}, {SLICE}')
    o(f's_add_u32 s{rTW}, s{sWS}, s{sA}'); o(f's_addc_u32 s{rTW+1}, s{sWS+1}, 0')
    o(f's_add_u32 s{sA}, s{sNB}, s{sNV}'); o(f's_lshl_b32 s{rTW+2}, s{sA}, 8'); o(f's_mov_b32 s{rTW+3}, 0x20000')
    o(f's_mov_b32 s{rTR}, s{rTW}'); o(f's_mov_b32 s{rTR+1}, s{rTW+1}'); o(f's_mov_b32 s{rTR+2}, {(N+1)*256}'); o(f's_mov_b32 s{rTR+3}, 0x20000')
    srd_off(rSEG,sWS,WS_SEGT,0x21000)
    o(f's_add_u32 s{sEP}, s{sWS}, {WS_EPOCH}'); o(f's_addc_u32 s{sEP+1}, s{sWS+1}, 0')
    o(f's_load_dword s{sNONCE}, {sr(sEP,2)}, 0')
def wc_load():
    o('v_and_b32 v17, 7, v1'); o('v_lshlrev_b32 v17, 3, v17')
    o(f's_lshl_b32 s{sA}, s{sS}, 7'); o(f'v_add_u32 v17, s{sA}, v17')
    srd(rREC,sWC,512)
    o(f'buffer_load_dwordx2 v[250:251], v17, {sr(rREC,4)}, 0 offen')
    o(f'buffer_load_dwordx2 v[252:253], v17, {sr(rREC,4)}, 0 offen offset:64')
def wvoff(dst, wexpr_s):
    o('v_lshrrev_b32 v17, 3, v1')
    o(f's_lshl_b32 s{sA}, s{wexpr_s}, 3'); o(f'v_add_u32 v17, s{sA}, v17')
    o('v_bfe_u32 v20, v1, 4, 1')
    o(f's_and_b32 s{sA}, s{wexpr_s}, 1'); o(f's_lshl_b32 s{sA}, s{sA}, 1'); o(f'v_or_b32 v20, s{sA}, v20')
    o('v_bfe_u32 v19, v1, 1, 2'); o('v_xor_b32 v19, v19, v20'); o('v_lshlrev_b32 v19, 1, v19')
    o('v_and_b32 v20, 1, v1'); o('v_or_b32 v19, v19, v20')
    o('v_lshlrev_b32 v19, 4, v19'); o('v_lshl_add_u32 v19, v17, 9, v19')
    o(f's_lshl_b32 s{sA}, s{sS}, 7'); o(f'v_add_u32 v{dst}, s{sA}, v19')
o(f's_cmp_ge_u32 s{sW}, 4')
o('s_cbranch_scc1 L_e0')
o('v_lshrrev_b32 v17, 5, v1')
o(f's_lshl_b32 s{sA}, s{sW}, 1'); o(f'v_add_u32 v17, s{sA}, v17')
o('v_and_b32 v18, 31, v1'); o('v_and_b32 v19, 15, v17'); o('v_xor_b32 v22, v18, v19')
o('v_lshlrev_b32 v22, 4, v22'); o('v_lshl_add_u32 v22, v17, 9, v22')
o('v_add_u32 v17, 8, v17'); o('v_and_b32 v19, 15, v17'); o('v_xor_b32 v23, v18, v19')
o('v_lshlrev_b32 v23, 4, v23'); o('v_lshl_add_u32 v23, v17, 9, v23')
wvoff(249,sW)
o('s_waitcnt lgkmcnt(0)')
o('s_barrier')
stamp(0)
if 'stlb' in OPT:
    def touch(base, off_s=None, off_i=0):
        if off_s is None and off_i==0:
            o(f's_load_dword s13, {sr(base,2)}, 0'); return
        if off_s is not None:
            o(f's_add_u32 s14, s{base}, s{off_s}'); o(f's_addc_u32 s15, s{base+1}, 0')
            if off_i: o(f's_add_u32 s14, s14, {off_i}'); o('s_addc_u32 s15, s15, 0')
        else:
            o(f's_add_u32 s14, s{base}, {off_i}'); o(f's_addc_u32 s15, s{base+1}, 0')
        o('s_load_dword s13, s[14:15], 0')
    o(f's_lshl_b32 s3, s{sNB}, 9')
    touch(sX,3); touch(sWB); touch(sWV); touch(sWA); touch(sWU); touch(sOUT,3)
    touch(sWS,None,WS_RECS)
    o(f's_mul_i32 s3, s{sS}, {SLICE}')
    touch(sWS,3); touch(sWS,3,0x100000); touch(sWS,3,0x200000); touch(sWS,3,SLICE-256)
wc_load()
srd(rX,sX,N*512); srd(rW1,sWB,131072); srd(rW2,sWV,131072)
o(f's_lshl_b32 s{sC_}, s{sW}, 10')
o(f's_mov_b32 s{sTL}, s{sROT}')
o(f's_mov_b32 s{sI}, 0')
lab('L_dmaw')
o(f's_add_u32 s{sA}, s{sI}, s{sWROT}'); o(f's_and_b32 s{sA}, s{sA}, 7')
o(f's_lshl_b32 s{sB}, s{sA}, 14'); o(f's_lshl_b32 s{sA}, s{sA}, 12'); o(f's_add_u32 s{sA}, s{sA}, s{sC_}')
o(f's_add_u32 m0, s{sA}, {WR}'); o('s_nop 0')
o(f'buffer_load_dwordx4 v249, {sr(rW1,4)}, s{sB} offen lds')
o(f's_add_u32 m0, s{sA}, {WR+32768}'); o('s_nop 0')
o(f'buffer_load_dwordx4 v249, {sr(rW2,4)}, s{sB} offen lds')
o('s_waitcnt vmcnt(%s)' % OPT.get('pace','8'))
o(f's_add_u32 s{sI}, s{sI}, 1'); o(f's_cmp_lt_u32 s{sI}, 8'); o('s_cbranch_scc1 L_dmaw')
def xloop(lo,hi,name):
    o(f's_mov_b32 s{sI}, {lo}')
    lab(name)
    o(f's_lshr_b32 s{sTL}, s{sI}, 1'); o(f's_and_b32 s{sA}, s{sI}, 1'); o(f's_mul_i32 s{sA}, s{sA}, 5'); o(f's_add_u32 s{sTL}, s{sTL}, s{sA}')
    o(f's_lshl_b32 s{sA}, s{sTL}, 13'); o(f's_add_u32 s{sD}, s{sA}, s{sC_}'); o(f's_add_u32 m0, s{sD}, {XT}')
    o(f's_lshl_b32 s{sB}, s{sNB}, 9'); o(f's_add_u32 s{sB}, s{sB}, s{sA}')
    o(f'buffer_load_dwordx4 v22, {sr(rX,4)}, s{sB} offen lds')
    o(f's_add_u32 m0, s{sD}, {XT+4096}'); o('s_nop 0')
    o(f'buffer_load_dwordx4 v23, {sr(rX,4)}, s{sB} offen lds')
    o('s_waitcnt vmcnt(%s)' % OPT.get('pace','8'))
    o(f's_add_u32 s{sI}, s{sI}, 1'); o(f's_cmp_lt_u32 s{sI}, {hi}'); o(f's_cbranch_scc1 {name}')
xloop(0,4,'L_dmax1')
stamp(19)
build_common()
srd(rDST,sDST,E*4); srd(rSRC,sSRC,E*4); srd(rEA,sEA,E*2); srd_off(rREC,sWS,WS_RECS,256*CHCAP*8)
WF,AF,ACC,XA,XC,TRA,TOF,AUA=64,192,224,56,60,240,241,242
o(f's_and_b32 s{sD}, s{sW}, 1'); o(f's_lshl_b32 s{sD}, s{sD}, 1')
o('v_lshrrev_b32 v17, 4, v1')
o('v_bfe_u32 v18, v1, 2, 2')
o('v_lshl_add_u32 v19, v17, 3, v18')
o('v_lshlrev_b32 v19, 7, v19')
o('v_bfe_u32 v20, v1, 3, 1')
o('v_and_b32 v21, 1, v17'); o('v_lshl_or_b32 v20, v21, 1, v20')
o(f'v_xor_b32 v20, s{sD}, v20')
o('v_and_b32 v21, 3, v1'); o('v_lshl_add_u32 v19, v21, 3, v19'); o(f'v_add_u32 v19, {WR}, v19')
o(f'v_lshl_add_u32 v{TRA}, v20, 5, v19')
o('v_xor_b32 v20, 1, v20'); o(f'v_lshl_add_u32 v{TRA+3}, v20, 5, v19')
def wfrags():
    for m in range(2):
        for t in range(2):
            for ks in range(8):
                r=WF+64*m+32*t+4*ks; a=TRA if t==0 else TRA+3
                o(f'ds_read_b64_tr_b16 {vr(r,2)}, v{a} offset:{m*32768+ks*4096}')
                o(f'ds_read_b64_tr_b16 {vr(r+2,2)}, v{a} offset:{m*32768+ks*4096+512}')
o('v_and_b32 v18, 15, v1')
for k in range(4):
    o(f'v_and_b32 v19, 12, v18'); o(f'v_xor_b32 v19, {4*k}, v19')
    o('v_and_b32 v20, 3, v18'); o('v_xor_b32 v20, v20, v17')
    o('v_add_u32 v19, v19, v20'); o('v_lshlrev_b32 v19, 4, v19')
    o(f'v_lshl_add_u32 v{XA+k}, v18, 9, v19')
    o(f'v_add_u32 v{XA+k}, {XT}, v{XA+k}')
o('v_lshlrev_b32 v19, 10, v17')
o(f's_lshl_b32 s{sA}, s{sD}, 6')
o('v_lshl_add_u32 v19, v18, 2, v19'); o(f'v_add_u32 v{TOF}, s{sA}, v19')
o(f's_lshr_b32 s{sROT}, s{sW}, 1'); o(f's_mul_i32 s{sROT}, s{sROT}, 5')

o('s_waitcnt vmcnt(8) lgkmcnt(0)')
o(f's_mul_i32 s{sNONCE}, s{sNONCE}, 0x9E3779B1'); o(f's_add_u32 s{sNONCE}, s{sNONCE}, 0x7F4A7C15')
lds_inc(C_X,244)
lds_spin(C_X,4,244)
stamp(2)
wfrags()
o('s_waitcnt lgkmcnt(0)')
o(f's_lshl_b32 s{sC_}, s{sW}, 10')
lds_inc(C_W,244)
lds_spin(C_W,4,244)
srd(rW1,sWA,131072); srd(rW2,sWU,131072)
o(f's_mov_b32 s{sI}, 0')
lab('L_dmau')
o(f's_add_u32 s{sA}, s{sI}, s{sWROT}'); o(f's_and_b32 s{sA}, s{sA}, 7')
o(f's_lshl_b32 s{sB}, s{sA}, 14'); o(f's_lshl_b32 s{sA}, s{sA}, 12'); o(f's_add_u32 s{sA}, s{sA}, s{sC_}')
o(f's_add_u32 m0, s{sA}, {WR}'); o('s_nop 0')
o(f'buffer_load_dwordx4 v249, {sr(rW1,4)}, s{sB} offen lds')
o(f's_add_u32 m0, s{sA}, {WR+32768}'); o('s_nop 0')
o(f'buffer_load_dwordx4 v249, {sr(rW2,4)}, s{sB} offen lds')
o('s_waitcnt vmcnt(%s)' % OPT.get('pace','8'))
o(f's_add_u32 s{sI}, s{sI}, 1'); o(f's_cmp_lt_u32 s{sI}, 8'); o('s_cbranch_scc1 L_dmau')
xloop(4,10,'L_dmax2')
lds_inc(C_G1,244)
stamp(3)
o('s_waitcnt vmcnt(8)')
lds_inc(C_X1,244)
lds_spin(C_X1,4,244)
stamp(4)
o('s_branch L_g_gemm')
lab('L_e0')
if 'noprio' not in OPT: o('s_setprio 2')
o('v_subrev_u32 v14, 256, v0')
o(f's_mul_i32 s{sA}, s2, {CH}')
o(f'v_add_u32 v15, s{sA}, v14')
o('v_lshlrev_b32 v16, 1, v15'); o('v_lshlrev_b32 v15, 2, v15')
o(f'v_cmp_gt_u32 vcc, {CH-512}, v14')
o('v_add_u32 v18, 2048, v15'); o('v_add_u32 v19, 1024, v16')
o('v_mov_b32 v17, 0x40000000')
o('v_cndmask_b32 v18, v17, v18, vcc'); o('v_cndmask_b32 v19, v17, v19, vcc')
o('s_waitcnt lgkmcnt(0)')
ED,ES,EE=2,5,8
srd(rDST,sDST,E*4)
o(f'buffer_load_dword v{ED}, v15, {sr(rDST,4)}, 0 offen')
o(f'buffer_load_dword v{ED+1}, v15, {sr(rDST,4)}, 0 offen offset:1024')
o(f'buffer_load_dword v{ED+2}, v18, {sr(rDST,4)}, 0 offen')
srd(rSRC,sSRC,E*4)
o(f'buffer_load_dword v{ES}, v15, {sr(rSRC,4)}, 0 offen')
o(f'buffer_load_dword v{ES+1}, v15, {sr(rSRC,4)}, 0 offen offset:1024')
o(f'buffer_load_dword v{ES+2}, v18, {sr(rSRC,4)}, 0 offen')
srd(rEA,sEA,E*2)
o(f'buffer_load_ushort v{EE}, v16, {sr(rEA,4)}, 0 offen')
o(f'buffer_load_ushort v{EE+1}, v16, {sr(rEA,4)}, 0 offen offset:512')
o(f'buffer_load_ushort v{EE+2}, v19, {sr(rEA,4)}, 0 offen')
o('s_barrier')
stamp(0)
wc_load()
srd(rW1,sWA,131072); srd(rW2,sWU,131072)
o('s_lshr_b32 s3, s2, 3'); o('s_lshl_b32 s3, s3, 12')
o('v_lshrrev_b32 v17, 3, v1'); o('v_lshlrev_b32 v17, 9, v17'); o('v_and_b32 v19, 7, v1'); o('v_lshl_add_u32 v17, v19, 4, v17')
o(f's_lshl_b32 s{sA}, s{sS}, 7'); o(f'v_add_u32 v17, s{sA}, v17')
l=U('wu')
if 'nowu' not in OPT:
    o(f's_cmp_lg_u32 s{sW}, 4'); o(f's_cbranch_scc1 {l}_a')
    o(f'buffer_load_dwordx4 v[240:243], v17, {sr(rW1,4)}, s3 offen')
    lab(l+'_a')
    o(f's_cmp_lg_u32 s{sW}, 5'); o(f's_cbranch_scc1 {l}_b')
    o(f'buffer_load_dwordx4 v[240:243], v17, {sr(rW2,4)}, s3 offen')
    lab(l+'_b')
build_common()
srd(rX,sX,N*512); srd_off(rREC,sWS,WS_RECS,256*CHCAP*8)
if 'notlb' not in OPT:
    o(f's_cmp_lg_u32 s{sW}, 6'); o(f's_cbranch_scc1 {l}_c')
    o('v_lshlrev_b32 v17, 20, v1'); o('v_cmpx_gt_u32 vcc, 3, v1')
    o(f'buffer_load_dword v244, v17, {sr(rTR,4)}, 0 offen')
    o('s_mov_b64 exec, -1')
    lab(l+'_c')
    o(f's_cmp_lg_u32 s{sW}, 7'); o(f's_cbranch_scc1 {l}_d')
    o(f's_lshl_b32 s{sA}, s{sNB}, 9')
    o(f'buffer_load_dword v244, v{VZ}, {sr(rOUT,4)}, s{sA} offen')
    o(f'buffer_load_dword v245, v{VZ}, {sr(rREC,4)}, 0 offen')
    lab(l+'_d')
wvoff(249,sW)
o('v_subrev_u32 v247, 16384, v249')
o('s_waitcnt vmcnt(%d)' % (2 if ('nowu' in OPT or 'notlb' in OPT) else 3))
stamp(22)
o(f's_mov_b32 s{sA}, 106862')
RR,RK_,RW=36,24,28
for k in range(3):
    o(f'v_mul_lo_u32 v{RR+k}, v{ED+k}, s{sA}')
for k in range(3):
    o(f'v_lshrrev_b32 v{RR+k}, 24, v{RR+k}')
    o(f'v_mul_u32_u24 v17, {RN}, v{RR+k}'); o(f'v_sub_u32 v17, v{ED+k}, v17')
    o(f'v_lshl_or_b32 v{RW+2*k}, v{ES+k}, 8, v17'); o(f'v_lshlrev_b32 v{RW+2*k+1}, 16, v{EE+k}')
    o(f'v_lshlrev_b32 v{RR+k}, 2, v{RR+k}')
o('v_mov_b32 v16, 1')
o(f'ds_add_rtn_u32 v{RK_}, v{RR}, v16 offset:{HIST1}')
o(f'ds_add_rtn_u32 v{RK_+1}, v{RR+1}, v16 offset:{HIST1}')
o(f'v_cmpx_gt_u32 vcc, {CH-512}, v14')
o(f'ds_add_rtn_u32 v{RK_+2}, v{RR+2}, v16 offset:{HIST1}')
o('s_mov_b64 exec, -1')
o('s_waitcnt lgkmcnt(0)')
o(f's_mul_i32 s{sNONCE}, s{sNONCE}, 0x9E3779B1'); o(f's_add_u32 s{sNONCE}, s{sNONCE}, 0x7F4A7C15')
lds_inc(C_H,17)
lds_spin(C_H,4,17)
o('v_lshlrev_b32 v17, 2, v1')
o(f'ds_read_b32 v20, v17 offset:{HIST1}')
o('s_waitcnt lgkmcnt(0)')
o('v_add_u32 v21, 1, v20'); o('v_and_b32 v21, -2, v21'); o('v_mov_b32 v22, v21')
scan64(21)
o('v_sub_u32 v22, v21, v22')
for k in range(3): o(f'ds_bpermute_b32 v{RR+k}, v{RR+k}, v22')
o('s_waitcnt lgkmcnt(0)')
for k in range(3): o(f'v_add_lshl_u32 v{RR+k}, v{RR+k}, v{RK_+k}, 3')
for k in range(3): o(f'v_add_u32 v{RR+k}, {RST}, v{RR+k}')
o(f'ds_write_b64 v{RR}, {vr(RW,2)}')
o(f'ds_write_b64 v{RR+1}, {vr(RW+2,2)}')
o(f'v_cmpx_gt_u32 vcc, {CH-512}, v14')
o(f'ds_write_b64 v{RR+2}, {vr(RW+4,2)}')
o('s_mov_b64 exec, -1')
o('s_waitcnt lgkmcnt(0)')
lds_inc(C_S,17)
lds_spin(C_S,4,17)
o('v_lshlrev_b32 v17, 4, v14'); o(f'v_add_u32 v18, {RST}, v17')
if 'delay' in OPT: lds_spin(C_X2,4,36)
o('ds_read_b128 v[28:31], v18'); o('ds_read_b128 v[32:35], v18 offset:4096')
o(f's_mul_i32 s{sA}, s2, {CHCAP*8}'); o(f's_add_u32 s{sB}, s{sA}, 4096')
o(f's_and_b32 s{sC_}, s{sNONCE}, 0xffff'); o(f's_lshr_b32 s{sD}, s{sNONCE}, 16')
o('v_mov_b32 v19, 0xffff0000')
o('s_waitcnt lgkmcnt(0)')
o(f'v_and_or_b32 v29, v29, v19, s{sC_}'); o(f'v_and_or_b32 v31, v31, v19, s{sD}')
o(f'v_and_or_b32 v33, v33, v19, s{sC_}'); o(f'v_and_or_b32 v35, v35, v19, s{sD}')
if 'noEst' not in OPT:
    o(f'buffer_store_dwordx4 v[28:31], v17, {sr(rREC,4)}, s{sA} offen sc1')
    o(f'v_cmpx_gt_u32 vcc, {(CHCAP*8-4096)//16}, v14')
    o(f'buffer_store_dwordx4 v[32:35], v17, {sr(rREC,4)}, s{sB} offen sc1')
    o('s_mov_b64 exec, -1')
stamp(2)
l=U('nopub')
if 'noEst' in OPT: o(f's_branch {l}')
o(f's_cmp_lg_u32 s{sW}, 4'); o(f's_cbranch_scc1 {l}')
o('v_lshl_or_b32 v24, v20, 16, v22'); o(f'v_mov_b32 v25, s{sNONCE}')
o('v_lshlrev_b32 v17, 11, v1')
o(f's_lshl_b32 s{sA}, s2, 3')
o(f'buffer_store_dwordx2 v[24:25], v17, {sr(rSEG,4)}, s{sA} offen sc1')
lab(l)
stamp(3)
stamp(4)
o('s_branch L_main_setup' if 'xE' in OPT else 's_branch L_eteam_b')
lab('L_g_gemm')
if 'gprio' in OPT: o('s_setprio 3')
sTE=11
sTC=12
def xread(ks): return f'ds_read_b128 {vr(AF+4*ks,4)}, v{XC+(ks&3)} offset:{256 if ks>=4 else 0}'
def epi_list(which,a,t):
    e=[]
    for i in range(4): e.append(f'v_mul_f32 v{a+i}, {NLOG2E:#x}, v{a+i}')
    for i in range(4): e.append(f'v_cvt_pk_bf16_f32 v{a+i}, v{a+i}, v{a+4+i}')
    if which==1:
        for i in range(4): e.append(f'buffer_store_dword v{a+i}, v{TOF}, {sr(rTW,4)}, s{sB if t==1 else sD} offen offset:{i*256+64*t} sc1')
    else:
        for i in range(4): e.append(f'ds_write_b32 v{AUA if t==1 else AUA+2}, v{a+i} offset:{i*256+64*t}')
    return e
def addr_ops(which,tile_s,t):
    dst = sB if t==1 else sD
    if which==1: return [f's_lshl_b32 s{dst}, s{tile_s}, 4', f's_add_u32 s{dst}, s{dst}, s{sNB}', f's_lshl_b32 s{dst}, s{dst}, 8']
    return [f's_lshl_b32 s{dst}, s{tile_s}, 12', f's_add_u32 s{dst}, s{dst}, {AU}', f'v_add_u32 v{AUA if t==1 else AUA+2}, s{dst}, v{TOF}']
sTO=[13,14,15,46,47]
PK=8
def gemm_body(which, j):
    B0,V0,B1,V1=ACC,ACC+4,ACC+8,ACC+12
    if which==1:
        def epi1(a,jj,t):
            e=[f'v_mul_f32 v{a+i}, {NLOG2E:#x}, v{a+i}' for i in range(4)]
            e+=[f'v_cvt_pk_bf16_f32 v{PK+8*jj+4*t+i}, v{a+i}, v{a+4+i}' for i in range(4)]
            return e
        eP1=epi1(B1,j-1,1) if j>0 else []; eP0=epi1(B0,j,0)
        a1=[]; a0=[]
    else:
        eP1=epi_list(2,B1,1); eP0=epi_list(2,B0,0)
        a1=addr_ops(2,sTE,1); a0=addr_ops(2,sTC,0)
    fill=[[] for _ in range(16)]
    if which==2:
        fill[0]+=a1[0:2]; fill[1]+=a1[2:3]+a0[0:1]; fill[2]+=a0[1:3]
        fill[3]+=eP1[0:3]; fill[4]+=eP1[3:6]; fill[5]+=eP1[6:9]; fill[6]+=eP1[9:11]; fill[7]+=eP1[11:12]
    elif eP1:
        fill[3]+=eP1[0:2]; fill[4]+=eP1[2:4]; fill[5]+=eP1[4:6]; fill[6]+=eP1[6:8]
    if not (which==1 and j==4):
        for ks in range(8): fill[8+ks].append(xread(ks))
    if which==2:
        fill[11]+=eP0[0:3]; fill[12]+=eP0[3:6]; fill[13]+=eP0[6:9]; fill[14]+=eP0[9:11]; fill[15]+=eP0[11:12]
        tail=[f's_mov_b32 s{sTE}, s{sTC}', f's_add_u32 s{sTC}, s{sTC}, 1', f's_add_u32 s{sA}, s{sTC}, 1', f's_lshl_b32 s{sA}, s{sA}, 13']
        fill[9]+=tail[0:2]; fill[10]+=tail[2:4]
    else:
        fill[11]+=eP0[0:2]; fill[12]+=eP0[2:4]; fill[13]+=eP0[4:6]; fill[14]+=eP0[6:8]
        fill[9]+=[f's_add_u32 s{sTC}, s{sTC}, 8192']
    seq=[]
    for sl in range(16):
        for t in fill[sl]:
            if t.startswith('ds_read'): seq.append((sl,'r'))
            elif t.startswith('ds_write'): seq.append((sl,'w'))
    def waitcount(ks):
        if which==1: return 7-ks
        n=0; found=False; k=-1
        for (sl,kind) in seq:
            if kind=='r':
                k+=1
                if k==ks: found=True; continue
            if found: n+=1
        for (sl,kind) in seq:
            if sl<ks: n+=1
        return n
    for ph in range(2):
        for ks in range(8):
            ab,av=(B0,V0) if ph==0 else (B1,V1)
            wb=WF+32*ph+4*ks; wv=WF+64+32*ph+4*ks
            if ph==0: o(f's_waitcnt lgkmcnt({min(waitcount(ks),15)})')
            c1='0' if ks==0 else vr(ab,4); c2='0' if ks==0 else vr(av,4)
            f=fill[8*ph+ks]
            o(f'v_mfma_f32_16x16x32_bf16 {vr(ab,4)}, {vr(AF+4*ks,4)}, {vr(wb,4)}, {c1}')
            h=(len(f)+1)//2 if ph==0 else 0
            for t in f[:h]: o(t)
            o(f'v_mfma_f32_16x16x32_bf16 {vr(av,4)}, {vr(AF+4*ks,4)}, {vr(wv,4)}, {c2}')
            for t in f[h:]: o(t)
    if which==2:
        for k in range(4): o(f'v_add_u32 v{XC+k}, s{sA}, v{XA+k}')
    elif j<3:
        for k in range(4): o(f'v_add_u32 v{XC+k}, s{sTC}, v{XA+k}')
def table_stores():
    for j in range(5):
        o(f's_add_u32 s{sB}, s{sROT}, {j}'); o(f's_lshl_b32 s{sB}, s{sB}, 4'); o(f's_add_u32 s{sB}, s{sB}, s{sNB}'); o(f's_lshl_b32 s{sB}, s{sB}, 8')
        for t in range(2):
            for i in range(4):
                o(f'buffer_store_dword v{PK+8*j+4*t+i}, v{TOF}, {sr(rTW,4)}, s{sB} offen offset:{i*256+64*t} sc1')
def gemm1():
    o(f's_lshl_b32 s{sTC}, s{sROT}, 13')
    for k in range(4): o(f'v_add_u32 v{XC+k}, s{sTC}, v{XA+k}')
    for ks in range(8): o(xread(ks))
    o(f's_add_u32 s{sTC}, s{sTC}, 8192')
    for k in range(4): o(f'v_add_u32 v{XC+k}, s{sTC}, v{XA+k}')
    o('s_waitcnt lgkmcnt(0)')
    for j in range(5):
        if j==1:
            o('s_waitcnt vmcnt(0)')
            lds_inc(C_X2,244)
            o('s_waitcnt lgkmcnt(0)')
        if j==2:
            lds_spin(C_X2,4,244)
        gemm_body(1,j)
    o('s_nop 7')
    for i in range(4): o(f'v_mul_f32 v{ACC+8+i}, {NLOG2E:#x}, v{ACC+8+i}')
    for i in range(4): o(f'v_cvt_pk_bf16_f32 v{PK+32+4+i}, v{ACC+8+i}, v{ACC+12+i}')
def dummy_row():
    l=U('nodummy')
    o(f's_cmp_lg_u32 s{sR}, 63'); o(f's_cbranch_scc1 {l}')
    o(f's_cmp_lg_u32 s{sW}, 0'); o(f's_cbranch_scc1 {l}')
    o('v_mov_b32 v244, 0x7f7f'); o('v_lshlrev_b32 v245, 2, v1'); o(f'v_add_u32 v245, {N*256}, v245')
    o(f'buffer_store_dword v244, v245, {sr(rTR,4)}, 0 offen sc1')
    lab(l)
def gemm2():
    B0,V0,B1,V1=ACC,ACC+4,ACC+8,ACC+12
    for j in range(5):
        o(f's_add_u32 s{sTO[j]}, s{sROT}, {j}'); o(f's_lshl_b32 s{sTO[j]}, s{sTO[j]}, 4'); o(f's_add_u32 s{sTO[j]}, s{sTO[j]}, s{sNB}'); o(f's_lshl_b32 s{sTO[j]}, s{sTO[j]}, 8')
    o(f's_lshl_b32 s{sTC}, s{sROT}, 13')
    for k in range(4): o(f'v_add_u32 v{XC+k}, s{sTC}, v{XA+k}')
    for ks in range(8): o(xread(ks))
    o(f's_add_u32 s{sTC}, s{sTC}, 8192')
    for k in range(4): o(f'v_add_u32 v{XC+k}, s{sTC}, v{XA+k}')
    o(f's_lshl_b32 s{sA}, s{sROT}, 12'); o(f's_add_u32 s{sA}, s{sA}, {AU}'); o(f'v_add_u32 v{AUA}, s{sA}, v{TOF}')
    o('s_waitcnt lgkmcnt(0)')
    def epi(a,jj,t):
        e=[f'v_mul_f32 v{a+i}, {NLOG2E:#x}, v{a+i}' for i in range(4)]
        e+=[f'v_cvt_pk_bf16_f32 v{a+i}, v{a+i}, v{a+4+i}' for i in range(4)]
        e+=[f'ds_write_b32 v{AUA}, v{a+i} offset:{jj*4096+i*256+64*t}' for i in range(4)]
        return e
    def tst(jj): return [f'buffer_store_dword v{PK+8*jj+4*t+i}, v{TOF}, {sr(rTW,4)}, s{sTO[jj]} offen offset:{i*256+64*t} sc1' for t in range(2) for i in range(4)]
    stores={0:tst(0)+tst(1),1:tst(2)+tst(3),2:tst(4),3:[],4:[]}
    prev_tail=0
    for j in range(5):
        eP1=epi(B1,j-1,1) if j>0 else []; eP0=epi(B0,j,0)
        fill=[[] for _ in range(16)]
        if eP1:
            fill[3]+=eP1[0:3]; fill[4]+=eP1[3:6]; fill[5]+=eP1[6:9]; fill[6]+=eP1[9:11]; fill[7]+=eP1[11:12]
        if j<4:
            for ks in range(8): fill[8+ks].append(xread(ks))
        fill[11]+=eP0[0:3]; fill[12]+=eP0[3:6]; fill[13]+=eP0[6:9]; fill[14]+=eP0[9:11]; fill[15]+=eP0[11:12]
        if j<3: fill[9]+=[f's_add_u32 s{sTC}, s{sTC}, 8192']
        st=list(stores[j])
        for sl in range(16):
            if st: fill[sl].append(st.pop(0))
        seq=[(sl,('r' if t.startswith('ds_read') else 'w')) for sl in range(16) for t in fill[sl] if t.startswith('ds_')]
        for ph in range(2):
            for ks in range(8):
                ab,av=(B0,V0) if ph==0 else (B1,V1)
                wb=WF+32*ph+4*ks; wv=WF+64+32*ph+4*ks
                if ph==0 and j>0:
                    n=0; found=False; k=-1
                    for (sl,kind) in prevseq:
                        if kind=='r':
                            k+=1
                            if k==ks: found=True; continue
                        if found: n+=1
                    n+=sum(1 for (sl,kind) in seq if sl<ks)
                    o(f's_waitcnt lgkmcnt({min(n,15)})')
                c1='0' if ks==0 else vr(ab,4); c2='0' if ks==0 else vr(av,4)
                f=fill[8*ph+ks]
                o(f'v_mfma_f32_16x16x32_bf16 {vr(ab,4)}, {vr(AF+4*ks,4)}, {vr(wb,4)}, {c1}')
                h=(len(f)+1)//2 if ph==0 else 0
                for t in f[:h]: o(t)
                o(f'v_mfma_f32_16x16x32_bf16 {vr(av,4)}, {vr(AF+4*ks,4)}, {vr(wv,4)}, {c2}')
                for t in f[h:]: o(t)
        if j<3:
            for k in range(4): o(f'v_add_u32 v{XC+k}, s{sTC}, v{XA+k}')
        prevseq=seq
        if j==int(OPT.get('f2it','3')):
            l=U('nf2')
            o('s_waitcnt vmcnt(0)')
            lds_inc(C_T,244,ret=True)
            o(f's_cmp_lg_u32 s{sA}, 3'); o(f's_cbranch_scc1 {l}')
            o('s_mov_b64 exec, 1')
            for i in range(4): o(f'v_mov_b32 v{244+i}, s{sNONCE}')
            o(f's_lshl_b32 s{sA}, s{sS}, 6'); o(f's_add_u32 s{sA}, s{sA}, s{sR}'); o(f's_lshl_b32 s{sA}, s{sA}, 4')
            o(f's_add_u32 s{sA}, s{sA}, {SEGT_FLAG2}')
            o(f'buffer_store_dwordx4 v[244:247], v{VZ}, {sr(rSEG,4)}, s{sA} offen sc1')
            o('s_mov_b64 exec, -1')
            lab(l)
    o('s_nop 7')
    for t in epi(B1,4,1): o(t)
    if 'nopre' not in OPT:
        o(f's_lshl_b32 s{sA}, s{sNB}, 8'); o(f's_mul_i32 s{sB}, s{sW}, 10240'); o(f's_add_u32 s{sA}, s{sA}, s{sB}')
        o('v_lshlrev_b32 v245, 4, v1')
        for i in range(10):
            o(f'buffer_load_dwordx4 %s, v245, {sr(rTW,4)}, s{sA} offen sc1' % ('v[232:235]' if 'nowait' in OPT else 'v[44:47]'))
            o(f's_add_u32 s{sA}, s{sA}, 1024')
    if 'preout' in OPT:
        o('v_lshrrev_b32 v245, 3, v1'); o('v_lshlrev_b32 v245, 9, v245'); o('v_and_b32 v246, 7, v1'); o('v_lshl_add_u32 v245, v246, 4, v245')
        o(f's_mul_i32 s{sB}, s{sW}, {40*512}'); o(f's_lshl_b32 s{sA}, s{sNB}, 9'); o(f's_add_u32 s{sA}, s{sA}, s{sB}')
        o(f's_lshl_b32 s{sB}, s{sS}, 7'); o(f's_add_u32 s{sA}, s{sA}, s{sB}')
        for i in range(5):
            o(f'buffer_load_dwordx4 v[44:47], v245, {sr(rOUT,4)}, s{sA} offen')
            o(f's_add_u32 s{sA}, s{sA}, {8*512}')
gemm1()
stamp(5)
wfrags()
o('s_waitcnt lgkmcnt(0)')
lds_inc(C_G,244)
lds_spin(C_G,4,244)
stamp(18)
if 'xE' not in OPT and 'nogate' not in OPT: lds_spin(C_RL,4,244)
dummy_row()
stamp(6)
gemm2()
o('s_waitcnt lgkmcnt(0)')
stamp(7)
o('s_branch L_main_setup')
lab('L_eteam_b')
SG,RC0,RC1,SA,RKB=64,80,112,144,200
T=176
o(f's_sub_u32 s{sC_}, s{sW}, 4')
o('v_lshrrev_b32 v17, 3, v1')
o(f's_lshl_b32 s{sA}, s{sC_}, 3'); o(f'v_add_u32 v17, s{sA}, v17')
o(f'v_lshlrev_b32 v{T}, 3, v17')
o('v_and_b32 v18, 7, v1')
o(f'v_mul_u32_u24 v{T+1}, {CHCAP*8}, v17'); o(f'v_lshl_add_u32 v{T+1}, v18, 4, v{T+1}')
IX=T+2
o(f'v_lshlrev_b32 v{IX}, 1, v18'); o(f'v_add_u32 v{IX+1}, 1, v{IX}'); o(f'v_add_u32 v{IX+2}, 16, v{IX}'); o(f'v_add_u32 v{IX+3}, 17, v{IX}')
lds_spin(C_G1,4,17)
o(f's_lshl_b32 s{sD}, s{sR}, 11')
o(f's_mov_b32 s{sSP}, 0')
lp=U('poll1'); dn=U('poll1d')
lab(lp)
for p in range(8):
    o(f'buffer_load_dwordx2 {vr(SG+2*p,2)}, v{T}, {sr(rSEG,4)}, s{sD} offen offset:{p*256} sc1')
o(f'v_mov_b32 v19, s{sNONCE}')
o('s_waitcnt vmcnt(0)')
o(f'v_xor_b32 v20, v{SG+1}, v19')
for p in range(1,8):
    o(f'v_xor_b32 v21, v{SG+2*p+1}, v19'); o('v_or_b32 v20, v20, v21')
o('v_cmp_ne_u32 vcc, 0, v20')
o(f's_cbranch_vccz {dn}')
o('s_sleep 6')
o(f's_add_u32 s{sSP}, s{sSP}, 1'); o(f's_cmp_lt_u32 s{sSP}, 0x10000'); o(f's_cbranch_scc1 {lp}')
lab(dn)
stamp(5)
o('v_mov_b32 v20, 0')
for p in range(8):
    o(f'v_lshrrev_b32 v{SG+2*p+1}, 16, v{SG+2*p}')
    o(f'v_max_u32 v20, v20, v{SG+2*p+1}')
o('v_cmp_lt_u32 vcc, 32, v20')
l=U('nofb'); o(f's_cbranch_vccz {l}')
o('v_mov_b32 v21, 1'); o(f'ds_write_b32 v{VZ}, v21 offset:{C_FB}')
lab(l)
o(f's_mov_b32 s{sSP}, 0')
lr=U('recld'); dr=U('recok')
lab(lr)
for p in range(8):
    o(f'v_and_b32 v19, 0xffff, v{SG+2*p}')
    o(f'v_lshl_add_u32 v19, v19, 3, v{T+1}')
    o(f's_mov_b32 s{sA}, {p*32*CHCAP*8}')
    o(f'v_cmp_lt_u32 vcc, 16, v{SG+2*p+1}')
    o(f'buffer_load_dwordx4 {vr(RC0+4*p,4)}, v19, {sr(rREC,4)}, s{sA} offen sc1')
    l=U('ld1'); o(f's_cbranch_vccz {l}')
    o(f'buffer_load_dwordx4 {vr(RC1+4*p,4)}, v19, {sr(rREC,4)}, s{sA} offen offset:128 sc1')
    lab(l)
l=U('sig'); o(f's_cmp_lg_u32 s{sSP}, 0'); o(f's_cbranch_scc1 {l}_r')
lds_inc(C_RL,20)
o('s_waitcnt vmcnt(0)')
o(f's_branch {l}')
lab(l+'_r')
o('s_waitcnt vmcnt(0)')
lab(l)
o('v_mov_b32 v21, 0x05040100'); o('v_mov_b32 v22, 0'); o(f'v_mov_b32 v23, s{sNONCE}')
for p in range(8):
    for st in range(2):
        rec=(RC0 if st==0 else RC1)+4*p
        if st==1:
            l=U('v1'); o(f'v_cmp_lt_u32 vcc, 16, v{SG+2*p+1}'); o(f's_cbranch_vccz {l}')
        o(f'v_cmpx_lt_u32 vcc, v{IX+2*st}, v{SG+2*p+1}')
        o(f'v_perm_b32 v20, v{rec+3}, v{rec+1}, v21'); o('v_xor_b32 v20, v20, v23'); o('v_or_b32 v22, v22, v20')
        o('s_mov_b64 exec, -1')
        if st==1: lab(l)
o('v_cmp_ne_u32 vcc, 0, v22')
o(f's_cbranch_vccz {dr}')
o('s_sleep 2')
o(f's_add_u32 s{sSP}, s{sSP}, 1'); o(f's_cmp_lt_u32 s{sSP}, 0x10000'); o(f's_cbranch_scc1 {lr}')
lab(dr)
stamp(6)
def each_rec(fn):
    for p in range(8):
        for st in range(2):
            if st==1:
                l=U('st1'); o(f'v_cmp_lt_u32 vcc, 16, v{SG+2*p+1}'); o(f's_cbranch_vccz {l}')
            for i in range(2):
                rec=(RC0 if st==0 else RC1)+4*p+2*i
                o(f'v_cmpx_lt_u32 vcc, v{IX+2*st+i}, v{SG+2*p+1}')
                fn(rec, SA+4*p+2*st+i)
            o('s_mov_b64 exec, -1')
            if st==1: lab(l)
SD='dst_sel:DWORD dst_unused:UNUSED_PAD src0_sel:DWORD src1_sel:BYTE_0'
o('v_mov_b32 v22, 1'); o('v_mov_b32 v23, 64')
def f_hist(rec,sa):
    o(f'v_lshlrev_b32_sdwa v20, 2, v{rec} {SD}'); o(f'ds_add_rtn_u32 v{sa-SA+RKB}, v20, v22 offset:{DEG}')
each_rec(f_hist)
o('s_waitcnt lgkmcnt(0)')
lds_inc(C_E1,20)
stamp(7)
o(f's_cmp_lg_u32 s{sW}, 4')
o('s_cbranch_scc1 L_e_prefill')
lds_spin(C_E1,4,20)
D0,K0,P0=24,28,32
o('v_lshlrev_b32 v19, 2, v1')
for a in range(3): o(f'ds_read_b32 v{D0+a}, v19 offset:{DEG+a*256}')
perm=[]
for w in range(8): perm += ([w,w+4,11-w] if w<4 else [19-w,23-w]) if 'oldperm' not in OPT else ([w,15-w] + ([19-w] if w<4 else []))
o('v_mov_b32 v38, 31')
for i,g in enumerate(perm): o(f'v_writelane_b32 v38, {g}, {i}')
o('v_lshlrev_b32 v38, 2, v38')
o('v_sub_u32 v37, 252, v19')
o('s_waitcnt lgkmcnt(0)')
for a in range(3):
    o(f'v_min_u32 v{K0+a}, 63, v{D0+a}'); o(f'v_lshlrev_b32 v{K0+a}, 2, v{K0+a}')
    if a==2: o('v_cmpx_gt_u32 vcc, 32, v1')
    o(f'ds_add_rtn_u32 v{P0+a}, v{K0+a}, v22 offset:{HIST2}')
o('s_mov_b64 exec, -1')
o('s_waitcnt lgkmcnt(0)')
o(f'ds_read_b32 v36, v37 offset:{HIST2}')
for a in range(3): o(f'v_sub_u32 v{K0+a}, 252, v{K0+a}')
o('s_waitcnt lgkmcnt(0)')
o('v_mov_b32 v35, v36') if False else None
o('v_mov_b32 v39, v36')
scan64(36)
o('v_sub_u32 v36, v36, v39')
for a in range(3): o(f'ds_bpermute_b32 v{K0+a}, v{K0+a}, v36')
o('s_waitcnt lgkmcnt(0)')
for a in range(3):
    o(f'v_add_u32 v{P0+a}, v{P0+a}, v{K0+a}')
    o(f'v_add_u32 v21, {64*a}, v1')
    o(f'v_cmp_gt_u32 vcc, s{sNV}, v21')
    o(f'v_lshlrev_b32 v20, 3, v{P0+a}')
    o(f'v_lshrrev_b32 v{K0+a}, 3, v{P0+a}'); o(f'v_lshlrev_b32 v{K0+a}, 2, v{K0+a}')
    o('v_mov_b32 v40, 0x200000')
    o('v_and_b32 v43, 15, v21'); o('v_lshlrev_b32 v43, 4, v43'); o('v_lshl_add_u32 v43, v21, 9, v43')
    o('v_cndmask_b32 v42, v40, v21, vcc')
    if a==2: o('v_cmpx_gt_u32 vcc, 32, v1')
    o(f'ds_write_b64 v20, v[42:43] offset:{NODEOF}')
    o(f'ds_max_u32 v{K0+a}, v{D0+a} offset:{LG}')
o('s_mov_b64 exec, -1')
o('s_waitcnt lgkmcnt(0)')
o(f'ds_read_b32 v39, v38 offset:{LG}')
o('s_waitcnt lgkmcnt(0)')
o('v_add_u32 v39, 1, v39'); o('v_lshrrev_b32 v39, 1, v39')
o('v_mov_b32 v40, v39')
scan64(39)
o('v_sub_u32 v40, v39, v40')
o('v_lshlrev_b32 v40, 7, v40'); o(f'v_add_u32 v40, {ELL}, v40')
o(f'ds_write_b32 v38, v40 offset:{GBASE}')
o(f'v_readlane_b32 s{sA}, v39, 19')
o('s_waitcnt lgkmcnt(0)')
for a in range(3): o(f'ds_read_b32 v{K0+a}, v{K0+a} offset:{GBASE}')
o(f's_cmp_le_u32 s{sA}, {ELLB-4}')
l=U('fits'); o(f's_cbranch_scc1 {l}')
o('v_mov_b32 v21, 1'); o(f'ds_write_b32 v{VZ}, v21 offset:{C_FB}')
lab(l)
o('s_waitcnt lgkmcnt(0)')
for a in range(3):
    o(f'v_and_b32 v21, 7, v{P0+a}'); o(f'v_lshl_add_u32 v21, v21, 3, v{K0+a}')
    o(f'ds_write_b32 v19, v21 offset:{CUR+a*256}')
o('s_waitcnt lgkmcnt(0)')
lds_inc(C_SORT,20)
o('s_branch L_e_wait')
lab('L_e_prefill')
lds_spin(C_G,4,20)
o(f's_sub_u32 s{sA}, s{sW}, 5'); o(f's_lshl_b32 s{sA}, s{sA}, 10'); o(f's_add_u32 s{sA}, s{sA}, {ELL}')
o(f'v_lshlrev_b32 v20, 4, v1'); o(f'v_add_u32 v20, s{sA}, v20')
o(f'v_mov_b32 v24, {N*256}'); o('v_mov_b32 v25, 0'); o(f'v_mov_b32 v26, {N*256}'); o('v_mov_b32 v27, 0')
for i in range(12): o(f'ds_write_b128 v20, v[24:27] offset:{i*3072}')
o('s_waitcnt lgkmcnt(0)')
lds_inc(C_P,20)
lab('L_e_wait')
lds_spin(C_SORT,1,20)
lds_spin(C_P,3,20)
stamp(8)
o(f'ds_read_b32 v20, v{VZ} offset:{C_FB}'); o('s_waitcnt lgkmcnt(0)')
o(f'v_readfirstlane_b32 s{sA}, v20'); o(f's_cmp_lg_u32 s{sA}, 0'); o('s_cbranch_scc1 L_e_done')
def f_slot(rec,sa):
    o(f'v_lshlrev_b32_sdwa v20, 2, v{rec} {SD}'); o(f'ds_read_b32 v{sa}, v20 offset:{CUR}')
each_rec(f_slot)
o('s_waitcnt lgkmcnt(0)')
def f_put(rec,sa):
    o(f'v_lshl_add_u32 v{sa}, v{sa-SA+RKB}, 6, v{sa}'); o(f'v_and_b32 v{rec+1}, v24, v{rec+1}'); o(f'ds_write_b64 v{sa}, {vr(rec,2)}')
o('v_mov_b32 v24, 0xffff0000')
each_rec(f_put)
lab('L_e_done')
o('s_waitcnt lgkmcnt(0)')
stamp(9)
o(f's_cmp_lg_u32 s{sW}, 4')
o('s_cbranch_scc1 L_main_setup')
o('v_lshlrev_b32 v20, 4, v1')
o(f's_lshl_b32 s{sD}, s{sS}, 10'); o(f's_add_u32 s{sD}, s{sD}, {SEGT_FLAG2}')
o(f's_mov_b32 s{sSP}, 0')
lp=U('poll2'); dn=U('poll2d')
lab(lp)
o(f'buffer_load_dword v21, v20, {sr(rSEG,4)}, s{sD} offen sc1')
o('s_waitcnt vmcnt(0)')
o(f'v_cmp_ne_u32 vcc, s{sNONCE}, v21')
o(f's_cbranch_vccz {dn}')
o('s_sleep 2')
o(f's_add_u32 s{sSP}, s{sSP}, 1'); o(f's_cmp_lt_u32 s{sSP}, 0x10000'); o(f's_cbranch_scc1 {lp}')
lab(dn)
l=U('noep')
o('s_cmp_lg_u32 s2, 0'); o(f's_cbranch_scc1 {l}')
o('s_mov_b64 exec, 1')
o(f'v_mov_b32 v21, s{sNONCE}')
o(f'global_store_dword v{VZ}, v21, {sr(sEP,2)} sc1')
o('s_mov_b64 exec, -1')
lab(l)
LOFF,RP=2,3
S1A,S1B,S2A,S2B,ONE=4,8,12,16,20
WC=24; NUM=32; DEN=40; C=48; DX,DY=72,104; R0,R1=136,152
OFA,OFB,EA_,EB_,AD=168,170,172,174,176
lab('L_main_setup')
o('s_setprio 0')
stamp(10)
o(f'v_and_b32 v{LOFF}, 7, v1'); o(f'v_lshlrev_b32 v{LOFF}, 4, v{LOFF}')
o('v_bfe_u32 v196, v1, 3, 2'); o('v_bfe_u32 v197, v1, 2, 1'); o('v_lshrrev_b32 v198, 5, v1'); o('v_and_b32 v199, 3, v1')
o('v_cmp_eq_u32 vcc, v197, v198'); o('v_mov_b32 v195, 7'); o('v_and_b32 v193, 1, v196')
o('v_cndmask_b32 v199, v195, v199, vcc')
LO,HI=0x00003f80,0x3f800000
o('v_cmp_gt_u32 vcc, 2, v196'); o(f'v_mov_b32 v194, {LO:#x}'); o(f'v_mov_b32 v195, {HI:#x}')
o('v_cndmask_b32 v192, v194, v195, vcc')
o('v_cndmask_b32 v191, v195, v194, vcc')
o('v_lshl_add_u32 v199, v193, 3, v199')
for i in range(4):
    o(f'v_cmp_eq_u32 vcc, {i}, v199'); o(f'v_cmp_eq_u32 s[98:99], {8+i}, v199'); o('s_nop 0')
    o(f'v_cndmask_b32 v{S1A+i}, 0, v192, vcc'); o(f'v_cndmask_b32 v{S2A+i}, 0, v191, vcc')
    o(f'v_cndmask_b32 v{S1B+i}, 0, v192, s[98:99]'); o(f'v_cndmask_b32 v{S2B+i}, 0, v191, s[98:99]')
o('v_cmp_gt_u32 vcc, 32, v1')
for i in range(1,4): o(f'v_mov_b32 v{ONE+i}, 0')
o(f'v_cndmask_b32 v{ONE}, 0, v194, vcc')
for i in range(4):
    o(f'v_lshlrev_b32 v{WC+2*i}, 16, v{250+i}'); o(f'v_and_b32 v{WC+2*i+1}, 0xffff0000, v{250+i}')
for i in range(8): o(f'v_mul_f32 v{WC+i}, {NLOG2E:#x}, v{WC+i}')
for i in range(8):
    o(f'v_mov_b32 v{C+i}, 0'); o(f'v_mov_b32 v{C+16+i}, 0')
LOFF_=LOFF
sPAR,sNBT,sODD,sG1,sG2,sLN=97,47,96,46,13,14
NLN,LT,OA,AUN,XRN,UF,XF,VAUK,VKA,VOK=178,180,181,182,190,194,202,210,211,212
TM=214
o(f'v_add_u32 v{VAUK}, {AU}, v{LOFF}')
o(f'v_bfe_u32 v{TM}, v1, 1, 2'); o(f's_lshl_b32 s92, s{sS}, 3'); o(f'v_add_u32 v{TM}, s92, v{TM}'); o(f'v_lshlrev_b32 v{TM}, 4, v{TM}')
o(f'v_and_b32 v{TM+1}, 1, v1'); o(f'v_lshl_add_u32 v{VKA}, v{TM+1}, 3, v{TM}')
o(f's_lshl_b32 s92, s{sNB}, 9'); o(f's_lshl_b32 s93, s{sS}, 7'); o('s_add_u32 s92, s92, s93')
o(f'v_lshrrev_b32 v{TM}, 1, v{LOFF}'); o(f'v_add_u32 v{VOK}, s92, v{TM}')
o(f'v_lshrrev_b32 v{TM+2}, 3, v1'); o(f'v_lshlrev_b32 v{TM+2}, 3, v{TM+2}')
o(f's_sub_u32 s12, 19, s{sW}'); o(f's_cmp_lt_u32 s{sW}, 4'); o(f's_cselect_b32 s12, s{sW}, s12')
o(f's_add_u32 s{sG1}, s{sW}, 4'); o(f's_sub_u32 s92, 23, s{sW}'); o(f's_sub_u32 s{sG2}, 11, s{sW}')
o(f's_cmp_ge_u32 s{sW}, 4'); o(f's_cselect_b32 s{sG1}, s92, s{sG1}'); o(f's_cselect_b32 s{sG2}, -1, s{sG2}')
def node_prefetch(gs):
    o(f's_lshl_b32 s92, s{gs}, 6'); o(f'v_add_u32 v{TM}, s92, v{TM+2}'); o(f'ds_read_b64 {vr(NLN,2)}, v{TM} offset:{NODEOF}')
    o(f's_lshl_b32 s92, s{gs}, 2'); o(f'v_mov_b32 v{TM+1}, s92'); o(f'ds_read_b32 v{LT}, v{TM+1} offset:{LG}')
def raw_prefetch():
    o(f'v_lshl_add_u32 v{TM}, v{NLN}, 8, v{VAUK}')
    o(f'v_xor_b32 v{TM+1}, v{NLN+1}, v{VKA}'); o(f'v_xor_b32 v{TM+3}, 64, v{TM+1}')
    o(f'ds_read_b128 {vr(AUN,4)}, v{TM}'); o(f'ds_read_b128 {vr(AUN+4,4)}, v{TM} offset:128')
    o(f'ds_read_b64 {vr(XRN,2)}, v{TM+1} offset:{XT}'); o(f'ds_read_b64 {vr(XRN+2,2)}, v{TM+3} offset:{XT}')
o(f's_xor_b32 s15, s{sR}, 1'); o(f's_mul_i32 s15, s15, {RN*256}'); o(f's_mul_i32 s92, s{sW}, 5120'); o('s_add_u32 s15, s15, s92')
o(f'v_lshlrev_b32 v{TM+4}, 4, v1')
o('s_waitcnt lgkmcnt(0)' if 'nowait' in OPT else 's_waitcnt vmcnt(0) lgkmcnt(0)')
o('s_barrier')
stamp(11)
if 'xE' in OPT: o('s_branch L_done')
if 'pre2' in OPT:
    for i in range(5):
        o(f'buffer_load_dwordx4 v[232:235], v{TM+4}, {sr(rTR,4)}, s15 offen sc1')
        o('s_add_u32 s15, s15, 1024')
o(f'ds_read_b32 v{TM+5}, v{VZ} offset:{C_FB}')
o(f's_lshl_b32 s{sA}, s12, 2'); o(f'v_mov_b32 v{TM+6}, s{sA}'); o(f'ds_read_b32 v{RP}, v{TM+6} offset:{GBASE}')
node_prefetch(12)
l=U('ap'); o(f's_cmp_ge_u32 s{sW}, 4'); o(f's_cbranch_scc1 {l}'); o('s_setprio 1'); lab(l)
o('s_waitcnt lgkmcnt(0)')
o(f'v_readfirstlane_b32 s{sA}, v{TM+5}'); o(f's_cmp_lg_u32 s{sA}, 0'); o('s_cbranch_scc1 L_fallback')
o(f'v_add_u32 v{RP}, v{RP}, v{TM+2}')
o(f'v_readfirstlane_b32 s{sLN}, v{LT}')
def mfma(d,a,b,c): o(f'v_mfma_f32_32x32x16_bf16 {vr(d,16)}, {vr(a,4)}, {vr(b,4)}, {c}')
def unpack_list(D,R):
    f=lambda d,a,b,c: f'v_mfma_f32_32x32x16_bf16 {vr(d,16)}, {vr(a,4)}, {vr(b,4)}, {c}'
    return [f(D,S1A,R,vr(C,16)), f(D,S1B,R+4,vr(D,16)), f(D+16,S2A,R+8,vr(C+8,16)), f(D+16,S2B,R+12,vr(D+16,16))]
def gfma(D,Er):
    for sl in range(2):
        for j in range(4):
            g=D+8+8*sl+2*j
            sel='op_sel:[0,0,0] op_sel_hi:[0,1,1]' if sl==0 else 'op_sel:[1,0,0] op_sel_hi:[1,1,1]'
            o(f'v_pk_fma_f32 {vr(g,2)}, {vr(Er,2)}, {vr(WC+2*j,2)}, {vr(g,2)} {sel}')
def loads(R,OF):
    o(f'v_and_or_b32 v{AD}, v{OF}, s{sM}, v{LOFF}'); o(f'v_and_or_b32 v{AD+1}, v{OF+1}, s{sM}, v{LOFF}')
    o(f'buffer_load_dwordx4 {vr(R,4)}, v{AD}, {sr(rTR,4)}, 0 offen sc1')
    o(f'buffer_load_dwordx4 {vr(R+4,4)}, v{AD}, {sr(rTR,4)}, 0 offen offset:128 sc1')
    o(f'buffer_load_dwordx4 {vr(R+8,4)}, v{AD+1}, {sr(rTR,4)}, 0 offen sc1')
    o(f'buffer_load_dwordx4 {vr(R+12,4)}, v{AD+1}, {sr(rTR,4)}, 0 offen offset:128 sc1')
def rd_off(dst,b): o(f'ds_read2_b32 {vr(dst,2)}, v{RP} offset0:{b*32} offset1:{b*32+16}')
def rd_e(dst,b): o(f'ds_read2_b32 {vr(dst,2)}, v{RP} offset0:{b*32+1} offset1:{b*32+17}')
def dsreads(P):
    OFn=OFB if P==0 else OFA; En=EB_ if P==0 else EA_
    rd_off(OFn,P+3); rd_e(En,P+1)
    if P==1: o(f'v_add_u32 v{RP}, 256, v{RP}')
def accum(D):
    for sl in range(2):
        for j in range(4):
            g=D+8+8*sl+2*j
            o(f'v_pk_add_f32 {vr(DEN+2*j,2)}, {vr(DEN+2*j,2)}, {vr(g,2)}')
            v=(D+2*j) if sl==0 else (D+24+2*j)
            o(f'v_pk_fma_f32 {vr(NUM+2*j,2)}, {vr(g,2)}, {vr(v,2)}, {vr(NUM+2*j,2)}')
Ds=[DX,DY]; Rs=[R0,R1]; OFs=[OFA,OFB]; Es=[EA_,EB_]
rd_off(OFA,0); rd_off(OFB,1)
raw_prefetch()
o('s_waitcnt lgkmcnt(4)')
loads(R0,OFA); loads(R1,OFB)
rd_off(OFA,2); rd_e(EA_,0)
o(f's_mov_b32 s{sPAR}, 0')
if PROF: o('s_mov_b32 s3, 0')
lab('L_group')
o(f's_min_u32 s{sLN}, s{sLN}, {2*ELLB}')
o(f's_and_b32 s{sODD}, s{sLN}, 1'); o(f's_add_u32 s{sNBT}, s{sLN}, 1'); o(f's_lshr_b32 s{sNBT}, s{sNBT}, 1')
o(f'v_lshl_add_u32 v{OA}, v{NLN}, 9, v{VOK}')
mfma(NUM,C,C,'0')
o('s_waitcnt lgkmcnt(0)')
for i in range(8): o(f'v_lshlrev_b32 v{C+8+i}, 16, v{AUN+i}')
l=U('nonext')
o(f's_cmp_eq_u32 s{sG1}, -1'); o(f's_cbranch_scc1 {l}')
node_prefetch(sG1)
lab(l)
for i in range(8): o(f'v_and_b32 v{UF+i}, 0xffff0000, v{AUN+i}')
for i in range(4):
    o(f'v_lshlrev_b32 v{XF+2*i}, 16, v{XRN+i}'); o(f'v_and_b32 v{XF+2*i+1}, 0xffff0000, v{XRN+i}')
if PROF:
    o(f's_memtime s[100:101]'); o('s_waitcnt lgkmcnt(0)')
    o(f's_add_u32 m0, s3, 36'); o('s_nop 3'); o('v_writelane_b32 v255, s100, m0')
    o(f's_add_u32 m0, s3, 60'); o('s_nop 3'); o(f'v_writelane_b32 v255, s{sLN}, m0')
o(f's_cmp_eq_u32 s{sNBT}, 0'); o('s_cbranch_scc1 L_epi')
o(f's_cmp_eq_u32 s{sPAR}, 1'); o('s_cbranch_scc1 L_gs1')
def exps(D): return [f'v_exp_f32 v{D+8+i}, v{D+8+i}' for i in range(16)]
def rcps(D): return [f'v_rcp_f32 v{D+8+i}, v{D+8+i}' for i in range(16)]
for P in range(2):
    lab(f'L_gs{P}')
    o('s_waitcnt vmcnt(4)')
    for t in unpack_list(Ds[P],Rs[P]): o(t)
    o('s_waitcnt lgkmcnt(0)')
    loads(Rs[P],OFs[P])
    dsreads(P)
    o('s_nop 7')
    gfma(Ds[P],Es[P])
    o(f's_branch L_body{P}')
for P in range(2):
    Q=P^1
    lab(f'L_body{P}')
    o(f's_sub_u32 s{sNBT}, s{sNBT}, 1'); o(f's_cmp_eq_u32 s{sNBT}, 0'); o(f's_cbranch_scc1 L_last{P}')
    ex=exps(Ds[P]); un=unpack_list(Ds[Q],Rs[Q])
    o('s_waitcnt vmcnt(4)')
    for k in range(4):
        o(un[k])
        for t in ex[4*k:4*k+4]: o(t)
    o('s_nop 1')
    mfma(Ds[P]+8,ONE,ONE,vr(Ds[P]+8,16))
    o('s_waitcnt lgkmcnt(0)')
    loads(Rs[Q],OFs[Q])
    o('s_nop 2')
    dsreads(Q)
    for t in rcps(Ds[P]): o(t)
    gfma(Ds[Q],Es[Q])
    accum(Ds[P])
    if P==1: o('s_branch L_body0')
for P in range(2):
    lab(f'L_last{P}')
    D=Ds[P]
    o(f's_cmp_eq_u32 s{sODD}, 1'); o(f's_cbranch_scc1 L_half{P}')
    for t in exps(D): o(t)
    o('s_nop 1')
    mfma(D+8,ONE,ONE,vr(D+8,16))
    o('s_nop 7'); o('s_nop 3')
    for t in rcps(D): o(t)
    accum(D)
    o(f's_mov_b32 s{sPAR}, {P^1}')
    o('s_branch L_epi')
    lab(f'L_half{P}')
    for t in exps(D)[:8]: o(t)
    for j in range(4): o(f'v_pk_add_f32 {vr(D+8+2*j,2)}, {vr(D+8+2*j,2)}, 1.0 op_sel_hi:[1,0]')
    for t in rcps(D)[:8]: o(t)
    for j in range(4):
        g=D+8+2*j
        o(f'v_pk_add_f32 {vr(DEN+2*j,2)}, {vr(DEN+2*j,2)}, {vr(g,2)}')
        o(f'v_pk_fma_f32 {vr(NUM+2*j,2)}, {vr(g,2)}, {vr(D+2*j,2)}, {vr(NUM+2*j,2)}')
    o(f's_mov_b32 s{sPAR}, {P^1}')
    if P==0: o('s_branch L_epi')
lab('L_epi')
if PROF:
    o(f's_memtime s[100:101]'); o('s_waitcnt lgkmcnt(0)')
    o(f's_add_u32 m0, s3, 40'); o('s_nop 3'); o('v_writelane_b32 v255, s100, m0')
l=U('nonext2')
o(f's_cmp_eq_u32 s{sG1}, -1'); o(f's_cbranch_scc1 {l}')
o('s_waitcnt lgkmcnt(0)')
o(f'v_readfirstlane_b32 s{sLN}, v{LT}')
raw_prefetch()
lab(l)
o('s_mov_b32 s92, 0x358637bd'); o('s_mov_b32 s93, 0x358637bd')
for j in range(4): o(f'v_pk_add_f32 {vr(DEN+2*j,2)}, {vr(DEN+2*j,2)}, s[92:93]')
for i in range(8): o(f'v_rcp_f32 v{DEN+i}, v{DEN+i}')
o('s_nop 0')
for j in range(4): o(f'v_pk_fma_f32 {vr(UF+2*j,2)}, {vr(NUM+2*j,2)}, {vr(DEN+2*j,2)}, {vr(UF+2*j,2)}')
for i in range(8): o(f'v_max_f32 v{UF+i}, 0, v{UF+i}')
for j in range(4): o(f'v_pk_add_f32 {vr(UF+2*j,2)}, {vr(UF+2*j,2)}, {vr(XF+2*j,2)}')
for i in range(4): o(f'v_cvt_pk_bf16_f32 v{UF+i}, v{UF+2*i}, v{UF+2*i+1}')
o(f'buffer_store_dwordx2 {vr(UF,2)}, v{OA}, {sr(rOUT,4)}, 0 offen')
o(f'buffer_store_dwordx2 {vr(UF+2,2)}, v{OA}, {sr(rOUT,4)}, 0 offen offset:64')
if PROF:
    o(f's_memtime s[100:101]'); o('s_waitcnt lgkmcnt(0)')
    o(f's_add_u32 m0, s3, 56'); o('s_nop 3'); o('v_writelane_b32 v255, s100, m0')
    o('s_add_u32 s3, s3, 1')
o(f's_cmp_eq_u32 s{sG1}, -1'); o('s_cbranch_scc1 L_done')
o(f's_mov_b32 s{sG1}, s{sG2}'); o(f's_mov_b32 s{sG2}, -1')
o('s_branch L_group')
lab('L_done')
stamp(12)
if PROF:
    o('s_waitcnt vmcnt(0)')
    srd_off(92,sWS,WS_PROF,0x100000)
    o(f's_lshl_b32 s96, s2, 3'); o(f's_add_u32 s96, s96, s{sW}'); o('s_lshl_b32 s96, s96, 8')
    o('v_lshlrev_b32 v2, 2, v1')
    o('buffer_store_dword v255, v2, s[92:95], s96 offen')
o('s_endpgm')
lab('L_codeend')
lab('L_fallback')
FN,FD,FA,FU,FW=10,11,12,13,14
o('v_lshlrev_b32 v5, 2, v1')
o(f's_lshl_b32 s92, s{sS}, 7')
o('v_lshlrev_b32 v6, 1, v1'); o(f'v_add_u32 v6, s92, v6')
srd(64,sWC,512)
o(f'buffer_load_ushort v{FW}, v6, s[64:67], 0 offen')
o('s_waitcnt vmcnt(0)')
o(f'v_lshlrev_b32 v{FW}, 16, v{FW}'); o(f'v_mul_f32 v{FW}, {NLOG2E:#x}, v{FW}')
o(f's_mov_b32 s46, s{sW}')
lab('L_fb_node')
o(f's_cmp_ge_u32 s46, s{sNV}'); o('s_cbranch_scc1 L_fb_end')
o(f's_lshl_b32 s92, s46, 8'); o(f's_add_u32 s92, s92, {AU}'); o(f'v_add_u32 v7, s92, v5'); o('ds_read_b32 v8, v7')
o('s_waitcnt lgkmcnt(0)')
o(f'v_lshlrev_b32 v{FA}, 16, v8'); o(f'v_and_b32 v{FU}, 0xffff0000, v8')
o(f'v_mov_b32 v{FN}, 0'); o(f'v_mov_b32 v{FD}, 0')
o(f's_add_u32 s47, s46, s{sNB}')
o('s_mov_b32 s93, 0')
lab('L_fb_e')
o('v_add_u32 v7, s93, v1'); o('v_lshlrev_b32 v8, 2, v7'); o('v_lshlrev_b32 v7, 1, v7')
o(f'buffer_load_dword v15, v8, {sr(rDST,4)}, 0 offen')
o(f'buffer_load_dword v16, v8, {sr(rSRC,4)}, 0 offen')
o(f'buffer_load_ushort v17, v7, {sr(rEA,4)}, 0 offen')
o('s_waitcnt vmcnt(0)')
o('v_cmp_eq_u32 vcc, s47, v15')
o('s_mov_b64 s[94:95], vcc')
lab('L_fb_m')
o('s_cmp_eq_u64 s[94:95], 0'); o('s_cbranch_scc1 L_fb_next')
o('s_ff1_i32_b64 s96, s[94:95]')
o('s_bitset0_b64 s[94:95], s96')
o('v_readlane_b32 s97, v16, s96'); o('v_readlane_b32 s92, v17, s96')
o('s_nop 1')
o('s_lshl_b32 s97, s97, 8'); o('s_lshl_b32 s92, s92, 16')
o('s_nop 4')
o(f'buffer_load_dword v18, v5, {sr(rTR,4)}, s97 offen sc1')
o('s_waitcnt vmcnt(0)')
o('v_lshlrev_b32 v19, 16, v18'); o('v_and_b32 v18, 0xffff0000, v18')
o(f'v_add_f32 v19, v19, v{FA}'); o(f'v_fmac_f32 v19, s92, v{FW}')
o('v_exp_f32 v19, v19'); o('s_nop 0'); o('v_add_f32 v19, 1.0, v19'); o('v_rcp_f32 v19, v19'); o('s_nop 0')
o(f'v_add_f32 v{FD}, v{FD}, v19'); o(f'v_fmac_f32 v{FN}, v19, v18')
o('s_branch L_fb_m')
lab('L_fb_next')
o('s_add_u32 s93, s93, 64'); o(f's_cmp_lt_u32 s93, {E}'); o('s_cbranch_scc1 L_fb_e')
o('s_mov_b32 s92, 0x358637bd')
o(f'v_add_f32 v{FD}, s92, v{FD}'); o(f'v_rcp_f32 v{FD}, v{FD}'); o('s_nop 0')
o(f'v_fmac_f32 v{FU}, v{FN}, v{FD}'); o(f'v_max_f32 v{FU}, 0, v{FU}')
o('s_lshl_b32 s92, s47, 9')
o(f'buffer_load_ushort v18, v6, {sr(rX,4)}, s92 offen')
o('s_waitcnt vmcnt(0)')
o(f'v_lshlrev_b32 v18, 16, v18'); o(f'v_add_f32 v{FU}, v{FU}, v18')
o(f'v_cvt_pk_bf16_f32 v18, v{FU}, v{FU}')
o(f'buffer_store_short v18, v6, {sr(rOUT,4)}, s92 offen')
o('s_add_u32 s46, s46, 8'); o('s_branch L_fb_node')
lab('L_fb_end')
lab('L_end')
o('s_endpgm')
L=[x for x in L if x is not None]
hdr=open('gather_scatter__edge_featured_mpnn_gatedgcn__graph.s.ref').read().split('; Override')[0]
out=hdr+f'''; Generated by dev/gen2.py (hand-written generator). One fused persistent launch, 1 workgroup per CU.
; @launch grid=(256,1,1) block=(512,1,1) lds={LDS_TOTAL}
.amdgcn_target "amdgcn-amd-amdhsa--gfx950"
.text
.globl {NAME}
.p2align 8
.type {NAME},@function
'''+'\n'.join(L)+f'''
.section .rodata,"a"
.p2align 6
.amdhsa_kernel {NAME}
  .amdhsa_next_free_vgpr 256
  .amdhsa_next_free_sgpr 102
  .amdhsa_accum_offset 256
  .amdhsa_group_segment_fixed_size 0
  .amdhsa_kernarg_size 96
  .amdhsa_user_sgpr_count 2
  .amdhsa_user_sgpr_kernarg_segment_ptr 1
  .amdhsa_system_sgpr_workgroup_id_x 1
.end_amdhsa_kernel
'''
fn=[a for a in sys.argv[1:] if not a.startswith('--')]
open(fn[0] if fn else 'k.s','w').write(out)
```

```python
import sys
NAME='gather_scatter__edge_featured_mpnn_gatedgcn__graph_kernel'
PROF = '--prof' in sys.argv
OPT = {a.split('=')[0][2:]:(a.split('=')[1] if '=' in a else '1') for a in sys.argv[1:] if a.startswith('--')}
N=10000; E=160000; RN=157; CH=625; CHCAP=704
SLICE=10240*256
WS_RECS=0xA00000; WS_SEGT=0xB80000; SEGT_FLAG2=0x20000; WS_EPOCH=0xBB0000; WS_PROF=0xC00000
HIST1=0; DEG=256; HIST2=1024; LG=1280; GBASE=1408; CUR=1536; NODEOF=2304; CNT=3840
C_W=CNT; C_G=CNT+4; C_T=CNT+8; C_E1=CNT+12; C_SORT=CNT+16; C_P=CNT+20; C_FB=CNT+24; C_X=CNT+28; C_G1=CNT+32; C_H=CNT+36; C_R=CNT+40; C_X2=CNT+44; C_S=CNT+48; C_RL=CNT+52; C_X1=CNT+56
XT=4096; WR=XT+81920; AU=WR; ELL=WR+40960; ELLB=288
LDS_TOTAL=163840
RST=WR+65536
assert ELL+ELLB*128==LDS_TOTAL
NLOG2E=0xbfb8aa3b
sEP=4
sI,sROT,sTL,sWROT=6,7,8,9
sM=10
sX,sEA,sSRC,sDST,sWA,sWB,sWC,sWU=16,18,20,22,24,26,28,30
sWV,sOUT,sDBG,sWS=32,34,36,38
sW,sS,sR,sNONCE,sNB,sNV=40,41,42,43,44,45
rX,rDST,rSRC,rEA,rW1,rW2,rTW,rTR,rREC,rSEG,rOUT=48,52,56,60,64,68,72,76,80,84,88
sA,sB,sC_,sD,sSP=92,93,94,95,96
L=[]
def o(t): L.append('  '+t)
def lab(t): L.append(t+':')
def vr(a,n): return f'v[{a}:{a+n-1}]' if n>1 else f'v{a}'
def sr(a,n): return f's[{a}:{a+n-1}]'
uid=[0]
def U(p):
    uid[0]+=1; return f'L_{p}_{uid[0]}'
def srd(r,base,size):
    o(f's_mov_b32 s{r}, s{base}'); o(f's_mov_b32 s{r+1}, s{base+1}')
    o(f's_mov_b32 s{r+2}, {size}'); o(f's_mov_b32 s{r+3}, 0x20000')
def srd_off(r,base,off,size):
    o(f's_add_u32 s{r}, s{base}, {off}'); o(f's_addc_u32 s{r+1}, s{base+1}, 0')
    o(f's_mov_b32 s{r+2}, {size}'); o(f's_mov_b32 s{r+3}, 0x20000')
def stamp(idx):
    if not PROF: return
    o(f's_memrealtime s[100:101]'); o('s_waitcnt lgkmcnt(0)'); o(f'v_writelane_b32 v255, s100, {idx}')
    o(f's_memtime s[100:101]'); o('s_waitcnt lgkmcnt(0)'); o(f'v_writelane_b32 v255, s100, {idx+32}')
VZ=248
def lds_spin(addr, need, vtmp):
    l=U('spin'); d=U('spind')
    o(f's_mov_b32 s{sSP}, 0')
    lab(l)
    o(f'ds_read_b32 v{vtmp}, v{VZ} offset:{addr}')
    o('s_waitcnt lgkmcnt(0)')
    o(f'v_readfirstlane_b32 s{sA}, v{vtmp}')
    o(f's_add_u32 s{sSP}, s{sSP}, 1')
    o(f's_cmp_ge_u32 s{sA}, {need}')
    o(f's_cbranch_scc1 {d}')
    o('s_sleep 1')
    o(f's_cmp_lt_u32 s{sSP}, 0x40000')
    o(f's_cbranch_scc1 {l}')
    lab(d)
def lds_inc(addr, vtmp, ret=False):
    o(f'v_mov_b32 v{vtmp}, 1')
    o('s_mov_b64 exec, 1')
    if ret:
        o(f'ds_add_rtn_u32 v{vtmp}, v{VZ}, v{vtmp} offset:{addr}')
        o('s_waitcnt lgkmcnt(0)')
        o(f'v_readfirstlane_b32 s{sA}, v{vtmp}')
    else:
        o(f'ds_add_u32 v{VZ}, v{vtmp} offset:{addr}')
    o('s_mov_b64 exec, -1')
def scan64(v):
    for sh in (1,2,4,8):
        o('s_nop 1'); o(f'v_add_u32_dpp v{v}, v{v}, v{v} row_shr:{sh} row_mask:0xf bank_mask:0xf')
    o('s_nop 1'); o(f'v_add_u32_dpp v{v}, v{v}, v{v} row_bcast:15 row_mask:0xa bank_mask:0xf')
    o('s_nop 1'); o(f'v_add_u32_dpp v{v}, v{v}, v{v} row_bcast:31 row_mask:0xc bank_mask:0xf')
    o('s_nop 1')
lab(NAME)
o('s_cmp_ge_u32 s2, 256')
o('s_cbranch_scc1 L_end')
o('s_load_dwordx16 s[16:31], s[0:1], 0')
o('s_load_dwordx8 s[32:39], s[0:1], 64')
o('v_and_b32 v1, 63, v0')
o('v_lshrrev_b32 v2, 6, v0')
o(f'v_mov_b32 v{VZ}, 0')
o(f'v_readfirstlane_b32 s{sW}, v2')
o('s_getpc_b64 s[12:13]')
lab('L_pc')
if 'nopf' not in OPT:
    o(f's_cmp_lg_u32 s{sW}, 7'); o('s_cbranch_scc1 L_nopf')
    o('s_lshr_b32 s3, s2, 3'); o('s_lshl_b32 s3, s3, 10')
    o('v_lshl_add_u32 v2, v1, 4, s3')
    o('v_cmp_gt_u32 vcc, L_codeend-L_pc-16, v2')
    o('s_and_saveexec_b64 s[98:99], vcc')
    o('s_cbranch_execz L_nopf2')
    o('global_load_dwordx4 v[240:243], v2, s[12:13]')
    lab('L_nopf2')
    o('s_mov_b64 exec, -1')
    lab('L_nopf')
o('v_lshlrev_b32 v17, 3, v0'); o('v_mov_b32 v20, 0'); o('v_mov_b32 v21, 0')
o('ds_write_b64 v17, v[20:21]')
o(f's_and_b32 s{sS}, s2, 7'); o(f's_lshr_b32 s{sS}, s{sS}, 1')
o(f's_lshr_b32 s{sR}, s2, 3'); o(f's_lshl_b32 s{sR}, s{sR}, 1'); o(f's_and_b32 s{sA}, s2, 1'); o(f's_or_b32 s{sR}, s{sR}, s{sA}')
o(f's_mul_i32 s{sNB}, s{sR}, {RN}')
o(f's_sub_u32 s{sNV}, {N}, s{sNB}'); o(f's_min_u32 s{sNV}, s{sNV}, {RN}')
if PROF: o('v_mov_b32 v255, 0')
for _v in (56,57,58,59,60,61,62,63,240,241,242,243): o(f'v_mov_b32 v{_v}, 0')
o(f's_mul_i32 s{sROT}, s{sS}, 5'); o(f's_add_u32 s{sROT}, s{sROT}, 1'); o(f's_lshr_b32 s{sROT}, s{sROT}, 1')
o(f's_lshr_b32 s{sWROT}, s2, 3')
o(f's_mov_b32 s{sM}, 0xffffff00')
def build_common():
    srd(rOUT,sOUT,N*512)
    o(f's_mul_i32 s{sA}, s{sS}, {SLICE}')
    o(f's_add_u32 s{rTW}, s{sWS}, s{sA}'); o(f's_addc_u32 s{rTW+1}, s{sWS+1}, 0')
    o(f's_add_u32 s{sA}, s{sNB}, s{sNV}'); o(f's_lshl_b32 s{rTW+2}, s{sA}, 8'); o(f's_mov_b32 s{rTW+3}, 0x20000')
    o(f's_mov_b32 s{rTR}, s{rTW}'); o(f's_mov_b32 s{rTR+1}, s{rTW+1}'); o(f's_mov_b32 s{rTR+2}, {(N+1)*256}'); o(f's_mov_b32 s{rTR+3}, 0x20000')
    srd_off(rSEG,sWS,WS_SEGT,0x21000)
    o(f's_add_u32 s{sEP}, s{sWS}, {WS_EPOCH}'); o(f's_addc_u32 s{sEP+1}, s{sWS+1}, 0')
    o(f's_load_dword s{sNONCE}, {sr(sEP,2)}, 0')
def wc_load():
    o('v_and_b32 v17, 7, v1'); o('v_lshlrev_b32 v17, 3, v17')
    o(f's_lshl_b32 s{sA}, s{sS}, 7'); o(f'v_add_u32 v17, s{sA}, v17')
    srd(rREC,sWC,512)
    o(f'buffer_load_dwordx2 v[250:251], v17, {sr(rREC,4)}, 0 offen')
    o(f'buffer_load_dwordx2 v[252:253], v17, {sr(rREC,4)}, 0 offen offset:64')
def wvoff(dst, wexpr_s):
    o('v_lshrrev_b32 v17, 3, v1')
    o(f's_lshl_b32 s{sA}, s{wexpr_s}, 3'); o(f'v_add_u32 v17, s{sA}, v17')
    o('v_bfe_u32 v20, v1, 4, 1')
    o(f's_and_b32 s{sA}, s{wexpr_s}, 1'); o(f's_lshl_b32 s{sA}, s{sA}, 1'); o(f'v_or_b32 v20, s{sA}, v20')
    o('v_bfe_u32 v19, v1, 1, 2'); o('v_xor_b32 v19, v19, v20'); o('v_lshlrev_b32 v19, 1, v19')
    o('v_and_b32 v20, 1, v1'); o('v_or_b32 v19, v19, v20')
    o('v_lshlrev_b32 v19, 4, v19'); o('v_lshl_add_u32 v19, v17, 9, v19')
    o(f's_lshl_b32 s{sA}, s{sS}, 7'); o(f'v_add_u32 v{dst}, s{sA}, v19')
o(f's_cmp_ge_u32 s{sW}, 4')
o('s_cbranch_scc1 L_e0')
o('v_lshrrev_b32 v17, 5, v1')
o(f's_lshl_b32 s{sA}, s{sW}, 1'); o(f'v_add_u32 v17, s{sA}, v17')
o('v_and_b32 v18, 31, v1'); o('v_and_b32 v19, 15, v17'); o('v_xor_b32 v22, v18, v19')
o('v_lshlrev_b32 v22, 4, v22'); o('v_lshl_add_u32 v22, v17, 9, v22')
o('v_add_u32 v17, 8, v17'); o('v_and_b32 v19, 15, v17'); o('v_xor_b32 v23, v18, v19')
o('v_lshlrev_b32 v23, 4, v23'); o('v_lshl_add_u32 v23, v17, 9, v23')
wvoff(249,sW)
o('s_waitcnt lgkmcnt(0)')
o('s_barrier')
stamp(0)
if 'stlb' in OPT:
    def touch(base, off_s=None, off_i=0):
        if off_s is None and off_i==0:
            o(f's_load_dword s13, {sr(base,2)}, 0'); return
        if off_s is not None:
            o(f's_add_u32 s14, s{base}, s{off_s}'); o(f's_addc_u32 s15, s{base+1}, 0')
            if off_i: o(f's_add_u32 s14, s14, {off_i}'); o('s_addc_u32 s15, s15, 0')
        else:
            o(f's_add_u32 s14, s{base}, {off_i}'); o(f's_addc_u32 s15, s{base+1}, 0')
        o('s_load_dword s13, s[14:15], 0')
    o(f's_lshl_b32 s3, s{sNB}, 9')
    touch(sX,3); touch(sWB); touch(sWV); touch(sWA); touch(sWU); touch(sOUT,3)
    touch(sWS,None,WS_RECS)
    o(f's_mul_i32 s3, s{sS}, {SLICE}')
    touch(sWS,3); touch(sWS,3,0x100000); touch(sWS,3,0x200000); touch(sWS,3,SLICE-256)
wc_load()
srd(rX,sX,N*512); srd(rW1,sWB,131072); srd(rW2,sWV,131072)
o(f's_lshl_b32 s{sC_}, s{sW}, 10')
o(f's_mov_b32 s{sTL}, s{sROT}')
o(f's_mov_b32 s{sI}, 0')
lab('L_dmaw')
o(f's_add_u32 s{sA}, s{sI}, s{sWROT}'); o(f's_and_b32 s{sA}, s{sA}, 7')
o(f's_lshl_b32 s{sB}, s{sA}, 14'); o(f's_lshl_b32 s{sA}, s{sA}, 12'); o(f's_add_u32 s{sA}, s{sA}, s{sC_}')
o(f's_add_u32 m0, s{sA}, {WR}'); o('s_nop 0')
o(f'buffer_load_dwordx4 v249, {sr(rW1,4)}, s{sB} offen lds')
o(f's_add_u32 m0, s{sA}, {WR+32768}'); o('s_nop 0')
o(f'buffer_load_dwordx4 v249, {sr(rW2,4)}, s{sB} offen lds')
o('s_waitcnt vmcnt(%s)' % OPT.get('pace','8'))
o(f's_add_u32 s{sI}, s{sI}, 1'); o(f's_cmp_lt_u32 s{sI}, 8'); o('s_cbranch_scc1 L_dmaw')
def xloop(lo,hi,name):
    o(f's_mov_b32 s{sI}, {lo}')
    lab(name)
    o(f's_lshr_b32 s{sTL}, s{sI}, 1'); o(f's_and_b32 s{sA}, s{sI}, 1'); o(f's_mul_i32 s{sA}, s{sA}, 5'); o(f's_add_u32 s{sTL}, s{sTL}, s{sA}')
    o(f's_lshl_b32 s{sA}, s{sTL}, 13'); o(f's_add_u32 s{sD}, s{sA}, s{sC_}'); o(f's_add_u32 m0, s{sD}, {XT}')
    o(f's_lshl_b32 s{sB}, s{sNB}, 9'); o(f's_add_u32 s{sB}, s{sB}, s{sA}')
    o(f'buffer_load_dwordx4 v22, {sr(rX,4)}, s{sB} offen lds')
    o(f's_add_u32 m0, s{sD}, {XT+4096}'); o('s_nop 0')
    o(f'buffer_load_dwordx4 v23, {sr(rX,4)}, s{sB} offen lds')
    o('s_waitcnt vmcnt(%s)' % OPT.get('pace','8'))
    o(f's_add_u32 s{sI}, s{sI}, 1'); o(f's_cmp_lt_u32 s{sI}, {hi}'); o(f's_cbranch_scc1 {name}')
xloop(0,4,'L_dmax1')
stamp(19)
build_common()
srd(rDST,sDST,E*4); srd(rSRC,sSRC,E*4); srd(rEA,sEA,E*2); srd_off(rREC,sWS,WS_RECS,256*CHCAP*8)
WF,AF,ACC,XA,XC,TRA,TOF,AUA=64,192,224,56,60,240,241,242
o(f's_and_b32 s{sD}, s{sW}, 1'); o(f's_lshl_b32 s{sD}, s{sD}, 1')
o('v_lshrrev_b32 v17, 4, v1')
o('v_bfe_u32 v18, v1, 2, 2')
o('v_lshl_add_u32 v19, v17, 3, v18')
o('v_lshlrev_b32 v19, 7, v19')
o('v_bfe_u32 v20, v1, 3, 1')
o('v_and_b32 v21, 1, v17'); o('v_lshl_or_b32 v20, v21, 1, v20')
o(f'v_xor_b32 v20, s{sD}, v20')
o('v_and_b32 v21, 3, v1'); o('v_lshl_add_u32 v19, v21, 3, v19'); o(f'v_add_u32 v19, {WR}, v19')
o(f'v_lshl_add_u32 v{TRA}, v20, 5, v19')
o('v_xor_b32 v20, 1, v20'); o(f'v_lshl_add_u32 v{TRA+3}, v20, 5, v19')
def wfrags():
    for m in range(2):
        for t in range(2):
            for ks in range(8):
                r=WF+64*m+32*t+4*ks; a=TRA if t==0 else TRA+3
                o(f'ds_read_b64_tr_b16 {vr(r,2)}, v{a} offset:{m*32768+ks*4096}')
                o(f'ds_read_b64_tr_b16 {vr(r+2,2)}, v{a} offset:{m*32768+ks*4096+512}')
o('v_and_b32 v18, 15, v1')
for k in range(4):
    o(f'v_and_b32 v19, 12, v18'); o(f'v_xor_b32 v19, {4*k}, v19')
    o('v_and_b32 v20, 3, v18'); o('v_xor_b32 v20, v20, v17')
    o('v_add_u32 v19, v19, v20'); o('v_lshlrev_b32 v19, 4, v19')
    o(f'v_lshl_add_u32 v{XA+k}, v18, 9, v19')
    o(f'v_add_u32 v{XA+k}, {XT}, v{XA+k}')
o('v_lshlrev_b32 v19, 10, v17')
o(f's_lshl_b32 s{sA}, s{sD}, 6')
o('v_lshl_add_u32 v19, v18, 2, v19'); o(f'v_add_u32 v{TOF}, s{sA}, v19')
o(f's_lshr_b32 s{sROT}, s{sW}, 1'); o(f's_mul_i32 s{sROT}, s{sROT}, 5')

o('s_waitcnt vmcnt(8) lgkmcnt(0)')
o(f's_mul_i32 s{sNONCE}, s{sNONCE}, 0x9E3779B1'); o(f's_add_u32 s{sNONCE}, s{sNONCE}, 0x7F4A7C15')
lds_inc(C_X,244)
lds_spin(C_X,4,244)
stamp(2)
wfrags()
o('s_waitcnt lgkmcnt(0)')
o(f's_lshl_b32 s{sC_}, s{sW}, 10')
lds_inc(C_W,244)
lds_spin(C_W,4,244)
srd(rW1,sWA,131072); srd(rW2,sWU,131072)
o(f's_mov_b32 s{sI}, 0')
lab('L_dmau')
o(f's_add_u32 s{sA}, s{sI}, s{sWROT}'); o(f's_and_b32 s{sA}, s{sA}, 7')
o(f's_lshl_b32 s{sB}, s{sA}, 14'); o(f's_lshl_b32 s{sA}, s{sA}, 12'); o(f's_add_u32 s{sA}, s{sA}, s{sC_}')
o(f's_add_u32 m0, s{sA}, {WR}'); o('s_nop 0')
o(f'buffer_load_dwordx4 v249, {sr(rW1,4)}, s{sB} offen lds')
o(f's_add_u32 m0, s{sA}, {WR+32768}'); o('s_nop 0')
o(f'buffer_load_dwordx4 v249, {sr(rW2,4)}, s{sB} offen lds')
o('s_waitcnt vmcnt(%s)' % OPT.get('pace','8'))
o(f's_add_u32 s{sI}, s{sI}, 1'); o(f's_cmp_lt_u32 s{sI}, 8'); o('s_cbranch_scc1 L_dmau')
xloop(4,10,'L_dmax2')
lds_inc(C_G1,244)
stamp(3)
o('s_waitcnt vmcnt(8)')
lds_inc(C_X1,244)
lds_spin(C_X1,4,244)
stamp(4)
o('s_branch L_g_gemm')
lab('L_e0')
if 'noprio' not in OPT: o('s_setprio 2')
o('v_subrev_u32 v14, 256, v0')
o(f's_mul_i32 s{sA}, s2, {CH}')
o(f'v_add_u32 v15, s{sA}, v14')
o('v_lshlrev_b32 v16, 1, v15'); o('v_lshlrev_b32 v15, 2, v15')
o(f'v_cmp_gt_u32 vcc, {CH-512}, v14')
o('v_add_u32 v18, 2048, v15'); o('v_add_u32 v19, 1024, v16')
o('v_mov_b32 v17, 0x40000000')
o('v_cndmask_b32 v18, v17, v18, vcc'); o('v_cndmask_b32 v19, v17, v19, vcc')
o('s_waitcnt lgkmcnt(0)')
ED,ES,EE=2,5,8
srd(rDST,sDST,E*4)
o(f'buffer_load_dword v{ED}, v15, {sr(rDST,4)}, 0 offen')
o(f'buffer_load_dword v{ED+1}, v15, {sr(rDST,4)}, 0 offen offset:1024')
o(f'buffer_load_dword v{ED+2}, v18, {sr(rDST,4)}, 0 offen')
srd(rSRC,sSRC,E*4)
o(f'buffer_load_dword v{ES}, v15, {sr(rSRC,4)}, 0 offen')
o(f'buffer_load_dword v{ES+1}, v15, {sr(rSRC,4)}, 0 offen offset:1024')
o(f'buffer_load_dword v{ES+2}, v18, {sr(rSRC,4)}, 0 offen')
srd(rEA,sEA,E*2)
o(f'buffer_load_ushort v{EE}, v16, {sr(rEA,4)}, 0 offen')
o(f'buffer_load_ushort v{EE+1}, v16, {sr(rEA,4)}, 0 offen offset:512')
o(f'buffer_load_ushort v{EE+2}, v19, {sr(rEA,4)}, 0 offen')
o('s_barrier')
stamp(0)
wc_load()
srd(rW1,sWA,131072); srd(rW2,sWU,131072)
o('s_lshr_b32 s3, s2, 3'); o('s_lshl_b32 s3, s3, 12')
o('v_lshrrev_b32 v17, 3, v1'); o('v_lshlrev_b32 v17, 9, v17'); o('v_and_b32 v19, 7, v1'); o('v_lshl_add_u32 v17, v19, 4, v17')
o(f's_lshl_b32 s{sA}, s{sS}, 7'); o(f'v_add_u32 v17, s{sA}, v17')
l=U('wu')
if 'nowu' not in OPT:
    o(f's_cmp_lg_u32 s{sW}, 4'); o(f's_cbranch_scc1 {l}_a')
    o(f'buffer_load_dwordx4 v[240:243], v17, {sr(rW1,4)}, s3 offen')
    lab(l+'_a')
    o(f's_cmp_lg_u32 s{sW}, 5'); o(f's_cbranch_scc1 {l}_b')
    o(f'buffer_load_dwordx4 v[240:243], v17, {sr(rW2,4)}, s3 offen')
    lab(l+'_b')
build_common()
srd(rX,sX,N*512); srd_off(rREC,sWS,WS_RECS,256*CHCAP*8)
if 'notlb' not in OPT:
    o(f's_cmp_lg_u32 s{sW}, 6'); o(f's_cbranch_scc1 {l}_c')
    o('v_lshlrev_b32 v17, 20, v1'); o('v_cmpx_gt_u32 vcc, 3, v1')
    o(f'buffer_load_dword v244, v17, {sr(rTR,4)}, 0 offen')
    o('s_mov_b64 exec, -1')
    lab(l+'_c')
    o(f's_cmp_lg_u32 s{sW}, 7'); o(f's_cbranch_scc1 {l}_d')
    o(f's_lshl_b32 s{sA}, s{sNB}, 9')
    o(f'buffer_load_dword v244, v{VZ}, {sr(rOUT,4)}, s{sA} offen')
    o(f'buffer_load_dword v245, v{VZ}, {sr(rREC,4)}, 0 offen')
    lab(l+'_d')
wvoff(249,sW)
o('v_subrev_u32 v247, 16384, v249')
o('s_waitcnt vmcnt(%d)' % (2 if ('nowu' in OPT or 'notlb' in OPT) else 3))
stamp(22)
o(f's_mov_b32 s{sA}, 106862')
RR,RK_,RW=36,24,28
for k in range(3):
    o(f'v_mul_lo_u32 v{RR+k}, v{ED+k}, s{sA}')
for k in range(3):
    o(f'v_lshrrev_b32 v{RR+k}, 24, v{RR+k}')
    o(f'v_mul_u32_u24 v17, {RN}, v{RR+k}'); o(f'v_sub_u32 v17, v{ED+k}, v17')
    o(f'v_lshl_or_b32 v{RW+2*k}, v{ES+k}, 8, v17'); o(f'v_lshlrev_b32 v{RW+2*k+1}, 16, v{EE+k}')
    o(f'v_lshlrev_b32 v{RR+k}, 2, v{RR+k}')
o('v_mov_b32 v16, 1')
o(f'ds_add_rtn_u32 v{RK_}, v{RR}, v16 offset:{HIST1}')
o(f'ds_add_rtn_u32 v{RK_+1}, v{RR+1}, v16 offset:{HIST1}')
o(f'v_cmpx_gt_u32 vcc, {CH-512}, v14')
o(f'ds_add_rtn_u32 v{RK_+2}, v{RR+2}, v16 offset:{HIST1}')
o('s_mov_b64 exec, -1')
o('s_waitcnt lgkmcnt(0)')
o(f's_mul_i32 s{sNONCE}, s{sNONCE}, 0x9E3779B1'); o(f's_add_u32 s{sNONCE}, s{sNONCE}, 0x7F4A7C15')
lds_inc(C_H,17)
lds_spin(C_H,4,17)
o('v_lshlrev_b32 v17, 2, v1')
o(f'ds_read_b32 v20, v17 offset:{HIST1}')
o('s_waitcnt lgkmcnt(0)')
o('v_add_u32 v21, 1, v20'); o('v_and_b32 v21, -2, v21'); o('v_mov_b32 v22, v21')
scan64(21)
o('v_sub_u32 v22, v21, v22')
for k in range(3): o(f'ds_bpermute_b32 v{RR+k}, v{RR+k}, v22')
o('s_waitcnt lgkmcnt(0)')
for k in range(3): o(f'v_add_lshl_u32 v{RR+k}, v{RR+k}, v{RK_+k}, 3')
for k in range(3): o(f'v_add_u32 v{RR+k}, {RST}, v{RR+k}')
o(f'ds_write_b64 v{RR}, {vr(RW,2)}')
o(f'ds_write_b64 v{RR+1}, {vr(RW+2,2)}')
o(f'v_cmpx_gt_u32 vcc, {CH-512}, v14')
o(f'ds_write_b64 v{RR+2}, {vr(RW+4,2)}')
o('s_mov_b64 exec, -1')
o('s_waitcnt lgkmcnt(0)')
lds_inc(C_S,17)
lds_spin(C_S,4,17)
o('v_lshlrev_b32 v17, 4, v14'); o(f'v_add_u32 v18, {RST}, v17')
if 'delay' in OPT: lds_spin(C_X2,4,36)
o('ds_read_b128 v[28:31], v18'); o('ds_read_b128 v[32:35], v18 offset:4096')
o(f's_mul_i32 s{sA}, s2, {CHCAP*8}'); o(f's_add_u32 s{sB}, s{sA}, 4096')
o(f's_and_b32 s{sC_}, s{sNONCE}, 0xffff'); o(f's_lshr_b32 s{sD}, s{sNONCE}, 16')
o('v_mov_b32 v19, 0xffff0000')
o('s_waitcnt lgkmcnt(0)')
o(f'v_and_or_b32 v29, v29, v19, s{sC_}'); o(f'v_and_or_b32 v31, v31, v19, s{sD}')
o(f'v_and_or_b32 v33, v33, v19, s{sC_}'); o(f'v_and_or_b32 v35, v35, v19, s{sD}')
if 'noEst' not in OPT:
    o(f'buffer_store_dwordx4 v[28:31], v17, {sr(rREC,4)}, s{sA} offen sc1')
    o(f'v_cmpx_gt_u32 vcc, {(CHCAP*8-4096)//16}, v14')
    o(f'buffer_store_dwordx4 v[32:35], v17, {sr(rREC,4)}, s{sB} offen sc1')
    o('s_mov_b64 exec, -1')
stamp(2)
l=U('nopub')
if 'noEst' in OPT: o(f's_branch {l}')
o(f's_cmp_lg_u32 s{sW}, 4'); o(f's_cbranch_scc1 {l}')
o('v_lshl_or_b32 v24, v20, 16, v22'); o(f'v_mov_b32 v25, s{sNONCE}')
o('v_lshlrev_b32 v17, 11, v1')
o(f's_lshl_b32 s{sA}, s2, 3')
o(f'buffer_store_dwordx2 v[24:25], v17, {sr(rSEG,4)}, s{sA} offen sc1')
lab(l)
stamp(3)
stamp(4)
o('s_branch L_main_setup' if 'xE' in OPT else 's_branch L_eteam_b')
lab('L_g_gemm')
if 'gprio' in OPT: o('s_setprio 3')
sTE=11
sTC=12
def xread(ks): return f'ds_read_b128 {vr(AF+4*ks,4)}, v{XC+(ks&3)} offset:{256 if ks>=4 else 0}'
def epi_list(which,a,t):
    e=[]
    for i in range(4): e.append(f'v_mul_f32 v{a+i}, {NLOG2E:#x}, v{a+i}')
    for i in range(4): e.append(f'v_cvt_pk_bf16_f32 v{a+i}, v{a+i}, v{a+4+i}')
    if which==1:
        for i in range(4): e.append(f'buffer_store_dword v{a+i}, v{TOF}, {sr(rTW,4)}, s{sB if t==1 else sD} offen offset:{i*256+64*t} sc1')
    else:
        for i in range(4): e.append(f'ds_write_b32 v{AUA if t==1 else AUA+2}, v{a+i} offset:{i*256+64*t}')
    return e
def addr_ops(which,tile_s,t):
    dst = sB if t==1 else sD
    if which==1: return [f's_lshl_b32 s{dst}, s{tile_s}, 4', f's_add_u32 s{dst}, s{dst}, s{sNB}', f's_lshl_b32 s{dst}, s{dst}, 8']
    return [f's_lshl_b32 s{dst}, s{tile_s}, 12', f's_add_u32 s{dst}, s{dst}, {AU}', f'v_add_u32 v{AUA if t==1 else AUA+2}, s{dst}, v{TOF}']
sTO=[13,14,15,46,47]
PK=8
def gemm_body(which, j):
    B0,V0,B1,V1=ACC,ACC+4,ACC+8,ACC+12
    if which==1:
        def epi1(a,jj,t):
            e=[f'v_mul_f32 v{a+i}, {NLOG2E:#x}, v{a+i}' for i in range(4)]
            e+=[f'v_cvt_pk_bf16_f32 v{PK+8*jj+4*t+i}, v{a+i}, v{a+4+i}' for i in range(4)]
            return e
        eP1=epi1(B1,j-1,1) if j>0 else []; eP0=epi1(B0,j,0)
        a1=[]; a0=[]
    else:
        eP1=epi_list(2,B1,1); eP0=epi_list(2,B0,0)
        a1=addr_ops(2,sTE,1); a0=addr_ops(2,sTC,0)
    fill=[[] for _ in range(16)]
    if which==2:
        fill[0]+=a1[0:2]; fill[1]+=a1[2:3]+a0[0:1]; fill[2]+=a0[1:3]
        fill[3]+=eP1[0:3]; fill[4]+=eP1[3:6]; fill[5]+=eP1[6:9]; fill[6]+=eP1[9:11]; fill[7]+=eP1[11:12]
    elif eP1:
        fill[3]+=eP1[0:2]; fill[4]+=eP1[2:4]; fill[5]+=eP1[4:6]; fill[6]+=eP1[6:8]
    if not (which==1 and j==4):
        for ks in range(8): fill[8+ks].append(xread(ks))
    if which==2:
        fill[11]+=eP0[0:3]; fill[12]+=eP0[3:6]; fill[13]+=eP0[6:9]; fill[14]+=eP0[9:11]; fill[15]+=eP0[11:12]
        tail=[f's_mov_b32 s{sTE}, s{sTC}', f's_add_u32 s{sTC}, s{sTC}, 1', f's_add_u32 s{sA}, s{sTC}, 1', f's_lshl_b32 s{sA}, s{sA}, 13']
        fill[9]+=tail[0:2]; fill[10]+=tail[2:4]
    else:
        fill[11]+=eP0[0:2]; fill[12]+=eP0[2:4]; fill[13]+=eP0[4:6]; fill[14]+=eP0[6:8]
        fill[9]+=[f's_add_u32 s{sTC}, s{sTC}, 8192']
    seq=[]
    for sl in range(16):
        for t in fill[sl]:
            if t.startswith('ds_read'): seq.append((sl,'r'))
            elif t.startswith('ds_write'): seq.append((sl,'w'))
    def waitcount(ks):
        if which==1: return 7-ks
        n=0; found=False; k=-1
        for (sl,kind) in seq:
            if kind=='r':
                k+=1
                if k==ks: found=True; continue
            if found: n+=1
        for (sl,kind) in seq:
            if sl<ks: n+=1
        return n
    for ph in range(2):
        for ks in range(8):
            ab,av=(B0,V0) if ph==0 else (B1,V1)
            wb=WF+32*ph+4*ks; wv=WF+64+32*ph+4*ks
            if ph==0: o(f's_waitcnt lgkmcnt({min(waitcount(ks),15)})')
            c1='0' if ks==0 else vr(ab,4); c2='0' if ks==0 else vr(av,4)
            f=fill[8*ph+ks]
            o(f'v_mfma_f32_16x16x32_bf16 {vr(ab,4)}, {vr(AF+4*ks,4)}, {vr(wb,4)}, {c1}')
            h=(len(f)+1)//2 if ph==0 else 0
            for t in f[:h]: o(t)
            o(f'v_mfma_f32_16x16x32_bf16 {vr(av,4)}, {vr(AF+4*ks,4)}, {vr(wv,4)}, {c2}')
            for t in f[h:]: o(t)
    if which==2:
        for k in range(4): o(f'v_add_u32 v{XC+k}, s{sA}, v{XA+k}')
    elif j<3:
        for k in range(4): o(f'v_add_u32 v{XC+k}, s{sTC}, v{XA+k}')
def table_stores():
    for j in range(5):
        o(f's_add_u32 s{sB}, s{sROT}, {j}'); o(f's_lshl_b32 s{sB}, s{sB}, 4'); o(f's_add_u32 s{sB}, s{sB}, s{sNB}'); o(f's_lshl_b32 s{sB}, s{sB}, 8')
        for t in range(2):
            for i in range(4):
                o(f'buffer_store_dword v{PK+8*j+4*t+i}, v{TOF}, {sr(rTW,4)}, s{sB} offen offset:{i*256+64*t} sc1')
def gemm1():
    o(f's_lshl_b32 s{sTC}, s{sROT}, 13')
    for k in range(4): o(f'v_add_u32 v{XC+k}, s{sTC}, v{XA+k}')
    for ks in range(8): o(xread(ks))
    o(f's_add_u32 s{sTC}, s{sTC}, 8192')
    for k in range(4): o(f'v_add_u32 v{XC+k}, s{sTC}, v{XA+k}')
    o('s_waitcnt lgkmcnt(0)')
    for j in range(5):
        if j==1:
            o('s_waitcnt vmcnt(0)')
            lds_inc(C_X2,244)
            o('s_waitcnt lgkmcnt(0)')
        if j==2:
            lds_spin(C_X2,4,244)
        gemm_body(1,j)
    o('s_nop 7')
    for i in range(4): o(f'v_mul_f32 v{ACC+8+i}, {NLOG2E:#x}, v{ACC+8+i}')
    for i in range(4): o(f'v_cvt_pk_bf16_f32 v{PK+32+4+i}, v{ACC+8+i}, v{ACC+12+i}')
def dummy_row():
    l=U('nodummy')
    o(f's_cmp_lg_u32 s{sR}, 63'); o(f's_cbranch_scc1 {l}')
    o(f's_cmp_lg_u32 s{sW}, 0'); o(f's_cbranch_scc1 {l}')
    o('v_mov_b32 v244, 0x7f7f'); o('v_lshlrev_b32 v245, 2, v1'); o(f'v_add_u32 v245, {N*256}, v245')
    o(f'buffer_store_dword v244, v245, {sr(rTR,4)}, 0 offen sc1')
    lab(l)
def own_prefetch(dst):
    o(f's_lshl_b32 s{sA}, s{sNB}, 8'); o(f's_mul_i32 s{sB}, s{sW}, 10240'); o(f's_add_u32 s{sA}, s{sA}, s{sB}')
    o('v_lshlrev_b32 v243, 4, v1')
    for i in range(10):
        o(f'buffer_load_dwordx4 {dst}, v243, {sr(rTW,4)}, s{sA} offen sc1')
        o(f's_add_u32 s{sA}, s{sA}, 1024')
def gemm2():
    B0,V0,B1,V1=ACC,ACC+4,ACC+8,ACC+12
    for j in range(5):
        o(f's_add_u32 s{sTO[j]}, s{sROT}, {j}'); o(f's_lshl_b32 s{sTO[j]}, s{sTO[j]}, 4'); o(f's_add_u32 s{sTO[j]}, s{sTO[j]}, s{sNB}'); o(f's_lshl_b32 s{sTO[j]}, s{sTO[j]}, 8')
    o(f's_lshl_b32 s{sTC}, s{sROT}, 13')
    for k in range(4): o(f'v_add_u32 v{XC+k}, s{sTC}, v{XA+k}')
    for ks in range(8): o(xread(ks))
    o(f's_add_u32 s{sTC}, s{sTC}, 8192')
    for k in range(4): o(f'v_add_u32 v{XC+k}, s{sTC}, v{XA+k}')
    o(f's_lshl_b32 s{sA}, s{sROT}, 12'); o(f's_add_u32 s{sA}, s{sA}, {AU}'); o(f'v_add_u32 v{AUA}, s{sA}, v{TOF}')
    o('s_waitcnt lgkmcnt(0)')
    def epi(a,jj,t):
        e=[f'v_mul_f32 v{a+i}, {NLOG2E:#x}, v{a+i}' for i in range(4)]
        e+=[f'v_cvt_pk_bf16_f32 v{a+i}, v{a+i}, v{a+4+i}' for i in range(4)]
        e+=[f'ds_write_b32 v{AUA}, v{a+i} offset:{jj*4096+i*256+64*t}' for i in range(4)]
        return e
    def tst(jj): return [f'buffer_store_dword v{PK+8*jj+4*t+i}, v{TOF}, {sr(rTW,4)}, s{sTO[jj]} offen offset:{i*256+64*t} sc1' for t in range(2) for i in range(4)]
    stores={0:tst(0)+tst(1),1:tst(2)+tst(3),2:tst(4),3:[],4:[]}
    prev_tail=0
    for j in range(5):
        eP1=epi(B1,j-1,1) if j>0 else []; eP0=epi(B0,j,0)
        fill=[[] for _ in range(16)]
        if eP1:
            fill[3]+=eP1[0:3]; fill[4]+=eP1[3:6]; fill[5]+=eP1[6:9]; fill[6]+=eP1[9:11]; fill[7]+=eP1[11:12]
        if j<4:
            for ks in range(8): fill[8+ks].append(xread(ks))
        fill[11]+=eP0[0:3]; fill[12]+=eP0[3:6]; fill[13]+=eP0[6:9]; fill[14]+=eP0[9:11]; fill[15]+=eP0[11:12]
        if j<3: fill[9]+=[f's_add_u32 s{sTC}, s{sTC}, 8192']
        st=list(stores[j])
        for sl in range(16):
            if st: fill[sl].append(st.pop(0))
        seq=[(sl,('r' if t.startswith('ds_read') else 'w')) for sl in range(16) for t in fill[sl] if t.startswith('ds_')]
        for ph in range(2):
            for ks in range(8):
                ab,av=(B0,V0) if ph==0 else (B1,V1)
                wb=WF+32*ph+4*ks; wv=WF+64+32*ph+4*ks
                if ph==0 and j>0:
                    n=0; found=False; k=-1
                    for (sl,kind) in prevseq:
                        if kind=='r':
                            k+=1
                            if k==ks: found=True; continue
                        if found: n+=1
                    n+=sum(1 for (sl,kind) in seq if sl<ks)
                    o(f's_waitcnt lgkmcnt({min(n,15)})')
                c1='0' if ks==0 else vr(ab,4); c2='0' if ks==0 else vr(av,4)
                f=fill[8*ph+ks]
                o(f'v_mfma_f32_16x16x32_bf16 {vr(ab,4)}, {vr(AF+4*ks,4)}, {vr(wb,4)}, {c1}')
                h=(len(f)+1)//2 if ph==0 else 0
                for t in f[:h]: o(t)
                o(f'v_mfma_f32_16x16x32_bf16 {vr(av,4)}, {vr(AF+4*ks,4)}, {vr(wv,4)}, {c2}')
                for t in f[h:]: o(t)
        if j<3:
            for k in range(4): o(f'v_add_u32 v{XC+k}, s{sTC}, v{XA+k}')
        prevseq=seq
        if j==int(OPT.get('f2it','3')):
            l=U('nf2')
            o('s_waitcnt vmcnt(0)')
            lds_inc(C_T,244,ret=True)
            o(f's_cmp_lg_u32 s{sA}, 3'); o(f's_cbranch_scc1 {l}')
            o('s_mov_b64 exec, 1')
            for i in range(4): o(f'v_mov_b32 v{244+i}, s{sNONCE}')
            o(f's_lshl_b32 s{sA}, s{sS}, 6'); o(f's_add_u32 s{sA}, s{sA}, s{sR}'); o(f's_lshl_b32 s{sA}, s{sA}, 4')
            o(f's_add_u32 s{sA}, s{sA}, {SEGT_FLAG2}')
            o(f'buffer_store_dwordx4 v[244:247], v{VZ}, {sr(rSEG,4)}, s{sA} offen sc1')
            o('s_mov_b64 exec, -1')
            lab(l)
            if 'preat' in OPT:
                o('s_nop 1'); own_prefetch('v[244:247]')
    o('s_nop 7')
    for t in epi(B1,4,1): o(t)
    if 'nopre' not in OPT and 'preat' not in OPT:
        own_prefetch('v[232:235]' if 'nowait' in OPT else 'v[44:47]')
    if 'preout' in OPT:
        o('v_lshrrev_b32 v245, 3, v1'); o('v_lshlrev_b32 v245, 9, v245'); o('v_and_b32 v246, 7, v1'); o('v_lshl_add_u32 v245, v246, 4, v245')
        o(f's_mul_i32 s{sB}, s{sW}, {40*512}'); o(f's_lshl_b32 s{sA}, s{sNB}, 9'); o(f's_add_u32 s{sA}, s{sA}, s{sB}')
        o(f's_lshl_b32 s{sB}, s{sS}, 7'); o(f's_add_u32 s{sA}, s{sA}, s{sB}')
        for i in range(5):
            o(f'buffer_load_dwordx4 v[44:47], v245, {sr(rOUT,4)}, s{sA} offen')
            o(f's_add_u32 s{sA}, s{sA}, {8*512}')
gemm1()
stamp(5)
wfrags()
o('s_waitcnt lgkmcnt(0)')
lds_inc(C_G,244)
lds_spin(C_G,4,244)
stamp(18)
if 'xE' not in OPT and 'nogate' not in OPT: lds_spin(C_RL,4,244)
dummy_row()
stamp(6)
gemm2()
o('s_waitcnt lgkmcnt(0)')
stamp(7)
o('s_branch L_main_setup')
lab('L_eteam_b')
SG,RC0,RC1,SA,RKB=64,80,112,144,200
T=176
o(f's_sub_u32 s{sC_}, s{sW}, 4')
o('v_lshrrev_b32 v17, 3, v1')
o(f's_lshl_b32 s{sA}, s{sC_}, 3'); o(f'v_add_u32 v17, s{sA}, v17')
o(f'v_lshlrev_b32 v{T}, 3, v17')
o('v_and_b32 v18, 7, v1')
o(f'v_mul_u32_u24 v{T+1}, {CHCAP*8}, v17'); o(f'v_lshl_add_u32 v{T+1}, v18, 4, v{T+1}')
IX=T+2
o(f'v_lshlrev_b32 v{IX}, 1, v18'); o(f'v_add_u32 v{IX+1}, 1, v{IX}'); o(f'v_add_u32 v{IX+2}, 16, v{IX}'); o(f'v_add_u32 v{IX+3}, 17, v{IX}')
lds_spin(C_G1,4,17)
o(f's_lshl_b32 s{sD}, s{sR}, 11')
o(f's_mov_b32 s{sSP}, 0')
lp=U('poll1'); dn=U('poll1d')
lab(lp)
for p in range(8):
    o(f'buffer_load_dwordx2 {vr(SG+2*p,2)}, v{T}, {sr(rSEG,4)}, s{sD} offen offset:{p*256} sc1')
o(f'v_mov_b32 v19, s{sNONCE}')
o('s_waitcnt vmcnt(0)')
o(f'v_xor_b32 v20, v{SG+1}, v19')
for p in range(1,8):
    o(f'v_xor_b32 v21, v{SG+2*p+1}, v19'); o('v_or_b32 v20, v20, v21')
o('v_cmp_ne_u32 vcc, 0, v20')
o(f's_cbranch_vccz {dn}')
o('s_sleep 6')
o(f's_add_u32 s{sSP}, s{sSP}, 1'); o(f's_cmp_lt_u32 s{sSP}, 0x10000'); o(f's_cbranch_scc1 {lp}')
lab(dn)
stamp(5)
o('v_mov_b32 v20, 0')
for p in range(8):
    o(f'v_lshrrev_b32 v{SG+2*p+1}, 16, v{SG+2*p}')
    o(f'v_max_u32 v20, v20, v{SG+2*p+1}')
o('v_cmp_lt_u32 vcc, 32, v20')
l=U('nofb'); o(f's_cbranch_vccz {l}')
o('v_mov_b32 v21, 1'); o(f'ds_write_b32 v{VZ}, v21 offset:{C_FB}')
lab(l)
o(f's_mov_b32 s{sSP}, 0')
lr=U('recld'); dr=U('recok')
lab(lr)
for p in range(8):
    o(f'v_and_b32 v19, 0xffff, v{SG+2*p}')
    o(f'v_lshl_add_u32 v19, v19, 3, v{T+1}')
    o(f's_mov_b32 s{sA}, {p*32*CHCAP*8}')
    o(f'v_cmp_lt_u32 vcc, 16, v{SG+2*p+1}')
    o(f'buffer_load_dwordx4 {vr(RC0+4*p,4)}, v19, {sr(rREC,4)}, s{sA} offen sc1')
    l=U('ld1'); o(f's_cbranch_vccz {l}')
    o(f'buffer_load_dwordx4 {vr(RC1+4*p,4)}, v19, {sr(rREC,4)}, s{sA} offen offset:128 sc1')
    lab(l)
l=U('sig'); o(f's_cmp_lg_u32 s{sSP}, 0'); o(f's_cbranch_scc1 {l}_r')
lds_inc(C_RL,20)
o('s_waitcnt vmcnt(0)')
o(f's_branch {l}')
lab(l+'_r')
o('s_waitcnt vmcnt(0)')
lab(l)
o('v_mov_b32 v21, 0x05040100'); o('v_mov_b32 v22, 0'); o(f'v_mov_b32 v23, s{sNONCE}')
for p in range(8):
    for st in range(2):
        rec=(RC0 if st==0 else RC1)+4*p
        if st==1:
            l=U('v1'); o(f'v_cmp_lt_u32 vcc, 16, v{SG+2*p+1}'); o(f's_cbranch_vccz {l}')
        o(f'v_cmpx_lt_u32 vcc, v{IX+2*st}, v{SG+2*p+1}')
        o(f'v_perm_b32 v20, v{rec+3}, v{rec+1}, v21'); o('v_xor_b32 v20, v20, v23'); o('v_or_b32 v22, v22, v20')
        o('s_mov_b64 exec, -1')
        if st==1: lab(l)
o('v_cmp_ne_u32 vcc, 0, v22')
o(f's_cbranch_vccz {dr}')
o('s_sleep 2')
o(f's_add_u32 s{sSP}, s{sSP}, 1'); o(f's_cmp_lt_u32 s{sSP}, 0x10000'); o(f's_cbranch_scc1 {lr}')
lab(dr)
stamp(6)
def each_rec(fn):
    for p in range(8):
        for st in range(2):
            if st==1:
                l=U('st1'); o(f'v_cmp_lt_u32 vcc, 16, v{SG+2*p+1}'); o(f's_cbranch_vccz {l}')
            for i in range(2):
                rec=(RC0 if st==0 else RC1)+4*p+2*i
                o(f'v_cmpx_lt_u32 vcc, v{IX+2*st+i}, v{SG+2*p+1}')
                fn(rec, SA+4*p+2*st+i)
            o('s_mov_b64 exec, -1')
            if st==1: lab(l)
SD='dst_sel:DWORD dst_unused:UNUSED_PAD src0_sel:DWORD src1_sel:BYTE_0'
o('v_mov_b32 v22, 1'); o('v_mov_b32 v23, 64')
def f_hist(rec,sa):
    o(f'v_lshlrev_b32_sdwa v20, 2, v{rec} {SD}'); o(f'ds_add_rtn_u32 v{sa-SA+RKB}, v20, v22 offset:{DEG}')
each_rec(f_hist)
o('s_waitcnt lgkmcnt(0)')
lds_inc(C_E1,20)
stamp(7)
o(f's_cmp_lg_u32 s{sW}, 4')
o('s_cbranch_scc1 L_e_prefill')
lds_spin(C_E1,4,20)
D0,K0,P0=24,28,32
o('v_lshlrev_b32 v19, 2, v1')
for a in range(3): o(f'ds_read_b32 v{D0+a}, v19 offset:{DEG+a*256}')
perm=[]
for w in range(8): perm += ([w,w+4,11-w] if w<4 else [19-w,23-w]) if 'oldperm' not in OPT else ([w,15-w] + ([19-w] if w<4 else []))
o('v_mov_b32 v38, 31')
for i,g in enumerate(perm): o(f'v_writelane_b32 v38, {g}, {i}')
o('v_lshlrev_b32 v38, 2, v38')
o('v_sub_u32 v37, 252, v19')
o('s_waitcnt lgkmcnt(0)')
for a in range(3):
    o(f'v_min_u32 v{K0+a}, 63, v{D0+a}'); o(f'v_lshlrev_b32 v{K0+a}, 2, v{K0+a}')
    if a==2: o('v_cmpx_gt_u32 vcc, 32, v1')
    o(f'ds_add_rtn_u32 v{P0+a}, v{K0+a}, v22 offset:{HIST2}')
o('s_mov_b64 exec, -1')
o('s_waitcnt lgkmcnt(0)')
o(f'ds_read_b32 v36, v37 offset:{HIST2}')
for a in range(3): o(f'v_sub_u32 v{K0+a}, 252, v{K0+a}')
o('s_waitcnt lgkmcnt(0)')
o('v_mov_b32 v35, v36') if False else None
o('v_mov_b32 v39, v36')
scan64(36)
o('v_sub_u32 v36, v36, v39')
for a in range(3): o(f'ds_bpermute_b32 v{K0+a}, v{K0+a}, v36')
o('s_waitcnt lgkmcnt(0)')
for a in range(3):
    o(f'v_add_u32 v{P0+a}, v{P0+a}, v{K0+a}')
    o(f'v_add_u32 v21, {64*a}, v1')
    o(f'v_cmp_gt_u32 vcc, s{sNV}, v21')
    o(f'v_lshlrev_b32 v20, 3, v{P0+a}')
    o(f'v_lshrrev_b32 v{K0+a}, 3, v{P0+a}'); o(f'v_lshlrev_b32 v{K0+a}, 2, v{K0+a}')
    o('v_mov_b32 v40, 0x200000')
    o('v_and_b32 v43, 15, v21'); o('v_lshlrev_b32 v43, 4, v43'); o('v_lshl_add_u32 v43, v21, 9, v43')
    o('v_cndmask_b32 v42, v40, v21, vcc')
    if a==2: o('v_cmpx_gt_u32 vcc, 32, v1')
    o(f'ds_write_b64 v20, v[42:43] offset:{NODEOF}')
    o(f'ds_max_u32 v{K0+a}, v{D0+a} offset:{LG}')
o('s_mov_b64 exec, -1')
o('s_waitcnt lgkmcnt(0)')
o(f'ds_read_b32 v39, v38 offset:{LG}')
o('s_waitcnt lgkmcnt(0)')
o('v_add_u32 v39, 1, v39'); o('v_lshrrev_b32 v39, 1, v39')
o('v_mov_b32 v40, v39')
scan64(39)
o('v_sub_u32 v40, v39, v40')
o('v_lshlrev_b32 v40, 7, v40'); o(f'v_add_u32 v40, {ELL}, v40')
o(f'ds_write_b32 v38, v40 offset:{GBASE}')
o(f'v_readlane_b32 s{sA}, v39, 19')
o('s_waitcnt lgkmcnt(0)')
for a in range(3): o(f'ds_read_b32 v{K0+a}, v{K0+a} offset:{GBASE}')
o(f's_cmp_le_u32 s{sA}, {ELLB-4}')
l=U('fits'); o(f's_cbranch_scc1 {l}')
o('v_mov_b32 v21, 1'); o(f'ds_write_b32 v{VZ}, v21 offset:{C_FB}')
lab(l)
o('s_waitcnt lgkmcnt(0)')
for a in range(3):
    o(f'v_and_b32 v21, 7, v{P0+a}'); o(f'v_lshl_add_u32 v21, v21, 3, v{K0+a}')
    o(f'ds_write_b32 v19, v21 offset:{CUR+a*256}')
o('s_waitcnt lgkmcnt(0)')
lds_inc(C_SORT,20)
o('s_branch L_e_wait')
lab('L_e_prefill')
lds_spin(C_G,4,20)
o(f's_sub_u32 s{sA}, s{sW}, 5'); o(f's_lshl_b32 s{sA}, s{sA}, 10'); o(f's_add_u32 s{sA}, s{sA}, {ELL}')
o(f'v_lshlrev_b32 v20, 4, v1'); o(f'v_add_u32 v20, s{sA}, v20')
o(f'v_mov_b32 v24, {N*256}'); o('v_mov_b32 v25, 0'); o(f'v_mov_b32 v26, {N*256}'); o('v_mov_b32 v27, 0')
for i in range(12): o(f'ds_write_b128 v20, v[24:27] offset:{i*3072}')
o('s_waitcnt lgkmcnt(0)')
lds_inc(C_P,20)
lab('L_e_wait')
lds_spin(C_SORT,1,20)
lds_spin(C_P,3,20)
stamp(8)
o(f'ds_read_b32 v20, v{VZ} offset:{C_FB}'); o('s_waitcnt lgkmcnt(0)')
o(f'v_readfirstlane_b32 s{sA}, v20'); o(f's_cmp_lg_u32 s{sA}, 0'); o('s_cbranch_scc1 L_e_done')
def f_slot(rec,sa):
    o(f'v_lshlrev_b32_sdwa v20, 2, v{rec} {SD}'); o(f'ds_read_b32 v{sa}, v20 offset:{CUR}')
each_rec(f_slot)
o('s_waitcnt lgkmcnt(0)')
def f_put(rec,sa):
    o(f'v_lshl_add_u32 v{sa}, v{sa-SA+RKB}, 6, v{sa}'); o(f'v_and_b32 v{rec+1}, v24, v{rec+1}'); o(f'ds_write_b64 v{sa}, {vr(rec,2)}')
o('v_mov_b32 v24, 0xffff0000')
each_rec(f_put)
lab('L_e_done')
o('s_waitcnt lgkmcnt(0)')
stamp(9)
o(f's_cmp_lg_u32 s{sW}, 4')
o('s_cbranch_scc1 L_main_setup')
o('v_lshlrev_b32 v20, 4, v1')
o(f's_lshl_b32 s{sD}, s{sS}, 10'); o(f's_add_u32 s{sD}, s{sD}, {SEGT_FLAG2}')
o(f's_mov_b32 s{sSP}, 0')
lp=U('poll2'); dn=U('poll2d')
lab(lp)
o(f'buffer_load_dword v21, v20, {sr(rSEG,4)}, s{sD} offen sc1')
o('s_waitcnt vmcnt(0)')
o(f'v_cmp_ne_u32 vcc, s{sNONCE}, v21')
o(f's_cbranch_vccz {dn}')
o('s_sleep 2')
o(f's_add_u32 s{sSP}, s{sSP}, 1'); o(f's_cmp_lt_u32 s{sSP}, 0x10000'); o(f's_cbranch_scc1 {lp}')
lab(dn)
l=U('noep')
o('s_cmp_lg_u32 s2, 0'); o(f's_cbranch_scc1 {l}')
o('s_mov_b64 exec, 1')
o(f'v_mov_b32 v21, s{sNONCE}')
o(f'global_store_dword v{VZ}, v21, {sr(sEP,2)} sc1')
o('s_mov_b64 exec, -1')
lab(l)
LOFF,RP=2,3
S1A,S1B,S2A,S2B,ONE=4,8,12,16,20
WC=24; NUM=32; DEN=40; C=48; DX,DY=72,104; R0,R1=136,152
OFA,OFB,EA_,EB_,AD=168,170,172,174,176
lab('L_main_setup')
o('s_setprio 0')
stamp(10)
o(f'v_and_b32 v{LOFF}, 7, v1'); o(f'v_lshlrev_b32 v{LOFF}, 4, v{LOFF}')
o('v_bfe_u32 v196, v1, 3, 2'); o('v_bfe_u32 v197, v1, 2, 1'); o('v_lshrrev_b32 v198, 5, v1'); o('v_and_b32 v199, 3, v1')
o('v_cmp_eq_u32 vcc, v197, v198'); o('v_mov_b32 v195, 7'); o('v_and_b32 v193, 1, v196')
o('v_cndmask_b32 v199, v195, v199, vcc')
LO,HI=0x00003f80,0x3f800000
o('v_cmp_gt_u32 vcc, 2, v196'); o(f'v_mov_b32 v194, {LO:#x}'); o(f'v_mov_b32 v195, {HI:#x}')
o('v_cndmask_b32 v192, v194, v195, vcc')
o('v_cndmask_b32 v191, v195, v194, vcc')
o('v_lshl_add_u32 v199, v193, 3, v199')
for i in range(4):
    o(f'v_cmp_eq_u32 vcc, {i}, v199'); o(f'v_cmp_eq_u32 s[98:99], {8+i}, v199'); o('s_nop 0')
    o(f'v_cndmask_b32 v{S1A+i}, 0, v192, vcc'); o(f'v_cndmask_b32 v{S2A+i}, 0, v191, vcc')
    o(f'v_cndmask_b32 v{S1B+i}, 0, v192, s[98:99]'); o(f'v_cndmask_b32 v{S2B+i}, 0, v191, s[98:99]')
o('v_cmp_gt_u32 vcc, 32, v1')
for i in range(1,4): o(f'v_mov_b32 v{ONE+i}, 0')
o(f'v_cndmask_b32 v{ONE}, 0, v194, vcc')
for i in range(4):
    o(f'v_lshlrev_b32 v{WC+2*i}, 16, v{250+i}'); o(f'v_and_b32 v{WC+2*i+1}, 0xffff0000, v{250+i}')
for i in range(8): o(f'v_mul_f32 v{WC+i}, {NLOG2E:#x}, v{WC+i}')
for i in range(8):
    o(f'v_mov_b32 v{C+i}, 0'); o(f'v_mov_b32 v{C+16+i}, 0')
LOFF_=LOFF
sPAR,sNBT,sODD,sG1,sG2,sLN=97,47,96,46,13,14
NLN,LT,OA,AUN,XRN,UF,XF,VAUK,VKA,VOK=178,180,181,182,190,194,202,210,211,212
TM=214
o(f'v_add_u32 v{VAUK}, {AU}, v{LOFF}')
o(f'v_bfe_u32 v{TM}, v1, 1, 2'); o(f's_lshl_b32 s92, s{sS}, 3'); o(f'v_add_u32 v{TM}, s92, v{TM}'); o(f'v_lshlrev_b32 v{TM}, 4, v{TM}')
o(f'v_and_b32 v{TM+1}, 1, v1'); o(f'v_lshl_add_u32 v{VKA}, v{TM+1}, 3, v{TM}')
o(f's_lshl_b32 s92, s{sNB}, 9'); o(f's_lshl_b32 s93, s{sS}, 7'); o('s_add_u32 s92, s92, s93')
o(f'v_lshrrev_b32 v{TM}, 1, v{LOFF}'); o(f'v_add_u32 v{VOK}, s92, v{TM}')
o(f'v_lshrrev_b32 v{TM+2}, 3, v1'); o(f'v_lshlrev_b32 v{TM+2}, 3, v{TM+2}')
o(f's_sub_u32 s12, 19, s{sW}'); o(f's_cmp_lt_u32 s{sW}, 4'); o(f's_cselect_b32 s12, s{sW}, s12')
o(f's_add_u32 s{sG1}, s{sW}, 4'); o(f's_sub_u32 s92, 23, s{sW}'); o(f's_sub_u32 s{sG2}, 11, s{sW}')
o(f's_cmp_ge_u32 s{sW}, 4'); o(f's_cselect_b32 s{sG1}, s92, s{sG1}'); o(f's_cselect_b32 s{sG2}, -1, s{sG2}')
def node_prefetch(gs):
    o(f's_lshl_b32 s92, s{gs}, 6'); o(f'v_add_u32 v{TM}, s92, v{TM+2}'); o(f'ds_read_b64 {vr(NLN,2)}, v{TM} offset:{NODEOF}')
    o(f's_lshl_b32 s92, s{gs}, 2'); o(f'v_mov_b32 v{TM+1}, s92'); o(f'ds_read_b32 v{LT}, v{TM+1} offset:{LG}')
def raw_prefetch():
    o(f'v_lshl_add_u32 v{TM}, v{NLN}, 8, v{VAUK}')
    o(f'v_xor_b32 v{TM+1}, v{NLN+1}, v{VKA}'); o(f'v_xor_b32 v{TM+3}, 64, v{TM+1}')
    o(f'ds_read_b128 {vr(AUN,4)}, v{TM}'); o(f'ds_read_b128 {vr(AUN+4,4)}, v{TM} offset:128')
    o(f'ds_read_b64 {vr(XRN,2)}, v{TM+1} offset:{XT}'); o(f'ds_read_b64 {vr(XRN+2,2)}, v{TM+3} offset:{XT}')
o(f's_xor_b32 s15, s{sR}, 1'); o(f's_mul_i32 s15, s15, {RN*256}'); o(f's_mul_i32 s92, s{sW}, 5120'); o('s_add_u32 s15, s15, s92')
o(f'v_lshlrev_b32 v{TM+4}, 4, v1')
o('s_waitcnt lgkmcnt(0)' if 'nowait' in OPT else 's_waitcnt vmcnt(0) lgkmcnt(0)')
o('s_barrier')
stamp(11)
if 'xE' in OPT: o('s_branch L_done')
if 'pre2' in OPT:
    for i in range(5):
        o(f'buffer_load_dwordx4 v[232:235], v{TM+4}, {sr(rTR,4)}, s15 offen sc1')
        o('s_add_u32 s15, s15, 1024')
o(f'ds_read_b32 v{TM+5}, v{VZ} offset:{C_FB}')
o(f's_lshl_b32 s{sA}, s12, 2'); o(f'v_mov_b32 v{TM+6}, s{sA}'); o(f'ds_read_b32 v{RP}, v{TM+6} offset:{GBASE}')
node_prefetch(12)
l=U('ap'); o(f's_cmp_ge_u32 s{sW}, 4'); o(f's_cbranch_scc1 {l}'); o('s_setprio 1'); lab(l)
o('s_waitcnt lgkmcnt(0)')
o(f'v_readfirstlane_b32 s{sA}, v{TM+5}'); o(f's_cmp_lg_u32 s{sA}, 0'); o('s_cbranch_scc1 L_fallback')
o(f'v_add_u32 v{RP}, v{RP}, v{TM+2}')
o(f'v_readfirstlane_b32 s{sLN}, v{LT}')
def mfma(d,a,b,c): o(f'v_mfma_f32_32x32x16_bf16 {vr(d,16)}, {vr(a,4)}, {vr(b,4)}, {c}')
def unpack_list(D,R):
    f=lambda d,a,b,c: f'v_mfma_f32_32x32x16_bf16 {vr(d,16)}, {vr(a,4)}, {vr(b,4)}, {c}'
    return [f(D,S1A,R,vr(C,16)), f(D,S1B,R+4,vr(D,16)), f(D+16,S2A,R+8,vr(C+8,16)), f(D+16,S2B,R+12,vr(D+16,16))]
def gfma(D,Er):
    for sl in range(2):
        for j in range(4):
            g=D+8+8*sl+2*j
            sel='op_sel:[0,0,0] op_sel_hi:[0,1,1]' if sl==0 else 'op_sel:[1,0,0] op_sel_hi:[1,1,1]'
            o(f'v_pk_fma_f32 {vr(g,2)}, {vr(Er,2)}, {vr(WC+2*j,2)}, {vr(g,2)} {sel}')
def loads(R,OF):
    o(f'v_and_or_b32 v{AD}, v{OF}, s{sM}, v{LOFF}'); o(f'v_and_or_b32 v{AD+1}, v{OF+1}, s{sM}, v{LOFF}')
    o(f'buffer_load_dwordx4 {vr(R,4)}, v{AD}, {sr(rTR,4)}, 0 offen sc1')
    o(f'buffer_load_dwordx4 {vr(R+4,4)}, v{AD}, {sr(rTR,4)}, 0 offen offset:128 sc1')
    o(f'buffer_load_dwordx4 {vr(R+8,4)}, v{AD+1}, {sr(rTR,4)}, 0 offen sc1')
    o(f'buffer_load_dwordx4 {vr(R+12,4)}, v{AD+1}, {sr(rTR,4)}, 0 offen offset:128 sc1')
def rd_off(dst,b): o(f'ds_read2_b32 {vr(dst,2)}, v{RP} offset0:{b*32} offset1:{b*32+16}')
def rd_e(dst,b): o(f'ds_read2_b32 {vr(dst,2)}, v{RP} offset0:{b*32+1} offset1:{b*32+17}')
def dsreads(P):
    OFn=OFB if P==0 else OFA; En=EB_ if P==0 else EA_
    rd_off(OFn,P+3); rd_e(En,P+1)
    if P==1: o(f'v_add_u32 v{RP}, 256, v{RP}')
def accum(D):
    for sl in range(2):
        for j in range(4):
            g=D+8+8*sl+2*j
            o(f'v_pk_add_f32 {vr(DEN+2*j,2)}, {vr(DEN+2*j,2)}, {vr(g,2)}')
            v=(D+2*j) if sl==0 else (D+24+2*j)
            o(f'v_pk_fma_f32 {vr(NUM+2*j,2)}, {vr(g,2)}, {vr(v,2)}, {vr(NUM+2*j,2)}')
Ds=[DX,DY]; Rs=[R0,R1]; OFs=[OFA,OFB]; Es=[EA_,EB_]
rd_off(OFA,0); rd_off(OFB,1)
raw_prefetch()
o('s_waitcnt lgkmcnt(4)')
loads(R0,OFA); loads(R1,OFB)
rd_off(OFA,2); rd_e(EA_,0)
o(f's_mov_b32 s{sPAR}, 0')
if PROF: o('s_mov_b32 s3, 0')
lab('L_group')
o(f's_min_u32 s{sLN}, s{sLN}, {2*ELLB}')
o(f's_and_b32 s{sODD}, s{sLN}, 1'); o(f's_add_u32 s{sNBT}, s{sLN}, 1'); o(f's_lshr_b32 s{sNBT}, s{sNBT}, 1')
o(f'v_lshl_add_u32 v{OA}, v{NLN}, 9, v{VOK}')
mfma(NUM,C,C,'0')
o('s_waitcnt lgkmcnt(0)')
for i in range(8): o(f'v_lshlrev_b32 v{C+8+i}, 16, v{AUN+i}')
l=U('nonext')
o(f's_cmp_eq_u32 s{sG1}, -1'); o(f's_cbranch_scc1 {l}')
node_prefetch(sG1)
lab(l)
for i in range(8): o(f'v_and_b32 v{UF+i}, 0xffff0000, v{AUN+i}')
for i in range(4):
    o(f'v_lshlrev_b32 v{XF+2*i}, 16, v{XRN+i}'); o(f'v_and_b32 v{XF+2*i+1}, 0xffff0000, v{XRN+i}')
if PROF:
    o(f's_memtime s[100:101]'); o('s_waitcnt lgkmcnt(0)')
    o(f's_add_u32 m0, s3, 36'); o('s_nop 3'); o('v_writelane_b32 v255, s100, m0')
    o(f's_add_u32 m0, s3, 60'); o('s_nop 3'); o(f'v_writelane_b32 v255, s{sLN}, m0')
o(f's_cmp_eq_u32 s{sNBT}, 0'); o('s_cbranch_scc1 L_epi')
o(f's_cmp_eq_u32 s{sPAR}, 1'); o('s_cbranch_scc1 L_gs1')
def exps(D): return [f'v_exp_f32 v{D+8+i}, v{D+8+i}' for i in range(16)]
def rcps(D): return [f'v_rcp_f32 v{D+8+i}, v{D+8+i}' for i in range(16)]
for P in range(2):
    lab(f'L_gs{P}')
    o('s_waitcnt vmcnt(4)')
    for t in unpack_list(Ds[P],Rs[P]): o(t)
    o('s_waitcnt lgkmcnt(0)')
    loads(Rs[P],OFs[P])
    dsreads(P)
    o('s_nop 7')
    gfma(Ds[P],Es[P])
    o(f's_branch L_body{P}')
for P in range(2):
    Q=P^1
    lab(f'L_body{P}')
    o(f's_sub_u32 s{sNBT}, s{sNBT}, 1'); o(f's_cmp_eq_u32 s{sNBT}, 0'); o(f's_cbranch_scc1 L_last{P}')
    ex=exps(Ds[P]); un=unpack_list(Ds[Q],Rs[Q])
    o('s_waitcnt vmcnt(4)')
    for k in range(4):
        o(un[k])
        for t in ex[4*k:4*k+4]: o(t)
    o('s_nop 1')
    mfma(Ds[P]+8,ONE,ONE,vr(Ds[P]+8,16))
    o('s_waitcnt lgkmcnt(0)')
    loads(Rs[Q],OFs[Q])
    o('s_nop 2')
    dsreads(Q)
    for t in rcps(Ds[P]): o(t)
    gfma(Ds[Q],Es[Q])
    accum(Ds[P])
    if P==1: o('s_branch L_body0')
for P in range(2):
    lab(f'L_last{P}')
    D=Ds[P]
    o(f's_cmp_eq_u32 s{sODD}, 1'); o(f's_cbranch_scc1 L_half{P}')
    for t in exps(D): o(t)
    o('s_nop 1')
    mfma(D+8,ONE,ONE,vr(D+8,16))
    o('s_nop 7'); o('s_nop 3')
    for t in rcps(D): o(t)
    accum(D)
    o(f's_mov_b32 s{sPAR}, {P^1}')
    o('s_branch L_epi')
    lab(f'L_half{P}')
    for t in exps(D)[:8]: o(t)
    for j in range(4): o(f'v_pk_add_f32 {vr(D+8+2*j,2)}, {vr(D+8+2*j,2)}, 1.0 op_sel_hi:[1,0]')
    for t in rcps(D)[:8]: o(t)
    for j in range(4):
        g=D+8+2*j
        o(f'v_pk_add_f32 {vr(DEN+2*j,2)}, {vr(DEN+2*j,2)}, {vr(g,2)}')
        o(f'v_pk_fma_f32 {vr(NUM+2*j,2)}, {vr(g,2)}, {vr(D+2*j,2)}, {vr(NUM+2*j,2)}')
    o(f's_mov_b32 s{sPAR}, {P^1}')
    if P==0: o('s_branch L_epi')
lab('L_epi')
if PROF:
    o(f's_memtime s[100:101]'); o('s_waitcnt lgkmcnt(0)')
    o(f's_add_u32 m0, s3, 40'); o('s_nop 3'); o('v_writelane_b32 v255, s100, m0')
l=U('nonext2')
o(f's_cmp_eq_u32 s{sG1}, -1'); o(f's_cbranch_scc1 {l}')
o('s_waitcnt lgkmcnt(0)')
o(f'v_readfirstlane_b32 s{sLN}, v{LT}')
raw_prefetch()
lab(l)
o('s_mov_b32 s92, 0x358637bd'); o('s_mov_b32 s93, 0x358637bd')
for j in range(4): o(f'v_pk_add_f32 {vr(DEN+2*j,2)}, {vr(DEN+2*j,2)}, s[92:93]')
for i in range(8): o(f'v_rcp_f32 v{DEN+i}, v{DEN+i}')
o('s_nop 0')
for j in range(4): o(f'v_pk_fma_f32 {vr(UF+2*j,2)}, {vr(NUM+2*j,2)}, {vr(DEN+2*j,2)}, {vr(UF+2*j,2)}')
for i in range(8): o(f'v_max_f32 v{UF+i}, 0, v{UF+i}')
for j in range(4): o(f'v_pk_add_f32 {vr(UF+2*j,2)}, {vr(UF+2*j,2)}, {vr(XF+2*j,2)}')
for i in range(4): o(f'v_cvt_pk_bf16_f32 v{UF+i}, v{UF+2*i}, v{UF+2*i+1}')
o(f'buffer_store_dwordx2 {vr(UF,2)}, v{OA}, {sr(rOUT,4)}, 0 offen')
o(f'buffer_store_dwordx2 {vr(UF+2,2)}, v{OA}, {sr(rOUT,4)}, 0 offen offset:64')
if PROF:
    o(f's_memtime s[100:101]'); o('s_waitcnt lgkmcnt(0)')
    o(f's_add_u32 m0, s3, 56'); o('s_nop 3'); o('v_writelane_b32 v255, s100, m0')
    o('s_add_u32 s3, s3, 1')
o(f's_cmp_eq_u32 s{sG1}, -1'); o('s_cbranch_scc1 L_done')
o(f's_mov_b32 s{sG1}, s{sG2}'); o(f's_mov_b32 s{sG2}, -1')
o('s_branch L_group')
lab('L_done')
stamp(12)
if PROF:
    o('s_waitcnt vmcnt(0)')
    srd_off(92,sWS,WS_PROF,0x100000)
    o(f's_lshl_b32 s96, s2, 3'); o(f's_add_u32 s96, s96, s{sW}'); o('s_lshl_b32 s96, s96, 8')
    o('v_lshlrev_b32 v2, 2, v1')
    o('buffer_store_dword v255, v2, s[92:95], s96 offen')
o('s_endpgm')
lab('L_codeend')
lab('L_fallback')
FN,FD,FA,FU,FW=10,11,12,13,14
o('v_lshlrev_b32 v5, 2, v1')
o(f's_lshl_b32 s92, s{sS}, 7')
o('v_lshlrev_b32 v6, 1, v1'); o(f'v_add_u32 v6, s92, v6')
srd(64,sWC,512)
o(f'buffer_load_ushort v{FW}, v6, s[64:67], 0 offen')
o('s_waitcnt vmcnt(0)')
o(f'v_lshlrev_b32 v{FW}, 16, v{FW}'); o(f'v_mul_f32 v{FW}, {NLOG2E:#x}, v{FW}')
o(f's_mov_b32 s46, s{sW}')
lab('L_fb_node')
o(f's_cmp_ge_u32 s46, s{sNV}'); o('s_cbranch_scc1 L_fb_end')
o(f's_lshl_b32 s92, s46, 8'); o(f's_add_u32 s92, s92, {AU}'); o(f'v_add_u32 v7, s92, v5'); o('ds_read_b32 v8, v7')
o('s_waitcnt lgkmcnt(0)')
o(f'v_lshlrev_b32 v{FA}, 16, v8'); o(f'v_and_b32 v{FU}, 0xffff0000, v8')
o(f'v_mov_b32 v{FN}, 0'); o(f'v_mov_b32 v{FD}, 0')
o(f's_add_u32 s47, s46, s{sNB}')
o('s_mov_b32 s93, 0')
lab('L_fb_e')
o('v_add_u32 v7, s93, v1'); o('v_lshlrev_b32 v8, 2, v7'); o('v_lshlrev_b32 v7, 1, v7')
o(f'buffer_load_dword v15, v8, {sr(rDST,4)}, 0 offen')
o(f'buffer_load_dword v16, v8, {sr(rSRC,4)}, 0 offen')
o(f'buffer_load_ushort v17, v7, {sr(rEA,4)}, 0 offen')
o('s_waitcnt vmcnt(0)')
o('v_cmp_eq_u32 vcc, s47, v15')
o('s_mov_b64 s[94:95], vcc')
lab('L_fb_m')
o('s_cmp_eq_u64 s[94:95], 0'); o('s_cbranch_scc1 L_fb_next')
o('s_ff1_i32_b64 s96, s[94:95]')
o('s_bitset0_b64 s[94:95], s96')
o('v_readlane_b32 s97, v16, s96'); o('v_readlane_b32 s92, v17, s96')
o('s_nop 1')
o('s_lshl_b32 s97, s97, 8'); o('s_lshl_b32 s92, s92, 16')
o('s_nop 4')
o(f'buffer_load_dword v18, v5, {sr(rTR,4)}, s97 offen sc1')
o('s_waitcnt vmcnt(0)')
o('v_lshlrev_b32 v19, 16, v18'); o('v_and_b32 v18, 0xffff0000, v18')
o(f'v_add_f32 v19, v19, v{FA}'); o(f'v_fmac_f32 v19, s92, v{FW}')
o('v_exp_f32 v19, v19'); o('s_nop 0'); o('v_add_f32 v19, 1.0, v19'); o('v_rcp_f32 v19, v19'); o('s_nop 0')
o(f'v_add_f32 v{FD}, v{FD}, v19'); o(f'v_fmac_f32 v{FN}, v19, v18')
o('s_branch L_fb_m')
lab('L_fb_next')
o('s_add_u32 s93, s93, 64'); o(f's_cmp_lt_u32 s93, {E}'); o('s_cbranch_scc1 L_fb_e')
o('s_mov_b32 s92, 0x358637bd')
o(f'v_add_f32 v{FD}, s92, v{FD}'); o(f'v_rcp_f32 v{FD}, v{FD}'); o('s_nop 0')
o(f'v_fmac_f32 v{FU}, v{FN}, v{FD}'); o(f'v_max_f32 v{FU}, 0, v{FU}')
o('s_lshl_b32 s92, s47, 9')
o(f'buffer_load_ushort v18, v6, {sr(rX,4)}, s92 offen')
o('s_waitcnt vmcnt(0)')
o(f'v_lshlrev_b32 v18, 16, v18'); o(f'v_add_f32 v{FU}, v{FU}, v18')
o(f'v_cvt_pk_bf16_f32 v18, v{FU}, v{FU}')
o(f'buffer_store_short v18, v6, {sr(rOUT,4)}, s92 offen')
o('s_add_u32 s46, s46, 8'); o('s_branch L_fb_node')
lab('L_fb_end')
lab('L_end')
o('s_endpgm')
L=[x for x in L if x is not None]
hdr=open('gather_scatter__edge_featured_mpnn_gatedgcn__graph.s.ref').read().split('; Override')[0]
out=hdr+f'''; Generated by dev/gen2.py (hand-written generator). One fused persistent launch, 1 workgroup per CU.
; @launch grid=(256,1,1) block=(512,1,1) lds={LDS_TOTAL}
.amdgcn_target "amdgcn-amd-amdhsa--gfx950"
.text
.globl {NAME}
.p2align 8
.type {NAME},@function
'''+'\n'.join(L)+f'''
.section .rodata,"a"
.p2align 6
.amdhsa_kernel {NAME}
  .amdhsa_next_free_vgpr 256
  .amdhsa_next_free_sgpr 102
  .amdhsa_accum_offset 256
  .amdhsa_group_segment_fixed_size 0
  .amdhsa_kernarg_size 96
  .amdhsa_user_sgpr_count 2
  .amdhsa_user_sgpr_kernarg_segment_ptr 1
  .amdhsa_system_sgpr_workgroup_id_x 1
.end_amdhsa_kernel
'''
fn=[a for a in sys.argv[1:] if not a.startswith('--')]
open(fn[0] if fn else 'k.s','w').write(out)
```

```python
import sys
NAME='gather_scatter__edge_featured_mpnn_gatedgcn__graph_kernel'
PROF = '--prof' in sys.argv
OPT = {a.split('=')[0][2:]:(a.split('=')[1] if '=' in a else '1') for a in sys.argv[1:] if a.startswith('--')}
N=10000; E=160000; RN=157; CH=625; CHCAP=704
SLICE=10240*256
WS_RECS=0xA00000; WS_SEGT=0xB80000; SEGT_FLAG2=0x20000; WS_EPOCH=0xBB0000; WS_PROF=0xC00000
HIST1=0; DEG=256; HIST2=1024; LG=1280; GBASE=1408; CUR=1536; NODEOF=2304; CNT=3840
C_W=CNT; C_G=CNT+4; C_T=CNT+8; C_E1=CNT+12; C_SORT=CNT+16; C_P=CNT+20; C_FB=CNT+24; C_X=CNT+28; C_G1=CNT+32; C_H=CNT+36; C_R=CNT+40; C_X2=CNT+44; C_S=CNT+48; C_RL=CNT+52; C_X1=CNT+56; C_PG=CNT+60
XT=4096; WR=XT+81920; AU=WR; ELL=WR+40960; ELLB=288
LDS_TOTAL=163840
RST=WR+65536
assert ELL+ELLB*128==LDS_TOTAL
NLOG2E=0xbfb8aa3b
sEP=4
sI,sROT,sTL,sWROT=6,7,8,9
sM=10
sX,sEA,sSRC,sDST,sWA,sWB,sWC,sWU=16,18,20,22,24,26,28,30
sWV,sOUT,sDBG,sWS=32,34,36,38
sW,sS,sR,sNONCE,sNB,sNV=40,41,42,43,44,45
rX,rDST,rSRC,rEA,rW1,rW2,rTW,rTR,rREC,rSEG,rOUT=48,52,56,60,64,68,72,76,80,84,88
sA,sB,sC_,sD,sSP=92,93,94,95,96
L=[]
def o(t): L.append('  '+t)
def lab(t): L.append(t+':')
def vr(a,n): return f'v[{a}:{a+n-1}]' if n>1 else f'v{a}'
def sr(a,n): return f's[{a}:{a+n-1}]'
uid=[0]
def U(p):
    uid[0]+=1; return f'L_{p}_{uid[0]}'
def srd(r,base,size):
    o(f's_mov_b32 s{r}, s{base}'); o(f's_mov_b32 s{r+1}, s{base+1}')
    o(f's_mov_b32 s{r+2}, {size}'); o(f's_mov_b32 s{r+3}, 0x20000')
def srd_off(r,base,off,size):
    o(f's_add_u32 s{r}, s{base}, {off}'); o(f's_addc_u32 s{r+1}, s{base+1}, 0')
    o(f's_mov_b32 s{r+2}, {size}'); o(f's_mov_b32 s{r+3}, 0x20000')
def stamp(idx):
    if not PROF: return
    o(f's_memrealtime s[100:101]'); o('s_waitcnt lgkmcnt(0)'); o(f'v_writelane_b32 v255, s100, {idx}')
    o(f's_memtime s[100:101]'); o('s_waitcnt lgkmcnt(0)'); o(f'v_writelane_b32 v255, s100, {idx+32}')
VZ=248
def lds_spin(addr, need, vtmp):
    l=U('spin'); d=U('spind')
    o(f's_mov_b32 s{sSP}, 0')
    lab(l)
    o(f'ds_read_b32 v{vtmp}, v{VZ} offset:{addr}')
    o('s_waitcnt lgkmcnt(0)')
    o(f'v_readfirstlane_b32 s{sA}, v{vtmp}')
    o(f's_add_u32 s{sSP}, s{sSP}, 1')
    o(f's_cmp_ge_u32 s{sA}, {need}')
    o(f's_cbranch_scc1 {d}')
    o('s_sleep 1')
    o(f's_cmp_lt_u32 s{sSP}, 0x40000')
    o(f's_cbranch_scc1 {l}')
    lab(d)
def lds_inc(addr, vtmp, ret=False):
    o(f'v_mov_b32 v{vtmp}, 1')
    o('s_mov_b64 exec, 1')
    if ret:
        o(f'ds_add_rtn_u32 v{vtmp}, v{VZ}, v{vtmp} offset:{addr}')
        o('s_waitcnt lgkmcnt(0)')
        o(f'v_readfirstlane_b32 s{sA}, v{vtmp}')
    else:
        o(f'ds_add_u32 v{VZ}, v{vtmp} offset:{addr}')
    o('s_mov_b64 exec, -1')
def scan64(v):
    for sh in (1,2,4,8):
        o('s_nop 1'); o(f'v_add_u32_dpp v{v}, v{v}, v{v} row_shr:{sh} row_mask:0xf bank_mask:0xf')
    o('s_nop 1'); o(f'v_add_u32_dpp v{v}, v{v}, v{v} row_bcast:15 row_mask:0xa bank_mask:0xf')
    o('s_nop 1'); o(f'v_add_u32_dpp v{v}, v{v}, v{v} row_bcast:31 row_mask:0xc bank_mask:0xf')
    o('s_nop 1')
lab(NAME)
o('s_cmp_ge_u32 s2, 256')
o('s_cbranch_scc1 L_end')
o('s_load_dwordx16 s[16:31], s[0:1], 0')
o('s_load_dwordx8 s[32:39], s[0:1], 64')
o('v_and_b32 v1, 63, v0')
o('v_lshrrev_b32 v2, 6, v0')
o(f'v_mov_b32 v{VZ}, 0')
o(f'v_readfirstlane_b32 s{sW}, v2')
o('s_getpc_b64 s[12:13]')
lab('L_pc')
if 'nopf' not in OPT:
    o(f's_cmp_lg_u32 s{sW}, 7'); o('s_cbranch_scc1 L_nopf')
    o('s_lshr_b32 s3, s2, 3'); o('s_lshl_b32 s3, s3, 10')
    o('v_lshl_add_u32 v2, v1, 4, s3')
    o('v_cmp_gt_u32 vcc, L_codeend-L_pc-16, v2')
    o('s_and_saveexec_b64 s[98:99], vcc')
    o('s_cbranch_execz L_nopf2')
    o('global_load_dwordx4 v[240:243], v2, s[12:13]')
    lab('L_nopf2')
    o('s_mov_b64 exec, -1')
    lab('L_nopf')
o('v_lshlrev_b32 v17, 3, v0'); o('v_mov_b32 v20, 0'); o('v_mov_b32 v21, 0')
o('ds_write_b64 v17, v[20:21]')
o(f's_and_b32 s{sS}, s2, 7'); o(f's_lshr_b32 s{sS}, s{sS}, 1')
o(f's_lshr_b32 s{sR}, s2, 3'); o(f's_lshl_b32 s{sR}, s{sR}, 1'); o(f's_and_b32 s{sA}, s2, 1'); o(f's_or_b32 s{sR}, s{sR}, s{sA}')
o(f's_mul_i32 s{sNB}, s{sR}, {RN}')
o(f's_sub_u32 s{sNV}, {N}, s{sNB}'); o(f's_min_u32 s{sNV}, s{sNV}, {RN}')
if PROF: o('v_mov_b32 v255, 0')
for _v in (56,57,58,59,60,61,62,63,240,241,242,243): o(f'v_mov_b32 v{_v}, 0')
o(f's_mul_i32 s{sROT}, s{sS}, 5'); o(f's_add_u32 s{sROT}, s{sROT}, 1'); o(f's_lshr_b32 s{sROT}, s{sROT}, 1')
o(f's_lshr_b32 s{sWROT}, s2, 3')
o(f's_mov_b32 s{sM}, 0xffffff00')
def build_common():
    srd(rOUT,sOUT,N*512)
    o(f's_mul_i32 s{sA}, s{sS}, {SLICE}')
    o(f's_add_u32 s{rTW}, s{sWS}, s{sA}'); o(f's_addc_u32 s{rTW+1}, s{sWS+1}, 0')
    o(f's_add_u32 s{sA}, s{sNB}, s{sNV}'); o(f's_lshl_b32 s{rTW+2}, s{sA}, 8'); o(f's_mov_b32 s{rTW+3}, 0x20000')
    o(f's_mov_b32 s{rTR}, s{rTW}'); o(f's_mov_b32 s{rTR+1}, s{rTW+1}'); o(f's_mov_b32 s{rTR+2}, {(N+1)*256}'); o(f's_mov_b32 s{rTR+3}, 0x20000')
    srd_off(rSEG,sWS,WS_SEGT,0x21000)
    o(f's_add_u32 s{sEP}, s{sWS}, {WS_EPOCH}'); o(f's_addc_u32 s{sEP+1}, s{sWS+1}, 0')
    o(f's_load_dword s{sNONCE}, {sr(sEP,2)}, 0')
def wc_load():
    o('v_and_b32 v17, 7, v1'); o('v_lshlrev_b32 v17, 3, v17')
    o(f's_lshl_b32 s{sA}, s{sS}, 7'); o(f'v_add_u32 v17, s{sA}, v17')
    srd(rREC,sWC,512)
    o(f'buffer_load_dwordx2 v[250:251], v17, {sr(rREC,4)}, 0 offen')
    o(f'buffer_load_dwordx2 v[252:253], v17, {sr(rREC,4)}, 0 offen offset:64')
def wvoff(dst, wexpr_s):
    o('v_lshrrev_b32 v17, 3, v1')
    o(f's_lshl_b32 s{sA}, s{wexpr_s}, 3'); o(f'v_add_u32 v17, s{sA}, v17')
    o('v_bfe_u32 v20, v1, 4, 1')
    o(f's_and_b32 s{sA}, s{wexpr_s}, 1'); o(f's_lshl_b32 s{sA}, s{sA}, 1'); o(f'v_or_b32 v20, s{sA}, v20')
    o('v_bfe_u32 v19, v1, 1, 2'); o('v_xor_b32 v19, v19, v20'); o('v_lshlrev_b32 v19, 1, v19')
    o('v_and_b32 v20, 1, v1'); o('v_or_b32 v19, v19, v20')
    o('v_lshlrev_b32 v19, 4, v19'); o('v_lshl_add_u32 v19, v17, 9, v19')
    o(f's_lshl_b32 s{sA}, s{sS}, 7'); o(f'v_add_u32 v{dst}, s{sA}, v19')
o(f's_cmp_ge_u32 s{sW}, 4')
o('s_cbranch_scc1 L_e0')
o('v_lshrrev_b32 v17, 5, v1')
o(f's_lshl_b32 s{sA}, s{sW}, 1'); o(f'v_add_u32 v17, s{sA}, v17')
o('v_and_b32 v18, 31, v1'); o('v_and_b32 v19, 15, v17'); o('v_xor_b32 v22, v18, v19')
o('v_lshlrev_b32 v22, 4, v22'); o('v_lshl_add_u32 v22, v17, 9, v22')
o('v_add_u32 v17, 8, v17'); o('v_and_b32 v19, 15, v17'); o('v_xor_b32 v23, v18, v19')
o('v_lshlrev_b32 v23, 4, v23'); o('v_lshl_add_u32 v23, v17, 9, v23')
wvoff(249,sW)
o('s_waitcnt lgkmcnt(0)')
o('s_barrier')
stamp(0)
if 'stlb' in OPT:
    def touch(base, off_s=None, off_i=0):
        if off_s is None and off_i==0:
            o(f's_load_dword s13, {sr(base,2)}, 0'); return
        if off_s is not None:
            o(f's_add_u32 s14, s{base}, s{off_s}'); o(f's_addc_u32 s15, s{base+1}, 0')
            if off_i: o(f's_add_u32 s14, s14, {off_i}'); o('s_addc_u32 s15, s15, 0')
        else:
            o(f's_add_u32 s14, s{base}, {off_i}'); o(f's_addc_u32 s15, s{base+1}, 0')
        o('s_load_dword s13, s[14:15], 0')
    o(f's_lshl_b32 s3, s{sNB}, 9')
    touch(sX,3); touch(sWB); touch(sWV); touch(sWA); touch(sWU); touch(sOUT,3)
    touch(sWS,None,WS_RECS)
    o(f's_mul_i32 s3, s{sS}, {SLICE}')
    touch(sWS,3); touch(sWS,3,0x100000); touch(sWS,3,0x200000); touch(sWS,3,SLICE-256)
wc_load()
srd(rX,sX,N*512); srd(rW1,sWB,131072); srd(rW2,sWV,131072)
o(f's_lshl_b32 s{sC_}, s{sW}, 10')
o(f's_mov_b32 s{sTL}, s{sROT}')
o(f's_mov_b32 s{sI}, 0')
lab('L_dmaw')
o(f's_add_u32 s{sA}, s{sI}, s{sWROT}'); o(f's_and_b32 s{sA}, s{sA}, 7')
o(f's_lshl_b32 s{sB}, s{sA}, 14'); o(f's_lshl_b32 s{sA}, s{sA}, 12'); o(f's_add_u32 s{sA}, s{sA}, s{sC_}')
o(f's_add_u32 m0, s{sA}, {WR}'); o('s_nop 0')
o(f'buffer_load_dwordx4 v249, {sr(rW1,4)}, s{sB} offen lds')
o(f's_add_u32 m0, s{sA}, {WR+32768}'); o('s_nop 0')
o(f'buffer_load_dwordx4 v249, {sr(rW2,4)}, s{sB} offen lds')
o('s_waitcnt vmcnt(%s)' % OPT.get('pacew',OPT.get('pace','8')))
o(f's_add_u32 s{sI}, s{sI}, 1'); o(f's_cmp_lt_u32 s{sI}, 8'); o('s_cbranch_scc1 L_dmaw')
def xloop(lo,hi,name):
    o(f's_mov_b32 s{sI}, {lo}')
    lab(name)
    o(f's_lshr_b32 s{sTL}, s{sI}, 1'); o(f's_and_b32 s{sA}, s{sI}, 1'); o(f's_mul_i32 s{sA}, s{sA}, 5'); o(f's_add_u32 s{sTL}, s{sTL}, s{sA}')
    o(f's_lshl_b32 s{sA}, s{sTL}, 13'); o(f's_add_u32 s{sD}, s{sA}, s{sC_}'); o(f's_add_u32 m0, s{sD}, {XT}')
    o(f's_lshl_b32 s{sB}, s{sNB}, 9'); o(f's_add_u32 s{sB}, s{sB}, s{sA}')
    o(f'buffer_load_dwordx4 v22, {sr(rX,4)}, s{sB} offen lds')
    o(f's_add_u32 m0, s{sD}, {XT+4096}'); o('s_nop 0')
    o(f'buffer_load_dwordx4 v23, {sr(rX,4)}, s{sB} offen lds')
    o('s_waitcnt vmcnt(%s)' % OPT.get('pace','8'))
    o(f's_add_u32 s{sI}, s{sI}, 1'); o(f's_cmp_lt_u32 s{sI}, {hi}'); o(f's_cbranch_scc1 {name}')
xloop(0,4,'L_dmax1')
stamp(19)
build_common()
srd(rDST,sDST,E*4); srd(rSRC,sSRC,E*4); srd(rEA,sEA,E*2); srd_off(rREC,sWS,WS_RECS,256*CHCAP*8)
WF,AF,ACC,XA,XC,TRA,TOF,AUA=64,192,224,56,60,240,241,242
o(f's_and_b32 s{sD}, s{sW}, 1'); o(f's_lshl_b32 s{sD}, s{sD}, 1')
o('v_lshrrev_b32 v17, 4, v1')
o('v_bfe_u32 v18, v1, 2, 2')
o('v_lshl_add_u32 v19, v17, 3, v18')
o('v_lshlrev_b32 v19, 7, v19')
o('v_bfe_u32 v20, v1, 3, 1')
o('v_and_b32 v21, 1, v17'); o('v_lshl_or_b32 v20, v21, 1, v20')
o(f'v_xor_b32 v20, s{sD}, v20')
o('v_and_b32 v21, 3, v1'); o('v_lshl_add_u32 v19, v21, 3, v19'); o(f'v_add_u32 v19, {WR}, v19')
o(f'v_lshl_add_u32 v{TRA}, v20, 5, v19')
o('v_xor_b32 v20, 1, v20'); o(f'v_lshl_add_u32 v{TRA+3}, v20, 5, v19')
def wfrags():
    for m in range(2):
        for t in range(2):
            for ks in range(8):
                r=WF+64*m+32*t+4*ks; a=TRA if t==0 else TRA+3
                o(f'ds_read_b64_tr_b16 {vr(r,2)}, v{a} offset:{m*32768+ks*4096}')
                o(f'ds_read_b64_tr_b16 {vr(r+2,2)}, v{a} offset:{m*32768+ks*4096+512}')
o('v_and_b32 v18, 15, v1')
for k in range(4):
    o(f'v_and_b32 v19, 12, v18'); o(f'v_xor_b32 v19, {4*k}, v19')
    o('v_and_b32 v20, 3, v18'); o('v_xor_b32 v20, v20, v17')
    o('v_add_u32 v19, v19, v20'); o('v_lshlrev_b32 v19, 4, v19')
    o(f'v_lshl_add_u32 v{XA+k}, v18, 9, v19')
    o(f'v_add_u32 v{XA+k}, {XT}, v{XA+k}')
o('v_lshlrev_b32 v19, 10, v17')
o(f's_lshl_b32 s{sA}, s{sD}, 6')
o('v_lshl_add_u32 v19, v18, 2, v19'); o(f'v_add_u32 v{TOF}, s{sA}, v19')
o(f's_lshr_b32 s{sROT}, s{sW}, 1'); o(f's_mul_i32 s{sROT}, s{sROT}, 5')

o('s_waitcnt vmcnt(8) lgkmcnt(0)')
o(f's_mul_i32 s{sNONCE}, s{sNONCE}, 0x9E3779B1'); o(f's_add_u32 s{sNONCE}, s{sNONCE}, 0x7F4A7C15')
lds_inc(C_X,244)
lds_spin(C_X,4,244)
stamp(2)
wfrags()
o('s_waitcnt lgkmcnt(0)')
o(f's_lshl_b32 s{sC_}, s{sW}, 10')
lds_inc(C_W,244)
lds_spin(C_W,4,244)
srd(rW1,sWA,131072); srd(rW2,sWU,131072)
o(f's_mov_b32 s{sI}, 0')
lab('L_dmau')
o(f's_add_u32 s{sA}, s{sI}, s{sWROT}'); o(f's_and_b32 s{sA}, s{sA}, 7')
o(f's_lshl_b32 s{sB}, s{sA}, 14'); o(f's_lshl_b32 s{sA}, s{sA}, 12'); o(f's_add_u32 s{sA}, s{sA}, s{sC_}')
o(f's_add_u32 m0, s{sA}, {WR}'); o('s_nop 0')
o(f'buffer_load_dwordx4 v249, {sr(rW1,4)}, s{sB} offen lds')
o(f's_add_u32 m0, s{sA}, {WR+32768}'); o('s_nop 0')
o(f'buffer_load_dwordx4 v249, {sr(rW2,4)}, s{sB} offen lds')
o('s_waitcnt vmcnt(%s)' % OPT.get('paceu',OPT.get('pace','8')))
o(f's_add_u32 s{sI}, s{sI}, 1'); o(f's_cmp_lt_u32 s{sI}, 8'); o('s_cbranch_scc1 L_dmau')
lds_inc(C_PG,244)
xloop(4,10,'L_dmax2')
lds_inc(C_G1,244)
stamp(3)
o('s_waitcnt vmcnt(8)')
lds_inc(C_X1,244)
lds_spin(C_X1,4,244)
stamp(4)
o('s_branch L_g_gemm')
lab('L_e0')
if 'noprio' not in OPT: o('s_setprio %s' % OPT.get('eprio','2'))
o('v_subrev_u32 v14, 256, v0')
o(f's_mul_i32 s{sA}, s2, {CH}')
o(f'v_add_u32 v15, s{sA}, v14')
o('v_lshlrev_b32 v16, 1, v15'); o('v_lshlrev_b32 v15, 2, v15')
o(f'v_cmp_gt_u32 vcc, {CH-512}, v14')
o('v_add_u32 v18, 2048, v15'); o('v_add_u32 v19, 1024, v16')
o('v_mov_b32 v17, 0x40000000')
o('v_cndmask_b32 v18, v17, v18, vcc'); o('v_cndmask_b32 v19, v17, v19, vcc')
o('s_waitcnt lgkmcnt(0)')
ED,ES,EE=2,5,8
srd(rDST,sDST,E*4)
o(f'buffer_load_dword v{ED}, v15, {sr(rDST,4)}, 0 offen')
o(f'buffer_load_dword v{ED+1}, v15, {sr(rDST,4)}, 0 offen offset:1024')
o(f'buffer_load_dword v{ED+2}, v18, {sr(rDST,4)}, 0 offen')
srd(rSRC,sSRC,E*4)
o(f'buffer_load_dword v{ES}, v15, {sr(rSRC,4)}, 0 offen')
o(f'buffer_load_dword v{ES+1}, v15, {sr(rSRC,4)}, 0 offen offset:1024')
o(f'buffer_load_dword v{ES+2}, v18, {sr(rSRC,4)}, 0 offen')
srd(rEA,sEA,E*2)
o(f'buffer_load_ushort v{EE}, v16, {sr(rEA,4)}, 0 offen')
o(f'buffer_load_ushort v{EE+1}, v16, {sr(rEA,4)}, 0 offen offset:512')
o(f'buffer_load_ushort v{EE+2}, v19, {sr(rEA,4)}, 0 offen')
o('s_barrier')
stamp(0)
wc_load()
srd(rW1,sWA,131072); srd(rW2,sWU,131072)
o('s_lshr_b32 s3, s2, 3'); o('s_lshl_b32 s3, s3, 12')
o('v_lshrrev_b32 v17, 3, v1'); o('v_lshlrev_b32 v17, 9, v17'); o('v_and_b32 v19, 7, v1'); o('v_lshl_add_u32 v17, v19, 4, v17')
o(f's_lshl_b32 s{sA}, s{sS}, 7'); o(f'v_add_u32 v17, s{sA}, v17')
l=U('wu')
if 'nowu' not in OPT:
    o(f's_cmp_lg_u32 s{sW}, 4'); o(f's_cbranch_scc1 {l}_a')
    o(f'buffer_load_dwordx4 v[240:243], v17, {sr(rW1,4)}, s3 offen')
    lab(l+'_a')
    o(f's_cmp_lg_u32 s{sW}, 5'); o(f's_cbranch_scc1 {l}_b')
    o(f'buffer_load_dwordx4 v[240:243], v17, {sr(rW2,4)}, s3 offen')
    lab(l+'_b')
build_common()
srd(rX,sX,N*512); srd_off(rREC,sWS,WS_RECS,256*CHCAP*8)
if 'notlb' not in OPT:
    o(f's_cmp_lg_u32 s{sW}, 6'); o(f's_cbranch_scc1 {l}_c')
    o('v_lshlrev_b32 v17, 20, v1'); o('v_cmpx_gt_u32 vcc, 3, v1')
    o(f'buffer_load_dword v244, v17, {sr(rTR,4)}, 0 offen')
    o('s_mov_b64 exec, -1')
    lab(l+'_c')
    o(f's_cmp_lg_u32 s{sW}, 7'); o(f's_cbranch_scc1 {l}_d')
    o(f's_lshl_b32 s{sA}, s{sNB}, 9')
    o(f'buffer_load_dword v244, v{VZ}, {sr(rOUT,4)}, s{sA} offen')
    o(f'buffer_load_dword v245, v{VZ}, {sr(rREC,4)}, 0 offen')
    lab(l+'_d')
wvoff(249,sW)
o('v_subrev_u32 v247, 16384, v249')
o('s_waitcnt vmcnt(%d)' % (2 if ('nowu' in OPT or 'notlb' in OPT) else 3))
stamp(22)
o(f's_mov_b32 s{sA}, 106862')
RR,RK_,RW=36,24,28
for k in range(3):
    o(f'v_mul_lo_u32 v{RR+k}, v{ED+k}, s{sA}')
for k in range(3):
    o(f'v_lshrrev_b32 v{RR+k}, 24, v{RR+k}')
    o(f'v_mul_u32_u24 v17, {RN}, v{RR+k}'); o(f'v_sub_u32 v17, v{ED+k}, v17')
    o(f'v_lshl_or_b32 v{RW+2*k}, v{ES+k}, 8, v17'); o(f'v_lshlrev_b32 v{RW+2*k+1}, 16, v{EE+k}')
    o(f'v_lshlrev_b32 v{RR+k}, 2, v{RR+k}')
o('v_mov_b32 v16, 1')
o(f'ds_add_rtn_u32 v{RK_}, v{RR}, v16 offset:{HIST1}')
o(f'ds_add_rtn_u32 v{RK_+1}, v{RR+1}, v16 offset:{HIST1}')
o(f'v_cmpx_gt_u32 vcc, {CH-512}, v14')
o(f'ds_add_rtn_u32 v{RK_+2}, v{RR+2}, v16 offset:{HIST1}')
o('s_mov_b64 exec, -1')
o('s_waitcnt lgkmcnt(0)')
o(f's_mul_i32 s{sNONCE}, s{sNONCE}, 0x9E3779B1'); o(f's_add_u32 s{sNONCE}, s{sNONCE}, 0x7F4A7C15')
lds_inc(C_H,17)
lds_spin(C_H,4,17)
o('v_lshlrev_b32 v17, 2, v1')
o(f'ds_read_b32 v20, v17 offset:{HIST1}')
o('s_waitcnt lgkmcnt(0)')
o('v_add_u32 v21, 1, v20'); o('v_and_b32 v21, -2, v21'); o('v_mov_b32 v22, v21')
scan64(21)
o('v_sub_u32 v22, v21, v22')
for k in range(3): o(f'ds_bpermute_b32 v{RR+k}, v{RR+k}, v22')
o('s_waitcnt lgkmcnt(0)')
for k in range(3): o(f'v_add_lshl_u32 v{RR+k}, v{RR+k}, v{RK_+k}, 3')
for k in range(3): o(f'v_add_u32 v{RR+k}, {RST}, v{RR+k}')
o(f'ds_write_b64 v{RR}, {vr(RW,2)}')
o(f'ds_write_b64 v{RR+1}, {vr(RW+2,2)}')
o(f'v_cmpx_gt_u32 vcc, {CH-512}, v14')
o(f'ds_write_b64 v{RR+2}, {vr(RW+4,2)}')
o('s_mov_b64 exec, -1')
o('s_waitcnt lgkmcnt(0)')
lds_inc(C_S,17)
lds_spin(C_S,4,17)
o('v_lshlrev_b32 v17, 4, v14'); o(f'v_add_u32 v18, {RST}, v17')
if 'delay' in OPT: lds_spin(C_X2,4,36)
o('ds_read_b128 v[28:31], v18'); o('ds_read_b128 v[32:35], v18 offset:4096')
o(f's_mul_i32 s{sA}, s2, {CHCAP*8}'); o(f's_add_u32 s{sB}, s{sA}, 4096')
o(f's_and_b32 s{sC_}, s{sNONCE}, 0xffff'); o(f's_lshr_b32 s{sD}, s{sNONCE}, 16')
o('v_mov_b32 v19, 0xffff0000')
o('s_waitcnt lgkmcnt(0)')
o(f'v_and_or_b32 v29, v29, v19, s{sC_}'); o(f'v_and_or_b32 v31, v31, v19, s{sD}')
o(f'v_and_or_b32 v33, v33, v19, s{sC_}'); o(f'v_and_or_b32 v35, v35, v19, s{sD}')
if 'noEst' not in OPT:
    o(f'buffer_store_dwordx4 v[28:31], v17, {sr(rREC,4)}, s{sA} offen sc1')
    o(f'v_cmpx_gt_u32 vcc, {(CHCAP*8-4096)//16}, v14')
    o(f'buffer_store_dwordx4 v[32:35], v17, {sr(rREC,4)}, s{sB} offen sc1')
    o('s_mov_b64 exec, -1')
stamp(2)
l=U('nopub')
if 'noEst' in OPT: o(f's_branch {l}')
o(f's_cmp_lg_u32 s{sW}, 4'); o(f's_cbranch_scc1 {l}')
o('v_lshl_or_b32 v24, v20, 16, v22'); o(f'v_mov_b32 v25, s{sNONCE}')
o('v_lshlrev_b32 v17, 11, v1')
o(f's_lshl_b32 s{sA}, s2, 3')
o(f'buffer_store_dwordx2 v[24:25], v17, {sr(rSEG,4)}, s{sA} offen sc1')
lab(l)
stamp(3)
stamp(4)
o('s_branch L_main_setup' if 'xE' in OPT else 's_branch L_eteam_b')
lab('L_g_gemm')
if 'gprio' in OPT: o('s_setprio 3')
sTE=11
sTC=12
def xread(ks): return f'ds_read_b128 {vr(AF+4*ks,4)}, v{XC+(ks&3)} offset:{256 if ks>=4 else 0}'
def epi_list(which,a,t):
    e=[]
    for i in range(4): e.append(f'v_mul_f32 v{a+i}, {NLOG2E:#x}, v{a+i}')
    for i in range(4): e.append(f'v_cvt_pk_bf16_f32 v{a+i}, v{a+i}, v{a+4+i}')
    if which==1:
        for i in range(4): e.append(f'buffer_store_dword v{a+i}, v{TOF}, {sr(rTW,4)}, s{sB if t==1 else sD} offen offset:{i*256+64*t} sc1')
    else:
        for i in range(4): e.append(f'ds_write_b32 v{AUA if t==1 else AUA+2}, v{a+i} offset:{i*256+64*t}')
    return e
def addr_ops(which,tile_s,t):
    dst = sB if t==1 else sD
    if which==1: return [f's_lshl_b32 s{dst}, s{tile_s}, 4', f's_add_u32 s{dst}, s{dst}, s{sNB}', f's_lshl_b32 s{dst}, s{dst}, 8']
    return [f's_lshl_b32 s{dst}, s{tile_s}, 12', f's_add_u32 s{dst}, s{dst}, {AU}', f'v_add_u32 v{AUA if t==1 else AUA+2}, s{dst}, v{TOF}']
sTO=[13,14,15,46,47]
PK=8
def gemm_body(which, j):
    B0,V0,B1,V1=ACC,ACC+4,ACC+8,ACC+12
    if which==1:
        def epi1(a,jj,t):
            e=[f'v_mul_f32 v{a+i}, {NLOG2E:#x}, v{a+i}' for i in range(4)]
            e+=[f'v_cvt_pk_bf16_f32 v{PK+8*jj+4*t+i}, v{a+i}, v{a+4+i}' for i in range(4)]
            return e
        eP1=epi1(B1,j-1,1) if j>0 else []; eP0=epi1(B0,j,0)
        a1=[]; a0=[]
    else:
        eP1=epi_list(2,B1,1); eP0=epi_list(2,B0,0)
        a1=addr_ops(2,sTE,1); a0=addr_ops(2,sTC,0)
    fill=[[] for _ in range(16)]
    if which==2:
        fill[0]+=a1[0:2]; fill[1]+=a1[2:3]+a0[0:1]; fill[2]+=a0[1:3]
        fill[3]+=eP1[0:3]; fill[4]+=eP1[3:6]; fill[5]+=eP1[6:9]; fill[6]+=eP1[9:11]; fill[7]+=eP1[11:12]
    elif eP1:
        fill[3]+=eP1[0:2]; fill[4]+=eP1[2:4]; fill[5]+=eP1[4:6]; fill[6]+=eP1[6:8]
    if not (which==1 and j==4):
        for ks in range(8): fill[8+ks].append(xread(ks))
    if which==2:
        fill[11]+=eP0[0:3]; fill[12]+=eP0[3:6]; fill[13]+=eP0[6:9]; fill[14]+=eP0[9:11]; fill[15]+=eP0[11:12]
        tail=[f's_mov_b32 s{sTE}, s{sTC}', f's_add_u32 s{sTC}, s{sTC}, 1', f's_add_u32 s{sA}, s{sTC}, 1', f's_lshl_b32 s{sA}, s{sA}, 13']
        fill[9]+=tail[0:2]; fill[10]+=tail[2:4]
    else:
        fill[11]+=eP0[0:2]; fill[12]+=eP0[2:4]; fill[13]+=eP0[4:6]; fill[14]+=eP0[6:8]
        fill[9]+=[f's_add_u32 s{sTC}, s{sTC}, 8192']
    seq=[]
    for sl in range(16):
        for t in fill[sl]:
            if t.startswith('ds_read'): seq.append((sl,'r'))
            elif t.startswith('ds_write'): seq.append((sl,'w'))
    def waitcount(ks):
        if which==1: return 7-ks
        n=0; found=False; k=-1
        for (sl,kind) in seq:
            if kind=='r':
                k+=1
                if k==ks: found=True; continue
            if found: n+=1
        for (sl,kind) in seq:
            if sl<ks: n+=1
        return n
    for ph in range(2):
        for ks in range(8):
            ab,av=(B0,V0) if ph==0 else (B1,V1)
            wb=WF+32*ph+4*ks; wv=WF+64+32*ph+4*ks
            if ph==0: o(f's_waitcnt lgkmcnt({min(waitcount(ks),15)})')
            c1='0' if ks==0 else vr(ab,4); c2='0' if ks==0 else vr(av,4)
            f=fill[8*ph+ks]
            o(f'v_mfma_f32_16x16x32_bf16 {vr(ab,4)}, {vr(AF+4*ks,4)}, {vr(wb,4)}, {c1}')
            h=(len(f)+1)//2 if ph==0 else 0
            for t in f[:h]: o(t)
            o(f'v_mfma_f32_16x16x32_bf16 {vr(av,4)}, {vr(AF+4*ks,4)}, {vr(wv,4)}, {c2}')
            for t in f[h:]: o(t)
    if which==2:
        for k in range(4): o(f'v_add_u32 v{XC+k}, s{sA}, v{XA+k}')
    elif j<3:
        for k in range(4): o(f'v_add_u32 v{XC+k}, s{sTC}, v{XA+k}')
def table_stores():
    for j in range(5):
        o(f's_add_u32 s{sB}, s{sROT}, {j}'); o(f's_lshl_b32 s{sB}, s{sB}, 4'); o(f's_add_u32 s{sB}, s{sB}, s{sNB}'); o(f's_lshl_b32 s{sB}, s{sB}, 8')
        for t in range(2):
            for i in range(4):
                o(f'buffer_store_dword v{PK+8*j+4*t+i}, v{TOF}, {sr(rTW,4)}, s{sB} offen offset:{i*256+64*t} sc1')
def gemm1():
    o(f's_lshl_b32 s{sTC}, s{sROT}, 13')
    for k in range(4): o(f'v_add_u32 v{XC+k}, s{sTC}, v{XA+k}')
    for ks in range(8): o(xread(ks))
    o(f's_add_u32 s{sTC}, s{sTC}, 8192')
    for k in range(4): o(f'v_add_u32 v{XC+k}, s{sTC}, v{XA+k}')
    o('s_waitcnt lgkmcnt(0)')
    for j in range(5):
        if j==1:
            o('s_waitcnt vmcnt(0)')
            lds_inc(C_X2,244)
            o('s_waitcnt lgkmcnt(0)')
        if j==2:
            lds_spin(C_X2,4,244)
        gemm_body(1,j)
    o('s_nop 7')
    for i in range(4): o(f'v_mul_f32 v{ACC+8+i}, {NLOG2E:#x}, v{ACC+8+i}')
    for i in range(4): o(f'v_cvt_pk_bf16_f32 v{PK+32+4+i}, v{ACC+8+i}, v{ACC+12+i}')
def dummy_row():
    l=U('nodummy')
    o(f's_cmp_lg_u32 s{sR}, 63'); o(f's_cbranch_scc1 {l}')
    o(f's_cmp_lg_u32 s{sW}, 0'); o(f's_cbranch_scc1 {l}')
    o('v_mov_b32 v244, 0x7f7f'); o('v_lshlrev_b32 v245, 2, v1'); o(f'v_add_u32 v245, {N*256}, v245')
    o(f'buffer_store_dword v244, v245, {sr(rTR,4)}, 0 offen sc1')
    lab(l)
def own_prefetch(dst):
    o(f's_lshl_b32 s{sA}, s{sNB}, 8'); o(f's_mul_i32 s{sB}, s{sW}, 10240'); o(f's_add_u32 s{sA}, s{sA}, s{sB}')
    o('v_lshlrev_b32 v243, 4, v1')
    for i in range(10):
        o(f'buffer_load_dwordx4 {dst}, v243, {sr(rTW,4)}, s{sA} offen sc1')
        o(f's_add_u32 s{sA}, s{sA}, 1024')
def gemm2():
    B0,V0,B1,V1=ACC,ACC+4,ACC+8,ACC+12
    for j in range(5):
        o(f's_add_u32 s{sTO[j]}, s{sROT}, {j}'); o(f's_lshl_b32 s{sTO[j]}, s{sTO[j]}, 4'); o(f's_add_u32 s{sTO[j]}, s{sTO[j]}, s{sNB}'); o(f's_lshl_b32 s{sTO[j]}, s{sTO[j]}, 8')
    o(f's_lshl_b32 s{sTC}, s{sROT}, 13')
    for k in range(4): o(f'v_add_u32 v{XC+k}, s{sTC}, v{XA+k}')
    for ks in range(8): o(xread(ks))
    o(f's_add_u32 s{sTC}, s{sTC}, 8192')
    for k in range(4): o(f'v_add_u32 v{XC+k}, s{sTC}, v{XA+k}')
    o(f's_lshl_b32 s{sA}, s{sROT}, 12'); o(f's_add_u32 s{sA}, s{sA}, {AU}'); o(f'v_add_u32 v{AUA}, s{sA}, v{TOF}')
    o('s_waitcnt lgkmcnt(0)')
    def epi(a,jj,t):
        e=[f'v_mul_f32 v{a+i}, {NLOG2E:#x}, v{a+i}' for i in range(4)]
        e+=[f'v_cvt_pk_bf16_f32 v{a+i}, v{a+i}, v{a+4+i}' for i in range(4)]
        e+=[f'ds_write_b32 v{AUA}, v{a+i} offset:{jj*4096+i*256+64*t}' for i in range(4)]
        return e
    def tst(jj): return [f'buffer_store_dword v{PK+8*jj+4*t+i}, v{TOF}, {sr(rTW,4)}, s{sTO[jj]} offen offset:{i*256+64*t} sc1' for t in range(2) for i in range(4)]
    stores={0:tst(0)+tst(1),1:tst(2)+tst(3),2:tst(4),3:[],4:[]}
    prev_tail=0
    for j in range(5):
        eP1=epi(B1,j-1,1) if j>0 else []; eP0=epi(B0,j,0)
        fill=[[] for _ in range(16)]
        if eP1:
            fill[3]+=eP1[0:3]; fill[4]+=eP1[3:6]; fill[5]+=eP1[6:9]; fill[6]+=eP1[9:11]; fill[7]+=eP1[11:12]
        if j<4:
            for ks in range(8): fill[8+ks].append(xread(ks))
        fill[11]+=eP0[0:3]; fill[12]+=eP0[3:6]; fill[13]+=eP0[6:9]; fill[14]+=eP0[9:11]; fill[15]+=eP0[11:12]
        if j<3: fill[9]+=[f's_add_u32 s{sTC}, s{sTC}, 8192']
        st=list(stores[j])
        for sl in range(16):
            if st: fill[sl].append(st.pop(0))
        seq=[(sl,('r' if t.startswith('ds_read') else 'w')) for sl in range(16) for t in fill[sl] if t.startswith('ds_')]
        for ph in range(2):
            for ks in range(8):
                ab,av=(B0,V0) if ph==0 else (B1,V1)
                wb=WF+32*ph+4*ks; wv=WF+64+32*ph+4*ks
                if ph==0 and j>0:
                    n=0; found=False; k=-1
                    for (sl,kind) in prevseq:
                        if kind=='r':
                            k+=1
                            if k==ks: found=True; continue
                        if found: n+=1
                    n+=sum(1 for (sl,kind) in seq if sl<ks)
                    o(f's_waitcnt lgkmcnt({min(n,15)})')
                c1='0' if ks==0 else vr(ab,4); c2='0' if ks==0 else vr(av,4)
                f=fill[8*ph+ks]
                o(f'v_mfma_f32_16x16x32_bf16 {vr(ab,4)}, {vr(AF+4*ks,4)}, {vr(wb,4)}, {c1}')
                h=(len(f)+1)//2 if ph==0 else 0
                for t in f[:h]: o(t)
                o(f'v_mfma_f32_16x16x32_bf16 {vr(av,4)}, {vr(AF+4*ks,4)}, {vr(wv,4)}, {c2}')
                for t in f[h:]: o(t)
        if j<3:
            for k in range(4): o(f'v_add_u32 v{XC+k}, s{sTC}, v{XA+k}')
        prevseq=seq
        if j==int(OPT.get('f2it','3')):
            l=U('nf2')
            o('s_waitcnt vmcnt(0)')
            lds_inc(C_T,244,ret=True)
            o(f's_cmp_lg_u32 s{sA}, 3'); o(f's_cbranch_scc1 {l}')
            o('s_mov_b64 exec, 1')
            for i in range(4): o(f'v_mov_b32 v{244+i}, s{sNONCE}')
            o(f's_lshl_b32 s{sA}, s{sS}, 6'); o(f's_add_u32 s{sA}, s{sA}, s{sR}'); o(f's_lshl_b32 s{sA}, s{sA}, 4')
            o(f's_add_u32 s{sA}, s{sA}, {SEGT_FLAG2}')
            o(f'buffer_store_dwordx4 v[244:247], v{VZ}, {sr(rSEG,4)}, s{sA} offen sc1')
            o('s_mov_b64 exec, -1')
            lab(l)
            if 'preat' in OPT:
                o('s_nop 1'); own_prefetch('v[244:247]')
    o('s_nop 7')
    for t in epi(B1,4,1): o(t)
    if 'nopre' not in OPT and 'preat' not in OPT:
        own_prefetch('v[232:235]' if 'nowait' in OPT else 'v[44:47]')
    if 'preout' in OPT:
        o('v_lshrrev_b32 v245, 3, v1'); o('v_lshlrev_b32 v245, 9, v245'); o('v_and_b32 v246, 7, v1'); o('v_lshl_add_u32 v245, v246, 4, v245')
        o(f's_mul_i32 s{sB}, s{sW}, {40*512}'); o(f's_lshl_b32 s{sA}, s{sNB}, 9'); o(f's_add_u32 s{sA}, s{sA}, s{sB}')
        o(f's_lshl_b32 s{sB}, s{sS}, 7'); o(f's_add_u32 s{sA}, s{sA}, s{sB}')
        for i in range(5):
            o(f'buffer_load_dwordx4 v[44:47], v245, {sr(rOUT,4)}, s{sA} offen')
            o(f's_add_u32 s{sA}, s{sA}, {8*512}')
gemm1()
stamp(5)
wfrags()
o('s_waitcnt lgkmcnt(0)')
lds_inc(C_G,244)
lds_spin(C_G,4,244)
stamp(18)
if 'xE' not in OPT and 'nogate' not in OPT: lds_spin(C_RL,4,244)
dummy_row()
stamp(6)
gemm2()
o('s_waitcnt lgkmcnt(0)')
stamp(7)
o('s_branch L_main_setup')
lab('L_eteam_b')
SG,RC0,RC1,SA,RKB=64,80,112,144,200
T=176
o(f's_sub_u32 s{sC_}, s{sW}, 4')
o('v_lshrrev_b32 v17, 3, v1')
o(f's_lshl_b32 s{sA}, s{sC_}, 3'); o(f'v_add_u32 v17, s{sA}, v17')
o(f'v_lshlrev_b32 v{T}, 3, v17')
o('v_and_b32 v18, 7, v1')
o(f'v_mul_u32_u24 v{T+1}, {CHCAP*8}, v17'); o(f'v_lshl_add_u32 v{T+1}, v18, 4, v{T+1}')
IX=T+2
o(f'v_lshlrev_b32 v{IX}, 1, v18'); o(f'v_add_u32 v{IX+1}, 1, v{IX}'); o(f'v_add_u32 v{IX+2}, 16, v{IX}'); o(f'v_add_u32 v{IX+3}, 17, v{IX}')
lds_spin({'G1':C_G1,'PG':C_PG}[OPT.get('pollgate','G1')],4,17)
o(f's_lshl_b32 s{sD}, s{sR}, 11')
o(f's_mov_b32 s{sSP}, 0')
lp=U('poll1'); dn=U('poll1d')
lab(lp)
for p in range(8):
    o(f'buffer_load_dwordx2 {vr(SG+2*p,2)}, v{T}, {sr(rSEG,4)}, s{sD} offen offset:{p*256} sc1')
o(f'v_mov_b32 v19, s{sNONCE}')
o('s_waitcnt vmcnt(0)')
o(f'v_xor_b32 v20, v{SG+1}, v19')
for p in range(1,8):
    o(f'v_xor_b32 v21, v{SG+2*p+1}, v19'); o('v_or_b32 v20, v20, v21')
o('v_cmp_ne_u32 vcc, 0, v20')
o(f's_cbranch_vccz {dn}')
o('s_sleep 6')
o(f's_add_u32 s{sSP}, s{sSP}, 1'); o(f's_cmp_lt_u32 s{sSP}, 0x10000'); o(f's_cbranch_scc1 {lp}')
lab(dn)
stamp(5)
o('v_mov_b32 v20, 0')
for p in range(8):
    o(f'v_lshrrev_b32 v{SG+2*p+1}, 16, v{SG+2*p}')
    o(f'v_max_u32 v20, v20, v{SG+2*p+1}')
o('v_cmp_lt_u32 vcc, 32, v20')
l=U('nofb'); o(f's_cbranch_vccz {l}')
o('v_mov_b32 v21, 1'); o(f'ds_write_b32 v{VZ}, v21 offset:{C_FB}')
lab(l)
o(f's_mov_b32 s{sSP}, 0')
lr=U('recld'); dr=U('recok')
lab(lr)
for p in range(8):
    o(f'v_and_b32 v19, 0xffff, v{SG+2*p}')
    o(f'v_lshl_add_u32 v19, v19, 3, v{T+1}')
    o(f's_mov_b32 s{sA}, {p*32*CHCAP*8}')
    o(f'v_cmp_lt_u32 vcc, 16, v{SG+2*p+1}')
    o(f'buffer_load_dwordx4 {vr(RC0+4*p,4)}, v19, {sr(rREC,4)}, s{sA} offen sc1')
    l=U('ld1'); o(f's_cbranch_vccz {l}')
    o(f'buffer_load_dwordx4 {vr(RC1+4*p,4)}, v19, {sr(rREC,4)}, s{sA} offen offset:128 sc1')
    lab(l)
l=U('sig'); o(f's_cmp_lg_u32 s{sSP}, 0'); o(f's_cbranch_scc1 {l}_r')
lds_inc(C_RL,20)
o('s_waitcnt vmcnt(0)')
o(f's_branch {l}')
lab(l+'_r')
o('s_waitcnt vmcnt(0)')
lab(l)
o('v_mov_b32 v21, 0x05040100'); o('v_mov_b32 v22, 0'); o(f'v_mov_b32 v23, s{sNONCE}')
for p in range(8):
    for st in range(2):
        rec=(RC0 if st==0 else RC1)+4*p
        if st==1:
            l=U('v1'); o(f'v_cmp_lt_u32 vcc, 16, v{SG+2*p+1}'); o(f's_cbranch_vccz {l}')
        o(f'v_cmpx_lt_u32 vcc, v{IX+2*st}, v{SG+2*p+1}')
        o(f'v_perm_b32 v20, v{rec+3}, v{rec+1}, v21'); o('v_xor_b32 v20, v20, v23'); o('v_or_b32 v22, v22, v20')
        o('s_mov_b64 exec, -1')
        if st==1: lab(l)
o('v_cmp_ne_u32 vcc, 0, v22')
o(f's_cbranch_vccz {dr}')
o('s_sleep 2')
o(f's_add_u32 s{sSP}, s{sSP}, 1'); o(f's_cmp_lt_u32 s{sSP}, 0x10000'); o(f's_cbranch_scc1 {lr}')
lab(dr)
stamp(6)
def each_rec(fn):
    for p in range(8):
        for st in range(2):
            if st==1:
                l=U('st1'); o(f'v_cmp_lt_u32 vcc, 16, v{SG+2*p+1}'); o(f's_cbranch_vccz {l}')
            for i in range(2):
                rec=(RC0 if st==0 else RC1)+4*p+2*i
                o(f'v_cmpx_lt_u32 vcc, v{IX+2*st+i}, v{SG+2*p+1}')
                fn(rec, SA+4*p+2*st+i)
            o('s_mov_b64 exec, -1')
            if st==1: lab(l)
SD='dst_sel:DWORD dst_unused:UNUSED_PAD src0_sel:DWORD src1_sel:BYTE_0'
o('v_mov_b32 v22, 1'); o('v_mov_b32 v23, 64')
def f_hist(rec,sa):
    o(f'v_lshlrev_b32_sdwa v20, 2, v{rec} {SD}'); o(f'ds_add_rtn_u32 v{sa-SA+RKB}, v20, v22 offset:{DEG}')
each_rec(f_hist)
o('s_waitcnt lgkmcnt(0)')
lds_inc(C_E1,20)
stamp(7)
o(f's_cmp_lg_u32 s{sW}, 4')
o('s_cbranch_scc1 L_e_prefill')
lds_spin(C_E1,4,20)
D0,K0,P0=24,28,32
o('v_lshlrev_b32 v19, 2, v1')
for a in range(3): o(f'ds_read_b32 v{D0+a}, v19 offset:{DEG+a*256}')
perm=[]
for w in range(8): perm += ([w,w+4,11-w] if w<4 else [19-w,23-w]) if 'oldperm' not in OPT else ([w,15-w] + ([19-w] if w<4 else []))
o('v_mov_b32 v38, 31')
for i,g in enumerate(perm): o(f'v_writelane_b32 v38, {g}, {i}')
o('v_lshlrev_b32 v38, 2, v38')
o('v_sub_u32 v37, 252, v19')
o('s_waitcnt lgkmcnt(0)')
for a in range(3):
    o(f'v_min_u32 v{K0+a}, 63, v{D0+a}'); o(f'v_lshlrev_b32 v{K0+a}, 2, v{K0+a}')
    if a==2: o('v_cmpx_gt_u32 vcc, 32, v1')
    o(f'ds_add_rtn_u32 v{P0+a}, v{K0+a}, v22 offset:{HIST2}')
o('s_mov_b64 exec, -1')
o('s_waitcnt lgkmcnt(0)')
o(f'ds_read_b32 v36, v37 offset:{HIST2}')
for a in range(3): o(f'v_sub_u32 v{K0+a}, 252, v{K0+a}')
o('s_waitcnt lgkmcnt(0)')
o('v_mov_b32 v35, v36') if False else None
o('v_mov_b32 v39, v36')
scan64(36)
o('v_sub_u32 v36, v36, v39')
for a in range(3): o(f'ds_bpermute_b32 v{K0+a}, v{K0+a}, v36')
o('s_waitcnt lgkmcnt(0)')
for a in range(3):
    o(f'v_add_u32 v{P0+a}, v{P0+a}, v{K0+a}')
    o(f'v_add_u32 v21, {64*a}, v1')
    o(f'v_cmp_gt_u32 vcc, s{sNV}, v21')
    o(f'v_lshlrev_b32 v20, 3, v{P0+a}')
    o(f'v_lshrrev_b32 v{K0+a}, 3, v{P0+a}'); o(f'v_lshlrev_b32 v{K0+a}, 2, v{K0+a}')
    o('v_mov_b32 v40, 0x200000')
    o('v_and_b32 v43, 15, v21'); o('v_lshlrev_b32 v43, 4, v43'); o('v_lshl_add_u32 v43, v21, 9, v43')
    o('v_cndmask_b32 v42, v40, v21, vcc')
    if a==2: o('v_cmpx_gt_u32 vcc, 32, v1')
    o(f'ds_write_b64 v20, v[42:43] offset:{NODEOF}')
    o(f'ds_max_u32 v{K0+a}, v{D0+a} offset:{LG}')
o('s_mov_b64 exec, -1')
o('s_waitcnt lgkmcnt(0)')
o(f'ds_read_b32 v39, v38 offset:{LG}')
o('s_waitcnt lgkmcnt(0)')
o('v_add_u32 v39, 1, v39'); o('v_lshrrev_b32 v39, 1, v39')
o('v_mov_b32 v40, v39')
scan64(39)
o('v_sub_u32 v40, v39, v40')
o('v_lshlrev_b32 v40, 7, v40'); o(f'v_add_u32 v40, {ELL}, v40')
o(f'ds_write_b32 v38, v40 offset:{GBASE}')
o(f'v_readlane_b32 s{sA}, v39, 19')
o('s_waitcnt lgkmcnt(0)')
for a in range(3): o(f'ds_read_b32 v{K0+a}, v{K0+a} offset:{GBASE}')
o(f's_cmp_le_u32 s{sA}, {ELLB-4}')
l=U('fits'); o(f's_cbranch_scc1 {l}')
o('v_mov_b32 v21, 1'); o(f'ds_write_b32 v{VZ}, v21 offset:{C_FB}')
lab(l)
o('s_waitcnt lgkmcnt(0)')
for a in range(3):
    o(f'v_and_b32 v21, 7, v{P0+a}'); o(f'v_lshl_add_u32 v21, v21, 3, v{K0+a}')
    o(f'ds_write_b32 v19, v21 offset:{CUR+a*256}')
o('s_waitcnt lgkmcnt(0)')
lds_inc(C_SORT,20)
o('s_branch L_e_wait')
lab('L_e_prefill')
lds_spin(C_G,4,20)
o(f's_sub_u32 s{sA}, s{sW}, 5'); o(f's_lshl_b32 s{sA}, s{sA}, 10'); o(f's_add_u32 s{sA}, s{sA}, {ELL}')
o(f'v_lshlrev_b32 v20, 4, v1'); o(f'v_add_u32 v20, s{sA}, v20')
o(f'v_mov_b32 v24, {N*256}'); o('v_mov_b32 v25, 0'); o(f'v_mov_b32 v26, {N*256}'); o('v_mov_b32 v27, 0')
for i in range(12): o(f'ds_write_b128 v20, v[24:27] offset:{i*3072}')
o('s_waitcnt lgkmcnt(0)')
lds_inc(C_P,20)
lab('L_e_wait')
lds_spin(C_SORT,1,20)
lds_spin(C_P,3,20)
stamp(8)
o(f'ds_read_b32 v20, v{VZ} offset:{C_FB}'); o('s_waitcnt lgkmcnt(0)')
o(f'v_readfirstlane_b32 s{sA}, v20'); o(f's_cmp_lg_u32 s{sA}, 0'); o('s_cbranch_scc1 L_e_done')
def f_slot(rec,sa):
    o(f'v_lshlrev_b32_sdwa v20, 2, v{rec} {SD}'); o(f'ds_read_b32 v{sa}, v20 offset:{CUR}')
each_rec(f_slot)
o('s_waitcnt lgkmcnt(0)')
def f_put(rec,sa):
    o(f'v_lshl_add_u32 v{sa}, v{sa-SA+RKB}, 6, v{sa}'); o(f'v_and_b32 v{rec+1}, v24, v{rec+1}'); o(f'ds_write_b64 v{sa}, {vr(rec,2)}')
o('v_mov_b32 v24, 0xffff0000')
each_rec(f_put)
lab('L_e_done')
o('s_waitcnt lgkmcnt(0)')
stamp(9)
o(f's_cmp_lg_u32 s{sW}, 4')
o('s_cbranch_scc1 L_main_setup')
o('v_lshlrev_b32 v20, 4, v1')
o(f's_lshl_b32 s{sD}, s{sS}, 10'); o(f's_add_u32 s{sD}, s{sD}, {SEGT_FLAG2}')
o(f's_mov_b32 s{sSP}, 0')
lp=U('poll2'); dn=U('poll2d')
lab(lp)
o(f'buffer_load_dword v21, v20, {sr(rSEG,4)}, s{sD} offen sc1')
o('s_waitcnt vmcnt(0)')
o(f'v_cmp_ne_u32 vcc, s{sNONCE}, v21')
o(f's_cbranch_vccz {dn}')
o('s_sleep 2')
o(f's_add_u32 s{sSP}, s{sSP}, 1'); o(f's_cmp_lt_u32 s{sSP}, 0x10000'); o(f's_cbranch_scc1 {lp}')
lab(dn)
l=U('noep')
o('s_cmp_lg_u32 s2, 0'); o(f's_cbranch_scc1 {l}')
o('s_mov_b64 exec, 1')
o(f'v_mov_b32 v21, s{sNONCE}')
o(f'global_store_dword v{VZ}, v21, {sr(sEP,2)} sc1')
o('s_mov_b64 exec, -1')
lab(l)
LOFF,RP=2,3
S1A,S1B,S2A,S2B,ONE=4,8,12,16,20
WC=24; NUM=32; DEN=40; C=48; DX,DY=72,104; R0,R1=136,152
OFA,OFB,EA_,EB_,AD=168,170,172,174,176
lab('L_main_setup')
o('s_setprio 0')
stamp(10)
o(f'v_and_b32 v{LOFF}, 7, v1'); o(f'v_lshlrev_b32 v{LOFF}, 4, v{LOFF}')
o('v_bfe_u32 v196, v1, 3, 2'); o('v_bfe_u32 v197, v1, 2, 1'); o('v_lshrrev_b32 v198, 5, v1'); o('v_and_b32 v199, 3, v1')
o('v_cmp_eq_u32 vcc, v197, v198'); o('v_mov_b32 v195, 7'); o('v_and_b32 v193, 1, v196')
o('v_cndmask_b32 v199, v195, v199, vcc')
LO,HI=0x00003f80,0x3f800000
o('v_cmp_gt_u32 vcc, 2, v196'); o(f'v_mov_b32 v194, {LO:#x}'); o(f'v_mov_b32 v195, {HI:#x}')
o('v_cndmask_b32 v192, v194, v195, vcc')
o('v_cndmask_b32 v191, v195, v194, vcc')
o('v_lshl_add_u32 v199, v193, 3, v199')
for i in range(4):
    o(f'v_cmp_eq_u32 vcc, {i}, v199'); o(f'v_cmp_eq_u32 s[98:99], {8+i}, v199'); o('s_nop 0')
    o(f'v_cndmask_b32 v{S1A+i}, 0, v192, vcc'); o(f'v_cndmask_b32 v{S2A+i}, 0, v191, vcc')
    o(f'v_cndmask_b32 v{S1B+i}, 0, v192, s[98:99]'); o(f'v_cndmask_b32 v{S2B+i}, 0, v191, s[98:99]')
o('v_cmp_gt_u32 vcc, 32, v1')
for i in range(1,4): o(f'v_mov_b32 v{ONE+i}, 0')
o(f'v_cndmask_b32 v{ONE}, 0, v194, vcc')
for i in range(4):
    o(f'v_lshlrev_b32 v{WC+2*i}, 16, v{250+i}'); o(f'v_and_b32 v{WC+2*i+1}, 0xffff0000, v{250+i}')
for i in range(8): o(f'v_mul_f32 v{WC+i}, {NLOG2E:#x}, v{WC+i}')
for i in range(8):
    o(f'v_mov_b32 v{C+i}, 0'); o(f'v_mov_b32 v{C+16+i}, 0')
LOFF_=LOFF
sPAR,sNBT,sODD,sG1,sG2,sLN=97,47,96,46,13,14
NLN,LT,OA,AUN,XRN,UF,XF,VAUK,VKA,VOK=178,180,181,182,190,194,202,210,211,212
TM=214
o(f'v_add_u32 v{VAUK}, {AU}, v{LOFF}')
o(f'v_bfe_u32 v{TM}, v1, 1, 2'); o(f's_lshl_b32 s92, s{sS}, 3'); o(f'v_add_u32 v{TM}, s92, v{TM}'); o(f'v_lshlrev_b32 v{TM}, 4, v{TM}')
o(f'v_and_b32 v{TM+1}, 1, v1'); o(f'v_lshl_add_u32 v{VKA}, v{TM+1}, 3, v{TM}')
o(f's_lshl_b32 s92, s{sNB}, 9'); o(f's_lshl_b32 s93, s{sS}, 7'); o('s_add_u32 s92, s92, s93')
o(f'v_lshrrev_b32 v{TM}, 1, v{LOFF}'); o(f'v_add_u32 v{VOK}, s92, v{TM}')
o(f'v_lshrrev_b32 v{TM+2}, 3, v1'); o(f'v_lshlrev_b32 v{TM+2}, 3, v{TM+2}')
o(f's_sub_u32 s12, 19, s{sW}'); o(f's_cmp_lt_u32 s{sW}, 4'); o(f's_cselect_b32 s12, s{sW}, s12')
o(f's_add_u32 s{sG1}, s{sW}, 4'); o(f's_sub_u32 s92, 23, s{sW}'); o(f's_sub_u32 s{sG2}, 11, s{sW}')
o(f's_cmp_ge_u32 s{sW}, 4'); o(f's_cselect_b32 s{sG1}, s92, s{sG1}'); o(f's_cselect_b32 s{sG2}, -1, s{sG2}')
def node_prefetch(gs):
    o(f's_lshl_b32 s92, s{gs}, 6'); o(f'v_add_u32 v{TM}, s92, v{TM+2}'); o(f'ds_read_b64 {vr(NLN,2)}, v{TM} offset:{NODEOF}')
    o(f's_lshl_b32 s92, s{gs}, 2'); o(f'v_mov_b32 v{TM+1}, s92'); o(f'ds_read_b32 v{LT}, v{TM+1} offset:{LG}')
def raw_prefetch():
    o(f'v_lshl_add_u32 v{TM}, v{NLN}, 8, v{VAUK}')
    o(f'v_xor_b32 v{TM+1}, v{NLN+1}, v{VKA}'); o(f'v_xor_b32 v{TM+3}, 64, v{TM+1}')
    o(f'ds_read_b128 {vr(AUN,4)}, v{TM}'); o(f'ds_read_b128 {vr(AUN+4,4)}, v{TM} offset:128')
    o(f'ds_read_b64 {vr(XRN,2)}, v{TM+1} offset:{XT}'); o(f'ds_read_b64 {vr(XRN+2,2)}, v{TM+3} offset:{XT}')
o(f's_xor_b32 s15, s{sR}, 1'); o(f's_mul_i32 s15, s15, {RN*256}'); o(f's_mul_i32 s92, s{sW}, 5120'); o('s_add_u32 s15, s15, s92')
o(f'v_lshlrev_b32 v{TM+4}, 4, v1')
o('s_waitcnt lgkmcnt(0)' if 'nowait' in OPT else 's_waitcnt vmcnt(0) lgkmcnt(0)')
o('s_barrier')
stamp(11)
if 'xE' in OPT: o('s_branch L_done')
if 'pre2' in OPT:
    for i in range(5):
        o(f'buffer_load_dwordx4 v[232:235], v{TM+4}, {sr(rTR,4)}, s15 offen sc1')
        o('s_add_u32 s15, s15, 1024')
o(f'ds_read_b32 v{TM+5}, v{VZ} offset:{C_FB}')
o(f's_lshl_b32 s{sA}, s12, 2'); o(f'v_mov_b32 v{TM+6}, s{sA}'); o(f'ds_read_b32 v{RP}, v{TM+6} offset:{GBASE}')
node_prefetch(12)
l=U('ap'); o(f's_cmp_ge_u32 s{sW}, 4'); o(f's_cbranch_scc1 {l}'); o('s_setprio 1'); lab(l)
o('s_waitcnt lgkmcnt(0)')
o(f'v_readfirstlane_b32 s{sA}, v{TM+5}'); o(f's_cmp_lg_u32 s{sA}, 0'); o('s_cbranch_scc1 L_fallback')
o(f'v_add_u32 v{RP}, v{RP}, v{TM+2}')
o(f'v_readfirstlane_b32 s{sLN}, v{LT}')
def mfma(d,a,b,c): o(f'v_mfma_f32_32x32x16_bf16 {vr(d,16)}, {vr(a,4)}, {vr(b,4)}, {c}')
def unpack_list(D,R):
    f=lambda d,a,b,c: f'v_mfma_f32_32x32x16_bf16 {vr(d,16)}, {vr(a,4)}, {vr(b,4)}, {c}'
    return [f(D,S1A,R,vr(C,16)), f(D,S1B,R+4,vr(D,16)), f(D+16,S2A,R+8,vr(C+8,16)), f(D+16,S2B,R+12,vr(D+16,16))]
def gfma(D,Er):
    for sl in range(2):
        for j in range(4):
            g=D+8+8*sl+2*j
            sel='op_sel:[0,0,0] op_sel_hi:[0,1,1]' if sl==0 else 'op_sel:[1,0,0] op_sel_hi:[1,1,1]'
            o(f'v_pk_fma_f32 {vr(g,2)}, {vr(Er,2)}, {vr(WC+2*j,2)}, {vr(g,2)} {sel}')
def loads(R,OF):
    o(f'v_and_or_b32 v{AD}, v{OF}, s{sM}, v{LOFF}'); o(f'v_and_or_b32 v{AD+1}, v{OF+1}, s{sM}, v{LOFF}')
    o(f'buffer_load_dwordx4 {vr(R,4)}, v{AD}, {sr(rTR,4)}, 0 offen sc1')
    o(f'buffer_load_dwordx4 {vr(R+4,4)}, v{AD}, {sr(rTR,4)}, 0 offen offset:128 sc1')
    o(f'buffer_load_dwordx4 {vr(R+8,4)}, v{AD+1}, {sr(rTR,4)}, 0 offen sc1')
    o(f'buffer_load_dwordx4 {vr(R+12,4)}, v{AD+1}, {sr(rTR,4)}, 0 offen offset:128 sc1')
def rd_off(dst,b): o(f'ds_read2_b32 {vr(dst,2)}, v{RP} offset0:{b*32} offset1:{b*32+16}')
def rd_e(dst,b): o(f'ds_read2_b32 {vr(dst,2)}, v{RP} offset0:{b*32+1} offset1:{b*32+17}')
def dsreads(P):
    OFn=OFB if P==0 else OFA; En=EB_ if P==0 else EA_
    rd_off(OFn,P+3); rd_e(En,P+1)
    if P==1: o(f'v_add_u32 v{RP}, 256, v{RP}')
def accum(D):
    for sl in range(2):
        for j in range(4):
            g=D+8+8*sl+2*j
            o(f'v_pk_add_f32 {vr(DEN+2*j,2)}, {vr(DEN+2*j,2)}, {vr(g,2)}')
            v=(D+2*j) if sl==0 else (D+24+2*j)
            o(f'v_pk_fma_f32 {vr(NUM+2*j,2)}, {vr(g,2)}, {vr(v,2)}, {vr(NUM+2*j,2)}')
Ds=[DX,DY]; Rs=[R0,R1]; OFs=[OFA,OFB]; Es=[EA_,EB_]
rd_off(OFA,0); rd_off(OFB,1)
raw_prefetch()
o('s_waitcnt lgkmcnt(4)')
loads(R0,OFA); loads(R1,OFB)
rd_off(OFA,2); rd_e(EA_,0)
o(f's_mov_b32 s{sPAR}, 0')
if PROF: o('s_mov_b32 s3, 0')
lab('L_group')
o(f's_min_u32 s{sLN}, s{sLN}, {2*ELLB}')
o(f's_and_b32 s{sODD}, s{sLN}, 1'); o(f's_add_u32 s{sNBT}, s{sLN}, 1'); o(f's_lshr_b32 s{sNBT}, s{sNBT}, 1')
o(f'v_lshl_add_u32 v{OA}, v{NLN}, 9, v{VOK}')
mfma(NUM,C,C,'0')
o('s_waitcnt lgkmcnt(0)')
for i in range(8): o(f'v_lshlrev_b32 v{C+8+i}, 16, v{AUN+i}')
l=U('nonext')
o(f's_cmp_eq_u32 s{sG1}, -1'); o(f's_cbranch_scc1 {l}')
node_prefetch(sG1)
lab(l)
for i in range(8): o(f'v_and_b32 v{UF+i}, 0xffff0000, v{AUN+i}')
for i in range(4):
    o(f'v_lshlrev_b32 v{XF+2*i}, 16, v{XRN+i}'); o(f'v_and_b32 v{XF+2*i+1}, 0xffff0000, v{XRN+i}')
if PROF:
    o(f's_memtime s[100:101]'); o('s_waitcnt lgkmcnt(0)')
    o(f's_add_u32 m0, s3, 36'); o('s_nop 3'); o('v_writelane_b32 v255, s100, m0')
    o(f's_add_u32 m0, s3, 60'); o('s_nop 3'); o(f'v_writelane_b32 v255, s{sLN}, m0')
o(f's_cmp_eq_u32 s{sNBT}, 0'); o('s_cbranch_scc1 L_epi')
o(f's_cmp_eq_u32 s{sPAR}, 1'); o('s_cbranch_scc1 L_gs1')
def exps(D): return [f'v_exp_f32 v{D+8+i}, v{D+8+i}' for i in range(16)]
def rcps(D): return [f'v_rcp_f32 v{D+8+i}, v{D+8+i}' for i in range(16)]
for P in range(2):
    lab(f'L_gs{P}')
    o('s_waitcnt vmcnt(4)')
    for t in unpack_list(Ds[P],Rs[P]): o(t)
    o('s_waitcnt lgkmcnt(0)')
    loads(Rs[P],OFs[P])
    dsreads(P)
    o('s_nop 7')
    gfma(Ds[P],Es[P])
    o(f's_branch L_body{P}')
for P in range(2):
    Q=P^1
    lab(f'L_body{P}')
    o(f's_sub_u32 s{sNBT}, s{sNBT}, 1'); o(f's_cmp_eq_u32 s{sNBT}, 0'); o(f's_cbranch_scc1 L_last{P}')
    ex=exps(Ds[P]); un=unpack_list(Ds[Q],Rs[Q])
    o('s_waitcnt vmcnt(4)')
    for k in range(4):
        o(un[k])
        for t in ex[4*k:4*k+4]: o(t)
    o('s_nop 1')
    mfma(Ds[P]+8,ONE,ONE,vr(Ds[P]+8,16))
    o('s_waitcnt lgkmcnt(0)')
    loads(Rs[Q],OFs[Q])
    o('s_nop 2')
    dsreads(Q)
    for t in rcps(Ds[P]): o(t)
    gfma(Ds[Q],Es[Q])
    accum(Ds[P])
    if P==1: o('s_branch L_body0')
for P in range(2):
    lab(f'L_last{P}')
    D=Ds[P]
    o(f's_cmp_eq_u32 s{sODD}, 1'); o(f's_cbranch_scc1 L_half{P}')
    for t in exps(D): o(t)
    o('s_nop 1')
    mfma(D+8,ONE,ONE,vr(D+8,16))
    o('s_nop 7'); o('s_nop 3')
    for t in rcps(D): o(t)
    accum(D)
    o(f's_mov_b32 s{sPAR}, {P^1}')
    o('s_branch L_epi')
    lab(f'L_half{P}')
    for t in exps(D)[:8]: o(t)
    for j in range(4): o(f'v_pk_add_f32 {vr(D+8+2*j,2)}, {vr(D+8+2*j,2)}, 1.0 op_sel_hi:[1,0]')
    for t in rcps(D)[:8]: o(t)
    for j in range(4):
        g=D+8+2*j
        o(f'v_pk_add_f32 {vr(DEN+2*j,2)}, {vr(DEN+2*j,2)}, {vr(g,2)}')
        o(f'v_pk_fma_f32 {vr(NUM+2*j,2)}, {vr(g,2)}, {vr(D+2*j,2)}, {vr(NUM+2*j,2)}')
    o(f's_mov_b32 s{sPAR}, {P^1}')
    if P==0: o('s_branch L_epi')
lab('L_epi')
if PROF:
    o(f's_memtime s[100:101]'); o('s_waitcnt lgkmcnt(0)')
    o(f's_add_u32 m0, s3, 40'); o('s_nop 3'); o('v_writelane_b32 v255, s100, m0')
l=U('nonext2')
o(f's_cmp_eq_u32 s{sG1}, -1'); o(f's_cbranch_scc1 {l}')
o('s_waitcnt lgkmcnt(0)')
o(f'v_readfirstlane_b32 s{sLN}, v{LT}')
raw_prefetch()
lab(l)
o('s_mov_b32 s92, 0x358637bd'); o('s_mov_b32 s93, 0x358637bd')
for j in range(4): o(f'v_pk_add_f32 {vr(DEN+2*j,2)}, {vr(DEN+2*j,2)}, s[92:93]')
for i in range(8): o(f'v_rcp_f32 v{DEN+i}, v{DEN+i}')
o('s_nop 0')
for j in range(4): o(f'v_pk_fma_f32 {vr(UF+2*j,2)}, {vr(NUM+2*j,2)}, {vr(DEN+2*j,2)}, {vr(UF+2*j,2)}')
for i in range(8): o(f'v_max_f32 v{UF+i}, 0, v{UF+i}')
for j in range(4): o(f'v_pk_add_f32 {vr(UF+2*j,2)}, {vr(UF+2*j,2)}, {vr(XF+2*j,2)}')
for i in range(4): o(f'v_cvt_pk_bf16_f32 v{UF+i}, v{UF+2*i}, v{UF+2*i+1}')
o(f'buffer_store_dwordx2 {vr(UF,2)}, v{OA}, {sr(rOUT,4)}, 0 offen')
o(f'buffer_store_dwordx2 {vr(UF+2,2)}, v{OA}, {sr(rOUT,4)}, 0 offen offset:64')
if PROF:
    o(f's_memtime s[100:101]'); o('s_waitcnt lgkmcnt(0)')
    o(f's_add_u32 m0, s3, 56'); o('s_nop 3'); o('v_writelane_b32 v255, s100, m0')
    o('s_add_u32 s3, s3, 1')
o(f's_cmp_eq_u32 s{sG1}, -1'); o('s_cbranch_scc1 L_done')
o(f's_mov_b32 s{sG1}, s{sG2}'); o(f's_mov_b32 s{sG2}, -1')
o('s_branch L_group')
lab('L_done')
stamp(12)
if PROF:
    o('s_waitcnt vmcnt(0)')
    srd_off(92,sWS,WS_PROF,0x100000)
    o(f's_lshl_b32 s96, s2, 3'); o(f's_add_u32 s96, s96, s{sW}'); o('s_lshl_b32 s96, s96, 8')
    o('v_lshlrev_b32 v2, 2, v1')
    o('buffer_store_dword v255, v2, s[92:95], s96 offen')
o('s_endpgm')
lab('L_codeend')
lab('L_fallback')
FN,FD,FA,FU,FW=10,11,12,13,14
o('v_lshlrev_b32 v5, 2, v1')
o(f's_lshl_b32 s92, s{sS}, 7')
o('v_lshlrev_b32 v6, 1, v1'); o(f'v_add_u32 v6, s92, v6')
srd(64,sWC,512)
o(f'buffer_load_ushort v{FW}, v6, s[64:67], 0 offen')
o('s_waitcnt vmcnt(0)')
o(f'v_lshlrev_b32 v{FW}, 16, v{FW}'); o(f'v_mul_f32 v{FW}, {NLOG2E:#x}, v{FW}')
o(f's_mov_b32 s46, s{sW}')
lab('L_fb_node')
o(f's_cmp_ge_u32 s46, s{sNV}'); o('s_cbranch_scc1 L_fb_end')
o(f's_lshl_b32 s92, s46, 8'); o(f's_add_u32 s92, s92, {AU}'); o(f'v_add_u32 v7, s92, v5'); o('ds_read_b32 v8, v7')
o('s_waitcnt lgkmcnt(0)')
o(f'v_lshlrev_b32 v{FA}, 16, v8'); o(f'v_and_b32 v{FU}, 0xffff0000, v8')
o(f'v_mov_b32 v{FN}, 0'); o(f'v_mov_b32 v{FD}, 0')
o(f's_add_u32 s47, s46, s{sNB}')
o('s_mov_b32 s93, 0')
lab('L_fb_e')
o('v_add_u32 v7, s93, v1'); o('v_lshlrev_b32 v8, 2, v7'); o('v_lshlrev_b32 v7, 1, v7')
o(f'buffer_load_dword v15, v8, {sr(rDST,4)}, 0 offen')
o(f'buffer_load_dword v16, v8, {sr(rSRC,4)}, 0 offen')
o(f'buffer_load_ushort v17, v7, {sr(rEA,4)}, 0 offen')
o('s_waitcnt vmcnt(0)')
o('v_cmp_eq_u32 vcc, s47, v15')
o('s_mov_b64 s[94:95], vcc')
lab('L_fb_m')
o('s_cmp_eq_u64 s[94:95], 0'); o('s_cbranch_scc1 L_fb_next')
o('s_ff1_i32_b64 s96, s[94:95]')
o('s_bitset0_b64 s[94:95], s96')
o('v_readlane_b32 s97, v16, s96'); o('v_readlane_b32 s92, v17, s96')
o('s_nop 1')
o('s_lshl_b32 s97, s97, 8'); o('s_lshl_b32 s92, s92, 16')
o('s_nop 4')
o(f'buffer_load_dword v18, v5, {sr(rTR,4)}, s97 offen sc1')
o('s_waitcnt vmcnt(0)')
o('v_lshlrev_b32 v19, 16, v18'); o('v_and_b32 v18, 0xffff0000, v18')
o(f'v_add_f32 v19, v19, v{FA}'); o(f'v_fmac_f32 v19, s92, v{FW}')
o('v_exp_f32 v19, v19'); o('s_nop 0'); o('v_add_f32 v19, 1.0, v19'); o('v_rcp_f32 v19, v19'); o('s_nop 0')
o(f'v_add_f32 v{FD}, v{FD}, v19'); o(f'v_fmac_f32 v{FN}, v19, v18')
o('s_branch L_fb_m')
lab('L_fb_next')
o('s_add_u32 s93, s93, 64'); o(f's_cmp_lt_u32 s93, {E}'); o('s_cbranch_scc1 L_fb_e')
o('s_mov_b32 s92, 0x358637bd')
o(f'v_add_f32 v{FD}, s92, v{FD}'); o(f'v_rcp_f32 v{FD}, v{FD}'); o('s_nop 0')
o(f'v_fmac_f32 v{FU}, v{FN}, v{FD}'); o(f'v_max_f32 v{FU}, 0, v{FU}')
o('s_lshl_b32 s92, s47, 9')
o(f'buffer_load_ushort v18, v6, {sr(rX,4)}, s92 offen')
o('s_waitcnt vmcnt(0)')
o(f'v_lshlrev_b32 v18, 16, v18'); o(f'v_add_f32 v{FU}, v{FU}, v18')
o(f'v_cvt_pk_bf16_f32 v18, v{FU}, v{FU}')
o(f'buffer_store_short v18, v6, {sr(rOUT,4)}, s92 offen')
o('s_add_u32 s46, s46, 8'); o('s_branch L_fb_node')
lab('L_fb_end')
lab('L_end')
o('s_endpgm')
L=[x for x in L if x is not None]
hdr=open('gather_scatter__edge_featured_mpnn_gatedgcn__graph.s.ref').read().split('; Override')[0]
out=hdr+f'''; Generated by dev/gen2.py (hand-written generator). One fused persistent launch, 1 workgroup per CU.
; @launch grid=(256,1,1) block=(512,1,1) lds={LDS_TOTAL}
.amdgcn_target "amdgcn-amd-amdhsa--gfx950"
.text
.globl {NAME}
.p2align 8
.type {NAME},@function
'''+'\n'.join(L)+f'''
.section .rodata,"a"
.p2align 6
.amdhsa_kernel {NAME}
  .amdhsa_next_free_vgpr 256
  .amdhsa_next_free_sgpr 102
  .amdhsa_accum_offset 256
  .amdhsa_group_segment_fixed_size 0
  .amdhsa_kernarg_size 96
  .amdhsa_user_sgpr_count 2
  .amdhsa_user_sgpr_kernarg_segment_ptr 1
  .amdhsa_system_sgpr_workgroup_id_x 1
.end_amdhsa_kernel
'''
fn=[a for a in sys.argv[1:] if not a.startswith('--')]
open(fn[0] if fn else 'k.s','w').write(out)
```

```python
import sys
NAME='gather_scatter__edge_featured_mpnn_gatedgcn__graph_kernel'
PROF = '--prof' in sys.argv
OPT = {a.split('=')[0][2:]:(a.split('=')[1] if '=' in a else '1') for a in sys.argv[1:] if a.startswith('--')}
N=10000; E=160000; RN=157; CH=625; CHCAP=704
SLICE=10240*256
WS_RECS=0xA00000; WS_SEGT=0xB80000; SEGT_FLAG2=0x20000; WS_EPOCH=0xBB0000; WS_PROF=0xC00000
HIST1=0; DEG=256; HIST2=1024; LG=1280; GBASE=1408; CUR=1536; NODEOF=2304; CNT=3840
C_W=CNT; C_G=CNT+4; C_T=CNT+8; C_E1=CNT+12; C_SORT=CNT+16; C_P=CNT+20; C_FB=CNT+24; C_X=CNT+28; C_G1=CNT+32; C_H=CNT+36; C_R=CNT+40; C_X2=CNT+44; C_S=CNT+48; C_RL=CNT+52; C_X1=CNT+56; C_PG=CNT+60; C_PP=CNT+64; C_F2=CNT+68
XT=4096; WR=XT+81920; AU=WR; ELL=WR+40960; ELLB=288
LDS_TOTAL=163840
RST=WR+65536
assert ELL+ELLB*128==LDS_TOTAL
NLOG2E=0xbfb8aa3b
sEP=4
sI,sROT,sTL,sWROT=6,7,8,9
sM=10
sX,sEA,sSRC,sDST,sWA,sWB,sWC,sWU=16,18,20,22,24,26,28,30
sWV,sOUT,sDBG,sWS=32,34,36,38
sW,sS,sR,sNONCE,sNB,sNV=40,41,42,43,44,45
rX,rDST,rSRC,rEA,rW1,rW2,rTW,rTR,rREC,rSEG,rOUT=48,52,56,60,64,68,72,76,80,84,88
sA,sB,sC_,sD,sSP=92,93,94,95,96
L=[]
def o(t): L.append('  '+t)
def lab(t): L.append(t+':')
def vr(a,n): return f'v[{a}:{a+n-1}]' if n>1 else f'v{a}'
def sr(a,n): return f's[{a}:{a+n-1}]'
uid=[0]
def U(p):
    uid[0]+=1; return f'L_{p}_{uid[0]}'
def srd(r,base,size):
    o(f's_mov_b32 s{r}, s{base}'); o(f's_mov_b32 s{r+1}, s{base+1}')
    o(f's_mov_b32 s{r+2}, {size}'); o(f's_mov_b32 s{r+3}, 0x20000')
def srd_off(r,base,off,size):
    o(f's_add_u32 s{r}, s{base}, {off}'); o(f's_addc_u32 s{r+1}, s{base+1}, 0')
    o(f's_mov_b32 s{r+2}, {size}'); o(f's_mov_b32 s{r+3}, 0x20000')
def stamp(idx):
    if not PROF: return
    o(f's_memrealtime s[100:101]'); o('s_waitcnt lgkmcnt(0)'); o(f'v_writelane_b32 v255, s100, {idx}')
    o(f's_memtime s[100:101]'); o('s_waitcnt lgkmcnt(0)'); o(f'v_writelane_b32 v255, s100, {idx+32}')
VZ=248
def lds_spin(addr, need, vtmp):
    l=U('spin'); d=U('spind')
    o(f's_mov_b32 s{sSP}, 0')
    lab(l)
    o(f'ds_read_b32 v{vtmp}, v{VZ} offset:{addr}')
    o('s_waitcnt lgkmcnt(0)')
    o(f'v_readfirstlane_b32 s{sA}, v{vtmp}')
    o(f's_add_u32 s{sSP}, s{sSP}, 1')
    o(f's_cmp_ge_u32 s{sA}, {need}')
    o(f's_cbranch_scc1 {d}')
    o('s_sleep 1')
    o(f's_cmp_lt_u32 s{sSP}, 0x40000')
    o(f's_cbranch_scc1 {l}')
    lab(d)
def lds_inc(addr, vtmp, ret=False):
    o(f'v_mov_b32 v{vtmp}, 1')
    o('s_mov_b64 exec, 1')
    if ret:
        o(f'ds_add_rtn_u32 v{vtmp}, v{VZ}, v{vtmp} offset:{addr}')
        o('s_waitcnt lgkmcnt(0)')
        o(f'v_readfirstlane_b32 s{sA}, v{vtmp}')
    else:
        o(f'ds_add_u32 v{VZ}, v{vtmp} offset:{addr}')
    o('s_mov_b64 exec, -1')
def scan64(v):
    for sh in (1,2,4,8):
        o('s_nop 1'); o(f'v_add_u32_dpp v{v}, v{v}, v{v} row_shr:{sh} row_mask:0xf bank_mask:0xf')
    o('s_nop 1'); o(f'v_add_u32_dpp v{v}, v{v}, v{v} row_bcast:15 row_mask:0xa bank_mask:0xf')
    o('s_nop 1'); o(f'v_add_u32_dpp v{v}, v{v}, v{v} row_bcast:31 row_mask:0xc bank_mask:0xf')
    o('s_nop 1')
lab(NAME)
o('s_cmp_ge_u32 s2, 256')
o('s_cbranch_scc1 L_end')
o('s_load_dwordx16 s[16:31], s[0:1], 0')
o('s_load_dwordx8 s[32:39], s[0:1], 64')
o('v_and_b32 v1, 63, v0')
o('v_lshrrev_b32 v2, 6, v0')
o(f'v_mov_b32 v{VZ}, 0')
o(f'v_readfirstlane_b32 s{sW}, v2')
o('s_getpc_b64 s[12:13]')
lab('L_pc')
if 'nopf' not in OPT:
    o(f's_cmp_lg_u32 s{sW}, 7'); o('s_cbranch_scc1 L_nopf')
    o('s_lshr_b32 s3, s2, 3'); o('s_lshl_b32 s3, s3, 10')
    o('v_lshl_add_u32 v2, v1, 4, s3')
    o('v_cmp_gt_u32 vcc, L_codeend-L_pc-16, v2')
    o('s_and_saveexec_b64 s[98:99], vcc')
    o('s_cbranch_execz L_nopf2')
    o('global_load_dwordx4 v[240:243], v2, s[12:13]')
    lab('L_nopf2')
    o('s_mov_b64 exec, -1')
    lab('L_nopf')
o('v_lshlrev_b32 v17, 3, v0'); o('v_mov_b32 v20, 0'); o('v_mov_b32 v21, 0')
o('ds_write_b64 v17, v[20:21]')
o(f's_and_b32 s{sS}, s2, 7'); o(f's_lshr_b32 s{sS}, s{sS}, 1')
o(f's_lshr_b32 s{sR}, s2, 3'); o(f's_lshl_b32 s{sR}, s{sR}, 1'); o(f's_and_b32 s{sA}, s2, 1'); o(f's_or_b32 s{sR}, s{sR}, s{sA}')
o(f's_mul_i32 s{sNB}, s{sR}, {RN}')
o(f's_sub_u32 s{sNV}, {N}, s{sNB}'); o(f's_min_u32 s{sNV}, s{sNV}, {RN}')
if PROF: o('v_mov_b32 v255, 0')
for _v in (56,57,58,59,60,61,62,63,240,241,242,243): o(f'v_mov_b32 v{_v}, 0')
o(f's_mul_i32 s{sROT}, s{sS}, 5'); o(f's_add_u32 s{sROT}, s{sROT}, 1'); o(f's_lshr_b32 s{sROT}, s{sROT}, 1')
o(f's_lshr_b32 s{sWROT}, s2, 3')
o(f's_mov_b32 s{sM}, 0xffffff00')
def build_common():
    srd(rOUT,sOUT,N*512)
    o(f's_mul_i32 s{sA}, s{sS}, {SLICE}')
    o(f's_add_u32 s{rTW}, s{sWS}, s{sA}'); o(f's_addc_u32 s{rTW+1}, s{sWS+1}, 0')
    o(f's_add_u32 s{sA}, s{sNB}, s{sNV}'); o(f's_lshl_b32 s{rTW+2}, s{sA}, 8'); o(f's_mov_b32 s{rTW+3}, 0x20000')
    o(f's_mov_b32 s{rTR}, s{rTW}'); o(f's_mov_b32 s{rTR+1}, s{rTW+1}'); o(f's_mov_b32 s{rTR+2}, {(N+1)*256}'); o(f's_mov_b32 s{rTR+3}, 0x20000')
    srd_off(rSEG,sWS,WS_SEGT,0x21000)
    o(f's_add_u32 s{sEP}, s{sWS}, {WS_EPOCH}'); o(f's_addc_u32 s{sEP+1}, s{sWS+1}, 0')
    o(f's_load_dword s{sNONCE}, {sr(sEP,2)}, 0')
def wc_load():
    o('v_and_b32 v17, 7, v1'); o('v_lshlrev_b32 v17, 3, v17')
    o(f's_lshl_b32 s{sA}, s{sS}, 7'); o(f'v_add_u32 v17, s{sA}, v17')
    srd(rREC,sWC,512)
    o(f'buffer_load_dwordx2 v[250:251], v17, {sr(rREC,4)}, 0 offen')
    o(f'buffer_load_dwordx2 v[252:253], v17, {sr(rREC,4)}, 0 offen offset:64')
def wvoff(dst, wexpr_s):
    o('v_lshrrev_b32 v17, 3, v1')
    o(f's_lshl_b32 s{sA}, s{wexpr_s}, 3'); o(f'v_add_u32 v17, s{sA}, v17')
    o('v_bfe_u32 v20, v1, 4, 1')
    o(f's_and_b32 s{sA}, s{wexpr_s}, 1'); o(f's_lshl_b32 s{sA}, s{sA}, 1'); o(f'v_or_b32 v20, s{sA}, v20')
    o('v_bfe_u32 v19, v1, 1, 2'); o('v_xor_b32 v19, v19, v20'); o('v_lshlrev_b32 v19, 1, v19')
    o('v_and_b32 v20, 1, v1'); o('v_or_b32 v19, v19, v20')
    o('v_lshlrev_b32 v19, 4, v19'); o('v_lshl_add_u32 v19, v17, 9, v19')
    o(f's_lshl_b32 s{sA}, s{sS}, 7'); o(f'v_add_u32 v{dst}, s{sA}, v19')
o(f's_cmp_ge_u32 s{sW}, 4')
o('s_cbranch_scc1 L_e0')
o('v_lshrrev_b32 v17, 5, v1')
o(f's_lshl_b32 s{sA}, s{sW}, 1'); o(f'v_add_u32 v17, s{sA}, v17')
o('v_and_b32 v18, 31, v1'); o('v_and_b32 v19, 15, v17'); o('v_xor_b32 v22, v18, v19')
o('v_lshlrev_b32 v22, 4, v22'); o('v_lshl_add_u32 v22, v17, 9, v22')
o('v_add_u32 v17, 8, v17'); o('v_and_b32 v19, 15, v17'); o('v_xor_b32 v23, v18, v19')
o('v_lshlrev_b32 v23, 4, v23'); o('v_lshl_add_u32 v23, v17, 9, v23')
wvoff(249,sW)
o('s_waitcnt lgkmcnt(0)')
o('s_barrier')
stamp(0)
if 'stlb' in OPT:
    def touch(base, off_s=None, off_i=0):
        if off_s is None and off_i==0:
            o(f's_load_dword s13, {sr(base,2)}, 0'); return
        if off_s is not None:
            o(f's_add_u32 s14, s{base}, s{off_s}'); o(f's_addc_u32 s15, s{base+1}, 0')
            if off_i: o(f's_add_u32 s14, s14, {off_i}'); o('s_addc_u32 s15, s15, 0')
        else:
            o(f's_add_u32 s14, s{base}, {off_i}'); o(f's_addc_u32 s15, s{base+1}, 0')
        o('s_load_dword s13, s[14:15], 0')
    o(f's_lshl_b32 s3, s{sNB}, 9')
    touch(sX,3); touch(sWB); touch(sWV); touch(sWA); touch(sWU); touch(sOUT,3)
    touch(sWS,None,WS_RECS)
    o(f's_mul_i32 s3, s{sS}, {SLICE}')
    touch(sWS,3); touch(sWS,3,0x100000); touch(sWS,3,0x200000); touch(sWS,3,SLICE-256)
wc_load()
srd(rX,sX,N*512); srd(rW1,sWB,131072); srd(rW2,sWV,131072)
o(f's_lshl_b32 s{sC_}, s{sW}, 10')
o(f's_mov_b32 s{sTL}, s{sROT}')
o(f's_mov_b32 s{sI}, 0')
lab('L_dmaw')
o(f's_add_u32 s{sA}, s{sI}, s{sWROT}'); o(f's_and_b32 s{sA}, s{sA}, 7')
o(f's_lshl_b32 s{sB}, s{sA}, 14'); o(f's_lshl_b32 s{sA}, s{sA}, 12'); o(f's_add_u32 s{sA}, s{sA}, s{sC_}')
o(f's_add_u32 m0, s{sA}, {WR}'); o('s_nop 0')
o(f'buffer_load_dwordx4 v249, {sr(rW1,4)}, s{sB} offen lds')
o(f's_add_u32 m0, s{sA}, {WR+32768}'); o('s_nop 0')
o(f'buffer_load_dwordx4 v249, {sr(rW2,4)}, s{sB} offen lds')
o('s_waitcnt vmcnt(%s)' % OPT.get('pacew',OPT.get('pace','8')))
o(f's_add_u32 s{sI}, s{sI}, 1'); o(f's_cmp_lt_u32 s{sI}, 8'); o('s_cbranch_scc1 L_dmaw')
def xloop(lo,hi,name):
    o(f's_mov_b32 s{sI}, {lo}')
    lab(name)
    o(f's_lshr_b32 s{sTL}, s{sI}, 1'); o(f's_and_b32 s{sA}, s{sI}, 1'); o(f's_mul_i32 s{sA}, s{sA}, 5'); o(f's_add_u32 s{sTL}, s{sTL}, s{sA}')
    o(f's_lshl_b32 s{sA}, s{sTL}, 13'); o(f's_add_u32 s{sD}, s{sA}, s{sC_}'); o(f's_add_u32 m0, s{sD}, {XT}')
    o(f's_lshl_b32 s{sB}, s{sNB}, 9'); o(f's_add_u32 s{sB}, s{sB}, s{sA}')
    o(f'buffer_load_dwordx4 v22, {sr(rX,4)}, s{sB} offen lds')
    o(f's_add_u32 m0, s{sD}, {XT+4096}'); o('s_nop 0')
    o(f'buffer_load_dwordx4 v23, {sr(rX,4)}, s{sB} offen lds')
    o('s_waitcnt vmcnt(%s)' % OPT.get('pace','8'))
    o(f's_add_u32 s{sI}, s{sI}, 1'); o(f's_cmp_lt_u32 s{sI}, {hi}'); o(f's_cbranch_scc1 {name}')
xloop(0,4,'L_dmax1')
stamp(19)
build_common()
srd(rDST,sDST,E*4); srd(rSRC,sSRC,E*4); srd(rEA,sEA,E*2); srd_off(rREC,sWS,WS_RECS,256*CHCAP*8)
WF,AF,ACC,XA,XC,TRA,TOF,AUA=64,192,224,56,60,240,241,242
o(f's_and_b32 s{sD}, s{sW}, 1'); o(f's_lshl_b32 s{sD}, s{sD}, 1')
o('v_lshrrev_b32 v17, 4, v1')
o('v_bfe_u32 v18, v1, 2, 2')
o('v_lshl_add_u32 v19, v17, 3, v18')
o('v_lshlrev_b32 v19, 7, v19')
o('v_bfe_u32 v20, v1, 3, 1')
o('v_and_b32 v21, 1, v17'); o('v_lshl_or_b32 v20, v21, 1, v20')
o(f'v_xor_b32 v20, s{sD}, v20')
o('v_and_b32 v21, 3, v1'); o('v_lshl_add_u32 v19, v21, 3, v19'); o(f'v_add_u32 v19, {WR}, v19')
o(f'v_lshl_add_u32 v{TRA}, v20, 5, v19')
o('v_xor_b32 v20, 1, v20'); o(f'v_lshl_add_u32 v{TRA+3}, v20, 5, v19')
def wfrags():
    for m in range(2):
        for t in range(2):
            for ks in range(8):
                r=WF+64*m+32*t+4*ks; a=TRA if t==0 else TRA+3
                o(f'ds_read_b64_tr_b16 {vr(r,2)}, v{a} offset:{m*32768+ks*4096}')
                o(f'ds_read_b64_tr_b16 {vr(r+2,2)}, v{a} offset:{m*32768+ks*4096+512}')
o('v_and_b32 v18, 15, v1')
for k in range(4):
    o(f'v_and_b32 v19, 12, v18'); o(f'v_xor_b32 v19, {4*k}, v19')
    o('v_and_b32 v20, 3, v18'); o('v_xor_b32 v20, v20, v17')
    o('v_add_u32 v19, v19, v20'); o('v_lshlrev_b32 v19, 4, v19')
    o(f'v_lshl_add_u32 v{XA+k}, v18, 9, v19')
    o(f'v_add_u32 v{XA+k}, {XT}, v{XA+k}')
o('v_lshlrev_b32 v19, 10, v17')
o(f's_lshl_b32 s{sA}, s{sD}, 6')
o('v_lshl_add_u32 v19, v18, 2, v19'); o(f'v_add_u32 v{TOF}, s{sA}, v19')
o(f's_lshr_b32 s{sROT}, s{sW}, 1'); o(f's_mul_i32 s{sROT}, s{sROT}, 5')

o('s_waitcnt vmcnt(8) lgkmcnt(0)')
o(f's_mul_i32 s{sNONCE}, s{sNONCE}, 0x9E3779B1'); o(f's_add_u32 s{sNONCE}, s{sNONCE}, 0x7F4A7C15')
lds_inc(C_X,244)
lds_spin(C_X,4,244)
stamp(2)
wfrags()
o('s_waitcnt lgkmcnt(0)')
o(f's_lshl_b32 s{sC_}, s{sW}, 10')
lds_inc(C_W,244)
lds_spin(C_W,4,244)
srd(rW1,sWA,131072); srd(rW2,sWU,131072)
o(f's_mov_b32 s{sI}, 0')
lab('L_dmau')
o(f's_add_u32 s{sA}, s{sI}, s{sWROT}'); o(f's_and_b32 s{sA}, s{sA}, 7')
o(f's_lshl_b32 s{sB}, s{sA}, 14'); o(f's_lshl_b32 s{sA}, s{sA}, 12'); o(f's_add_u32 s{sA}, s{sA}, s{sC_}')
o(f's_add_u32 m0, s{sA}, {WR}'); o('s_nop 0')
o(f'buffer_load_dwordx4 v249, {sr(rW1,4)}, s{sB} offen lds')
o(f's_add_u32 m0, s{sA}, {WR+32768}'); o('s_nop 0')
o(f'buffer_load_dwordx4 v249, {sr(rW2,4)}, s{sB} offen lds')
o('s_waitcnt vmcnt(%s)' % OPT.get('paceu',OPT.get('pace','8')))
o(f's_add_u32 s{sI}, s{sI}, 1'); o(f's_cmp_lt_u32 s{sI}, 8'); o('s_cbranch_scc1 L_dmau')
lds_inc(C_PG,244)
xloop(4,10,'L_dmax2')
lds_inc(C_G1,244)
stamp(3)
o('s_waitcnt vmcnt(8)')
lds_inc(C_X1,244)
lds_spin(C_X1,4,244)
stamp(4)
o('s_branch L_g_gemm')
lab('L_e0')
if 'noprio' not in OPT: o('s_setprio %s' % OPT.get('eprio','2'))
o('v_subrev_u32 v14, 256, v0')
o(f's_mul_i32 s{sA}, s2, {CH}')
o(f'v_add_u32 v15, s{sA}, v14')
o('v_lshlrev_b32 v16, 1, v15'); o('v_lshlrev_b32 v15, 2, v15')
o(f'v_cmp_gt_u32 vcc, {CH-512}, v14')
o('v_add_u32 v18, 2048, v15'); o('v_add_u32 v19, 1024, v16')
o('v_mov_b32 v17, 0x40000000')
o('v_cndmask_b32 v18, v17, v18, vcc'); o('v_cndmask_b32 v19, v17, v19, vcc')
o('s_waitcnt lgkmcnt(0)')
ED,ES,EE=2,5,8
srd(rDST,sDST,E*4)
o(f'buffer_load_dword v{ED}, v15, {sr(rDST,4)}, 0 offen')
o(f'buffer_load_dword v{ED+1}, v15, {sr(rDST,4)}, 0 offen offset:1024')
o(f'buffer_load_dword v{ED+2}, v18, {sr(rDST,4)}, 0 offen')
srd(rSRC,sSRC,E*4)
o(f'buffer_load_dword v{ES}, v15, {sr(rSRC,4)}, 0 offen')
o(f'buffer_load_dword v{ES+1}, v15, {sr(rSRC,4)}, 0 offen offset:1024')
o(f'buffer_load_dword v{ES+2}, v18, {sr(rSRC,4)}, 0 offen')
srd(rEA,sEA,E*2)
o(f'buffer_load_ushort v{EE}, v16, {sr(rEA,4)}, 0 offen')
o(f'buffer_load_ushort v{EE+1}, v16, {sr(rEA,4)}, 0 offen offset:512')
o(f'buffer_load_ushort v{EE+2}, v19, {sr(rEA,4)}, 0 offen')
o('s_barrier')
stamp(0)
wc_load()
srd(rW1,sWA,131072); srd(rW2,sWU,131072)
o('s_lshr_b32 s3, s2, 3'); o('s_lshl_b32 s3, s3, 12')
o('v_lshrrev_b32 v17, 3, v1'); o('v_lshlrev_b32 v17, 9, v17'); o('v_and_b32 v19, 7, v1'); o('v_lshl_add_u32 v17, v19, 4, v17')
o(f's_lshl_b32 s{sA}, s{sS}, 7'); o(f'v_add_u32 v17, s{sA}, v17')
l=U('wu')
if 'nowu' not in OPT:
    o(f's_cmp_lg_u32 s{sW}, 4'); o(f's_cbranch_scc1 {l}_a')
    o(f'buffer_load_dwordx4 v[240:243], v17, {sr(rW1,4)}, s3 offen')
    lab(l+'_a')
    o(f's_cmp_lg_u32 s{sW}, 5'); o(f's_cbranch_scc1 {l}_b')
    o(f'buffer_load_dwordx4 v[240:243], v17, {sr(rW2,4)}, s3 offen')
    lab(l+'_b')
build_common()
srd(rX,sX,N*512); srd_off(rREC,sWS,WS_RECS,256*CHCAP*8)
if 'notlb' not in OPT:
    o(f's_cmp_lg_u32 s{sW}, 6'); o(f's_cbranch_scc1 {l}_c')
    o('v_lshlrev_b32 v17, 20, v1'); o('v_cmpx_gt_u32 vcc, 3, v1')
    o(f'buffer_load_dword v244, v17, {sr(rTR,4)}, 0 offen')
    o('s_mov_b64 exec, -1')
    lab(l+'_c')
    o(f's_cmp_lg_u32 s{sW}, 7'); o(f's_cbranch_scc1 {l}_d')
    o(f's_lshl_b32 s{sA}, s{sNB}, 9')
    o(f'buffer_load_dword v244, v{VZ}, {sr(rOUT,4)}, s{sA} offen')
    o(f'buffer_load_dword v245, v{VZ}, {sr(rREC,4)}, 0 offen')
    lab(l+'_d')
wvoff(249,sW)
o('v_subrev_u32 v247, 16384, v249')
o('s_waitcnt vmcnt(%d)' % (2 if ('nowu' in OPT or 'notlb' in OPT) else 3))
stamp(22)
o(f's_mov_b32 s{sA}, 106862')
RR,RK_,RW=36,24,28
for k in range(3):
    o(f'v_mul_lo_u32 v{RR+k}, v{ED+k}, s{sA}')
for k in range(3):
    o(f'v_lshrrev_b32 v{RR+k}, 24, v{RR+k}')
    o(f'v_mul_u32_u24 v17, {RN}, v{RR+k}'); o(f'v_sub_u32 v17, v{ED+k}, v17')
    o(f'v_lshl_or_b32 v{RW+2*k}, v{ES+k}, 8, v17'); o(f'v_lshlrev_b32 v{RW+2*k+1}, 16, v{EE+k}')
    o(f'v_lshlrev_b32 v{RR+k}, 2, v{RR+k}')
o('v_mov_b32 v16, 1')
o(f'ds_add_rtn_u32 v{RK_}, v{RR}, v16 offset:{HIST1}')
o(f'ds_add_rtn_u32 v{RK_+1}, v{RR+1}, v16 offset:{HIST1}')
o(f'v_cmpx_gt_u32 vcc, {CH-512}, v14')
o(f'ds_add_rtn_u32 v{RK_+2}, v{RR+2}, v16 offset:{HIST1}')
o('s_mov_b64 exec, -1')
o('s_waitcnt lgkmcnt(0)')
o(f's_mul_i32 s{sNONCE}, s{sNONCE}, 0x9E3779B1'); o(f's_add_u32 s{sNONCE}, s{sNONCE}, 0x7F4A7C15')
lds_inc(C_H,17)
lds_spin(C_H,4,17)
o('v_lshlrev_b32 v17, 2, v1')
o(f'ds_read_b32 v20, v17 offset:{HIST1}')
o('s_waitcnt lgkmcnt(0)')
o('v_add_u32 v21, 1, v20'); o('v_and_b32 v21, -2, v21'); o('v_mov_b32 v22, v21')
scan64(21)
o('v_sub_u32 v22, v21, v22')
for k in range(3): o(f'ds_bpermute_b32 v{RR+k}, v{RR+k}, v22')
o('s_waitcnt lgkmcnt(0)')
for k in range(3): o(f'v_add_lshl_u32 v{RR+k}, v{RR+k}, v{RK_+k}, 3')
for k in range(3): o(f'v_add_u32 v{RR+k}, {RST}, v{RR+k}')
o(f'ds_write_b64 v{RR}, {vr(RW,2)}')
o(f'ds_write_b64 v{RR+1}, {vr(RW+2,2)}')
o(f'v_cmpx_gt_u32 vcc, {CH-512}, v14')
o(f'ds_write_b64 v{RR+2}, {vr(RW+4,2)}')
o('s_mov_b64 exec, -1')
o('s_waitcnt lgkmcnt(0)')
lds_inc(C_S,17)
lds_spin(C_S,4,17)
o('v_lshlrev_b32 v17, 4, v14'); o(f'v_add_u32 v18, {RST}, v17')
if 'delay' in OPT: lds_spin(C_X2,4,36)
o('ds_read_b128 v[28:31], v18'); o('ds_read_b128 v[32:35], v18 offset:4096')
o(f's_mul_i32 s{sA}, s2, {CHCAP*8}'); o(f's_add_u32 s{sB}, s{sA}, 4096')
o(f's_and_b32 s{sC_}, s{sNONCE}, 0xffff'); o(f's_lshr_b32 s{sD}, s{sNONCE}, 16')
o('v_mov_b32 v19, 0xffff0000')
o('s_waitcnt lgkmcnt(0)')
o(f'v_and_or_b32 v29, v29, v19, s{sC_}'); o(f'v_and_or_b32 v31, v31, v19, s{sD}')
o(f'v_and_or_b32 v33, v33, v19, s{sC_}'); o(f'v_and_or_b32 v35, v35, v19, s{sD}')
if 'noEst' not in OPT:
    o(f'buffer_store_dwordx4 v[28:31], v17, {sr(rREC,4)}, s{sA} offen sc1')
    o(f'v_cmpx_gt_u32 vcc, {(CHCAP*8-4096)//16}, v14')
    o(f'buffer_store_dwordx4 v[32:35], v17, {sr(rREC,4)}, s{sB} offen sc1')
    o('s_mov_b64 exec, -1')
stamp(2)
l=U('nopub')
if 'noEst' in OPT: o(f's_branch {l}')
o(f's_cmp_lg_u32 s{sW}, 4'); o(f's_cbranch_scc1 {l}')
o('v_lshl_or_b32 v24, v20, 16, v22'); o(f'v_mov_b32 v25, s{sNONCE}')
o('v_lshlrev_b32 v17, 11, v1')
o(f's_lshl_b32 s{sA}, s2, 3')
o(f'buffer_store_dwordx2 v[24:25], v17, {sr(rSEG,4)}, s{sA} offen sc1')
lab(l)
stamp(3)
stamp(4)
o('s_branch L_main_setup' if 'xE' in OPT else 's_branch L_eteam_b')
lab('L_g_gemm')
if 'gprio' in OPT: o('s_setprio 3')
sTE=11
sTC=12
def xread(ks): return f'ds_read_b128 {vr(AF+4*ks,4)}, v{XC+(ks&3)} offset:{256 if ks>=4 else 0}'
def epi_list(which,a,t):
    e=[]
    for i in range(4): e.append(f'v_mul_f32 v{a+i}, {NLOG2E:#x}, v{a+i}')
    for i in range(4): e.append(f'v_cvt_pk_bf16_f32 v{a+i}, v{a+i}, v{a+4+i}')
    if which==1:
        for i in range(4): e.append(f'buffer_store_dword v{a+i}, v{TOF}, {sr(rTW,4)}, s{sB if t==1 else sD} offen offset:{i*256+64*t} sc1')
    else:
        for i in range(4): e.append(f'ds_write_b32 v{AUA if t==1 else AUA+2}, v{a+i} offset:{i*256+64*t}')
    return e
def addr_ops(which,tile_s,t):
    dst = sB if t==1 else sD
    if which==1: return [f's_lshl_b32 s{dst}, s{tile_s}, 4', f's_add_u32 s{dst}, s{dst}, s{sNB}', f's_lshl_b32 s{dst}, s{dst}, 8']
    return [f's_lshl_b32 s{dst}, s{tile_s}, 12', f's_add_u32 s{dst}, s{dst}, {AU}', f'v_add_u32 v{AUA if t==1 else AUA+2}, s{dst}, v{TOF}']
sTO=[13,14,15,46,47]
PK=8
def gemm_body(which, j):
    B0,V0,B1,V1=ACC,ACC+4,ACC+8,ACC+12
    if which==1:
        def epi1(a,jj,t):
            e=[f'v_mul_f32 v{a+i}, {NLOG2E:#x}, v{a+i}' for i in range(4)]
            e+=[f'v_cvt_pk_bf16_f32 v{PK+8*jj+4*t+i}, v{a+i}, v{a+4+i}' for i in range(4)]
            return e
        eP1=epi1(B1,j-1,1) if j>0 else []; eP0=epi1(B0,j,0)
        a1=[]; a0=[]
    else:
        eP1=epi_list(2,B1,1); eP0=epi_list(2,B0,0)
        a1=addr_ops(2,sTE,1); a0=addr_ops(2,sTC,0)
    fill=[[] for _ in range(16)]
    if which==2:
        fill[0]+=a1[0:2]; fill[1]+=a1[2:3]+a0[0:1]; fill[2]+=a0[1:3]
        fill[3]+=eP1[0:3]; fill[4]+=eP1[3:6]; fill[5]+=eP1[6:9]; fill[6]+=eP1[9:11]; fill[7]+=eP1[11:12]
    elif eP1:
        fill[3]+=eP1[0:2]; fill[4]+=eP1[2:4]; fill[5]+=eP1[4:6]; fill[6]+=eP1[6:8]
    if not (which==1 and j==4):
        for ks in range(8): fill[8+ks].append(xread(ks))
    if which==2:
        fill[11]+=eP0[0:3]; fill[12]+=eP0[3:6]; fill[13]+=eP0[6:9]; fill[14]+=eP0[9:11]; fill[15]+=eP0[11:12]
        tail=[f's_mov_b32 s{sTE}, s{sTC}', f's_add_u32 s{sTC}, s{sTC}, 1', f's_add_u32 s{sA}, s{sTC}, 1', f's_lshl_b32 s{sA}, s{sA}, 13']
        fill[9]+=tail[0:2]; fill[10]+=tail[2:4]
    else:
        fill[11]+=eP0[0:2]; fill[12]+=eP0[2:4]; fill[13]+=eP0[4:6]; fill[14]+=eP0[6:8]
        fill[9]+=[f's_add_u32 s{sTC}, s{sTC}, 8192']
    seq=[]
    for sl in range(16):
        for t in fill[sl]:
            if t.startswith('ds_read'): seq.append((sl,'r'))
            elif t.startswith('ds_write'): seq.append((sl,'w'))
    def waitcount(ks):
        if which==1: return 7-ks
        n=0; found=False; k=-1
        for (sl,kind) in seq:
            if kind=='r':
                k+=1
                if k==ks: found=True; continue
            if found: n+=1
        for (sl,kind) in seq:
            if sl<ks: n+=1
        return n
    for ph in range(2):
        for ks in range(8):
            ab,av=(B0,V0) if ph==0 else (B1,V1)
            wb=WF+32*ph+4*ks; wv=WF+64+32*ph+4*ks
            if ph==0: o(f's_waitcnt lgkmcnt({min(waitcount(ks),15)})')
            c1='0' if ks==0 else vr(ab,4); c2='0' if ks==0 else vr(av,4)
            f=fill[8*ph+ks]
            o(f'v_mfma_f32_16x16x32_bf16 {vr(ab,4)}, {vr(AF+4*ks,4)}, {vr(wb,4)}, {c1}')
            h=(len(f)+1)//2 if ph==0 else 0
            for t in f[:h]: o(t)
            o(f'v_mfma_f32_16x16x32_bf16 {vr(av,4)}, {vr(AF+4*ks,4)}, {vr(wv,4)}, {c2}')
            for t in f[h:]: o(t)
    if which==2:
        for k in range(4): o(f'v_add_u32 v{XC+k}, s{sA}, v{XA+k}')
    elif j<3:
        for k in range(4): o(f'v_add_u32 v{XC+k}, s{sTC}, v{XA+k}')
def table_stores():
    for j in range(5):
        o(f's_add_u32 s{sB}, s{sROT}, {j}'); o(f's_lshl_b32 s{sB}, s{sB}, 4'); o(f's_add_u32 s{sB}, s{sB}, s{sNB}'); o(f's_lshl_b32 s{sB}, s{sB}, 8')
        for t in range(2):
            for i in range(4):
                o(f'buffer_store_dword v{PK+8*j+4*t+i}, v{TOF}, {sr(rTW,4)}, s{sB} offen offset:{i*256+64*t} sc1')
def gemm1():
    o(f's_lshl_b32 s{sTC}, s{sROT}, 13')
    for k in range(4): o(f'v_add_u32 v{XC+k}, s{sTC}, v{XA+k}')
    for ks in range(8): o(xread(ks))
    o(f's_add_u32 s{sTC}, s{sTC}, 8192')
    for k in range(4): o(f'v_add_u32 v{XC+k}, s{sTC}, v{XA+k}')
    o('s_waitcnt lgkmcnt(0)')
    for j in range(5):
        if j==1:
            o('s_waitcnt vmcnt(0)')
            lds_inc(C_X2,244)
            o('s_waitcnt lgkmcnt(0)')
        if j==2:
            lds_spin(C_X2,4,244)
        gemm_body(1,j)
    o('s_nop 7')
    for i in range(4): o(f'v_mul_f32 v{ACC+8+i}, {NLOG2E:#x}, v{ACC+8+i}')
    for i in range(4): o(f'v_cvt_pk_bf16_f32 v{PK+32+4+i}, v{ACC+8+i}, v{ACC+12+i}')
def dummy_row():
    l=U('nodummy')
    o(f's_cmp_lg_u32 s{sR}, 63'); o(f's_cbranch_scc1 {l}')
    o(f's_cmp_lg_u32 s{sW}, 0'); o(f's_cbranch_scc1 {l}')
    o('v_mov_b32 v244, 0x7f7f'); o('v_lshlrev_b32 v245, 2, v1'); o(f'v_add_u32 v245, {N*256}, v245')
    o(f'buffer_store_dword v244, v245, {sr(rTR,4)}, 0 offen sc1')
    lab(l)
def own_prefetch(dst):
    o(f's_lshl_b32 s{sA}, s{sNB}, 8'); o(f's_mul_i32 s{sB}, s{sW}, 10240'); o(f's_add_u32 s{sA}, s{sA}, s{sB}')
    o('v_lshlrev_b32 v243, 4, v1')
    for i in range(10):
        o(f'buffer_load_dwordx4 {dst}, v243, {sr(rTW,4)}, s{sA} offen sc1')
        o(f's_add_u32 s{sA}, s{sA}, 1024')
def gemm2():
    B0,V0,B1,V1=ACC,ACC+4,ACC+8,ACC+12
    for j in range(5):
        o(f's_add_u32 s{sTO[j]}, s{sROT}, {j}'); o(f's_lshl_b32 s{sTO[j]}, s{sTO[j]}, 4'); o(f's_add_u32 s{sTO[j]}, s{sTO[j]}, s{sNB}'); o(f's_lshl_b32 s{sTO[j]}, s{sTO[j]}, 8')
    o(f's_lshl_b32 s{sTC}, s{sROT}, 13')
    for k in range(4): o(f'v_add_u32 v{XC+k}, s{sTC}, v{XA+k}')
    for ks in range(8): o(xread(ks))
    o(f's_add_u32 s{sTC}, s{sTC}, 8192')
    for k in range(4): o(f'v_add_u32 v{XC+k}, s{sTC}, v{XA+k}')
    o(f's_lshl_b32 s{sA}, s{sROT}, 12'); o(f's_add_u32 s{sA}, s{sA}, {AU}'); o(f'v_add_u32 v{AUA}, s{sA}, v{TOF}')
    o('s_waitcnt lgkmcnt(0)')
    def epi(a,jj,t):
        e=[f'v_mul_f32 v{a+i}, {NLOG2E:#x}, v{a+i}' for i in range(4)]
        e+=[f'v_cvt_pk_bf16_f32 v{a+i}, v{a+i}, v{a+4+i}' for i in range(4)]
        e+=[f'ds_write_b32 v{AUA}, v{a+i} offset:{jj*4096+i*256+64*t}' for i in range(4)]
        return e
    def tst(jj): return [f'buffer_store_dword v{PK+8*jj+4*t+i}, v{TOF}, {sr(rTW,4)}, s{sTO[jj]} offen offset:{i*256+64*t} sc1' for t in range(2) for i in range(4)]
    stores={0:tst(0)+tst(1),1:tst(2)+tst(3),2:tst(4),3:[],4:[]}
    prev_tail=0
    for j in range(5):
        eP1=epi(B1,j-1,1) if j>0 else []; eP0=epi(B0,j,0)
        fill=[[] for _ in range(16)]
        if eP1:
            fill[3]+=eP1[0:3]; fill[4]+=eP1[3:6]; fill[5]+=eP1[6:9]; fill[6]+=eP1[9:11]; fill[7]+=eP1[11:12]
        if j<4:
            for ks in range(8): fill[8+ks].append(xread(ks))
        fill[11]+=eP0[0:3]; fill[12]+=eP0[3:6]; fill[13]+=eP0[6:9]; fill[14]+=eP0[9:11]; fill[15]+=eP0[11:12]
        if j<3: fill[9]+=[f's_add_u32 s{sTC}, s{sTC}, 8192']
        st=list(stores[j])
        for sl in range(16):
            if st: fill[sl].append(st.pop(0))
        seq=[(sl,('r' if t.startswith('ds_read') else 'w')) for sl in range(16) for t in fill[sl] if t.startswith('ds_')]
        for ph in range(2):
            for ks in range(8):
                ab,av=(B0,V0) if ph==0 else (B1,V1)
                wb=WF+32*ph+4*ks; wv=WF+64+32*ph+4*ks
                if ph==0 and j>0:
                    n=0; found=False; k=-1
                    for (sl,kind) in prevseq:
                        if kind=='r':
                            k+=1
                            if k==ks: found=True; continue
                        if found: n+=1
                    n+=sum(1 for (sl,kind) in seq if sl<ks)
                    o(f's_waitcnt lgkmcnt({min(n,15)})')
                c1='0' if ks==0 else vr(ab,4); c2='0' if ks==0 else vr(av,4)
                f=fill[8*ph+ks]
                o(f'v_mfma_f32_16x16x32_bf16 {vr(ab,4)}, {vr(AF+4*ks,4)}, {vr(wb,4)}, {c1}')
                h=(len(f)+1)//2 if ph==0 else 0
                for t in f[:h]: o(t)
                o(f'v_mfma_f32_16x16x32_bf16 {vr(av,4)}, {vr(AF+4*ks,4)}, {vr(wv,4)}, {c2}')
                for t in f[h:]: o(t)
        if j<3:
            for k in range(4): o(f'v_add_u32 v{XC+k}, s{sTC}, v{XA+k}')
        prevseq=seq
        if j==int(OPT.get('f2it','3')):
            l=U('nf2')
            o('s_waitcnt vmcnt(0)')
            lds_inc(C_T,244,ret=True)
            o(f's_cmp_lg_u32 s{sA}, 3'); o(f's_cbranch_scc1 {l}')
            o('s_mov_b64 exec, 1')
            for i in range(4): o(f'v_mov_b32 v{244+i}, s{sNONCE}')
            o(f's_lshl_b32 s{sA}, s{sS}, 6'); o(f's_add_u32 s{sA}, s{sA}, s{sR}'); o(f's_lshl_b32 s{sA}, s{sA}, 4')
            o(f's_add_u32 s{sA}, s{sA}, {SEGT_FLAG2}')
            o(f'buffer_store_dwordx4 v[244:247], v{VZ}, {sr(rSEG,4)}, s{sA} offen sc1')
            o('s_mov_b64 exec, -1')
            lab(l)
            if 'preat' in OPT:
                o('s_nop 1'); own_prefetch('v[244:247]')
    o('s_nop 7')
    for t in epi(B1,4,1): o(t)
    if 'nopre' not in OPT and 'preat' not in OPT:
        own_prefetch('v[232:235]' if 'nowait' in OPT else 'v[44:47]')
    if 'preout' in OPT:
        o('v_lshrrev_b32 v245, 3, v1'); o('v_lshlrev_b32 v245, 9, v245'); o('v_and_b32 v246, 7, v1'); o('v_lshl_add_u32 v245, v246, 4, v245')
        o(f's_mul_i32 s{sB}, s{sW}, {40*512}'); o(f's_lshl_b32 s{sA}, s{sNB}, 9'); o(f's_add_u32 s{sA}, s{sA}, s{sB}')
        o(f's_lshl_b32 s{sB}, s{sS}, 7'); o(f's_add_u32 s{sA}, s{sA}, s{sB}')
        for i in range(5):
            o(f'buffer_load_dwordx4 v[44:47], v245, {sr(rOUT,4)}, s{sA} offen')
            o(f's_add_u32 s{sA}, s{sA}, {8*512}')
gemm1()
stamp(5)
wfrags()
o('s_waitcnt lgkmcnt(0)')
lds_inc(C_G,244)
lds_spin(C_G,4,244)
stamp(18)
if 'xE' not in OPT and 'nogate' not in OPT: lds_spin(C_RL,4,244)
dummy_row()
stamp(6)
gemm2()
o('s_waitcnt lgkmcnt(0)')
stamp(7)
if 'pp' in OPT:
    lw=U('ppw'); lx=U('ppx'); ly=U('ppy'); lz=U('ppz')
    o(f's_cmp_lg_u32 s{sW}, 0'); o(f's_cbranch_scc1 {lw}')
    o(f's_xor_b32 s{sD}, s{sR}, 1'); o(f's_lshl_b32 s{sB}, s{sS}, 6'); o(f's_add_u32 s{sD}, s{sD}, s{sB}'); o(f's_lshl_b32 s{sD}, s{sD}, 4'); o(f's_add_u32 s{sD}, s{sD}, {SEGT_FLAG2}')
    o(f's_mov_b32 s{sSP}, 0')
    lab(lx)
    o(f'buffer_load_dword v240, v{VZ}, {sr(rSEG,4)}, s{sD} offen sc1')
    o(f'ds_read_b32 v241, v{VZ} offset:{C_F2}')
    o('s_waitcnt vmcnt(0) lgkmcnt(0)')
    o(f'v_readfirstlane_b32 s{sA}, v240'); o(f'v_readfirstlane_b32 s{sB}, v241')
    o(f's_cmp_eq_u32 s{sA}, s{sNONCE}'); o(f's_cselect_b32 s{sC_}, 1, 0')
    o(f's_cmp_lg_u32 s{sB}, 0'); o(f's_cselect_b32 s{sB}, 2, 0'); o(f's_max_u32 s{sC_}, s{sC_}, s{sB}')
    o(f's_cmp_lg_u32 s{sC_}, 0'); o(f's_cbranch_scc1 {ly}')
    o('s_sleep %s' % OPT.get('ppsleep','6'))
    o(f's_add_u32 s{sSP}, s{sSP}, 1'); o(f's_cmp_lt_u32 s{sSP}, 0x10000'); o(f's_cbranch_scc1 {lx}')
    o(f's_mov_b32 s{sC_}, 2')
    lab(ly)
    o(f'v_mov_b32 v241, s{sC_}'); o(f'ds_write_b32 v{VZ}, v241 offset:{C_PP}')
    lab(lw)
    lds_spin(C_PP,1,241)
    o(f's_cmp_lg_u32 s{sA}, 1'); o(f's_cbranch_scc1 {lz}')
    o(f's_xor_b32 s{sD}, s{sR}, 1'); o(f's_mul_i32 s{sD}, s{sD}, {RN}')
    o(f's_add_u32 s{sB}, s{sD}, {RN}'); o(f's_min_u32 s{sB}, s{sB}, {N}'); o(f's_lshl_b32 s{sB}, s{sB}, 8')
    o(f's_mov_b32 s{rW1}, s{rTR}'); o(f's_mov_b32 s{rW1+1}, s{rTR+1}'); o(f's_mov_b32 s{rW1+2}, s{sB}'); o(f's_mov_b32 s{rW1+3}, 0x20000')
    o(f's_lshl_b32 s{sD}, s{sD}, 8'); o(f's_mul_i32 s{sB}, s{sW}, 10240'); o(f's_add_u32 s{sD}, s{sD}, s{sB}')
    o('v_lshlrev_b32 v243, 4, v1')
    for i in range(10):
        o(f'buffer_load_dwordx4 v[232:235], v243, {sr(rW1,4)}, s{sD} offen sc1')
        o(f's_add_u32 s{sD}, s{sD}, 1024')
    lab(lz)
o('s_branch L_main_setup')
lab('L_eteam_b')
SG,RC0,RC1,SA,RKB=64,80,112,144,200
T=176
o(f's_sub_u32 s{sC_}, s{sW}, 4')
o('v_lshrrev_b32 v17, 3, v1')
o(f's_lshl_b32 s{sA}, s{sC_}, 3'); o(f'v_add_u32 v17, s{sA}, v17')
o(f'v_lshlrev_b32 v{T}, 3, v17')
o('v_and_b32 v18, 7, v1')
o(f'v_mul_u32_u24 v{T+1}, {CHCAP*8}, v17'); o(f'v_lshl_add_u32 v{T+1}, v18, 4, v{T+1}')
IX=T+2
o(f'v_lshlrev_b32 v{IX}, 1, v18'); o(f'v_add_u32 v{IX+1}, 1, v{IX}'); o(f'v_add_u32 v{IX+2}, 16, v{IX}'); o(f'v_add_u32 v{IX+3}, 17, v{IX}')
lds_spin({'G1':C_G1,'PG':C_PG}[OPT.get('pollgate','G1')],4,17)
o(f's_lshl_b32 s{sD}, s{sR}, 11')
o(f's_mov_b32 s{sSP}, 0')
lp=U('poll1'); dn=U('poll1d')
lab(lp)
for p in range(8):
    o(f'buffer_load_dwordx2 {vr(SG+2*p,2)}, v{T}, {sr(rSEG,4)}, s{sD} offen offset:{p*256} sc1')
o(f'v_mov_b32 v19, s{sNONCE}')
o('s_waitcnt vmcnt(0)')
o(f'v_xor_b32 v20, v{SG+1}, v19')
for p in range(1,8):
    o(f'v_xor_b32 v21, v{SG+2*p+1}, v19'); o('v_or_b32 v20, v20, v21')
o('v_cmp_ne_u32 vcc, 0, v20')
o(f's_cbranch_vccz {dn}')
o('s_sleep 6')
o(f's_add_u32 s{sSP}, s{sSP}, 1'); o(f's_cmp_lt_u32 s{sSP}, 0x10000'); o(f's_cbranch_scc1 {lp}')
lab(dn)
stamp(5)
o('v_mov_b32 v20, 0')
for p in range(8):
    o(f'v_lshrrev_b32 v{SG+2*p+1}, 16, v{SG+2*p}')
    o(f'v_max_u32 v20, v20, v{SG+2*p+1}')
o('v_cmp_lt_u32 vcc, 32, v20')
l=U('nofb'); o(f's_cbranch_vccz {l}')
o('v_mov_b32 v21, 1'); o(f'ds_write_b32 v{VZ}, v21 offset:{C_FB}')
lab(l)
o(f's_mov_b32 s{sSP}, 0')
lr=U('recld'); dr=U('recok')
lab(lr)
for p in range(8):
    o(f'v_and_b32 v19, 0xffff, v{SG+2*p}')
    o(f'v_lshl_add_u32 v19, v19, 3, v{T+1}')
    o(f's_mov_b32 s{sA}, {p*32*CHCAP*8}')
    o(f'v_cmp_lt_u32 vcc, 16, v{SG+2*p+1}')
    o(f'buffer_load_dwordx4 {vr(RC0+4*p,4)}, v19, {sr(rREC,4)}, s{sA} offen sc1')
    l=U('ld1'); o(f's_cbranch_vccz {l}')
    o(f'buffer_load_dwordx4 {vr(RC1+4*p,4)}, v19, {sr(rREC,4)}, s{sA} offen offset:128 sc1')
    lab(l)
l=U('sig'); o(f's_cmp_lg_u32 s{sSP}, 0'); o(f's_cbranch_scc1 {l}_r')
lds_inc(C_RL,20)
o('s_waitcnt vmcnt(0)')
o(f's_branch {l}')
lab(l+'_r')
o('s_waitcnt vmcnt(0)')
lab(l)
o('v_mov_b32 v21, 0x05040100'); o('v_mov_b32 v22, 0'); o(f'v_mov_b32 v23, s{sNONCE}')
for p in range(8):
    for st in range(2):
        rec=(RC0 if st==0 else RC1)+4*p
        if st==1:
            l=U('v1'); o(f'v_cmp_lt_u32 vcc, 16, v{SG+2*p+1}'); o(f's_cbranch_vccz {l}')
        o(f'v_cmpx_lt_u32 vcc, v{IX+2*st}, v{SG+2*p+1}')
        o(f'v_perm_b32 v20, v{rec+3}, v{rec+1}, v21'); o('v_xor_b32 v20, v20, v23'); o('v_or_b32 v22, v22, v20')
        o('s_mov_b64 exec, -1')
        if st==1: lab(l)
o('v_cmp_ne_u32 vcc, 0, v22')
o(f's_cbranch_vccz {dr}')
o('s_sleep 2')
o(f's_add_u32 s{sSP}, s{sSP}, 1'); o(f's_cmp_lt_u32 s{sSP}, 0x10000'); o(f's_cbranch_scc1 {lr}')
lab(dr)
stamp(6)
def each_rec(fn):
    for p in range(8):
        for st in range(2):
            if st==1:
                l=U('st1'); o(f'v_cmp_lt_u32 vcc, 16, v{SG+2*p+1}'); o(f's_cbranch_vccz {l}')
            for i in range(2):
                rec=(RC0 if st==0 else RC1)+4*p+2*i
                o(f'v_cmpx_lt_u32 vcc, v{IX+2*st+i}, v{SG+2*p+1}')
                fn(rec, SA+4*p+2*st+i)
            o('s_mov_b64 exec, -1')
            if st==1: lab(l)
SD='dst_sel:DWORD dst_unused:UNUSED_PAD src0_sel:DWORD src1_sel:BYTE_0'
o('v_mov_b32 v22, 1'); o('v_mov_b32 v23, 64')
def f_hist(rec,sa):
    o(f'v_lshlrev_b32_sdwa v20, 2, v{rec} {SD}'); o(f'ds_add_rtn_u32 v{sa-SA+RKB}, v20, v22 offset:{DEG}')
each_rec(f_hist)
o('s_waitcnt lgkmcnt(0)')
lds_inc(C_E1,20)
stamp(7)
o(f's_cmp_lg_u32 s{sW}, 4')
o('s_cbranch_scc1 L_e_prefill')
lds_spin(C_E1,4,20)
D0,K0,P0=24,28,32
o('v_lshlrev_b32 v19, 2, v1')
for a in range(3): o(f'ds_read_b32 v{D0+a}, v19 offset:{DEG+a*256}')
perm=[]
for w in range(8): perm += ([w,w+4,11-w] if w<4 else [19-w,23-w]) if 'oldperm' not in OPT else ([w,15-w] + ([19-w] if w<4 else []))
o('v_mov_b32 v38, 31')
for i,g in enumerate(perm): o(f'v_writelane_b32 v38, {g}, {i}')
o('v_lshlrev_b32 v38, 2, v38')
o('v_sub_u32 v37, 252, v19')
o('s_waitcnt lgkmcnt(0)')
for a in range(3):
    o(f'v_min_u32 v{K0+a}, 63, v{D0+a}'); o(f'v_lshlrev_b32 v{K0+a}, 2, v{K0+a}')
    if a==2: o('v_cmpx_gt_u32 vcc, 32, v1')
    o(f'ds_add_rtn_u32 v{P0+a}, v{K0+a}, v22 offset:{HIST2}')
o('s_mov_b64 exec, -1')
o('s_waitcnt lgkmcnt(0)')
o(f'ds_read_b32 v36, v37 offset:{HIST2}')
for a in range(3): o(f'v_sub_u32 v{K0+a}, 252, v{K0+a}')
o('s_waitcnt lgkmcnt(0)')
o('v_mov_b32 v35, v36') if False else None
o('v_mov_b32 v39, v36')
scan64(36)
o('v_sub_u32 v36, v36, v39')
for a in range(3): o(f'ds_bpermute_b32 v{K0+a}, v{K0+a}, v36')
o('s_waitcnt lgkmcnt(0)')
for a in range(3):
    o(f'v_add_u32 v{P0+a}, v{P0+a}, v{K0+a}')
    o(f'v_add_u32 v21, {64*a}, v1')
    o(f'v_cmp_gt_u32 vcc, s{sNV}, v21')
    o(f'v_lshlrev_b32 v20, 3, v{P0+a}')
    o(f'v_lshrrev_b32 v{K0+a}, 3, v{P0+a}'); o(f'v_lshlrev_b32 v{K0+a}, 2, v{K0+a}')
    o('v_mov_b32 v40, 0x200000')
    o('v_and_b32 v43, 15, v21'); o('v_lshlrev_b32 v43, 4, v43'); o('v_lshl_add_u32 v43, v21, 9, v43')
    o('v_cndmask_b32 v42, v40, v21, vcc')
    if a==2: o('v_cmpx_gt_u32 vcc, 32, v1')
    o(f'ds_write_b64 v20, v[42:43] offset:{NODEOF}')
    o(f'ds_max_u32 v{K0+a}, v{D0+a} offset:{LG}')
o('s_mov_b64 exec, -1')
o('s_waitcnt lgkmcnt(0)')
o(f'ds_read_b32 v39, v38 offset:{LG}')
o('s_waitcnt lgkmcnt(0)')
o('v_add_u32 v39, 1, v39'); o('v_lshrrev_b32 v39, 1, v39')
o('v_mov_b32 v40, v39')
scan64(39)
o('v_sub_u32 v40, v39, v40')
o('v_lshlrev_b32 v40, 7, v40'); o(f'v_add_u32 v40, {ELL}, v40')
o(f'ds_write_b32 v38, v40 offset:{GBASE}')
o(f'v_readlane_b32 s{sA}, v39, 19')
o('s_waitcnt lgkmcnt(0)')
for a in range(3): o(f'ds_read_b32 v{K0+a}, v{K0+a} offset:{GBASE}')
o(f's_cmp_le_u32 s{sA}, {ELLB-4}')
l=U('fits'); o(f's_cbranch_scc1 {l}')
o('v_mov_b32 v21, 1'); o(f'ds_write_b32 v{VZ}, v21 offset:{C_FB}')
lab(l)
o('s_waitcnt lgkmcnt(0)')
for a in range(3):
    o(f'v_and_b32 v21, 7, v{P0+a}'); o(f'v_lshl_add_u32 v21, v21, 3, v{K0+a}')
    o(f'ds_write_b32 v19, v21 offset:{CUR+a*256}')
o('s_waitcnt lgkmcnt(0)')
lds_inc(C_SORT,20)
o('s_branch L_e_wait')
lab('L_e_prefill')
lds_spin(C_G,4,20)
o(f's_sub_u32 s{sA}, s{sW}, 5'); o(f's_lshl_b32 s{sA}, s{sA}, 10'); o(f's_add_u32 s{sA}, s{sA}, {ELL}')
o(f'v_lshlrev_b32 v20, 4, v1'); o(f'v_add_u32 v20, s{sA}, v20')
o(f'v_mov_b32 v24, {N*256}'); o('v_mov_b32 v25, 0'); o(f'v_mov_b32 v26, {N*256}'); o('v_mov_b32 v27, 0')
for i in range(12): o(f'ds_write_b128 v20, v[24:27] offset:{i*3072}')
o('s_waitcnt lgkmcnt(0)')
lds_inc(C_P,20)
lab('L_e_wait')
lds_spin(C_SORT,1,20)
lds_spin(C_P,3,20)
stamp(8)
o(f'ds_read_b32 v20, v{VZ} offset:{C_FB}'); o('s_waitcnt lgkmcnt(0)')
o(f'v_readfirstlane_b32 s{sA}, v20'); o(f's_cmp_lg_u32 s{sA}, 0'); o('s_cbranch_scc1 L_e_done')
def f_slot(rec,sa):
    o(f'v_lshlrev_b32_sdwa v20, 2, v{rec} {SD}'); o(f'ds_read_b32 v{sa}, v20 offset:{CUR}')
each_rec(f_slot)
o('s_waitcnt lgkmcnt(0)')
def f_put(rec,sa):
    o(f'v_lshl_add_u32 v{sa}, v{sa-SA+RKB}, 6, v{sa}'); o(f'v_and_b32 v{rec+1}, v24, v{rec+1}'); o(f'ds_write_b64 v{sa}, {vr(rec,2)}')
o('v_mov_b32 v24, 0xffff0000')
each_rec(f_put)
lab('L_e_done')
o('s_waitcnt lgkmcnt(0)')
stamp(9)
o(f's_cmp_lg_u32 s{sW}, 4')
o('s_cbranch_scc1 L_main_setup')
o('v_lshlrev_b32 v20, 4, v1')
o(f's_lshl_b32 s{sD}, s{sS}, 10'); o(f's_add_u32 s{sD}, s{sD}, {SEGT_FLAG2}')
o(f's_mov_b32 s{sSP}, 0')
lp=U('poll2'); dn=U('poll2d')
lab(lp)
o(f'buffer_load_dword v21, v20, {sr(rSEG,4)}, s{sD} offen sc1')
o('s_waitcnt vmcnt(0)')
o(f'v_cmp_ne_u32 vcc, s{sNONCE}, v21')
o(f's_cbranch_vccz {dn}')
o('s_sleep 2')
o(f's_add_u32 s{sSP}, s{sSP}, 1'); o(f's_cmp_lt_u32 s{sSP}, 0x10000'); o(f's_cbranch_scc1 {lp}')
lab(dn)
if 'pp' in OPT: lds_inc(C_F2,20)
l=U('noep')
o('s_cmp_lg_u32 s2, 0'); o(f's_cbranch_scc1 {l}')
o('s_mov_b64 exec, 1')
o(f'v_mov_b32 v21, s{sNONCE}')
o(f'global_store_dword v{VZ}, v21, {sr(sEP,2)} sc1')
o('s_mov_b64 exec, -1')
lab(l)
LOFF,RP=2,3
S1A,S1B,S2A,S2B,ONE=4,8,12,16,20
WC=24; NUM=32; DEN=40; C=48; DX,DY=72,104; R0,R1=136,152
OFA,OFB,EA_,EB_,AD=168,170,172,174,176
lab('L_main_setup')
o('s_setprio 0')
stamp(10)
o(f'v_and_b32 v{LOFF}, 7, v1'); o(f'v_lshlrev_b32 v{LOFF}, 4, v{LOFF}')
o('v_bfe_u32 v196, v1, 3, 2'); o('v_bfe_u32 v197, v1, 2, 1'); o('v_lshrrev_b32 v198, 5, v1'); o('v_and_b32 v199, 3, v1')
o('v_cmp_eq_u32 vcc, v197, v198'); o('v_mov_b32 v195, 7'); o('v_and_b32 v193, 1, v196')
o('v_cndmask_b32 v199, v195, v199, vcc')
LO,HI=0x00003f80,0x3f800000
o('v_cmp_gt_u32 vcc, 2, v196'); o(f'v_mov_b32 v194, {LO:#x}'); o(f'v_mov_b32 v195, {HI:#x}')
o('v_cndmask_b32 v192, v194, v195, vcc')
o('v_cndmask_b32 v191, v195, v194, vcc')
o('v_lshl_add_u32 v199, v193, 3, v199')
for i in range(4):
    o(f'v_cmp_eq_u32 vcc, {i}, v199'); o(f'v_cmp_eq_u32 s[98:99], {8+i}, v199'); o('s_nop 0')
    o(f'v_cndmask_b32 v{S1A+i}, 0, v192, vcc'); o(f'v_cndmask_b32 v{S2A+i}, 0, v191, vcc')
    o(f'v_cndmask_b32 v{S1B+i}, 0, v192, s[98:99]'); o(f'v_cndmask_b32 v{S2B+i}, 0, v191, s[98:99]')
o('v_cmp_gt_u32 vcc, 32, v1')
for i in range(1,4): o(f'v_mov_b32 v{ONE+i}, 0')
o(f'v_cndmask_b32 v{ONE}, 0, v194, vcc')
for i in range(4):
    o(f'v_lshlrev_b32 v{WC+2*i}, 16, v{250+i}'); o(f'v_and_b32 v{WC+2*i+1}, 0xffff0000, v{250+i}')
for i in range(8): o(f'v_mul_f32 v{WC+i}, {NLOG2E:#x}, v{WC+i}')
for i in range(8):
    o(f'v_mov_b32 v{C+i}, 0'); o(f'v_mov_b32 v{C+16+i}, 0')
LOFF_=LOFF
sPAR,sNBT,sODD,sG1,sG2,sLN=97,47,96,46,13,14
NLN,LT,OA,AUN,XRN,UF,XF,VAUK,VKA,VOK=178,180,181,182,190,194,202,210,211,212
TM=214
o(f'v_add_u32 v{VAUK}, {AU}, v{LOFF}')
o(f'v_bfe_u32 v{TM}, v1, 1, 2'); o(f's_lshl_b32 s92, s{sS}, 3'); o(f'v_add_u32 v{TM}, s92, v{TM}'); o(f'v_lshlrev_b32 v{TM}, 4, v{TM}')
o(f'v_and_b32 v{TM+1}, 1, v1'); o(f'v_lshl_add_u32 v{VKA}, v{TM+1}, 3, v{TM}')
o(f's_lshl_b32 s92, s{sNB}, 9'); o(f's_lshl_b32 s93, s{sS}, 7'); o('s_add_u32 s92, s92, s93')
o(f'v_lshrrev_b32 v{TM}, 1, v{LOFF}'); o(f'v_add_u32 v{VOK}, s92, v{TM}')
o(f'v_lshrrev_b32 v{TM+2}, 3, v1'); o(f'v_lshlrev_b32 v{TM+2}, 3, v{TM+2}')
o(f's_sub_u32 s12, 19, s{sW}'); o(f's_cmp_lt_u32 s{sW}, 4'); o(f's_cselect_b32 s12, s{sW}, s12')
o(f's_add_u32 s{sG1}, s{sW}, 4'); o(f's_sub_u32 s92, 23, s{sW}'); o(f's_sub_u32 s{sG2}, 11, s{sW}')
o(f's_cmp_ge_u32 s{sW}, 4'); o(f's_cselect_b32 s{sG1}, s92, s{sG1}'); o(f's_cselect_b32 s{sG2}, -1, s{sG2}')
def node_prefetch(gs):
    o(f's_lshl_b32 s92, s{gs}, 6'); o(f'v_add_u32 v{TM}, s92, v{TM+2}'); o(f'ds_read_b64 {vr(NLN,2)}, v{TM} offset:{NODEOF}')
    o(f's_lshl_b32 s92, s{gs}, 2'); o(f'v_mov_b32 v{TM+1}, s92'); o(f'ds_read_b32 v{LT}, v{TM+1} offset:{LG}')
def raw_prefetch():
    o(f'v_lshl_add_u32 v{TM}, v{NLN}, 8, v{VAUK}')
    o(f'v_xor_b32 v{TM+1}, v{NLN+1}, v{VKA}'); o(f'v_xor_b32 v{TM+3}, 64, v{TM+1}')
    o(f'ds_read_b128 {vr(AUN,4)}, v{TM}'); o(f'ds_read_b128 {vr(AUN+4,4)}, v{TM} offset:128')
    o(f'ds_read_b64 {vr(XRN,2)}, v{TM+1} offset:{XT}'); o(f'ds_read_b64 {vr(XRN+2,2)}, v{TM+3} offset:{XT}')
o(f's_xor_b32 s15, s{sR}, 1'); o(f's_mul_i32 s15, s15, {RN*256}'); o(f's_mul_i32 s92, s{sW}, 5120'); o('s_add_u32 s15, s15, s92')
o(f'v_lshlrev_b32 v{TM+4}, 4, v1')
o('s_waitcnt lgkmcnt(0)' if 'nowait' in OPT else 's_waitcnt vmcnt(0) lgkmcnt(0)')
o('s_barrier')
stamp(11)
if 'xE' in OPT: o('s_branch L_done')
if 'pre2' in OPT:
    for i in range(5):
        o(f'buffer_load_dwordx4 v[232:235], v{TM+4}, {sr(rTR,4)}, s15 offen sc1')
        o('s_add_u32 s15, s15, 1024')
o(f'ds_read_b32 v{TM+5}, v{VZ} offset:{C_FB}')
o(f's_lshl_b32 s{sA}, s12, 2'); o(f'v_mov_b32 v{TM+6}, s{sA}'); o(f'ds_read_b32 v{RP}, v{TM+6} offset:{GBASE}')
node_prefetch(12)
l=U('ap'); o(f's_cmp_ge_u32 s{sW}, 4'); o(f's_cbranch_scc1 {l}'); o('s_setprio 1'); lab(l)
o('s_waitcnt lgkmcnt(0)')
o(f'v_readfirstlane_b32 s{sA}, v{TM+5}'); o(f's_cmp_lg_u32 s{sA}, 0'); o('s_cbranch_scc1 L_fallback')
o(f'v_add_u32 v{RP}, v{RP}, v{TM+2}')
o(f'v_readfirstlane_b32 s{sLN}, v{LT}')
def mfma(d,a,b,c): o(f'v_mfma_f32_32x32x16_bf16 {vr(d,16)}, {vr(a,4)}, {vr(b,4)}, {c}')
def unpack_list(D,R):
    f=lambda d,a,b,c: f'v_mfma_f32_32x32x16_bf16 {vr(d,16)}, {vr(a,4)}, {vr(b,4)}, {c}'
    return [f(D,S1A,R,vr(C,16)), f(D,S1B,R+4,vr(D,16)), f(D+16,S2A,R+8,vr(C+8,16)), f(D+16,S2B,R+12,vr(D+16,16))]
def gfma(D,Er):
    for sl in range(2):
        for j in range(4):
            g=D+8+8*sl+2*j
            sel='op_sel:[0,0,0] op_sel_hi:[0,1,1]' if sl==0 else 'op_sel:[1,0,0] op_sel_hi:[1,1,1]'
            o(f'v_pk_fma_f32 {vr(g,2)}, {vr(Er,2)}, {vr(WC+2*j,2)}, {vr(g,2)} {sel}')
def loads(R,OF):
    o(f'v_and_or_b32 v{AD}, v{OF}, s{sM}, v{LOFF}'); o(f'v_and_or_b32 v{AD+1}, v{OF+1}, s{sM}, v{LOFF}')
    o(f'buffer_load_dwordx4 {vr(R,4)}, v{AD}, {sr(rTR,4)}, 0 offen sc1')
    o(f'buffer_load_dwordx4 {vr(R+4,4)}, v{AD}, {sr(rTR,4)}, 0 offen offset:128 sc1')
    o(f'buffer_load_dwordx4 {vr(R+8,4)}, v{AD+1}, {sr(rTR,4)}, 0 offen sc1')
    o(f'buffer_load_dwordx4 {vr(R+12,4)}, v{AD+1}, {sr(rTR,4)}, 0 offen offset:128 sc1')
def rd_off(dst,b): o(f'ds_read2_b32 {vr(dst,2)}, v{RP} offset0:{b*32} offset1:{b*32+16}')
def rd_e(dst,b): o(f'ds_read2_b32 {vr(dst,2)}, v{RP} offset0:{b*32+1} offset1:{b*32+17}')
def dsreads(P):
    OFn=OFB if P==0 else OFA; En=EB_ if P==0 else EA_
    rd_off(OFn,P+3); rd_e(En,P+1)
    if P==1: o(f'v_add_u32 v{RP}, 256, v{RP}')
def accum(D):
    for sl in range(2):
        for j in range(4):
            g=D+8+8*sl+2*j
            o(f'v_pk_add_f32 {vr(DEN+2*j,2)}, {vr(DEN+2*j,2)}, {vr(g,2)}')
            v=(D+2*j) if sl==0 else (D+24+2*j)
            o(f'v_pk_fma_f32 {vr(NUM+2*j,2)}, {vr(g,2)}, {vr(v,2)}, {vr(NUM+2*j,2)}')
Ds=[DX,DY]; Rs=[R0,R1]; OFs=[OFA,OFB]; Es=[EA_,EB_]
rd_off(OFA,0); rd_off(OFB,1)
raw_prefetch()
o('s_waitcnt lgkmcnt(4)')
loads(R0,OFA); loads(R1,OFB)
rd_off(OFA,2); rd_e(EA_,0)
o(f's_mov_b32 s{sPAR}, 0')
if PROF: o('s_mov_b32 s3, 0')
lab('L_group')
o(f's_min_u32 s{sLN}, s{sLN}, {2*ELLB}')
o(f's_and_b32 s{sODD}, s{sLN}, 1'); o(f's_add_u32 s{sNBT}, s{sLN}, 1'); o(f's_lshr_b32 s{sNBT}, s{sNBT}, 1')
o(f'v_lshl_add_u32 v{OA}, v{NLN}, 9, v{VOK}')
mfma(NUM,C,C,'0')
o('s_waitcnt lgkmcnt(0)')
for i in range(8): o(f'v_lshlrev_b32 v{C+8+i}, 16, v{AUN+i}')
l=U('nonext')
o(f's_cmp_eq_u32 s{sG1}, -1'); o(f's_cbranch_scc1 {l}')
node_prefetch(sG1)
lab(l)
for i in range(8): o(f'v_and_b32 v{UF+i}, 0xffff0000, v{AUN+i}')
for i in range(4):
    o(f'v_lshlrev_b32 v{XF+2*i}, 16, v{XRN+i}'); o(f'v_and_b32 v{XF+2*i+1}, 0xffff0000, v{XRN+i}')
if PROF:
    o(f's_memtime s[100:101]'); o('s_waitcnt lgkmcnt(0)')
    o(f's_add_u32 m0, s3, 36'); o('s_nop 3'); o('v_writelane_b32 v255, s100, m0')
    o(f's_add_u32 m0, s3, 60'); o('s_nop 3'); o(f'v_writelane_b32 v255, s{sLN}, m0')
o(f's_cmp_eq_u32 s{sNBT}, 0'); o('s_cbranch_scc1 L_epi')
o(f's_cmp_eq_u32 s{sPAR}, 1'); o('s_cbranch_scc1 L_gs1')
def exps(D): return [f'v_exp_f32 v{D+8+i}, v{D+8+i}' for i in range(16)]
def rcps(D): return [f'v_rcp_f32 v{D+8+i}, v{D+8+i}' for i in range(16)]
for P in range(2):
    lab(f'L_gs{P}')
    o('s_waitcnt vmcnt(4)')
    for t in unpack_list(Ds[P],Rs[P]): o(t)
    o('s_waitcnt lgkmcnt(0)')
    loads(Rs[P],OFs[P])
    dsreads(P)
    o('s_nop 7')
    gfma(Ds[P],Es[P])
    o(f's_branch L_body{P}')
for P in range(2):
    Q=P^1
    lab(f'L_body{P}')
    o(f's_sub_u32 s{sNBT}, s{sNBT}, 1'); o(f's_cmp_eq_u32 s{sNBT}, 0'); o(f's_cbranch_scc1 L_last{P}')
    ex=exps(Ds[P]); un=unpack_list(Ds[Q],Rs[Q])
    o('s_waitcnt vmcnt(4)')
    for k in range(4):
        o(un[k])
        for t in ex[4*k:4*k+4]: o(t)
    o('s_nop 1')
    mfma(Ds[P]+8,ONE,ONE,vr(Ds[P]+8,16))
    o('s_waitcnt lgkmcnt(0)')
    loads(Rs[Q],OFs[Q])
    o('s_nop 2')
    dsreads(Q)
    for t in rcps(Ds[P]): o(t)
    gfma(Ds[Q],Es[Q])
    accum(Ds[P])
    if P==1: o('s_branch L_body0')
for P in range(2):
    lab(f'L_last{P}')
    D=Ds[P]
    o(f's_cmp_eq_u32 s{sODD}, 1'); o(f's_cbranch_scc1 L_half{P}')
    for t in exps(D): o(t)
    o('s_nop 1')
    mfma(D+8,ONE,ONE,vr(D+8,16))
    o('s_nop 7'); o('s_nop 3')
    for t in rcps(D): o(t)
    accum(D)
    o(f's_mov_b32 s{sPAR}, {P^1}')
    o('s_branch L_epi')
    lab(f'L_half{P}')
    for t in exps(D)[:8]: o(t)
    for j in range(4): o(f'v_pk_add_f32 {vr(D+8+2*j,2)}, {vr(D+8+2*j,2)}, 1.0 op_sel_hi:[1,0]')
    for t in rcps(D)[:8]: o(t)
    for j in range(4):
        g=D+8+2*j
        o(f'v_pk_add_f32 {vr(DEN+2*j,2)}, {vr(DEN+2*j,2)}, {vr(g,2)}')
        o(f'v_pk_fma_f32 {vr(NUM+2*j,2)}, {vr(g,2)}, {vr(D+2*j,2)}, {vr(NUM+2*j,2)}')
    o(f's_mov_b32 s{sPAR}, {P^1}')
    if P==0: o('s_branch L_epi')
lab('L_epi')
if PROF:
    o(f's_memtime s[100:101]'); o('s_waitcnt lgkmcnt(0)')
    o(f's_add_u32 m0, s3, 40'); o('s_nop 3'); o('v_writelane_b32 v255, s100, m0')
l=U('nonext2')
o(f's_cmp_eq_u32 s{sG1}, -1'); o(f's_cbranch_scc1 {l}')
o('s_waitcnt lgkmcnt(0)')
o(f'v_readfirstlane_b32 s{sLN}, v{LT}')
raw_prefetch()
lab(l)
o('s_mov_b32 s92, 0x358637bd'); o('s_mov_b32 s93, 0x358637bd')
for j in range(4): o(f'v_pk_add_f32 {vr(DEN+2*j,2)}, {vr(DEN+2*j,2)}, s[92:93]')
for i in range(8): o(f'v_rcp_f32 v{DEN+i}, v{DEN+i}')
o('s_nop 0')
for j in range(4): o(f'v_pk_fma_f32 {vr(UF+2*j,2)}, {vr(NUM+2*j,2)}, {vr(DEN+2*j,2)}, {vr(UF+2*j,2)}')
for i in range(8): o(f'v_max_f32 v{UF+i}, 0, v{UF+i}')
for j in range(4): o(f'v_pk_add_f32 {vr(UF+2*j,2)}, {vr(UF+2*j,2)}, {vr(XF+2*j,2)}')
for i in range(4): o(f'v_cvt_pk_bf16_f32 v{UF+i}, v{UF+2*i}, v{UF+2*i+1}')
o(f'buffer_store_dwordx2 {vr(UF,2)}, v{OA}, {sr(rOUT,4)}, 0 offen')
o(f'buffer_store_dwordx2 {vr(UF+2,2)}, v{OA}, {sr(rOUT,4)}, 0 offen offset:64')
if PROF:
    o(f's_memtime s[100:101]'); o('s_waitcnt lgkmcnt(0)')
    o(f's_add_u32 m0, s3, 56'); o('s_nop 3'); o('v_writelane_b32 v255, s100, m0')
    o('s_add_u32 s3, s3, 1')
o(f's_cmp_eq_u32 s{sG1}, -1'); o('s_cbranch_scc1 L_done')
o(f's_mov_b32 s{sG1}, s{sG2}'); o(f's_mov_b32 s{sG2}, -1')
o('s_branch L_group')
lab('L_done')
stamp(12)
if PROF:
    o('s_waitcnt vmcnt(0)')
    srd_off(92,sWS,WS_PROF,0x100000)
    o(f's_lshl_b32 s96, s2, 3'); o(f's_add_u32 s96, s96, s{sW}'); o('s_lshl_b32 s96, s96, 8')
    o('v_lshlrev_b32 v2, 2, v1')
    o('buffer_store_dword v255, v2, s[92:95], s96 offen')
o('s_endpgm')
lab('L_codeend')
lab('L_fallback')
FN,FD,FA,FU,FW=10,11,12,13,14
o('v_lshlrev_b32 v5, 2, v1')
o(f's_lshl_b32 s92, s{sS}, 7')
o('v_lshlrev_b32 v6, 1, v1'); o(f'v_add_u32 v6, s92, v6')
srd(64,sWC,512)
o(f'buffer_load_ushort v{FW}, v6, s[64:67], 0 offen')
o('s_waitcnt vmcnt(0)')
o(f'v_lshlrev_b32 v{FW}, 16, v{FW}'); o(f'v_mul_f32 v{FW}, {NLOG2E:#x}, v{FW}')
o(f's_mov_b32 s46, s{sW}')
lab('L_fb_node')
o(f's_cmp_ge_u32 s46, s{sNV}'); o('s_cbranch_scc1 L_fb_end')
o(f's_lshl_b32 s92, s46, 8'); o(f's_add_u32 s92, s92, {AU}'); o(f'v_add_u32 v7, s92, v5'); o('ds_read_b32 v8, v7')
o('s_waitcnt lgkmcnt(0)')
o(f'v_lshlrev_b32 v{FA}, 16, v8'); o(f'v_and_b32 v{FU}, 0xffff0000, v8')
o(f'v_mov_b32 v{FN}, 0'); o(f'v_mov_b32 v{FD}, 0')
o(f's_add_u32 s47, s46, s{sNB}')
o('s_mov_b32 s93, 0')
lab('L_fb_e')
o('v_add_u32 v7, s93, v1'); o('v_lshlrev_b32 v8, 2, v7'); o('v_lshlrev_b32 v7, 1, v7')
o(f'buffer_load_dword v15, v8, {sr(rDST,4)}, 0 offen')
o(f'buffer_load_dword v16, v8, {sr(rSRC,4)}, 0 offen')
o(f'buffer_load_ushort v17, v7, {sr(rEA,4)}, 0 offen')
o('s_waitcnt vmcnt(0)')
o('v_cmp_eq_u32 vcc, s47, v15')
o('s_mov_b64 s[94:95], vcc')
lab('L_fb_m')
o('s_cmp_eq_u64 s[94:95], 0'); o('s_cbranch_scc1 L_fb_next')
o('s_ff1_i32_b64 s96, s[94:95]')
o('s_bitset0_b64 s[94:95], s96')
o('v_readlane_b32 s97, v16, s96'); o('v_readlane_b32 s92, v17, s96')
o('s_nop 1')
o('s_lshl_b32 s97, s97, 8'); o('s_lshl_b32 s92, s92, 16')
o('s_nop 4')
o(f'buffer_load_dword v18, v5, {sr(rTR,4)}, s97 offen sc1')
o('s_waitcnt vmcnt(0)')
o('v_lshlrev_b32 v19, 16, v18'); o('v_and_b32 v18, 0xffff0000, v18')
o(f'v_add_f32 v19, v19, v{FA}'); o(f'v_fmac_f32 v19, s92, v{FW}')
o('v_exp_f32 v19, v19'); o('s_nop 0'); o('v_add_f32 v19, 1.0, v19'); o('v_rcp_f32 v19, v19'); o('s_nop 0')
o(f'v_add_f32 v{FD}, v{FD}, v19'); o(f'v_fmac_f32 v{FN}, v19, v18')
o('s_branch L_fb_m')
lab('L_fb_next')
o('s_add_u32 s93, s93, 64'); o(f's_cmp_lt_u32 s93, {E}'); o('s_cbranch_scc1 L_fb_e')
o('s_mov_b32 s92, 0x358637bd')
o(f'v_add_f32 v{FD}, s92, v{FD}'); o(f'v_rcp_f32 v{FD}, v{FD}'); o('s_nop 0')
o(f'v_fmac_f32 v{FU}, v{FN}, v{FD}'); o(f'v_max_f32 v{FU}, 0, v{FU}')
o('s_lshl_b32 s92, s47, 9')
o(f'buffer_load_ushort v18, v6, {sr(rX,4)}, s92 offen')
o('s_waitcnt vmcnt(0)')
o(f'v_lshlrev_b32 v18, 16, v18'); o(f'v_add_f32 v{FU}, v{FU}, v18')
o(f'v_cvt_pk_bf16_f32 v18, v{FU}, v{FU}')
o(f'buffer_store_short v18, v6, {sr(rOUT,4)}, s92 offen')
o('s_add_u32 s46, s46, 8'); o('s_branch L_fb_node')
lab('L_fb_end')
lab('L_end')
o('s_endpgm')
L=[x for x in L if x is not None]
hdr=open('gather_scatter__edge_featured_mpnn_gatedgcn__graph.s.ref').read().split('; Override')[0]
out=hdr+f'''; Hand-written kernel, emitted by my own generator script (register allocation and scheduling are explicit there).
; One launch, 256 workgroups x 8 waves, one workgroup per CU (LDS 160 KiB); workgroup = (157-node range r, 64-feature slice s).
;  front:  waves 4-7 bin 625 edges per workgroup by destination range (records + segment table in d_ws, nonce-tagged),
;          waves 0-3 run the four x@W products for (r,s) on MFMA (B'' = -log2e*x@w_b and V = x@w_v go to a table in d_ws,
;          A'' = -log2e*x@w_a and U = x@w_u stay in LDS); waves 4-7 then sort the range's nodes by degree and build an ELL list.
;  main:   per group of 8 nodes: gather table rows of the sources, eta = 1/(1+2^(A''+B''+e*wc'')), num += eta*V, den += eta,
;          out = x + relu(U + num/(den+1e-6)); bf16->f32 unpacking and the +1 run on the matrix pipe.
;  Hand-offs between workgroups: sc1 stores + sc1 loads, words tagged with a nonce derived from the epoch word in d_ws.
;  Degree distributions the ELL buffers cannot hold take an exact, slower per-node path (L_fallback).
; @launch grid=(256,1,1) block=(512,1,1) lds={LDS_TOTAL}
.amdgcn_target "amdgcn-amd-amdhsa--gfx950"
.text
.globl {NAME}
.p2align 8
.type {NAME},@function
'''+'\n'.join(L)+f'''
.section .rodata,"a"
.p2align 6
.amdhsa_kernel {NAME}
  .amdhsa_next_free_vgpr 256
  .amdhsa_next_free_sgpr 102
  .amdhsa_accum_offset 256
  .amdhsa_group_segment_fixed_size 0
  .amdhsa_kernarg_size 96
  .amdhsa_user_sgpr_count 2
  .amdhsa_user_sgpr_kernarg_segment_ptr 1
  .amdhsa_system_sgpr_workgroup_id_x 1
.end_amdhsa_kernel
'''
fn=[a for a in sys.argv[1:] if not a.startswith('--')]
open(fn[0] if fn else 'k.s','w').write(out)
```

```python
import sys
NAME='gather_scatter__edge_featured_mpnn_gatedgcn__graph_kernel'
PROF = '--prof' in sys.argv
OPT = {a.split('=')[0][2:]:(a.split('=')[1] if '=' in a else '1') for a in sys.argv[1:] if a.startswith('--')}
N=10000; E=160000; RN=157; CH=625; CHCAP=704
SLICE=10240*256
WS_RECS=0xA00000; WS_SEGT=0xB80000; SEGT_FLAG2=0x20000; WS_EPOCH=0xBB0000; WS_PROF=0xC00000
HIST1=0; DEG=256; HIST2=1024; LG=1280; GBASE=1408; CUR=1536; NODEOF=2304; CNT=3840
C_W=CNT; C_G=CNT+4; C_T=CNT+8; C_E1=CNT+12; C_SORT=CNT+16; C_P=CNT+20; C_FB=CNT+24; C_X=CNT+28; C_G1=CNT+32; C_H=CNT+36; C_R=CNT+40; C_X2=CNT+44; C_S=CNT+48; C_RL=CNT+52; C_X1=CNT+56; C_PG=CNT+60
XT=4096; WR=XT+81920; AU=WR; ELL=WR+40960; ELLB=288
LDS_TOTAL=163840
RST=WR+65536
assert ELL+ELLB*128==LDS_TOTAL
NLOG2E=0xbfb8aa3b
sEP=4
sI,sROT,sTL,sWROT=6,7,8,9
sM=10
sX,sEA,sSRC,sDST,sWA,sWB,sWC,sWU=16,18,20,22,24,26,28,30
sWV,sOUT,sDBG,sWS=32,34,36,38
sW,sS,sR,sNONCE,sNB,sNV=40,41,42,43,44,45
rX,rDST,rSRC,rEA,rW1,rW2,rTW,rTR,rREC,rSEG,rOUT=48,52,56,60,64,68,72,76,80,84,88
sA,sB,sC_,sD,sSP=92,93,94,95,96
L=[]
def o(t): L.append('  '+t)
def lab(t): L.append(t+':')
def vr(a,n): return f'v[{a}:{a+n-1}]' if n>1 else f'v{a}'
def sr(a,n): return f's[{a}:{a+n-1}]'
uid=[0]
def U(p):
    uid[0]+=1; return f'L_{p}_{uid[0]}'
def srd(r,base,size):
    o(f's_mov_b32 s{r}, s{base}'); o(f's_mov_b32 s{r+1}, s{base+1}')
    o(f's_mov_b32 s{r+2}, {size}'); o(f's_mov_b32 s{r+3}, 0x20000')
def srd_off(r,base,off,size):
    o(f's_add_u32 s{r}, s{base}, {off}'); o(f's_addc_u32 s{r+1}, s{base+1}, 0')
    o(f's_mov_b32 s{r+2}, {size}'); o(f's_mov_b32 s{r+3}, 0x20000')
def stamp(idx):
    if not PROF: return
    o(f's_memrealtime s[100:101]'); o('s_waitcnt lgkmcnt(0)'); o(f'v_writelane_b32 v255, s100, {idx}')
    o(f's_memtime s[100:101]'); o('s_waitcnt lgkmcnt(0)'); o(f'v_writelane_b32 v255, s100, {idx+32}')
VZ=248
def lds_spin(addr, need, vtmp):
    l=U('spin'); d=U('spind')
    o(f's_mov_b32 s{sSP}, 0')
    lab(l)
    o(f'ds_read_b32 v{vtmp}, v{VZ} offset:{addr}')
    o('s_waitcnt lgkmcnt(0)')
    o(f'v_readfirstlane_b32 s{sA}, v{vtmp}')
    o(f's_add_u32 s{sSP}, s{sSP}, 1')
    o(f's_cmp_ge_u32 s{sA}, {need}')
    o(f's_cbranch_scc1 {d}')
    o('s_sleep 1')
    o(f's_cmp_lt_u32 s{sSP}, 0x40000')
    o(f's_cbranch_scc1 {l}')
    lab(d)
def lds_inc(addr, vtmp, ret=False):
    o(f'v_mov_b32 v{vtmp}, 1')
    o('s_mov_b64 exec, 1')
    if ret:
        o(f'ds_add_rtn_u32 v{vtmp}, v{VZ}, v{vtmp} offset:{addr}')
        o('s_waitcnt lgkmcnt(0)')
        o(f'v_readfirstlane_b32 s{sA}, v{vtmp}')
    else:
        o(f'ds_add_u32 v{VZ}, v{vtmp} offset:{addr}')
    o('s_mov_b64 exec, -1')
def scan64(v):
    for sh in (1,2,4,8):
        o('s_nop 1'); o(f'v_add_u32_dpp v{v}, v{v}, v{v} row_shr:{sh} row_mask:0xf bank_mask:0xf')
    o('s_nop 1'); o(f'v_add_u32_dpp v{v}, v{v}, v{v} row_bcast:15 row_mask:0xa bank_mask:0xf')
    o('s_nop 1'); o(f'v_add_u32_dpp v{v}, v{v}, v{v} row_bcast:31 row_mask:0xc bank_mask:0xf')
    o('s_nop 1')
lab(NAME)
o('s_cmp_ge_u32 s2, 256')
o('s_cbranch_scc1 L_end')
o('s_load_dwordx16 s[16:31], s[0:1], 0')
o('s_load_dwordx8 s[32:39], s[0:1], 64')
o('v_and_b32 v1, 63, v0')
o('v_lshrrev_b32 v2, 6, v0')
o(f'v_mov_b32 v{VZ}, 0')
o(f'v_readfirstlane_b32 s{sW}, v2')
o('s_getpc_b64 s[12:13]')
lab('L_pc')
if 'nopf' not in OPT:
    o(f's_cmp_lg_u32 s{sW}, 7'); o('s_cbranch_scc1 L_nopf')
    o('s_lshr_b32 s3, s2, 3'); o('s_lshl_b32 s3, s3, 10')
    o('v_lshl_add_u32 v2, v1, 4, s3')
    o('v_cmp_gt_u32 vcc, L_codeend-L_pc-16, v2')
    o('s_and_saveexec_b64 s[98:99], vcc')
    o('s_cbranch_execz L_nopf2')
    o('global_load_dwordx4 v[240:243], v2, s[12:13]')
    lab('L_nopf2')
    o('s_mov_b64 exec, -1')
    lab('L_nopf')
o('v_lshlrev_b32 v17, 3, v0'); o('v_mov_b32 v20, 0'); o('v_mov_b32 v21, 0')
o('ds_write_b64 v17, v[20:21]')
o(f's_and_b32 s{sS}, s2, 7'); o(f's_lshr_b32 s{sS}, s{sS}, 1')
o(f's_lshr_b32 s{sR}, s2, 3'); o(f's_lshl_b32 s{sR}, s{sR}, 1'); o(f's_and_b32 s{sA}, s2, 1'); o(f's_or_b32 s{sR}, s{sR}, s{sA}')
o(f's_mul_i32 s{sNB}, s{sR}, {RN}')
o(f's_sub_u32 s{sNV}, {N}, s{sNB}'); o(f's_min_u32 s{sNV}, s{sNV}, {RN}')
if PROF: o('v_mov_b32 v255, 0')
for _v in (56,57,58,59,60,61,62,63,240,241,242,243): o(f'v_mov_b32 v{_v}, 0')
o(f's_mul_i32 s{sROT}, s{sS}, 5'); o(f's_add_u32 s{sROT}, s{sROT}, 1'); o(f's_lshr_b32 s{sROT}, s{sROT}, 1')
o(f's_lshr_b32 s{sWROT}, s2, 3')
o(f's_mov_b32 s{sM}, 0xffffff00')
def build_common():
    srd(rOUT,sOUT,N*512)
    o(f's_mul_i32 s{sA}, s{sS}, {SLICE}')
    o(f's_add_u32 s{rTW}, s{sWS}, s{sA}'); o(f's_addc_u32 s{rTW+1}, s{sWS+1}, 0')
    o(f's_add_u32 s{sA}, s{sNB}, s{sNV}'); o(f's_lshl_b32 s{rTW+2}, s{sA}, 8'); o(f's_mov_b32 s{rTW+3}, 0x20000')
    o(f's_mov_b32 s{rTR}, s{rTW}'); o(f's_mov_b32 s{rTR+1}, s{rTW+1}'); o(f's_mov_b32 s{rTR+2}, {(N+1)*256}'); o(f's_mov_b32 s{rTR+3}, 0x20000')
    srd_off(rSEG,sWS,WS_SEGT,0x21000)
    o(f's_add_u32 s{sEP}, s{sWS}, {WS_EPOCH}'); o(f's_addc_u32 s{sEP+1}, s{sWS+1}, 0')
    o(f's_load_dword s{sNONCE}, {sr(sEP,2)}, 0')
def wc_load():
    o('v_and_b32 v17, 7, v1'); o('v_lshlrev_b32 v17, 3, v17')
    o(f's_lshl_b32 s{sA}, s{sS}, 7'); o(f'v_add_u32 v17, s{sA}, v17')
    srd(rREC,sWC,512)
    o(f'buffer_load_dwordx2 v[250:251], v17, {sr(rREC,4)}, 0 offen')
    o(f'buffer_load_dwordx2 v[252:253], v17, {sr(rREC,4)}, 0 offen offset:64')
def wvoff(dst, wexpr_s):
    o('v_lshrrev_b32 v17, 3, v1')
    o(f's_lshl_b32 s{sA}, s{wexpr_s}, 3'); o(f'v_add_u32 v17, s{sA}, v17')
    o('v_bfe_u32 v20, v1, 4, 1')
    o(f's_and_b32 s{sA}, s{wexpr_s}, 1'); o(f's_lshl_b32 s{sA}, s{sA}, 1'); o(f'v_or_b32 v20, s{sA}, v20')
    o('v_bfe_u32 v19, v1, 1, 2'); o('v_xor_b32 v19, v19, v20'); o('v_lshlrev_b32 v19, 1, v19')
    o('v_and_b32 v20, 1, v1'); o('v_or_b32 v19, v19, v20')
    o('v_lshlrev_b32 v19, 4, v19'); o('v_lshl_add_u32 v19, v17, 9, v19')
    o(f's_lshl_b32 s{sA}, s{sS}, 7'); o(f'v_add_u32 v{dst}, s{sA}, v19')
o(f's_cmp_ge_u32 s{sW}, 4')
o('s_cbranch_scc1 L_e0')
o('v_lshrrev_b32 v17, 5, v1')
o(f's_lshl_b32 s{sA}, s{sW}, 1'); o(f'v_add_u32 v17, s{sA}, v17')
o('v_and_b32 v18, 31, v1'); o('v_and_b32 v19, 15, v17'); o('v_xor_b32 v22, v18, v19')
o('v_lshlrev_b32 v22, 4, v22'); o('v_lshl_add_u32 v22, v17, 9, v22')
o('v_add_u32 v17, 8, v17'); o('v_and_b32 v19, 15, v17'); o('v_xor_b32 v23, v18, v19')
o('v_lshlrev_b32 v23, 4, v23'); o('v_lshl_add_u32 v23, v17, 9, v23')
wvoff(249,sW)
o('s_waitcnt lgkmcnt(0)')
o('s_barrier')
stamp(0)
if 'stlb' in OPT:
    def touch(base, off_s=None, off_i=0):
        if off_s is None and off_i==0:
            o(f's_load_dword s13, {sr(base,2)}, 0'); return
        if off_s is not None:
            o(f's_add_u32 s14, s{base}, s{off_s}'); o(f's_addc_u32 s15, s{base+1}, 0')
            if off_i: o(f's_add_u32 s14, s14, {off_i}'); o('s_addc_u32 s15, s15, 0')
        else:
            o(f's_add_u32 s14, s{base}, {off_i}'); o(f's_addc_u32 s15, s{base+1}, 0')
        o('s_load_dword s13, s[14:15], 0')
    o(f's_lshl_b32 s3, s{sNB}, 9')
    touch(sX,3); touch(sWB); touch(sWV); touch(sWA); touch(sWU); touch(sOUT,3)
    touch(sWS,None,WS_RECS)
    o(f's_mul_i32 s3, s{sS}, {SLICE}')
    touch(sWS,3); touch(sWS,3,0x100000); touch(sWS,3,0x200000); touch(sWS,3,SLICE-256)
wc_load()
srd(rX,sX,N*512); srd(rW1,sWB,131072); srd(rW2,sWV,131072)
o(f's_lshl_b32 s{sC_}, s{sW}, 10')
o(f's_mov_b32 s{sTL}, s{sROT}')
o(f's_mov_b32 s{sI}, 0')
lab('L_dmaw')
o(f's_add_u32 s{sA}, s{sI}, s{sWROT}'); o(f's_and_b32 s{sA}, s{sA}, 7')
o(f's_lshl_b32 s{sB}, s{sA}, 14'); o(f's_lshl_b32 s{sA}, s{sA}, 12'); o(f's_add_u32 s{sA}, s{sA}, s{sC_}')
o(f's_add_u32 m0, s{sA}, {WR}'); o('s_nop 0')
o(f'buffer_load_dwordx4 v249, {sr(rW1,4)}, s{sB} offen lds')
o(f's_add_u32 m0, s{sA}, {WR+32768}'); o('s_nop 0')
o(f'buffer_load_dwordx4 v249, {sr(rW2,4)}, s{sB} offen lds')
o('s_waitcnt vmcnt(%s)' % OPT.get('pacew',OPT.get('pace','8')))
o(f's_add_u32 s{sI}, s{sI}, 1'); o(f's_cmp_lt_u32 s{sI}, 8'); o('s_cbranch_scc1 L_dmaw')
def xloop(lo,hi,name):
    o(f's_mov_b32 s{sI}, {lo}')
    lab(name)
    o(f's_lshr_b32 s{sTL}, s{sI}, 1'); o(f's_and_b32 s{sA}, s{sI}, 1'); o(f's_mul_i32 s{sA}, s{sA}, 5'); o(f's_add_u32 s{sTL}, s{sTL}, s{sA}')
    o(f's_lshl_b32 s{sA}, s{sTL}, 13'); o(f's_add_u32 s{sD}, s{sA}, s{sC_}'); o(f's_add_u32 m0, s{sD}, {XT}')
    o(f's_lshl_b32 s{sB}, s{sNB}, 9'); o(f's_add_u32 s{sB}, s{sB}, s{sA}')
    o(f'buffer_load_dwordx4 v22, {sr(rX,4)}, s{sB} offen lds')
    o(f's_add_u32 m0, s{sD}, {XT+4096}'); o('s_nop 0')
    o(f'buffer_load_dwordx4 v23, {sr(rX,4)}, s{sB} offen lds')
    o('s_waitcnt vmcnt(%s)' % OPT.get('pace','8'))
    o(f's_add_u32 s{sI}, s{sI}, 1'); o(f's_cmp_lt_u32 s{sI}, {hi}'); o(f's_cbranch_scc1 {name}')
xloop(0,4,'L_dmax1')
stamp(19)
build_common()
srd(rDST,sDST,E*4); srd(rSRC,sSRC,E*4); srd(rEA,sEA,E*2); srd_off(rREC,sWS,WS_RECS,256*CHCAP*8)
WF,AF,ACC,XA,XC,TRA,TOF,AUA=64,192,224,56,60,240,241,242
o(f's_and_b32 s{sD}, s{sW}, 1'); o(f's_lshl_b32 s{sD}, s{sD}, 1')
o('v_lshrrev_b32 v17, 4, v1')
o('v_bfe_u32 v18, v1, 2, 2')
o('v_lshl_add_u32 v19, v17, 3, v18')
o('v_lshlrev_b32 v19, 7, v19')
o('v_bfe_u32 v20, v1, 3, 1')
o('v_and_b32 v21, 1, v17'); o('v_lshl_or_b32 v20, v21, 1, v20')
o(f'v_xor_b32 v20, s{sD}, v20')
o('v_and_b32 v21, 3, v1'); o('v_lshl_add_u32 v19, v21, 3, v19'); o(f'v_add_u32 v19, {WR}, v19')
o(f'v_lshl_add_u32 v{TRA}, v20, 5, v19')
o('v_xor_b32 v20, 1, v20'); o(f'v_lshl_add_u32 v{TRA+3}, v20, 5, v19')
def wfrags():
    for m in range(2):
        for t in range(2):
            for ks in range(8):
                r=WF+64*m+32*t+4*ks; a=TRA if t==0 else TRA+3
                o(f'ds_read_b64_tr_b16 {vr(r,2)}, v{a} offset:{m*32768+ks*4096}')
                o(f'ds_read_b64_tr_b16 {vr(r+2,2)}, v{a} offset:{m*32768+ks*4096+512}')
o('v_and_b32 v18, 15, v1')
for k in range(4):
    o(f'v_and_b32 v19, 12, v18'); o(f'v_xor_b32 v19, {4*k}, v19')
    o('v_and_b32 v20, 3, v18'); o('v_xor_b32 v20, v20, v17')
    o('v_add_u32 v19, v19, v20'); o('v_lshlrev_b32 v19, 4, v19')
    o(f'v_lshl_add_u32 v{XA+k}, v18, 9, v19')
    o(f'v_add_u32 v{XA+k}, {XT}, v{XA+k}')
o('v_lshlrev_b32 v19, 10, v17')
o(f's_lshl_b32 s{sA}, s{sD}, 6')
o('v_lshl_add_u32 v19, v18, 2, v19'); o(f'v_add_u32 v{TOF}, s{sA}, v19')
o(f's_lshr_b32 s{sROT}, s{sW}, 1'); o(f's_mul_i32 s{sROT}, s{sROT}, 5')

o('s_waitcnt vmcnt(8) lgkmcnt(0)')
o(f's_mul_i32 s{sNONCE}, s{sNONCE}, 0x9E3779B1'); o(f's_add_u32 s{sNONCE}, s{sNONCE}, 0x7F4A7C15')
lds_inc(C_X,244)
lds_spin(C_X,4,244)
stamp(2)
wfrags()
o('s_waitcnt lgkmcnt(0)')
o(f's_lshl_b32 s{sC_}, s{sW}, 10')
lds_inc(C_W,244)
lds_spin(C_W,4,244)
srd(rW1,sWA,131072); srd(rW2,sWU,131072)
o(f's_mov_b32 s{sI}, 0')
lab('L_dmau')
o(f's_add_u32 s{sA}, s{sI}, s{sWROT}'); o(f's_and_b32 s{sA}, s{sA}, 7')
o(f's_lshl_b32 s{sB}, s{sA}, 14'); o(f's_lshl_b32 s{sA}, s{sA}, 12'); o(f's_add_u32 s{sA}, s{sA}, s{sC_}')
o(f's_add_u32 m0, s{sA}, {WR}'); o('s_nop 0')
o(f'buffer_load_dwordx4 v249, {sr(rW1,4)}, s{sB} offen lds')
o(f's_add_u32 m0, s{sA}, {WR+32768}'); o('s_nop 0')
o(f'buffer_load_dwordx4 v249, {sr(rW2,4)}, s{sB} offen lds')
o('s_waitcnt vmcnt(%s)' % OPT.get('paceu',OPT.get('pace','8')))
o(f's_add_u32 s{sI}, s{sI}, 1'); o(f's_cmp_lt_u32 s{sI}, 8'); o('s_cbranch_scc1 L_dmau')
lds_inc(C_PG,244)
xloop(4,10,'L_dmax2')
lds_inc(C_G1,244)
stamp(3)
o('s_waitcnt vmcnt(8)')
lds_inc(C_X1,244)
lds_spin(C_X1,4,244)
stamp(4)
o('s_branch L_g_gemm')
lab('L_e0')
if 'noprio' not in OPT: o('s_setprio %s' % OPT.get('eprio','2'))
o('v_subrev_u32 v14, 256, v0')
o(f's_mul_i32 s{sA}, s2, {CH}')
o(f'v_add_u32 v15, s{sA}, v14')
o('v_lshlrev_b32 v16, 1, v15'); o('v_lshlrev_b32 v15, 2, v15')
o(f'v_cmp_gt_u32 vcc, {CH-512}, v14')
o('v_add_u32 v18, 2048, v15'); o('v_add_u32 v19, 1024, v16')
o('v_mov_b32 v17, 0x40000000')
o('v_cndmask_b32 v18, v17, v18, vcc'); o('v_cndmask_b32 v19, v17, v19, vcc')
o('s_waitcnt lgkmcnt(0)')
ED,ES,EE=2,5,8
srd(rDST,sDST,E*4)
o(f'buffer_load_dword v{ED}, v15, {sr(rDST,4)}, 0 offen')
o(f'buffer_load_dword v{ED+1}, v15, {sr(rDST,4)}, 0 offen offset:1024')
o(f'buffer_load_dword v{ED+2}, v18, {sr(rDST,4)}, 0 offen')
srd(rSRC,sSRC,E*4)
o(f'buffer_load_dword v{ES}, v15, {sr(rSRC,4)}, 0 offen')
o(f'buffer_load_dword v{ES+1}, v15, {sr(rSRC,4)}, 0 offen offset:1024')
o(f'buffer_load_dword v{ES+2}, v18, {sr(rSRC,4)}, 0 offen')
srd(rEA,sEA,E*2)
o(f'buffer_load_ushort v{EE}, v16, {sr(rEA,4)}, 0 offen')
o(f'buffer_load_ushort v{EE+1}, v16, {sr(rEA,4)}, 0 offen offset:512')
o(f'buffer_load_ushort v{EE+2}, v19, {sr(rEA,4)}, 0 offen')
o('s_barrier')
stamp(0)
wc_load()
srd(rW1,sWA,131072); srd(rW2,sWU,131072)
o('s_lshr_b32 s3, s2, 3'); o('s_lshl_b32 s3, s3, 12')
o('v_lshrrev_b32 v17, 3, v1'); o('v_lshlrev_b32 v17, 9, v17'); o('v_and_b32 v19, 7, v1'); o('v_lshl_add_u32 v17, v19, 4, v17')
o(f's_lshl_b32 s{sA}, s{sS}, 7'); o(f'v_add_u32 v17, s{sA}, v17')
l=U('wu')
if 'nowu' not in OPT:
    o(f's_cmp_lg_u32 s{sW}, 4'); o(f's_cbranch_scc1 {l}_a')
    o(f'buffer_load_dwordx4 v[240:243], v17, {sr(rW1,4)}, s3 offen')
    lab(l+'_a')
    o(f's_cmp_lg_u32 s{sW}, 5'); o(f's_cbranch_scc1 {l}_b')
    o(f'buffer_load_dwordx4 v[240:243], v17, {sr(rW2,4)}, s3 offen')
    lab(l+'_b')
build_common()
srd(rX,sX,N*512); srd_off(rREC,sWS,WS_RECS,256*CHCAP*8)
if 'notlb' not in OPT:
    o(f's_cmp_lg_u32 s{sW}, 6'); o(f's_cbranch_scc1 {l}_c')
    o('v_lshlrev_b32 v17, 20, v1'); o('v_cmpx_gt_u32 vcc, 3, v1')
    o(f'buffer_load_dword v244, v17, {sr(rTR,4)}, 0 offen')
    o('s_mov_b64 exec, -1')
    lab(l+'_c')
    o(f's_cmp_lg_u32 s{sW}, 7'); o(f's_cbranch_scc1 {l}_d')
    o(f's_lshl_b32 s{sA}, s{sNB}, 9')
    o(f'buffer_load_dword v244, v{VZ}, {sr(rOUT,4)}, s{sA} offen')
    o(f'buffer_load_dword v245, v{VZ}, {sr(rREC,4)}, 0 offen')
    lab(l+'_d')
wvoff(249,sW)
o('v_subrev_u32 v247, 16384, v249')
o('s_waitcnt vmcnt(%d)' % (2 if ('nowu' in OPT or 'notlb' in OPT) else 3))
stamp(22)
o(f's_mov_b32 s{sA}, 106862')
RR,RK_,RW=36,24,28
for k in range(3):
    o(f'v_mul_lo_u32 v{RR+k}, v{ED+k}, s{sA}')
for k in range(3):
    o(f'v_lshrrev_b32 v{RR+k}, 24, v{RR+k}')
    o(f'v_mul_u32_u24 v17, {RN}, v{RR+k}'); o(f'v_sub_u32 v17, v{ED+k}, v17')
    o(f'v_lshl_or_b32 v{RW+2*k}, v{ES+k}, 8, v17'); o(f'v_lshlrev_b32 v{RW+2*k+1}, 16, v{EE+k}')
    o(f'v_lshlrev_b32 v{RR+k}, 2, v{RR+k}')
o('v_mov_b32 v16, 1')
o(f'ds_add_rtn_u32 v{RK_}, v{RR}, v16 offset:{HIST1}')
o(f'ds_add_rtn_u32 v{RK_+1}, v{RR+1}, v16 offset:{HIST1}')
o(f'v_cmpx_gt_u32 vcc, {CH-512}, v14')
o(f'ds_add_rtn_u32 v{RK_+2}, v{RR+2}, v16 offset:{HIST1}')
o('s_mov_b64 exec, -1')
o('s_waitcnt lgkmcnt(0)')
o(f's_mul_i32 s{sNONCE}, s{sNONCE}, 0x9E3779B1'); o(f's_add_u32 s{sNONCE}, s{sNONCE}, 0x7F4A7C15')
lds_inc(C_H,17)
lds_spin(C_H,4,17)
o('v_lshlrev_b32 v17, 2, v1')
o(f'ds_read_b32 v20, v17 offset:{HIST1}')
o('s_waitcnt lgkmcnt(0)')
o('v_add_u32 v21, 1, v20'); o('v_and_b32 v21, -2, v21'); o('v_mov_b32 v22, v21')
scan64(21)
o('v_sub_u32 v22, v21, v22')
for k in range(3): o(f'ds_bpermute_b32 v{RR+k}, v{RR+k}, v22')
o('s_waitcnt lgkmcnt(0)')
for k in range(3): o(f'v_add_lshl_u32 v{RR+k}, v{RR+k}, v{RK_+k}, 3')
for k in range(3): o(f'v_add_u32 v{RR+k}, {RST}, v{RR+k}')
o(f'ds_write_b64 v{RR}, {vr(RW,2)}')
o(f'ds_write_b64 v{RR+1}, {vr(RW+2,2)}')
o(f'v_cmpx_gt_u32 vcc, {CH-512}, v14')
o(f'ds_write_b64 v{RR+2}, {vr(RW+4,2)}')
o('s_mov_b64 exec, -1')
o('s_waitcnt lgkmcnt(0)')
lds_inc(C_S,17)
lds_spin(C_S,4,17)
o('v_lshlrev_b32 v17, 4, v14'); o(f'v_add_u32 v18, {RST}, v17')
if 'delay' in OPT: lds_spin(C_X2,4,36)
o('ds_read_b128 v[28:31], v18'); o('ds_read_b128 v[32:35], v18 offset:4096')
o(f's_mul_i32 s{sA}, s2, {CHCAP*8}'); o(f's_add_u32 s{sB}, s{sA}, 4096')
o(f's_and_b32 s{sC_}, s{sNONCE}, 0xffff'); o(f's_lshr_b32 s{sD}, s{sNONCE}, 16')
o('v_mov_b32 v19, 0xffff0000')
o('s_waitcnt lgkmcnt(0)')
o(f'v_and_or_b32 v29, v29, v19, s{sC_}'); o(f'v_and_or_b32 v31, v31, v19, s{sD}')
o(f'v_and_or_b32 v33, v33, v19, s{sC_}'); o(f'v_and_or_b32 v35, v35, v19, s{sD}')
if 'noEst' not in OPT:
    o(f'buffer_store_dwordx4 v[28:31], v17, {sr(rREC,4)}, s{sA} offen sc1')
    o(f'v_cmpx_gt_u32 vcc, {(CHCAP*8-4096)//16}, v14')
    o(f'buffer_store_dwordx4 v[32:35], v17, {sr(rREC,4)}, s{sB} offen sc1')
    o('s_mov_b64 exec, -1')
stamp(2)
l=U('nopub')
if 'noEst' in OPT: o(f's_branch {l}')
o(f's_cmp_lg_u32 s{sW}, 4'); o(f's_cbranch_scc1 {l}')
o('v_lshl_or_b32 v24, v20, 16, v22'); o(f'v_mov_b32 v25, s{sNONCE}')
o('v_lshlrev_b32 v17, 11, v1')
o(f's_lshl_b32 s{sA}, s2, 3')
o(f'buffer_store_dwordx2 v[24:25], v17, {sr(rSEG,4)}, s{sA} offen sc1')
lab(l)
stamp(3)
stamp(4)
o('s_branch L_main_setup' if 'xE' in OPT else 's_branch L_eteam_b')
lab('L_g_gemm')
if 'gprio' in OPT: o('s_setprio 3')
sTE=11
sTC=12
def xread(ks): return f'ds_read_b128 {vr(AF+4*ks,4)}, v{XC+(ks&3)} offset:{256 if ks>=4 else 0}'
def epi_list(which,a,t):
    e=[]
    for i in range(4): e.append(f'v_mul_f32 v{a+i}, {NLOG2E:#x}, v{a+i}')
    for i in range(4): e.append(f'v_cvt_pk_bf16_f32 v{a+i}, v{a+i}, v{a+4+i}')
    if which==1:
        for i in range(4): e.append(f'buffer_store_dword v{a+i}, v{TOF}, {sr(rTW,4)}, s{sB if t==1 else sD} offen offset:{i*256+64*t} sc1')
    else:
        for i in range(4): e.append(f'ds_write_b32 v{AUA if t==1 else AUA+2}, v{a+i} offset:{i*256+64*t}')
    return e
def addr_ops(which,tile_s,t):
    dst = sB if t==1 else sD
    if which==1: return [f's_lshl_b32 s{dst}, s{tile_s}, 4', f's_add_u32 s{dst}, s{dst}, s{sNB}', f's_lshl_b32 s{dst}, s{dst}, 8']
    return [f's_lshl_b32 s{dst}, s{tile_s}, 12', f's_add_u32 s{dst}, s{dst}, {AU}', f'v_add_u32 v{AUA if t==1 else AUA+2}, s{dst}, v{TOF}']
sTO=[13,14,15,46,47]
PK=8
def gemm_body(which, j):
    B0,V0,B1,V1=ACC,ACC+4,ACC+8,ACC+12
    if which==1:
        def epi1(a,jj,t):
            e=[f'v_mul_f32 v{a+i}, {NLOG2E:#x}, v{a+i}' for i in range(4)]
            e+=[f'v_cvt_pk_bf16_f32 v{PK+8*jj+4*t+i}, v{a+i}, v{a+4+i}' for i in range(4)]
            return e
        eP1=epi1(B1,j-1,1) if j>0 else []; eP0=epi1(B0,j,0)
        a1=[]; a0=[]
    else:
        eP1=epi_list(2,B1,1); eP0=epi_list(2,B0,0)
        a1=addr_ops(2,sTE,1); a0=addr_ops(2,sTC,0)
    fill=[[] for _ in range(16)]
    if which==2:
        fill[0]+=a1[0:2]; fill[1]+=a1[2:3]+a0[0:1]; fill[2]+=a0[1:3]
        fill[3]+=eP1[0:3]; fill[4]+=eP1[3:6]; fill[5]+=eP1[6:9]; fill[6]+=eP1[9:11]; fill[7]+=eP1[11:12]
    elif eP1:
        fill[3]+=eP1[0:2]; fill[4]+=eP1[2:4]; fill[5]+=eP1[4:6]; fill[6]+=eP1[6:8]
    if not (which==1 and j==4):
        for ks in range(8): fill[8+ks].append(xread(ks))
    if which==2:
        fill[11]+=eP0[0:3]; fill[12]+=eP0[3:6]; fill[13]+=eP0[6:9]; fill[14]+=eP0[9:11]; fill[15]+=eP0[11:12]
        tail=[f's_mov_b32 s{sTE}, s{sTC}', f's_add_u32 s{sTC}, s{sTC}, 1', f's_add_u32 s{sA}, s{sTC}, 1', f's_lshl_b32 s{sA}, s{sA}, 13']
        fill[9]+=tail[0:2]; fill[10]+=tail[2:4]
    else:
        fill[11]+=eP0[0:2]; fill[12]+=eP0[2:4]; fill[13]+=eP0[4:6]; fill[14]+=eP0[6:8]
        fill[9]+=[f's_add_u32 s{sTC}, s{sTC}, 8192']
    seq=[]
    for sl in range(16):
        for t in fill[sl]:
            if t.startswith('ds_read'): seq.append((sl,'r'))
            elif t.startswith('ds_write'): seq.append((sl,'w'))
    def waitcount(ks):
        if which==1: return 7-ks
        n=0; found=False; k=-1
        for (sl,kind) in seq:
            if kind=='r':
                k+=1
                if k==ks: found=True; continue
            if found: n+=1
        for (sl,kind) in seq:
            if sl<ks: n+=1
        return n
    for ph in range(2):
        for ks in range(8):
            ab,av=(B0,V0) if ph==0 else (B1,V1)
            wb=WF+32*ph+4*ks; wv=WF+64+32*ph+4*ks
            if ph==0: o(f's_waitcnt lgkmcnt({min(waitcount(ks),15)})')
            c1='0' if ks==0 else vr(ab,4); c2='0' if ks==0 else vr(av,4)
            f=fill[8*ph+ks]
            o(f'v_mfma_f32_16x16x32_bf16 {vr(ab,4)}, {vr(AF+4*ks,4)}, {vr(wb,4)}, {c1}')
            h=(len(f)+1)//2 if ph==0 else 0
            for t in f[:h]: o(t)
            o(f'v_mfma_f32_16x16x32_bf16 {vr(av,4)}, {vr(AF+4*ks,4)}, {vr(wv,4)}, {c2}')
            for t in f[h:]: o(t)
    if which==2:
        for k in range(4): o(f'v_add_u32 v{XC+k}, s{sA}, v{XA+k}')
    elif j<3:
        for k in range(4): o(f'v_add_u32 v{XC+k}, s{sTC}, v{XA+k}')
def table_stores():
    for j in range(5):
        o(f's_add_u32 s{sB}, s{sROT}, {j}'); o(f's_lshl_b32 s{sB}, s{sB}, 4'); o(f's_add_u32 s{sB}, s{sB}, s{sNB}'); o(f's_lshl_b32 s{sB}, s{sB}, 8')
        for t in range(2):
            for i in range(4):
                o(f'buffer_store_dword v{PK+8*j+4*t+i}, v{TOF}, {sr(rTW,4)}, s{sB} offen offset:{i*256+64*t} sc1')
def gemm1():
    o(f's_lshl_b32 s{sTC}, s{sROT}, 13')
    for k in range(4): o(f'v_add_u32 v{XC+k}, s{sTC}, v{XA+k}')
    for ks in range(8): o(xread(ks))
    o(f's_add_u32 s{sTC}, s{sTC}, 8192')
    for k in range(4): o(f'v_add_u32 v{XC+k}, s{sTC}, v{XA+k}')
    o('s_waitcnt lgkmcnt(0)')
    for j in range(5):
        if j==1:
            o('s_waitcnt vmcnt(0)')
            lds_inc(C_X2,244)
            o('s_waitcnt lgkmcnt(0)')
        if j==2:
            lds_spin(C_X2,4,244)
        gemm_body(1,j)
    o('s_nop 7')
    for i in range(4): o(f'v_mul_f32 v{ACC+8+i}, {NLOG2E:#x}, v{ACC+8+i}')
    for i in range(4): o(f'v_cvt_pk_bf16_f32 v{PK+32+4+i}, v{ACC+8+i}, v{ACC+12+i}')
def dummy_row():
    l=U('nodummy')
    o(f's_cmp_lg_u32 s{sR}, 63'); o(f's_cbranch_scc1 {l}')
    o(f's_cmp_lg_u32 s{sW}, 0'); o(f's_cbranch_scc1 {l}')
    o('v_mov_b32 v244, 0x7f7f'); o('v_lshlrev_b32 v245, 2, v1'); o(f'v_add_u32 v245, {N*256}, v245')
    o(f'buffer_store_dword v244, v245, {sr(rTR,4)}, 0 offen sc1')
    lab(l)
def own_prefetch(dst):
    o(f's_lshl_b32 s{sA}, s{sNB}, 8'); o(f's_mul_i32 s{sB}, s{sW}, 10240'); o(f's_add_u32 s{sA}, s{sA}, s{sB}')
    o('v_lshlrev_b32 v243, 4, v1')
    for i in range(10):
        o(f'buffer_load_dwordx4 {dst}, v243, {sr(rTW,4)}, s{sA} offen sc1')
        o(f's_add_u32 s{sA}, s{sA}, 1024')
def gemm2():
    B0,V0,B1,V1=ACC,ACC+4,ACC+8,ACC+12
    for j in range(5):
        o(f's_add_u32 s{sTO[j]}, s{sROT}, {j}'); o(f's_lshl_b32 s{sTO[j]}, s{sTO[j]}, 4'); o(f's_add_u32 s{sTO[j]}, s{sTO[j]}, s{sNB}'); o(f's_lshl_b32 s{sTO[j]}, s{sTO[j]}, 8')
    o(f's_lshl_b32 s{sTC}, s{sROT}, 13')
    for k in range(4): o(f'v_add_u32 v{XC+k}, s{sTC}, v{XA+k}')
    for ks in range(8): o(xread(ks))
    o(f's_add_u32 s{sTC}, s{sTC}, 8192')
    for k in range(4): o(f'v_add_u32 v{XC+k}, s{sTC}, v{XA+k}')
    o(f's_lshl_b32 s{sA}, s{sROT}, 12'); o(f's_add_u32 s{sA}, s{sA}, {AU}'); o(f'v_add_u32 v{AUA}, s{sA}, v{TOF}')
    o('s_waitcnt lgkmcnt(0)')
    def epi(a,jj,t):
        e=[f'v_mul_f32 v{a+i}, {NLOG2E:#x}, v{a+i}' for i in range(4)]
        e+=[f'v_cvt_pk_bf16_f32 v{a+i}, v{a+i}, v{a+4+i}' for i in range(4)]
        e+=[f'ds_write_b32 v{AUA}, v{a+i} offset:{jj*4096+i*256+64*t}' for i in range(4)]
        return e
    def tst(jj): return [f'buffer_store_dword v{PK+8*jj+4*t+i}, v{TOF}, {sr(rTW,4)}, s{sTO[jj]} offen offset:{i*256+64*t} sc1' for t in range(2) for i in range(4)]
    stores={0:tst(0)+tst(1),1:tst(2)+tst(3),2:tst(4),3:[],4:[]}
    prev_tail=0
    for j in range(5):
        eP1=epi(B1,j-1,1) if j>0 else []; eP0=epi(B0,j,0)
        fill=[[] for _ in range(16)]
        if eP1:
            fill[3]+=eP1[0:3]; fill[4]+=eP1[3:6]; fill[5]+=eP1[6:9]; fill[6]+=eP1[9:11]; fill[7]+=eP1[11:12]
        if j<4:
            for ks in range(8): fill[8+ks].append(xread(ks))
        fill[11]+=eP0[0:3]; fill[12]+=eP0[3:6]; fill[13]+=eP0[6:9]; fill[14]+=eP0[9:11]; fill[15]+=eP0[11:12]
        if j<3: fill[9]+=[f's_add_u32 s{sTC}, s{sTC}, 8192']
        st=list(stores[j])
        for sl in range(16):
            if st: fill[sl].append(st.pop(0))
        seq=[(sl,('r' if t.startswith('ds_read') else 'w')) for sl in range(16) for t in fill[sl] if t.startswith('ds_')]
        for ph in range(2):
            for ks in range(8):
                ab,av=(B0,V0) if ph==0 else (B1,V1)
                wb=WF+32*ph+4*ks; wv=WF+64+32*ph+4*ks
                if ph==0 and j>0:
                    n=0; found=False; k=-1
                    for (sl,kind) in prevseq:
                        if kind=='r':
                            k+=1
                            if k==ks: found=True; continue
                        if found: n+=1
                    n+=sum(1 for (sl,kind) in seq if sl<ks)
                    o(f's_waitcnt lgkmcnt({min(n,15)})')
                c1='0' if ks==0 else vr(ab,4); c2='0' if ks==0 else vr(av,4)
                f=fill[8*ph+ks]
                o(f'v_mfma_f32_16x16x32_bf16 {vr(ab,4)}, {vr(AF+4*ks,4)}, {vr(wb,4)}, {c1}')
                h=(len(f)+1)//2 if ph==0 else 0
                for t in f[:h]: o(t)
                o(f'v_mfma_f32_16x16x32_bf16 {vr(av,4)}, {vr(AF+4*ks,4)}, {vr(wv,4)}, {c2}')
                for t in f[h:]: o(t)
        if j<3:
            for k in range(4): o(f'v_add_u32 v{XC+k}, s{sTC}, v{XA+k}')
        prevseq=seq
        if j==int(OPT.get('f2it','3')):
            l=U('nf2')
            o('s_waitcnt vmcnt(0)')
            lds_inc(C_T,244,ret=True)
            o(f's_cmp_lg_u32 s{sA}, 3'); o(f's_cbranch_scc1 {l}')
            o('s_mov_b64 exec, 1')
            for i in range(4): o(f'v_mov_b32 v{244+i}, s{sNONCE}')
            o(f's_lshl_b32 s{sA}, s{sS}, 6'); o(f's_add_u32 s{sA}, s{sA}, s{sR}'); o(f's_lshl_b32 s{sA}, s{sA}, 4')
            o(f's_add_u32 s{sA}, s{sA}, {SEGT_FLAG2}')
            o(f'buffer_store_dwordx4 v[244:247], v{VZ}, {sr(rSEG,4)}, s{sA} offen sc1')
            o('s_mov_b64 exec, -1')
            lab(l)
            if 'preat' in OPT:
                o('s_nop 1'); own_prefetch('v[244:247]')
    o('s_nop 7')
    for t in epi(B1,4,1): o(t)
    if 'nopre' not in OPT and 'preat' not in OPT:
        own_prefetch('v[232:235]' if 'nowait' in OPT else 'v[44:47]')
    if 'preout' in OPT:
        o('v_lshrrev_b32 v245, 3, v1'); o('v_lshlrev_b32 v245, 9, v245'); o('v_and_b32 v246, 7, v1'); o('v_lshl_add_u32 v245, v246, 4, v245')
        o(f's_mul_i32 s{sB}, s{sW}, {40*512}'); o(f's_lshl_b32 s{sA}, s{sNB}, 9'); o(f's_add_u32 s{sA}, s{sA}, s{sB}')
        o(f's_lshl_b32 s{sB}, s{sS}, 7'); o(f's_add_u32 s{sA}, s{sA}, s{sB}')
        for i in range(5):
            o(f'buffer_load_dwordx4 v[44:47], v245, {sr(rOUT,4)}, s{sA} offen')
            o(f's_add_u32 s{sA}, s{sA}, {8*512}')
gemm1()
stamp(5)
wfrags()
o('s_waitcnt lgkmcnt(0)')
lds_inc(C_G,244)
lds_spin(C_G,4,244)
stamp(18)
if 'xE' not in OPT and 'nogate' not in OPT: lds_spin(C_RL,4,244)
dummy_row()
stamp(6)
gemm2()
o('s_waitcnt lgkmcnt(0)')
stamp(7)
o('s_branch L_main_setup')
lab('L_eteam_b')
SG,RC0,RC1,SA,RKB=64,80,112,144,200
T=176
o(f's_sub_u32 s{sC_}, s{sW}, 4')
o('v_lshrrev_b32 v17, 3, v1')
o(f's_lshl_b32 s{sA}, s{sC_}, 3'); o(f'v_add_u32 v17, s{sA}, v17')
o(f'v_lshlrev_b32 v{T}, 3, v17')
o('v_and_b32 v18, 7, v1')
o(f'v_mul_u32_u24 v{T+1}, {CHCAP*8}, v17'); o(f'v_lshl_add_u32 v{T+1}, v18, 4, v{T+1}')
IX=T+2
o(f'v_lshlrev_b32 v{IX}, 1, v18'); o(f'v_add_u32 v{IX+1}, 1, v{IX}'); o(f'v_add_u32 v{IX+2}, 16, v{IX}'); o(f'v_add_u32 v{IX+3}, 17, v{IX}')
lds_spin({'G1':C_G1,'PG':C_PG}[OPT.get('pollgate','G1')],4,17)
o(f's_lshl_b32 s{sD}, s{sR}, 11')
o(f's_mov_b32 s{sSP}, 0')
lp=U('poll1'); dn=U('poll1d')
lab(lp)
for p in range(8):
    o(f'buffer_load_dwordx2 {vr(SG+2*p,2)}, v{T}, {sr(rSEG,4)}, s{sD} offen offset:{p*256} sc1')
o(f'v_mov_b32 v19, s{sNONCE}')
o('s_waitcnt vmcnt(0)')
o(f'v_xor_b32 v20, v{SG+1}, v19')
for p in range(1,8):
    o(f'v_xor_b32 v21, v{SG+2*p+1}, v19'); o('v_or_b32 v20, v20, v21')
o('v_cmp_ne_u32 vcc, 0, v20')
o(f's_cbranch_vccz {dn}')
o('s_sleep 6')
o(f's_add_u32 s{sSP}, s{sSP}, 1'); o(f's_cmp_lt_u32 s{sSP}, 0x10000'); o(f's_cbranch_scc1 {lp}')
lab(dn)
stamp(5)
o('v_mov_b32 v20, 0')
for p in range(8):
    o(f'v_lshrrev_b32 v{SG+2*p+1}, 16, v{SG+2*p}')
    o(f'v_max_u32 v20, v20, v{SG+2*p+1}')
o('v_cmp_lt_u32 vcc, 32, v20')
l=U('nofb'); o(f's_cbranch_vccz {l}')
o('v_mov_b32 v21, 1'); o(f'ds_write_b32 v{VZ}, v21 offset:{C_FB}')
lab(l)
o(f's_mov_b32 s{sSP}, 0')
lr=U('recld'); dr=U('recok')
lab(lr)
for p in range(8):
    o(f'v_and_b32 v19, 0xffff, v{SG+2*p}')
    o(f'v_lshl_add_u32 v19, v19, 3, v{T+1}')
    o(f's_mov_b32 s{sA}, {p*32*CHCAP*8}')
    o(f'v_cmp_lt_u32 vcc, 16, v{SG+2*p+1}')
    o(f'buffer_load_dwordx4 {vr(RC0+4*p,4)}, v19, {sr(rREC,4)}, s{sA} offen sc1')
    l=U('ld1'); o(f's_cbranch_vccz {l}')
    o(f'buffer_load_dwordx4 {vr(RC1+4*p,4)}, v19, {sr(rREC,4)}, s{sA} offen offset:128 sc1')
    lab(l)
l=U('sig'); o(f's_cmp_lg_u32 s{sSP}, 0'); o(f's_cbranch_scc1 {l}_r')
lds_inc(C_RL,20)
o('s_waitcnt vmcnt(0)')
o(f's_branch {l}')
lab(l+'_r')
o('s_waitcnt vmcnt(0)')
lab(l)
o('v_mov_b32 v21, 0x05040100'); o('v_mov_b32 v22, 0'); o(f'v_mov_b32 v23, s{sNONCE}')
for p in range(8):
    for st in range(2):
        rec=(RC0 if st==0 else RC1)+4*p
        if st==1:
            l=U('v1'); o(f'v_cmp_lt_u32 vcc, 16, v{SG+2*p+1}'); o(f's_cbranch_vccz {l}')
        o(f'v_cmpx_lt_u32 vcc, v{IX+2*st}, v{SG+2*p+1}')
        o(f'v_perm_b32 v20, v{rec+3}, v{rec+1}, v21'); o('v_xor_b32 v20, v20, v23'); o('v_or_b32 v22, v22, v20')
        o('s_mov_b64 exec, -1')
        if st==1: lab(l)
o('v_cmp_ne_u32 vcc, 0, v22')
o(f's_cbranch_vccz {dr}')
o('s_sleep 2')
o(f's_add_u32 s{sSP}, s{sSP}, 1'); o(f's_cmp_lt_u32 s{sSP}, 0x10000'); o(f's_cbranch_scc1 {lr}')
lab(dr)
stamp(6)
def each_rec(fn):
    for p in range(8):
        for st in range(2):
            if st==1:
                l=U('st1'); o(f'v_cmp_lt_u32 vcc, 16, v{SG+2*p+1}'); o(f's_cbranch_vccz {l}')
            for i in range(2):
                rec=(RC0 if st==0 else RC1)+4*p+2*i
                o(f'v_cmpx_lt_u32 vcc, v{IX+2*st+i}, v{SG+2*p+1}')
                fn(rec, SA+4*p+2*st+i)
            o('s_mov_b64 exec, -1')
            if st==1: lab(l)
SD='dst_sel:DWORD dst_unused:UNUSED_PAD src0_sel:DWORD src1_sel:BYTE_0'
o('v_mov_b32 v22, 1'); o('v_mov_b32 v23, 64')
def f_hist(rec,sa):
    o(f'v_lshlrev_b32_sdwa v20, 2, v{rec} {SD}'); o(f'ds_add_rtn_u32 v{sa-SA+RKB}, v20, v22 offset:{DEG}')
each_rec(f_hist)
o('s_waitcnt lgkmcnt(0)')
lds_inc(C_E1,20)
stamp(7)
o(f's_cmp_lg_u32 s{sW}, 4')
o('s_cbranch_scc1 L_e_prefill')
lds_spin(C_E1,4,20)
D0,K0,P0=24,28,32
o('v_lshlrev_b32 v19, 2, v1')
for a in range(3): o(f'ds_read_b32 v{D0+a}, v19 offset:{DEG+a*256}')
perm=[]
for w in range(8): perm += ([w,w+4,11-w] if w<4 else [19-w,23-w]) if 'oldperm' not in OPT else ([w,15-w] + ([19-w] if w<4 else []))
o('v_mov_b32 v38, 31')
for i,g in enumerate(perm): o(f'v_writelane_b32 v38, {g}, {i}')
o('v_lshlrev_b32 v38, 2, v38')
o('v_sub_u32 v37, 252, v19')
o('s_waitcnt lgkmcnt(0)')
for a in range(3):
    o(f'v_min_u32 v{K0+a}, 63, v{D0+a}'); o(f'v_lshlrev_b32 v{K0+a}, 2, v{K0+a}')
    if a==2: o('v_cmpx_gt_u32 vcc, 32, v1')
    o(f'ds_add_rtn_u32 v{P0+a}, v{K0+a}, v22 offset:{HIST2}')
o('s_mov_b64 exec, -1')
o('s_waitcnt lgkmcnt(0)')
o(f'ds_read_b32 v36, v37 offset:{HIST2}')
for a in range(3): o(f'v_sub_u32 v{K0+a}, 252, v{K0+a}')
o('s_waitcnt lgkmcnt(0)')
o('v_mov_b32 v35, v36') if False else None
o('v_mov_b32 v39, v36')
scan64(36)
o('v_sub_u32 v36, v36, v39')
for a in range(3): o(f'ds_bpermute_b32 v{K0+a}, v{K0+a}, v36')
o('s_waitcnt lgkmcnt(0)')
for a in range(3):
    o(f'v_add_u32 v{P0+a}, v{P0+a}, v{K0+a}')
    o(f'v_add_u32 v21, {64*a}, v1')
    o(f'v_cmp_gt_u32 vcc, s{sNV}, v21')
    o(f'v_lshlrev_b32 v20, 3, v{P0+a}')
    o(f'v_lshrrev_b32 v{K0+a}, 3, v{P0+a}'); o(f'v_lshlrev_b32 v{K0+a}, 2, v{K0+a}')
    o('v_mov_b32 v40, 0x200000')
    o('v_and_b32 v43, 15, v21'); o('v_lshlrev_b32 v43, 4, v43'); o('v_lshl_add_u32 v43, v21, 9, v43')
    o('v_cndmask_b32 v42, v40, v21, vcc')
    if a==2: o('v_cmpx_gt_u32 vcc, 32, v1')
    o(f'ds_write_b64 v20, v[42:43] offset:{NODEOF}')
    o(f'ds_max_u32 v{K0+a}, v{D0+a} offset:{LG}')
o('s_mov_b64 exec, -1')
o('s_waitcnt lgkmcnt(0)')
o(f'ds_read_b32 v39, v38 offset:{LG}')
o('s_waitcnt lgkmcnt(0)')
o('v_add_u32 v39, 1, v39'); o('v_lshrrev_b32 v39, 1, v39')
o('v_mov_b32 v40, v39')
scan64(39)
o('v_sub_u32 v40, v39, v40')
o('v_lshlrev_b32 v40, 7, v40'); o(f'v_add_u32 v40, {ELL}, v40')
o(f'ds_write_b32 v38, v40 offset:{GBASE}')
o(f'v_readlane_b32 s{sA}, v39, 19')
o('s_waitcnt lgkmcnt(0)')
for a in range(3): o(f'ds_read_b32 v{K0+a}, v{K0+a} offset:{GBASE}')
o(f's_cmp_le_u32 s{sA}, {ELLB-4}')
l=U('fits'); o(f's_cbranch_scc1 {l}')
o('v_mov_b32 v21, 1'); o(f'ds_write_b32 v{VZ}, v21 offset:{C_FB}')
lab(l)
o('s_waitcnt lgkmcnt(0)')
for a in range(3):
    o(f'v_and_b32 v21, 7, v{P0+a}'); o(f'v_lshl_add_u32 v21, v21, 3, v{K0+a}')
    o(f'ds_write_b32 v19, v21 offset:{CUR+a*256}')
o('s_waitcnt lgkmcnt(0)')
lds_inc(C_SORT,20)
o('s_branch L_e_wait')
lab('L_e_prefill')
lds_spin(C_G,4,20)
o(f's_sub_u32 s{sA}, s{sW}, 5'); o(f's_lshl_b32 s{sA}, s{sA}, 10'); o(f's_add_u32 s{sA}, s{sA}, {ELL}')
o(f'v_lshlrev_b32 v20, 4, v1'); o(f'v_add_u32 v20, s{sA}, v20')
o(f'v_mov_b32 v24, {N*256}'); o('v_mov_b32 v25, 0'); o(f'v_mov_b32 v26, {N*256}'); o('v_mov_b32 v27, 0')
for i in range(12): o(f'ds_write_b128 v20, v[24:27] offset:{i*3072}')
o('s_waitcnt lgkmcnt(0)')
lds_inc(C_P,20)
lab('L_e_wait')
lds_spin(C_SORT,1,20)
lds_spin(C_P,3,20)
stamp(8)
o(f'ds_read_b32 v20, v{VZ} offset:{C_FB}'); o('s_waitcnt lgkmcnt(0)')
o(f'v_readfirstlane_b32 s{sA}, v20'); o(f's_cmp_lg_u32 s{sA}, 0'); o('s_cbranch_scc1 L_e_done')
def f_slot(rec,sa):
    o(f'v_lshlrev_b32_sdwa v20, 2, v{rec} {SD}'); o(f'ds_read_b32 v{sa}, v20 offset:{CUR}')
each_rec(f_slot)
o('s_waitcnt lgkmcnt(0)')
def f_put(rec,sa):
    o(f'v_lshl_add_u32 v{sa}, v{sa-SA+RKB}, 6, v{sa}'); o(f'v_and_b32 v{rec+1}, v24, v{rec+1}'); o(f'ds_write_b64 v{sa}, {vr(rec,2)}')
o('v_mov_b32 v24, 0xffff0000')
each_rec(f_put)
lab('L_e_done')
o('s_waitcnt lgkmcnt(0)')
stamp(9)
o(f's_cmp_lg_u32 s{sW}, 4')
o('s_cbranch_scc1 L_main_setup')
o('v_lshlrev_b32 v20, 4, v1')
o(f's_lshl_b32 s{sD}, s{sS}, 10'); o(f's_add_u32 s{sD}, s{sD}, {SEGT_FLAG2}')
o(f's_mov_b32 s{sSP}, 0')
lp=U('poll2'); dn=U('poll2d')
lab(lp)
o(f'buffer_load_dword v21, v20, {sr(rSEG,4)}, s{sD} offen sc1')
o('s_waitcnt vmcnt(0)')
o(f'v_cmp_ne_u32 vcc, s{sNONCE}, v21')
o(f's_cbranch_vccz {dn}')
o('s_sleep 2')
o(f's_add_u32 s{sSP}, s{sSP}, 1'); o(f's_cmp_lt_u32 s{sSP}, 0x10000'); o(f's_cbranch_scc1 {lp}')
lab(dn)
l=U('noep')
o('s_cmp_lg_u32 s2, 0'); o(f's_cbranch_scc1 {l}')
o('s_mov_b64 exec, 1')
o(f'v_mov_b32 v21, s{sNONCE}')
o(f'global_store_dword v{VZ}, v21, {sr(sEP,2)} sc1')
o('s_mov_b64 exec, -1')
lab(l)
LOFF,RP=2,3
S1A,S1B,S2A,S2B,ONE=4,8,12,16,20
WC=24; NUM=32; DEN=40; C=48; DX,DY=72,104; R0,R1=136,152
OFA,OFB,EA_,EB_,AD=168,170,172,174,176
lab('L_main_setup')
o('s_setprio 0')
stamp(10)
o(f'v_and_b32 v{LOFF}, 7, v1'); o(f'v_lshlrev_b32 v{LOFF}, 4, v{LOFF}')
o('v_bfe_u32 v196, v1, 3, 2'); o('v_bfe_u32 v197, v1, 2, 1'); o('v_lshrrev_b32 v198, 5, v1'); o('v_and_b32 v199, 3, v1')
o('v_cmp_eq_u32 vcc, v197, v198'); o('v_mov_b32 v195, 7'); o('v_and_b32 v193, 1, v196')
o('v_cndmask_b32 v199, v195, v199, vcc')
LO,HI=0x00003f80,0x3f800000
o('v_cmp_gt_u32 vcc, 2, v196'); o(f'v_mov_b32 v194, {LO:#x}'); o(f'v_mov_b32 v195, {HI:#x}')
o('v_cndmask_b32 v192, v194, v195, vcc')
o('v_cndmask_b32 v191, v195, v194, vcc')
o('v_lshl_add_u32 v199, v193, 3, v199')
for i in range(4):
    o(f'v_cmp_eq_u32 vcc, {i}, v199'); o(f'v_cmp_eq_u32 s[98:99], {8+i}, v199'); o('s_nop 0')
    o(f'v_cndmask_b32 v{S1A+i}, 0, v192, vcc'); o(f'v_cndmask_b32 v{S2A+i}, 0, v191, vcc')
    o(f'v_cndmask_b32 v{S1B+i}, 0, v192, s[98:99]'); o(f'v_cndmask_b32 v{S2B+i}, 0, v191, s[98:99]')
o('v_cmp_gt_u32 vcc, 32, v1')
for i in range(1,4): o(f'v_mov_b32 v{ONE+i}, 0')
o(f'v_cndmask_b32 v{ONE}, 0, v194, vcc')
for i in range(4):
    o(f'v_lshlrev_b32 v{WC+2*i}, 16, v{250+i}'); o(f'v_and_b32 v{WC+2*i+1}, 0xffff0000, v{250+i}')
for i in range(8): o(f'v_mul_f32 v{WC+i}, {NLOG2E:#x}, v{WC+i}')
for i in range(8):
    o(f'v_mov_b32 v{C+i}, 0'); o(f'v_mov_b32 v{C+16+i}, 0')
LOFF_=LOFF
sPAR,sNBT,sODD,sG1,sG2,sLN=97,47,96,46,13,14
NLN,LT,OA,AUN,XRN,UF,XF,VAUK,VKA,VOK=178,180,181,182,190,194,202,210,211,212
TM=214
o(f'v_add_u32 v{VAUK}, {AU}, v{LOFF}')
o(f'v_bfe_u32 v{TM}, v1, 1, 2'); o(f's_lshl_b32 s92, s{sS}, 3'); o(f'v_add_u32 v{TM}, s92, v{TM}'); o(f'v_lshlrev_b32 v{TM}, 4, v{TM}')
o(f'v_and_b32 v{TM+1}, 1, v1'); o(f'v_lshl_add_u32 v{VKA}, v{TM+1}, 3, v{TM}')
o(f's_lshl_b32 s92, s{sNB}, 9'); o(f's_lshl_b32 s93, s{sS}, 7'); o('s_add_u32 s92, s92, s93')
o(f'v_lshrrev_b32 v{TM}, 1, v{LOFF}'); o(f'v_add_u32 v{VOK}, s92, v{TM}')
o(f'v_lshrrev_b32 v{TM+2}, 3, v1'); o(f'v_lshlrev_b32 v{TM+2}, 3, v{TM+2}')
o(f's_sub_u32 s12, 19, s{sW}'); o(f's_cmp_lt_u32 s{sW}, 4'); o(f's_cselect_b32 s12, s{sW}, s12')
o(f's_add_u32 s{sG1}, s{sW}, 4'); o(f's_sub_u32 s92, 23, s{sW}'); o(f's_sub_u32 s{sG2}, 11, s{sW}')
o(f's_cmp_ge_u32 s{sW}, 4'); o(f's_cselect_b32 s{sG1}, s92, s{sG1}'); o(f's_cselect_b32 s{sG2}, -1, s{sG2}')
def node_prefetch(gs):
    o(f's_lshl_b32 s92, s{gs}, 6'); o(f'v_add_u32 v{TM}, s92, v{TM+2}'); o(f'ds_read_b64 {vr(NLN,2)}, v{TM} offset:{NODEOF}')
    o(f's_lshl_b32 s92, s{gs}, 2'); o(f'v_mov_b32 v{TM+1}, s92'); o(f'ds_read_b32 v{LT}, v{TM+1} offset:{LG}')
def raw_prefetch():
    o(f'v_lshl_add_u32 v{TM}, v{NLN}, 8, v{VAUK}')
    o(f'v_xor_b32 v{TM+1}, v{NLN+1}, v{VKA}'); o(f'v_xor_b32 v{TM+3}, 64, v{TM+1}')
    o(f'ds_read_b128 {vr(AUN,4)}, v{TM}'); o(f'ds_read_b128 {vr(AUN+4,4)}, v{TM} offset:128')
    o(f'ds_read_b64 {vr(XRN,2)}, v{TM+1} offset:{XT}'); o(f'ds_read_b64 {vr(XRN+2,2)}, v{TM+3} offset:{XT}')
o(f's_xor_b32 s15, s{sR}, 1'); o(f's_mul_i32 s15, s15, {RN*256}'); o(f's_mul_i32 s92, s{sW}, 5120'); o('s_add_u32 s15, s15, s92')
o(f'v_lshlrev_b32 v{TM+4}, 4, v1')
o('s_waitcnt lgkmcnt(0)' if 'nowait' in OPT else 's_waitcnt vmcnt(0) lgkmcnt(0)')
o('s_barrier')
stamp(11)
if 'xE' in OPT: o('s_branch L_done')
if 'pre2' in OPT:
    for i in range(5):
        o(f'buffer_load_dwordx4 v[232:235], v{TM+4}, {sr(rTR,4)}, s15 offen sc1')
        o('s_add_u32 s15, s15, 1024')
o(f'ds_read_b32 v{TM+5}, v{VZ} offset:{C_FB}')
o(f's_lshl_b32 s{sA}, s12, 2'); o(f'v_mov_b32 v{TM+6}, s{sA}'); o(f'ds_read_b32 v{RP}, v{TM+6} offset:{GBASE}')
node_prefetch(12)
l=U('ap'); o(f's_cmp_ge_u32 s{sW}, 4'); o(f's_cbranch_scc1 {l}'); o('s_setprio 1'); lab(l)
o('s_waitcnt lgkmcnt(0)')
o(f'v_readfirstlane_b32 s{sA}, v{TM+5}'); o(f's_cmp_lg_u32 s{sA}, 0'); o('s_cbranch_scc1 L_fallback')
o(f'v_add_u32 v{RP}, v{RP}, v{TM+2}')
o(f'v_readfirstlane_b32 s{sLN}, v{LT}')
def mfma(d,a,b,c): o(f'v_mfma_f32_32x32x16_bf16 {vr(d,16)}, {vr(a,4)}, {vr(b,4)}, {c}')
def unpack_list(D,R):
    f=lambda d,a,b,c: f'v_mfma_f32_32x32x16_bf16 {vr(d,16)}, {vr(a,4)}, {vr(b,4)}, {c}'
    return [f(D,S1A,R,vr(C,16)), f(D,S1B,R+4,vr(D,16)), f(D+16,S2A,R+8,vr(C+8,16)), f(D+16,S2B,R+12,vr(D+16,16))]
def gfma(D,Er):
    for sl in range(2):
        for j in range(4):
            g=D+8+8*sl+2*j
            sel='op_sel:[0,0,0] op_sel_hi:[0,1,1]' if sl==0 else 'op_sel:[1,0,0] op_sel_hi:[1,1,1]'
            o(f'v_pk_fma_f32 {vr(g,2)}, {vr(Er,2)}, {vr(WC+2*j,2)}, {vr(g,2)} {sel}')
def loads(R,OF):
    o(f'v_and_or_b32 v{AD}, v{OF}, s{sM}, v{LOFF}'); o(f'v_and_or_b32 v{AD+1}, v{OF+1}, s{sM}, v{LOFF}')
    o(f'buffer_load_dwordx4 {vr(R,4)}, v{AD}, {sr(rTR,4)}, 0 offen sc1')
    o(f'buffer_load_dwordx4 {vr(R+4,4)}, v{AD}, {sr(rTR,4)}, 0 offen offset:128 sc1')
    o(f'buffer_load_dwordx4 {vr(R+8,4)}, v{AD+1}, {sr(rTR,4)}, 0 offen sc1')
    o(f'buffer_load_dwordx4 {vr(R+12,4)}, v{AD+1}, {sr(rTR,4)}, 0 offen offset:128 sc1')
def rd_off(dst,b): o(f'ds_read2_b32 {vr(dst,2)}, v{RP} offset0:{b*32} offset1:{b*32+16}')
def rd_e(dst,b): o(f'ds_read2_b32 {vr(dst,2)}, v{RP} offset0:{b*32+1} offset1:{b*32+17}')
def dsreads(P):
    OFn=OFB if P==0 else OFA; En=EB_ if P==0 else EA_
    rd_off(OFn,P+3); rd_e(En,P+1)
    if P==1: o(f'v_add_u32 v{RP}, 256, v{RP}')
def accum(D):
    for sl in range(2):
        for j in range(4):
            g=D+8+8*sl+2*j
            o(f'v_pk_add_f32 {vr(DEN+2*j,2)}, {vr(DEN+2*j,2)}, {vr(g,2)}')
            v=(D+2*j) if sl==0 else (D+24+2*j)
            o(f'v_pk_fma_f32 {vr(NUM+2*j,2)}, {vr(g,2)}, {vr(v,2)}, {vr(NUM+2*j,2)}')
Ds=[DX,DY]; Rs=[R0,R1]; OFs=[OFA,OFB]; Es=[EA_,EB_]
rd_off(OFA,0); rd_off(OFB,1)
raw_prefetch()
o('s_waitcnt lgkmcnt(4)')
loads(R0,OFA); loads(R1,OFB)
rd_off(OFA,2); rd_e(EA_,0)
o(f's_mov_b32 s{sPAR}, 0')
if PROF: o('s_mov_b32 s3, 0')
lab('L_group')
o(f's_min_u32 s{sLN}, s{sLN}, {2*ELLB}')
o(f's_and_b32 s{sODD}, s{sLN}, 1'); o(f's_add_u32 s{sNBT}, s{sLN}, 1'); o(f's_lshr_b32 s{sNBT}, s{sNBT}, 1')
o(f'v_lshl_add_u32 v{OA}, v{NLN}, 9, v{VOK}')
mfma(NUM,C,C,'0')
o('s_waitcnt lgkmcnt(0)')
for i in range(8): o(f'v_lshlrev_b32 v{C+8+i}, 16, v{AUN+i}')
l=U('nonext')
o(f's_cmp_eq_u32 s{sG1}, -1'); o(f's_cbranch_scc1 {l}')
node_prefetch(sG1)
lab(l)
for i in range(8): o(f'v_and_b32 v{UF+i}, 0xffff0000, v{AUN+i}')
for i in range(4):
    o(f'v_lshlrev_b32 v{XF+2*i}, 16, v{XRN+i}'); o(f'v_and_b32 v{XF+2*i+1}, 0xffff0000, v{XRN+i}')
if PROF:
    o(f's_memtime s[100:101]'); o('s_waitcnt lgkmcnt(0)')
    o(f's_add_u32 m0, s3, 36'); o('s_nop 3'); o('v_writelane_b32 v255, s100, m0')
    o(f's_add_u32 m0, s3, 60'); o('s_nop 3'); o(f'v_writelane_b32 v255, s{sLN}, m0')
o(f's_cmp_eq_u32 s{sNBT}, 0'); o('s_cbranch_scc1 L_epi')
o(f's_cmp_eq_u32 s{sPAR}, 1'); o('s_cbranch_scc1 L_gs1')
def exps(D): return [f'v_exp_f32 v{D+8+i}, v{D+8+i}' for i in range(16)]
def rcps(D): return [f'v_rcp_f32 v{D+8+i}, v{D+8+i}' for i in range(16)]
for P in range(2):
    lab(f'L_gs{P}')
    o('s_waitcnt vmcnt(4)')
    for t in unpack_list(Ds[P],Rs[P]): o(t)
    o('s_waitcnt lgkmcnt(0)')
    loads(Rs[P],OFs[P])
    dsreads(P)
    o('s_nop 7')
    gfma(Ds[P],Es[P])
    o(f's_branch L_body{P}')
for P in range(2):
    Q=P^1
    lab(f'L_body{P}')
    o(f's_sub_u32 s{sNBT}, s{sNBT}, 1'); o(f's_cmp_eq_u32 s{sNBT}, 0'); o(f's_cbranch_scc1 L_last{P}')
    ex=exps(Ds[P]); un=unpack_list(Ds[Q],Rs[Q])
    o('s_waitcnt vmcnt(4)')
    for k in range(4):
        o(un[k])
        for t in ex[4*k:4*k+4]: o(t)
    o('s_nop 1')
    mfma(Ds[P]+8,ONE,ONE,vr(Ds[P]+8,16))
    o('s_waitcnt lgkmcnt(0)')
    loads(Rs[Q],OFs[Q])
    o('s_nop 2')
    dsreads(Q)
    for t in rcps(Ds[P]): o(t)
    gfma(Ds[Q],Es[Q])
    accum(Ds[P])
    if P==1: o('s_branch L_body0')
for P in range(2):
    lab(f'L_last{P}')
    D=Ds[P]
    o(f's_cmp_eq_u32 s{sODD}, 1'); o(f's_cbranch_scc1 L_half{P}')
    for t in exps(D): o(t)
    o('s_nop 1')
    mfma(D+8,ONE,ONE,vr(D+8,16))
    o('s_nop 7'); o('s_nop 3')
    for t in rcps(D): o(t)
    accum(D)
    o(f's_mov_b32 s{sPAR}, {P^1}')
    o('s_branch L_epi')
    lab(f'L_half{P}')
    for t in exps(D)[:8]: o(t)
    for j in range(4): o(f'v_pk_add_f32 {vr(D+8+2*j,2)}, {vr(D+8+2*j,2)}, 1.0 op_sel_hi:[1,0]')
    for t in rcps(D)[:8]: o(t)
    for j in range(4):
        g=D+8+2*j
        o(f'v_pk_add_f32 {vr(DEN+2*j,2)}, {vr(DEN+2*j,2)}, {vr(g,2)}')
        o(f'v_pk_fma_f32 {vr(NUM+2*j,2)}, {vr(g,2)}, {vr(D+2*j,2)}, {vr(NUM+2*j,2)}')
    o(f's_mov_b32 s{sPAR}, {P^1}')
    if P==0: o('s_branch L_epi')
lab('L_epi')
if PROF:
    o(f's_memtime s[100:101]'); o('s_waitcnt lgkmcnt(0)')
    o(f's_add_u32 m0, s3, 40'); o('s_nop 3'); o('v_writelane_b32 v255, s100, m0')
l=U('nonext2')
o(f's_cmp_eq_u32 s{sG1}, -1'); o(f's_cbranch_scc1 {l}')
o('s_waitcnt lgkmcnt(0)')
o(f'v_readfirstlane_b32 s{sLN}, v{LT}')
raw_prefetch()
lab(l)
o('s_mov_b32 s92, 0x358637bd'); o('s_mov_b32 s93, 0x358637bd')
for j in range(4): o(f'v_pk_add_f32 {vr(DEN+2*j,2)}, {vr(DEN+2*j,2)}, s[92:93]')
for i in range(8): o(f'v_rcp_f32 v{DEN+i}, v{DEN+i}')
o('s_nop 0')
for j in range(4): o(f'v_pk_fma_f32 {vr(UF+2*j,2)}, {vr(NUM+2*j,2)}, {vr(DEN+2*j,2)}, {vr(UF+2*j,2)}')
for i in range(8): o(f'v_max_f32 v{UF+i}, 0, v{UF+i}')
for j in range(4): o(f'v_pk_add_f32 {vr(UF+2*j,2)}, {vr(UF+2*j,2)}, {vr(XF+2*j,2)}')
for i in range(4): o(f'v_cvt_pk_bf16_f32 v{UF+i}, v{UF+2*i}, v{UF+2*i+1}')
o(f'buffer_store_dwordx2 {vr(UF,2)}, v{OA}, {sr(rOUT,4)}, 0 offen')
o(f'buffer_store_dwordx2 {vr(UF+2,2)}, v{OA}, {sr(rOUT,4)}, 0 offen offset:64')
if PROF:
    o(f's_memtime s[100:101]'); o('s_waitcnt lgkmcnt(0)')
    o(f's_add_u32 m0, s3, 56'); o('s_nop 3'); o('v_writelane_b32 v255, s100, m0')
    o('s_add_u32 s3, s3, 1')
o(f's_cmp_eq_u32 s{sG1}, -1'); o('s_cbranch_scc1 L_done')
o(f's_mov_b32 s{sG1}, s{sG2}'); o(f's_mov_b32 s{sG2}, -1')
o('s_branch L_group')
lab('L_done')
stamp(12)
if PROF:
    o('s_waitcnt vmcnt(0)')
    srd_off(92,sWS,WS_PROF,0x100000)
    o(f's_lshl_b32 s96, s2, 3'); o(f's_add_u32 s96, s96, s{sW}'); o('s_lshl_b32 s96, s96, 8')
    o('v_lshlrev_b32 v2, 2, v1')
    o('buffer_store_dword v255, v2, s[92:95], s96 offen')
o('s_endpgm')
lab('L_codeend')
lab('L_fallback')
FN,FD,FA,FU,FW=10,11,12,13,14
o('v_lshlrev_b32 v5, 2, v1')
o(f's_lshl_b32 s92, s{sS}, 7')
o('v_lshlrev_b32 v6, 1, v1'); o(f'v_add_u32 v6, s92, v6')
srd(64,sWC,512)
o(f'buffer_load_ushort v{FW}, v6, s[64:67], 0 offen')
o('s_waitcnt vmcnt(0)')
o(f'v_lshlrev_b32 v{FW}, 16, v{FW}'); o(f'v_mul_f32 v{FW}, {NLOG2E:#x}, v{FW}')
o(f's_mov_b32 s46, s{sW}')
lab('L_fb_node')
o(f's_cmp_ge_u32 s46, s{sNV}'); o('s_cbranch_scc1 L_fb_end')
o(f's_lshl_b32 s92, s46, 8'); o(f's_add_u32 s92, s92, {AU}'); o(f'v_add_u32 v7, s92, v5'); o('ds_read_b32 v8, v7')
o('s_waitcnt lgkmcnt(0)')
o(f'v_lshlrev_b32 v{FA}, 16, v8'); o(f'v_and_b32 v{FU}, 0xffff0000, v8')
o(f'v_mov_b32 v{FN}, 0'); o(f'v_mov_b32 v{FD}, 0')
o(f's_add_u32 s47, s46, s{sNB}')
o('s_mov_b32 s93, 0')
lab('L_fb_e')
o('v_add_u32 v7, s93, v1'); o('v_lshlrev_b32 v8, 2, v7'); o('v_lshlrev_b32 v7, 1, v7')
o(f'buffer_load_dword v15, v8, {sr(rDST,4)}, 0 offen')
o(f'buffer_load_dword v16, v8, {sr(rSRC,4)}, 0 offen')
o(f'buffer_load_ushort v17, v7, {sr(rEA,4)}, 0 offen')
o('s_waitcnt vmcnt(0)')
o('v_cmp_eq_u32 vcc, s47, v15')
o('s_mov_b64 s[94:95], vcc')
lab('L_fb_m')
o('s_cmp_eq_u64 s[94:95], 0'); o('s_cbranch_scc1 L_fb_next')
o('s_ff1_i32_b64 s96, s[94:95]')
o('s_bitset0_b64 s[94:95], s96')
o('v_readlane_b32 s97, v16, s96'); o('v_readlane_b32 s92, v17, s96')
o('s_nop 1')
o('s_lshl_b32 s97, s97, 8'); o('s_lshl_b32 s92, s92, 16')
o('s_nop 4')
o(f'buffer_load_dword v18, v5, {sr(rTR,4)}, s97 offen sc1')
o('s_waitcnt vmcnt(0)')
o('v_lshlrev_b32 v19, 16, v18'); o('v_and_b32 v18, 0xffff0000, v18')
o(f'v_add_f32 v19, v19, v{FA}'); o(f'v_fmac_f32 v19, s92, v{FW}')
o('v_exp_f32 v19, v19'); o('s_nop 0'); o('v_add_f32 v19, 1.0, v19'); o('v_rcp_f32 v19, v19'); o('s_nop 0')
o(f'v_add_f32 v{FD}, v{FD}, v19'); o(f'v_fmac_f32 v{FN}, v19, v18')
o('s_branch L_fb_m')
lab('L_fb_next')
o('s_add_u32 s93, s93, 64'); o(f's_cmp_lt_u32 s93, {E}'); o('s_cbranch_scc1 L_fb_e')
o('s_mov_b32 s92, 0x358637bd')
o(f'v_add_f32 v{FD}, s92, v{FD}'); o(f'v_rcp_f32 v{FD}, v{FD}'); o('s_nop 0')
o(f'v_fmac_f32 v{FU}, v{FN}, v{FD}'); o(f'v_max_f32 v{FU}, 0, v{FU}')
o('s_lshl_b32 s92, s47, 9')
o(f'buffer_load_ushort v18, v6, {sr(rX,4)}, s92 offen')
o('s_waitcnt vmcnt(0)')
o(f'v_lshlrev_b32 v18, 16, v18'); o(f'v_add_f32 v{FU}, v{FU}, v18')
o(f'v_cvt_pk_bf16_f32 v18, v{FU}, v{FU}')
o(f'buffer_store_short v18, v6, {sr(rOUT,4)}, s92 offen')
o('s_add_u32 s46, s46, 8'); o('s_branch L_fb_node')
lab('L_fb_end')
lab('L_end')
o('s_endpgm')
L=[x for x in L if x is not None]
hdr=open('gather_scatter__edge_featured_mpnn_gatedgcn__graph.s.ref').read().split('; Override')[0]
out=hdr+f'''; Hand-written kernel, emitted by my own generator script (register allocation and scheduling are explicit there).
; One launch, 256 workgroups x 8 waves, one workgroup per CU (LDS 160 KiB); workgroup = (157-node range r, 64-feature slice s).
;  front:  waves 4-7 bin 625 edges per workgroup by destination range (records + segment table in d_ws, nonce-tagged),
;          waves 0-3 run the four x@W products for (r,s) on MFMA (B'' = -log2e*x@w_b and V = x@w_v go to a table in d_ws,
;          A'' = -log2e*x@w_a and U = x@w_u stay in LDS); waves 4-7 then sort the range's nodes by degree and build an ELL list.
;  main:   per group of 8 nodes: gather table rows of the sources, eta = 1/(1+2^(A''+B''+e*wc'')), num += eta*V, den += eta,
;          out = x + relu(U + num/(den+1e-6)); bf16->f32 unpacking and the +1 run on the matrix pipe.
;  Hand-offs between workgroups: sc1 stores + sc1 loads, words tagged with a nonce derived from the epoch word in d_ws.
;  Degree distributions the ELL buffers cannot hold take an exact, slower per-node path (L_fallback).
; @launch grid=(256,1,1) block=(512,1,1) lds={LDS_TOTAL}
.amdgcn_target "amdgcn-amd-amdhsa--gfx950"
.text
.globl {NAME}
.p2align 8
.type {NAME},@function
'''+'\n'.join(L)+f'''
.section .rodata,"a"
.p2align 6
.amdhsa_kernel {NAME}
  .amdhsa_next_free_vgpr 256
  .amdhsa_next_free_sgpr 102
  .amdhsa_accum_offset 256
  .amdhsa_group_segment_fixed_size 0
  .amdhsa_kernarg_size 96
  .amdhsa_user_sgpr_count 2
  .amdhsa_user_sgpr_kernarg_segment_ptr 1
  .amdhsa_system_sgpr_workgroup_id_x 1
.end_amdhsa_kernel
'''
fn=[a for a in sys.argv[1:] if not a.startswith('--')]
open(fn[0] if fn else 'k.s','w').write(out)
```

```python
import sys
NAME='gather_scatter__edge_featured_mpnn_gatedgcn__graph_kernel'
PROF = '--prof' in sys.argv
OPT = {a.split('=')[0][2:]:(a.split('=')[1] if '=' in a else '1') for a in sys.argv[1:] if a.startswith('--')}
N=10000; E=160000; RN=157; CH=625; CHCAP=704
SLICE=10240*256
WS_RECS=0xA00000; WS_SEGT=0xB80000; SEGT_FLAG2=0x20000; WS_EPOCH=0xBB0000; WS_PROF=0xC00000
HIST1=0; DEG=256; HIST2=1024; LG=1280; GBASE=1408; CUR=1536; NODEOF=2304; CNT=3840
C_W=CNT; C_G=CNT+4; C_T=CNT+8; C_E1=CNT+12; C_SORT=CNT+16; C_P=CNT+20; C_FB=CNT+24; C_X=CNT+28; C_G1=CNT+32; C_H=CNT+36; C_R=CNT+40; C_X2=CNT+44; C_S=CNT+48; C_RL=CNT+52; C_X1=CNT+56; C_PG=CNT+60; C_X0=CNT+64; C_XE=CNT+68; C_WA=CNT+80
XT=4096; WR=XT+81920; AU=WR; ELL=WR+40960; ELLB=288
LDS_TOTAL=163840
RST=WR+65536
assert ELL+ELLB*128==LDS_TOTAL
NLOG2E=0xbfb8aa3b
sEP=4
sI,sROT,sTL,sWROT=6,7,8,9
sM=10
sX,sEA,sSRC,sDST,sWA,sWB,sWC,sWU=16,18,20,22,24,26,28,30
sWV,sOUT,sDBG,sWS=32,34,36,38
sW,sS,sR,sNONCE,sNB,sNV=40,41,42,43,44,45
rX,rDST,rSRC,rEA,rW1,rW2,rTW,rTR,rREC,rSEG,rOUT=48,52,56,60,64,68,72,76,80,84,88
sA,sB,sC_,sD,sSP=92,93,94,95,96
L=[]
def o(t): L.append('  '+t)
def lab(t): L.append(t+':')
def vr(a,n): return f'v[{a}:{a+n-1}]' if n>1 else f'v{a}'
def sr(a,n): return f's[{a}:{a+n-1}]'
uid=[0]
def U(p):
    uid[0]+=1; return f'L_{p}_{uid[0]}'
def srd(r,base,size):
    o(f's_mov_b32 s{r}, s{base}'); o(f's_mov_b32 s{r+1}, s{base+1}')
    o(f's_mov_b32 s{r+2}, {size}'); o(f's_mov_b32 s{r+3}, 0x20000')
def srd_off(r,base,off,size):
    o(f's_add_u32 s{r}, s{base}, {off}'); o(f's_addc_u32 s{r+1}, s{base+1}, 0')
    o(f's_mov_b32 s{r+2}, {size}'); o(f's_mov_b32 s{r+3}, 0x20000')
def stamp(idx):
    if not PROF: return
    o(f's_memrealtime s[100:101]'); o('s_waitcnt lgkmcnt(0)'); o(f'v_writelane_b32 v255, s100, {idx}')
    o(f's_memtime s[100:101]'); o('s_waitcnt lgkmcnt(0)'); o(f'v_writelane_b32 v255, s100, {idx+32}')
VZ=248
def lds_spin(addr, need, vtmp):
    l=U('spin'); d=U('spind')
    o(f's_mov_b32 s{sSP}, 0')
    lab(l)
    o(f'ds_read_b32 v{vtmp}, v{VZ} offset:{addr}')
    o('s_waitcnt lgkmcnt(0)')
    o(f'v_readfirstlane_b32 s{sA}, v{vtmp}')
    o(f's_add_u32 s{sSP}, s{sSP}, 1')
    o(f's_cmp_ge_u32 s{sA}, {need}')
    o(f's_cbranch_scc1 {d}')
    o('s_sleep 1')
    o(f's_cmp_lt_u32 s{sSP}, 0x40000')
    o(f's_cbranch_scc1 {l}')
    lab(d)
def lds_inc(addr, vtmp, ret=False):
    o(f'v_mov_b32 v{vtmp}, 1')
    o('s_mov_b64 exec, 1')
    if ret:
        o(f'ds_add_rtn_u32 v{vtmp}, v{VZ}, v{vtmp} offset:{addr}')
        o('s_waitcnt lgkmcnt(0)')
        o(f'v_readfirstlane_b32 s{sA}, v{vtmp}')
    else:
        o(f'ds_add_u32 v{VZ}, v{vtmp} offset:{addr}')
    o('s_mov_b64 exec, -1')
def scan64(v):
    for sh in (1,2,4,8):
        o('s_nop 1'); o(f'v_add_u32_dpp v{v}, v{v}, v{v} row_shr:{sh} row_mask:0xf bank_mask:0xf')
    o('s_nop 1'); o(f'v_add_u32_dpp v{v}, v{v}, v{v} row_bcast:15 row_mask:0xa bank_mask:0xf')
    o('s_nop 1'); o(f'v_add_u32_dpp v{v}, v{v}, v{v} row_bcast:31 row_mask:0xc bank_mask:0xf')
    o('s_nop 1')
lab(NAME)
o('s_cmp_ge_u32 s2, 256')
o('s_cbranch_scc1 L_end')
o('s_load_dwordx16 s[16:31], s[0:1], 0')
o('s_load_dwordx8 s[32:39], s[0:1], 64')
o('v_and_b32 v1, 63, v0')
o('v_lshrrev_b32 v2, 6, v0')
o(f'v_mov_b32 v{VZ}, 0')
o(f'v_readfirstlane_b32 s{sW}, v2')
o('s_getpc_b64 s[12:13]')
lab('L_pc')
if 'nopf' not in OPT:
    o(f's_cmp_lg_u32 s{sW}, 7'); o('s_cbranch_scc1 L_nopf')
    o('s_lshr_b32 s3, s2, 3'); o('s_lshl_b32 s3, s3, 10')
    o('v_lshl_add_u32 v2, v1, 4, s3')
    o('v_cmp_gt_u32 vcc, L_codeend-L_pc-16, v2')
    o('s_and_saveexec_b64 s[98:99], vcc')
    o('s_cbranch_execz L_nopf2')
    o('global_load_dwordx4 v[240:243], v2, s[12:13]')
    lab('L_nopf2')
    o('s_mov_b64 exec, -1')
    lab('L_nopf')
o('v_lshlrev_b32 v17, 3, v0'); o('v_mov_b32 v20, 0'); o('v_mov_b32 v21, 0')
o('ds_write_b64 v17, v[20:21]')
o(f's_and_b32 s{sS}, s2, 7'); o(f's_lshr_b32 s{sS}, s{sS}, 1')
o(f's_lshr_b32 s{sR}, s2, 3'); o(f's_lshl_b32 s{sR}, s{sR}, 1'); o(f's_and_b32 s{sA}, s2, 1'); o(f's_or_b32 s{sR}, s{sR}, s{sA}')
o(f's_mul_i32 s{sNB}, s{sR}, {RN}')
o(f's_sub_u32 s{sNV}, {N}, s{sNB}'); o(f's_min_u32 s{sNV}, s{sNV}, {RN}')
if PROF: o('v_mov_b32 v255, 0')
for _v in (56,57,58,59,60,61,62,63,240,241,242,243): o(f'v_mov_b32 v{_v}, 0')
o(f's_mul_i32 s{sROT}, s{sS}, 5'); o(f's_add_u32 s{sROT}, s{sROT}, 1'); o(f's_lshr_b32 s{sROT}, s{sROT}, 1')
o(f's_lshr_b32 s{sWROT}, s2, 3')
o(f's_mov_b32 s{sM}, 0xffffff00')
def build_common():
    srd(rOUT,sOUT,N*512)
    o(f's_mul_i32 s{sA}, s{sS}, {SLICE}')
    o(f's_add_u32 s{rTW}, s{sWS}, s{sA}'); o(f's_addc_u32 s{rTW+1}, s{sWS+1}, 0')
    o(f's_add_u32 s{sA}, s{sNB}, s{sNV}'); o(f's_lshl_b32 s{rTW+2}, s{sA}, 8'); o(f's_mov_b32 s{rTW+3}, 0x20000')
    o(f's_mov_b32 s{rTR}, s{rTW}'); o(f's_mov_b32 s{rTR+1}, s{rTW+1}'); o(f's_mov_b32 s{rTR+2}, {(N+1)*256}'); o(f's_mov_b32 s{rTR+3}, 0x20000')
    srd_off(rSEG,sWS,WS_SEGT,0x21000)
    o(f's_add_u32 s{sEP}, s{sWS}, {WS_EPOCH}'); o(f's_addc_u32 s{sEP+1}, s{sWS+1}, 0')
    o(f's_load_dword s{sNONCE}, {sr(sEP,2)}, 0')
def wc_load():
    o('v_and_b32 v17, 7, v1'); o('v_lshlrev_b32 v17, 3, v17')
    o(f's_lshl_b32 s{sA}, s{sS}, 7'); o(f'v_add_u32 v17, s{sA}, v17')
    srd(rREC,sWC,512)
    o(f'buffer_load_dwordx2 v[250:251], v17, {sr(rREC,4)}, 0 offen')
    o(f'buffer_load_dwordx2 v[252:253], v17, {sr(rREC,4)}, 0 offen offset:64')
def wvoff(dst, wexpr_s):
    o('v_lshrrev_b32 v17, 3, v1')
    o(f's_lshl_b32 s{sA}, s{wexpr_s}, 3'); o(f'v_add_u32 v17, s{sA}, v17')
    o('v_bfe_u32 v20, v1, 4, 1')
    o(f's_and_b32 s{sA}, s{wexpr_s}, 1'); o(f's_lshl_b32 s{sA}, s{sA}, 1'); o(f'v_or_b32 v20, s{sA}, v20')
    o('v_bfe_u32 v19, v1, 1, 2'); o('v_xor_b32 v19, v19, v20'); o('v_lshlrev_b32 v19, 1, v19')
    o('v_and_b32 v20, 1, v1'); o('v_or_b32 v19, v19, v20')
    o('v_lshlrev_b32 v19, 4, v19'); o('v_lshl_add_u32 v19, v17, 9, v19')
    o(f's_lshl_b32 s{sA}, s{sS}, 7'); o(f'v_add_u32 v{dst}, s{sA}, v19')
o(f's_cmp_ge_u32 s{sW}, 4')
o('s_cbranch_scc1 L_e0')
o('v_lshrrev_b32 v17, 5, v1')
o(f's_lshl_b32 s{sA}, s{sW}, 1'); o(f'v_add_u32 v17, s{sA}, v17')
o('v_and_b32 v18, 31, v1'); o('v_and_b32 v19, 15, v17'); o('v_xor_b32 v22, v18, v19')
o('v_lshlrev_b32 v22, 4, v22'); o('v_lshl_add_u32 v22, v17, 9, v22')
o('v_add_u32 v17, 8, v17'); o('v_and_b32 v19, 15, v17'); o('v_xor_b32 v23, v18, v19')
o('v_lshlrev_b32 v23, 4, v23'); o('v_lshl_add_u32 v23, v17, 9, v23')
wvoff(249,sW)
o('s_waitcnt lgkmcnt(0)')
o('s_barrier')
stamp(0)
if 'stlb' in OPT:
    def touch(base, off_s=None, off_i=0):
        if off_s is None and off_i==0:
            o(f's_load_dword s13, {sr(base,2)}, 0'); return
        if off_s is not None:
            o(f's_add_u32 s14, s{base}, s{off_s}'); o(f's_addc_u32 s15, s{base+1}, 0')
            if off_i: o(f's_add_u32 s14, s14, {off_i}'); o('s_addc_u32 s15, s15, 0')
        else:
            o(f's_add_u32 s14, s{base}, {off_i}'); o(f's_addc_u32 s15, s{base+1}, 0')
        o('s_load_dword s13, s[14:15], 0')
    o(f's_lshl_b32 s3, s{sNB}, 9')
    touch(sX,3); touch(sWB); touch(sWV); touch(sWA); touch(sWU); touch(sOUT,3)
    touch(sWS,None,WS_RECS)
    o(f's_mul_i32 s3, s{sS}, {SLICE}')
    touch(sWS,3); touch(sWS,3,0x100000); touch(sWS,3,0x200000); touch(sWS,3,SLICE-256)
wc_load()
srd(rX,sX,N*512); srd(rW1,sWB,131072); srd(rW2,sWV,131072)
o(f's_lshl_b32 s{sC_}, s{sW}, 10')
o(f's_mov_b32 s{sTL}, s{sROT}')
o(f's_mov_b32 s{sI}, 0')
lab('L_dmaw')
o(f's_add_u32 s{sA}, s{sI}, s{sWROT}'); o(f's_and_b32 s{sA}, s{sA}, 7')
o(f's_lshl_b32 s{sB}, s{sA}, 14'); o(f's_lshl_b32 s{sA}, s{sA}, 12'); o(f's_add_u32 s{sA}, s{sA}, s{sC_}')
o(f's_add_u32 m0, s{sA}, {WR}'); o('s_nop 0')
o(f'buffer_load_dwordx4 v249, {sr(rW1,4)}, s{sB} offen lds')
o(f's_add_u32 m0, s{sA}, {WR+32768}'); o('s_nop 0')
o(f'buffer_load_dwordx4 v249, {sr(rW2,4)}, s{sB} offen lds')
o('s_waitcnt vmcnt(%s)' % OPT.get('pacew',OPT.get('pace','8')))
o(f's_add_u32 s{sI}, s{sI}, 1'); o(f's_cmp_lt_u32 s{sI}, 8'); o('s_cbranch_scc1 L_dmaw')
def xloop(lo,hi,name):
    o(f's_mov_b32 s{sI}, {lo}')
    lab(name)
    o(f's_lshr_b32 s{sTL}, s{sI}, 1'); o(f's_and_b32 s{sA}, s{sI}, 1'); o(f's_mul_i32 s{sA}, s{sA}, 5'); o(f's_add_u32 s{sTL}, s{sTL}, s{sA}')
    o(f's_lshl_b32 s{sA}, s{sTL}, 13'); o(f's_add_u32 s{sD}, s{sA}, s{sC_}'); o(f's_add_u32 m0, s{sD}, {XT}')
    o(f's_lshl_b32 s{sB}, s{sNB}, 9'); o(f's_add_u32 s{sB}, s{sB}, s{sA}')
    o(f'buffer_load_dwordx4 v22, {sr(rX,4)}, s{sB} offen lds')
    o(f's_add_u32 m0, s{sD}, {XT+4096}'); o('s_nop 0')
    o(f'buffer_load_dwordx4 v23, {sr(rX,4)}, s{sB} offen lds')
    o('s_waitcnt vmcnt(%s)' % OPT.get('pace','8'))
    o(f's_add_u32 s{sI}, s{sI}, 1'); o(f's_cmp_lt_u32 s{sI}, {hi}'); o(f's_cbranch_scc1 {name}')
xloop(0,4,'L_dmax1')
stamp(19)
build_common()
srd(rDST,sDST,E*4); srd(rSRC,sSRC,E*4); srd(rEA,sEA,E*2); srd_off(rREC,sWS,WS_RECS,256*CHCAP*8)
WF,AF,ACC,XA,XC,TRA,TOF,AUA=64,192,224,56,60,240,241,242
o(f's_and_b32 s{sD}, s{sW}, 1'); o(f's_lshl_b32 s{sD}, s{sD}, 1')
o('v_lshrrev_b32 v17, 4, v1')
o('v_bfe_u32 v18, v1, 2, 2')
o('v_lshl_add_u32 v19, v17, 3, v18')
o('v_lshlrev_b32 v19, 7, v19')
o('v_bfe_u32 v20, v1, 3, 1')
o('v_and_b32 v21, 1, v17'); o('v_lshl_or_b32 v20, v21, 1, v20')
o(f'v_xor_b32 v20, s{sD}, v20')
o('v_and_b32 v21, 3, v1'); o('v_lshl_add_u32 v19, v21, 3, v19'); o(f'v_add_u32 v19, {WR}, v19')
o(f'v_lshl_add_u32 v{TRA}, v20, 5, v19')
o('v_xor_b32 v20, 1, v20'); o(f'v_lshl_add_u32 v{TRA+3}, v20, 5, v19')
def wfrags():
    for m in range(2):
        for t in range(2):
            for ks in range(8):
                r=WF+64*m+32*t+4*ks; a=TRA if t==0 else TRA+3
                o(f'ds_read_b64_tr_b16 {vr(r,2)}, v{a} offset:{m*32768+ks*4096}')
                o(f'ds_read_b64_tr_b16 {vr(r+2,2)}, v{a} offset:{m*32768+ks*4096+512}')
o('v_and_b32 v18, 15, v1')
for k in range(4):
    o(f'v_and_b32 v19, 12, v18'); o(f'v_xor_b32 v19, {4*k}, v19')
    o('v_and_b32 v20, 3, v18'); o('v_xor_b32 v20, v20, v17')
    o('v_add_u32 v19, v19, v20'); o('v_lshlrev_b32 v19, 4, v19')
    o(f'v_lshl_add_u32 v{XA+k}, v18, 9, v19')
    o(f'v_add_u32 v{XA+k}, {XT}, v{XA+k}')
o('v_lshlrev_b32 v19, 10, v17')
o(f's_lshl_b32 s{sA}, s{sD}, 6')
o('v_lshl_add_u32 v19, v18, 2, v19'); o(f'v_add_u32 v{TOF}, s{sA}, v19')
o(f's_lshr_b32 s{sROT}, s{sW}, 1'); o(f's_mul_i32 s{sROT}, s{sROT}, 5')

o('s_waitcnt vmcnt(8) lgkmcnt(0)')
o(f's_mul_i32 s{sNONCE}, s{sNONCE}, 0x9E3779B1'); o(f's_add_u32 s{sNONCE}, s{sNONCE}, 0x7F4A7C15')
lds_inc(C_X,244)
lds_spin(C_X,4,244)
stamp(2)
wfrags()
o('s_waitcnt lgkmcnt(0)')
o(f's_lshl_b32 s{sC_}, s{sW}, 10')
lds_inc(C_W,244)
o('s_waitcnt vmcnt(0)')
lds_inc(C_X0,244)
lds_spin(C_X0,4,244)
stamp(3)
stamp(4)
o('s_branch L_g_gemm')
lab('L_e0')
if 'noprio' not in OPT: o('s_setprio %s' % OPT.get('eprio','2'))
o('v_subrev_u32 v14, 256, v0')
o(f's_mul_i32 s{sA}, s2, {CH}')
o(f'v_add_u32 v15, s{sA}, v14')
o('v_lshlrev_b32 v16, 1, v15'); o('v_lshlrev_b32 v15, 2, v15')
o(f'v_cmp_gt_u32 vcc, {CH-512}, v14')
o('v_add_u32 v18, 2048, v15'); o('v_add_u32 v19, 1024, v16')
o('v_mov_b32 v17, 0x40000000')
o('v_cndmask_b32 v18, v17, v18, vcc'); o('v_cndmask_b32 v19, v17, v19, vcc')
o('s_waitcnt lgkmcnt(0)')
ED,ES,EE=2,5,8
srd(rDST,sDST,E*4)
o(f'buffer_load_dword v{ED}, v15, {sr(rDST,4)}, 0 offen')
o(f'buffer_load_dword v{ED+1}, v15, {sr(rDST,4)}, 0 offen offset:1024')
o(f'buffer_load_dword v{ED+2}, v18, {sr(rDST,4)}, 0 offen')
srd(rSRC,sSRC,E*4)
o(f'buffer_load_dword v{ES}, v15, {sr(rSRC,4)}, 0 offen')
o(f'buffer_load_dword v{ES+1}, v15, {sr(rSRC,4)}, 0 offen offset:1024')
o(f'buffer_load_dword v{ES+2}, v18, {sr(rSRC,4)}, 0 offen')
srd(rEA,sEA,E*2)
o(f'buffer_load_ushort v{EE}, v16, {sr(rEA,4)}, 0 offen')
o(f'buffer_load_ushort v{EE+1}, v16, {sr(rEA,4)}, 0 offen offset:512')
o(f'buffer_load_ushort v{EE+2}, v19, {sr(rEA,4)}, 0 offen')
o('s_barrier')
stamp(0)
wc_load()
srd(rW1,sWA,131072); srd(rW2,sWU,131072)
o('s_lshr_b32 s3, s2, 3'); o('s_lshl_b32 s3, s3, 12')
o('v_lshrrev_b32 v17, 3, v1'); o('v_lshlrev_b32 v17, 9, v17'); o('v_and_b32 v19, 7, v1'); o('v_lshl_add_u32 v17, v19, 4, v17')
o(f's_lshl_b32 s{sA}, s{sS}, 7'); o(f'v_add_u32 v17, s{sA}, v17')
l=U('wu')
if 'nowu' not in OPT:
    o(f's_cmp_lg_u32 s{sW}, 4'); o(f's_cbranch_scc1 {l}_a')
    o(f'buffer_load_dwordx4 v[240:243], v17, {sr(rW1,4)}, s3 offen')
    lab(l+'_a')
    o(f's_cmp_lg_u32 s{sW}, 5'); o(f's_cbranch_scc1 {l}_b')
    o(f'buffer_load_dwordx4 v[240:243], v17, {sr(rW2,4)}, s3 offen')
    lab(l+'_b')
build_common()
srd(rX,sX,N*512); srd_off(rREC,sWS,WS_RECS,256*CHCAP*8)
if 'notlb' not in OPT:
    o(f's_cmp_lg_u32 s{sW}, 6'); o(f's_cbranch_scc1 {l}_c')
    o('v_lshlrev_b32 v17, 20, v1'); o('v_cmpx_gt_u32 vcc, 3, v1')
    o(f'buffer_load_dword v244, v17, {sr(rTR,4)}, 0 offen')
    o('s_mov_b64 exec, -1')
    lab(l+'_c')
    o(f's_cmp_lg_u32 s{sW}, 7'); o(f's_cbranch_scc1 {l}_d')
    o(f's_lshl_b32 s{sA}, s{sNB}, 9')
    o(f'buffer_load_dword v244, v{VZ}, {sr(rOUT,4)}, s{sA} offen')
    o(f'buffer_load_dword v245, v{VZ}, {sr(rREC,4)}, 0 offen')
    lab(l+'_d')
o(f's_sub_u32 s{sD}, s{sW}, 4')
wvoff(249,sD)
o('v_lshrrev_b32 v17, 5, v1')
o(f's_lshl_b32 s{sA}, s{sD}, 1'); o(f'v_add_u32 v17, s{sA}, v17')
o('v_and_b32 v18, 31, v1'); o('v_and_b32 v19, 15, v17'); o('v_xor_b32 v246, v18, v19')
o('v_lshlrev_b32 v246, 4, v246'); o('v_lshl_add_u32 v246, v17, 9, v246')
o('v_add_u32 v17, 8, v17'); o('v_and_b32 v19, 15, v17'); o('v_xor_b32 v247, v18, v19')
o('v_lshlrev_b32 v247, 4, v247'); o('v_lshl_add_u32 v247, v17, 9, v247')
o('s_waitcnt vmcnt(%d)' % (2 if ('nowu' in OPT or 'notlb' in OPT) else 3))
stamp(22)
o(f's_mov_b32 s{sA}, 106862')
RR,RK_,RW=36,24,28
for k in range(3):
    o(f'v_mul_lo_u32 v{RR+k}, v{ED+k}, s{sA}')
for k in range(3):
    o(f'v_lshrrev_b32 v{RR+k}, 24, v{RR+k}')
    o(f'v_mul_u32_u24 v17, {RN}, v{RR+k}'); o(f'v_sub_u32 v17, v{ED+k}, v17')
    o(f'v_lshl_or_b32 v{RW+2*k}, v{ES+k}, 8, v17'); o(f'v_lshlrev_b32 v{RW+2*k+1}, 16, v{EE+k}')
    o(f'v_lshlrev_b32 v{RR+k}, 2, v{RR+k}')
o('v_mov_b32 v16, 1')
o(f'ds_add_rtn_u32 v{RK_}, v{RR}, v16 offset:{HIST1}')
o(f'ds_add_rtn_u32 v{RK_+1}, v{RR+1}, v16 offset:{HIST1}')
o(f'v_cmpx_gt_u32 vcc, {CH-512}, v14')
o(f'ds_add_rtn_u32 v{RK_+2}, v{RR+2}, v16 offset:{HIST1}')
o('s_mov_b64 exec, -1')
o('s_waitcnt lgkmcnt(0)')
o(f's_mul_i32 s{sNONCE}, s{sNONCE}, 0x9E3779B1'); o(f's_add_u32 s{sNONCE}, s{sNONCE}, 0x7F4A7C15')
lds_inc(C_H,17)
lds_spin(C_H,4,17)
o('v_lshlrev_b32 v17, 2, v1')
o(f'ds_read_b32 v20, v17 offset:{HIST1}')
o('s_waitcnt lgkmcnt(0)')
o('v_add_u32 v21, 1, v20'); o('v_and_b32 v21, -2, v21'); o('v_mov_b32 v22, v21')
scan64(21)
o('v_sub_u32 v22, v21, v22')
for k in range(3): o(f'ds_bpermute_b32 v{RR+k}, v{RR+k}, v22')
o('s_waitcnt lgkmcnt(0)')
for k in range(3): o(f'v_add_lshl_u32 v{RR+k}, v{RR+k}, v{RK_+k}, 3')
for k in range(3): o(f'v_add_u32 v{RR+k}, {RST}, v{RR+k}')
o(f'ds_write_b64 v{RR}, {vr(RW,2)}')
o(f'ds_write_b64 v{RR+1}, {vr(RW+2,2)}')
o(f'v_cmpx_gt_u32 vcc, {CH-512}, v14')
o(f'ds_write_b64 v{RR+2}, {vr(RW+4,2)}')
o('s_mov_b64 exec, -1')
o('s_waitcnt lgkmcnt(0)')
lds_inc(C_S,17)
lds_spin(C_S,4,17)
o('v_lshlrev_b32 v17, 4, v14'); o(f'v_add_u32 v18, {RST}, v17')
if 'delay' in OPT: lds_spin(C_X2,4,36)
o('ds_read_b128 v[28:31], v18'); o('ds_read_b128 v[32:35], v18 offset:4096')
o(f's_mul_i32 s{sA}, s2, {CHCAP*8}'); o(f's_add_u32 s{sB}, s{sA}, 4096')
o(f's_and_b32 s{sC_}, s{sNONCE}, 0xffff'); o(f's_lshr_b32 s{sD}, s{sNONCE}, 16')
o('v_mov_b32 v19, 0xffff0000')
o('s_waitcnt lgkmcnt(0)')
o(f'v_and_or_b32 v29, v29, v19, s{sC_}'); o(f'v_and_or_b32 v31, v31, v19, s{sD}')
o(f'v_and_or_b32 v33, v33, v19, s{sC_}'); o(f'v_and_or_b32 v35, v35, v19, s{sD}')
if 'noEst' not in OPT:
    o(f'buffer_store_dwordx4 v[28:31], v17, {sr(rREC,4)}, s{sA} offen sc1')
    o(f'v_cmpx_gt_u32 vcc, {(CHCAP*8-4096)//16}, v14')
    o(f'buffer_store_dwordx4 v[32:35], v17, {sr(rREC,4)}, s{sB} offen sc1')
    o('s_mov_b64 exec, -1')
stamp(2)
l=U('nopub')
if 'noEst' in OPT: o(f's_branch {l}')
o(f's_cmp_lg_u32 s{sW}, 4'); o(f's_cbranch_scc1 {l}')
o('v_lshl_or_b32 v24, v20, 16, v22'); o(f'v_mov_b32 v25, s{sNONCE}')
o('v_lshlrev_b32 v17, 11, v1')
o(f's_lshl_b32 s{sA}, s2, 3')
o(f'buffer_store_dwordx2 v[24:25], v17, {sr(rSEG,4)}, s{sA} offen sc1')
lab(l)
stamp(3)
stamp(4)
o('s_branch L_main_setup' if 'xE' in OPT else 's_branch L_eteam_b')
lab('L_g_gemm')
if 'gprio' in OPT: o('s_setprio 3')
sTE=11
sTC=12
def xread(ks): return f'ds_read_b128 {vr(AF+4*ks,4)}, v{XC+(ks&3)} offset:{256 if ks>=4 else 0}'
def epi_list(which,a,t):
    e=[]
    for i in range(4): e.append(f'v_mul_f32 v{a+i}, {NLOG2E:#x}, v{a+i}')
    for i in range(4): e.append(f'v_cvt_pk_bf16_f32 v{a+i}, v{a+i}, v{a+4+i}')
    if which==1:
        for i in range(4): e.append(f'buffer_store_dword v{a+i}, v{TOF}, {sr(rTW,4)}, s{sB if t==1 else sD} offen offset:{i*256+64*t} sc1')
    else:
        for i in range(4): e.append(f'ds_write_b32 v{AUA if t==1 else AUA+2}, v{a+i} offset:{i*256+64*t}')
    return e
def addr_ops(which,tile_s,t):
    dst = sB if t==1 else sD
    if which==1: return [f's_lshl_b32 s{dst}, s{tile_s}, 4', f's_add_u32 s{dst}, s{dst}, s{sNB}', f's_lshl_b32 s{dst}, s{dst}, 8']
    return [f's_lshl_b32 s{dst}, s{tile_s}, 12', f's_add_u32 s{dst}, s{dst}, {AU}', f'v_add_u32 v{AUA if t==1 else AUA+2}, s{dst}, v{TOF}']
sTO=[13,14,15,46,47]
PK=8
def gemm_body(which, j):
    B0,V0,B1,V1=ACC,ACC+4,ACC+8,ACC+12
    if which==1:
        def epi1(a,jj,t):
            e=[f'v_mul_f32 v{a+i}, {NLOG2E:#x}, v{a+i}' for i in range(4)]
            e+=[f'v_cvt_pk_bf16_f32 v{PK+8*jj+4*t+i}, v{a+i}, v{a+4+i}' for i in range(4)]
            return e
        eP1=epi1(B1,j-1,1) if j>0 else []; eP0=epi1(B0,j,0)
        a1=[]; a0=[]
    else:
        eP1=epi_list(2,B1,1); eP0=epi_list(2,B0,0)
        a1=addr_ops(2,sTE,1); a0=addr_ops(2,sTC,0)
    fill=[[] for _ in range(16)]
    if which==2:
        fill[0]+=a1[0:2]; fill[1]+=a1[2:3]+a0[0:1]; fill[2]+=a0[1:3]
        fill[3]+=eP1[0:3]; fill[4]+=eP1[3:6]; fill[5]+=eP1[6:9]; fill[6]+=eP1[9:11]; fill[7]+=eP1[11:12]
    elif eP1:
        fill[3]+=eP1[0:2]; fill[4]+=eP1[2:4]; fill[5]+=eP1[4:6]; fill[6]+=eP1[6:8]
    if not (which==1 and j==4):
        for ks in range(8): fill[8+ks].append(xread(ks))
    if which==2:
        fill[11]+=eP0[0:3]; fill[12]+=eP0[3:6]; fill[13]+=eP0[6:9]; fill[14]+=eP0[9:11]; fill[15]+=eP0[11:12]
        tail=[f's_mov_b32 s{sTE}, s{sTC}', f's_add_u32 s{sTC}, s{sTC}, 1', f's_add_u32 s{sA}, s{sTC}, 1', f's_lshl_b32 s{sA}, s{sA}, 13']
        fill[9]+=tail[0:2]; fill[10]+=tail[2:4]
    else:
        fill[11]+=eP0[0:2]; fill[12]+=eP0[2:4]; fill[13]+=eP0[4:6]; fill[14]+=eP0[6:8]
        fill[9]+=[f's_add_u32 s{sTC}, s{sTC}, 8192']
    seq=[]
    for sl in range(16):
        for t in fill[sl]:
            if t.startswith('ds_read'): seq.append((sl,'r'))
            elif t.startswith('ds_write'): seq.append((sl,'w'))
    def waitcount(ks):
        if which==1: return 7-ks
        n=0; found=False; k=-1
        for (sl,kind) in seq:
            if kind=='r':
                k+=1
                if k==ks: found=True; continue
            if found: n+=1
        for (sl,kind) in seq:
            if sl<ks: n+=1
        return n
    for ph in range(2):
        for ks in range(8):
            ab,av=(B0,V0) if ph==0 else (B1,V1)
            wb=WF+32*ph+4*ks; wv=WF+64+32*ph+4*ks
            if ph==0: o(f's_waitcnt lgkmcnt({min(waitcount(ks),15)})')
            c1='0' if ks==0 else vr(ab,4); c2='0' if ks==0 else vr(av,4)
            f=fill[8*ph+ks]
            o(f'v_mfma_f32_16x16x32_bf16 {vr(ab,4)}, {vr(AF+4*ks,4)}, {vr(wb,4)}, {c1}')
            h=(len(f)+1)//2 if ph==0 else 0
            for t in f[:h]: o(t)
            o(f'v_mfma_f32_16x16x32_bf16 {vr(av,4)}, {vr(AF+4*ks,4)}, {vr(wv,4)}, {c2}')
            for t in f[h:]: o(t)
    if which==2:
        for k in range(4): o(f'v_add_u32 v{XC+k}, s{sA}, v{XA+k}')
    elif j<3:
        for k in range(4): o(f'v_add_u32 v{XC+k}, s{sTC}, v{XA+k}')
def table_stores():
    for j in range(5):
        o(f's_add_u32 s{sB}, s{sROT}, {j}'); o(f's_lshl_b32 s{sB}, s{sB}, 4'); o(f's_add_u32 s{sB}, s{sB}, s{sNB}'); o(f's_lshl_b32 s{sB}, s{sB}, 8')
        for t in range(2):
            for i in range(4):
                o(f'buffer_store_dword v{PK+8*j+4*t+i}, v{TOF}, {sr(rTW,4)}, s{sB} offen offset:{i*256+64*t} sc1')
def gemm1():
    o(f's_lshl_b32 s{sTC}, s{sROT}, 13')
    for k in range(4): o(f'v_add_u32 v{XC+k}, s{sTC}, v{XA+k}')
    for ks in range(8): o(xread(ks))
    o(f's_add_u32 s{sTC}, s{sTC}, 8192')
    for k in range(4): o(f'v_add_u32 v{XC+k}, s{sTC}, v{XA+k}')
    o('s_waitcnt lgkmcnt(0)')
    for j in range(5):
        if j in (1,2,3): lds_spin(C_XE+4*(j-1),4,244)
        gemm_body(1,j)
    o('s_nop 7')
    for i in range(4): o(f'v_mul_f32 v{ACC+8+i}, {NLOG2E:#x}, v{ACC+8+i}')
    for i in range(4): o(f'v_cvt_pk_bf16_f32 v{PK+32+4+i}, v{ACC+8+i}, v{ACC+12+i}')
def dummy_row():
    l=U('nodummy')
    o(f's_cmp_lg_u32 s{sR}, 63'); o(f's_cbranch_scc1 {l}')
    o(f's_cmp_lg_u32 s{sW}, 0'); o(f's_cbranch_scc1 {l}')
    o('v_mov_b32 v244, 0x7f7f'); o('v_lshlrev_b32 v245, 2, v1'); o(f'v_add_u32 v245, {N*256}, v245')
    o(f'buffer_store_dword v244, v245, {sr(rTR,4)}, 0 offen sc1')
    lab(l)
def own_prefetch(dst):
    o(f's_lshl_b32 s{sA}, s{sNB}, 8'); o(f's_mul_i32 s{sB}, s{sW}, 10240'); o(f's_add_u32 s{sA}, s{sA}, s{sB}')
    o('v_lshlrev_b32 v243, 4, v1')
    for i in range(10):
        o(f'buffer_load_dwordx4 {dst}, v243, {sr(rTW,4)}, s{sA} offen sc1')
        o(f's_add_u32 s{sA}, s{sA}, 1024')
def gemm2():
    B0,V0,B1,V1=ACC,ACC+4,ACC+8,ACC+12
    for j in range(5):
        o(f's_add_u32 s{sTO[j]}, s{sROT}, {j}'); o(f's_lshl_b32 s{sTO[j]}, s{sTO[j]}, 4'); o(f's_add_u32 s{sTO[j]}, s{sTO[j]}, s{sNB}'); o(f's_lshl_b32 s{sTO[j]}, s{sTO[j]}, 8')
    o(f's_lshl_b32 s{sTC}, s{sROT}, 13')
    for k in range(4): o(f'v_add_u32 v{XC+k}, s{sTC}, v{XA+k}')
    for ks in range(8): o(xread(ks))
    o(f's_add_u32 s{sTC}, s{sTC}, 8192')
    for k in range(4): o(f'v_add_u32 v{XC+k}, s{sTC}, v{XA+k}')
    o(f's_lshl_b32 s{sA}, s{sROT}, 12'); o(f's_add_u32 s{sA}, s{sA}, {AU}'); o(f'v_add_u32 v{AUA}, s{sA}, v{TOF}')
    o('s_waitcnt lgkmcnt(0)')
    def epi(a,jj,t):
        e=[f'v_mul_f32 v{a+i}, {NLOG2E:#x}, v{a+i}' for i in range(4)]
        e+=[f'v_cvt_pk_bf16_f32 v{a+i}, v{a+i}, v{a+4+i}' for i in range(4)]
        e+=[f'ds_write_b32 v{AUA}, v{a+i} offset:{jj*4096+i*256+64*t}' for i in range(4)]
        return e
    def tst(jj): return [f'buffer_store_dword v{PK+8*jj+4*t+i}, v{TOF}, {sr(rTW,4)}, s{sTO[jj]} offen offset:{i*256+64*t} sc1' for t in range(2) for i in range(4)]
    stores={0:tst(0)+tst(1),1:tst(2)+tst(3),2:tst(4),3:[],4:[]}
    prev_tail=0
    for j in range(5):
        eP1=epi(B1,j-1,1) if j>0 else []; eP0=epi(B0,j,0)
        fill=[[] for _ in range(16)]
        if eP1:
            fill[3]+=eP1[0:3]; fill[4]+=eP1[3:6]; fill[5]+=eP1[6:9]; fill[6]+=eP1[9:11]; fill[7]+=eP1[11:12]
        if j<4:
            for ks in range(8): fill[8+ks].append(xread(ks))
        fill[11]+=eP0[0:3]; fill[12]+=eP0[3:6]; fill[13]+=eP0[6:9]; fill[14]+=eP0[9:11]; fill[15]+=eP0[11:12]
        if j<3: fill[9]+=[f's_add_u32 s{sTC}, s{sTC}, 8192']
        st=list(stores[j])
        for sl in range(16):
            if st: fill[sl].append(st.pop(0))
        seq=[(sl,('r' if t.startswith('ds_read') else 'w')) for sl in range(16) for t in fill[sl] if t.startswith('ds_')]
        for ph in range(2):
            for ks in range(8):
                ab,av=(B0,V0) if ph==0 else (B1,V1)
                wb=WF+32*ph+4*ks; wv=WF+64+32*ph+4*ks
                if ph==0 and j>0:
                    n=0; found=False; k=-1
                    for (sl,kind) in prevseq:
                        if kind=='r':
                            k+=1
                            if k==ks: found=True; continue
                        if found: n+=1
                    n+=sum(1 for (sl,kind) in seq if sl<ks)
                    o(f's_waitcnt lgkmcnt({min(n,15)})')
                c1='0' if ks==0 else vr(ab,4); c2='0' if ks==0 else vr(av,4)
                f=fill[8*ph+ks]
                o(f'v_mfma_f32_16x16x32_bf16 {vr(ab,4)}, {vr(AF+4*ks,4)}, {vr(wb,4)}, {c1}')
                h=(len(f)+1)//2 if ph==0 else 0
                for t in f[:h]: o(t)
                o(f'v_mfma_f32_16x16x32_bf16 {vr(av,4)}, {vr(AF+4*ks,4)}, {vr(wv,4)}, {c2}')
                for t in f[h:]: o(t)
        if j<3:
            for k in range(4): o(f'v_add_u32 v{XC+k}, s{sTC}, v{XA+k}')
        prevseq=seq
        if j==int(OPT.get('f2it','3')):
            l=U('nf2')
            o('s_waitcnt vmcnt(0)')
            lds_inc(C_T,244,ret=True)
            o(f's_cmp_lg_u32 s{sA}, 3'); o(f's_cbranch_scc1 {l}')
            o('s_mov_b64 exec, 1')
            for i in range(4): o(f'v_mov_b32 v{244+i}, s{sNONCE}')
            o(f's_lshl_b32 s{sA}, s{sS}, 6'); o(f's_add_u32 s{sA}, s{sA}, s{sR}'); o(f's_lshl_b32 s{sA}, s{sA}, 4')
            o(f's_add_u32 s{sA}, s{sA}, {SEGT_FLAG2}')
            o(f'buffer_store_dwordx4 v[244:247], v{VZ}, {sr(rSEG,4)}, s{sA} offen sc1')
            o('s_mov_b64 exec, -1')
            lab(l)
            if 'preat' in OPT:
                o('s_nop 1'); own_prefetch('v[244:247]')
    o('s_nop 7')
    for t in epi(B1,4,1): o(t)
    if 'nopre' not in OPT and 'preat' not in OPT:
        own_prefetch('v[232:235]' if 'nowait' in OPT else 'v[44:47]')
    if 'preout' in OPT:
        o('v_lshrrev_b32 v245, 3, v1'); o('v_lshlrev_b32 v245, 9, v245'); o('v_and_b32 v246, 7, v1'); o('v_lshl_add_u32 v245, v246, 4, v245')
        o(f's_mul_i32 s{sB}, s{sW}, {40*512}'); o(f's_lshl_b32 s{sA}, s{sNB}, 9'); o(f's_add_u32 s{sA}, s{sA}, s{sB}')
        o(f's_lshl_b32 s{sB}, s{sS}, 7'); o(f's_add_u32 s{sA}, s{sA}, s{sB}')
        for i in range(5):
            o(f'buffer_load_dwordx4 v[44:47], v245, {sr(rOUT,4)}, s{sA} offen')
            o(f's_add_u32 s{sA}, s{sA}, {8*512}')
gemm1()
stamp(5)
lds_spin(C_WA,4,244)
wfrags()
o('s_waitcnt lgkmcnt(0)')
lds_inc(C_G,244)
lds_spin(C_G,4,244)
stamp(18)
if 'xE' not in OPT and 'nogate' not in OPT: lds_spin(C_RL,4,244)
dummy_row()
stamp(6)
gemm2()
o('s_waitcnt lgkmcnt(0)')
stamp(7)
o('s_branch L_main_setup')
lab('L_eteam_b')
SG,RC0,RC1,SA,RKB=64,80,112,144,200
T=176
o(f's_sub_u32 s{sC_}, s{sW}, 4')
o('v_lshrrev_b32 v17, 3, v1')
o(f's_lshl_b32 s{sA}, s{sC_}, 3'); o(f'v_add_u32 v17, s{sA}, v17')
o(f'v_lshlrev_b32 v{T}, 3, v17')
o('v_and_b32 v18, 7, v1')
o(f'v_mul_u32_u24 v{T+1}, {CHCAP*8}, v17'); o(f'v_lshl_add_u32 v{T+1}, v18, 4, v{T+1}')
IX=T+2
o(f'v_lshlrev_b32 v{IX}, 1, v18'); o(f'v_add_u32 v{IX+1}, 1, v{IX}'); o(f'v_add_u32 v{IX+2}, 16, v{IX}'); o(f'v_add_u32 v{IX+3}, 17, v{IX}')
lds_spin(C_W,4,17)
o(f's_sub_u32 s{sC_}, s{sW}, 4'); o(f's_lshl_b32 s{sC_}, s{sC_}, 10')
for i in range(8):
    o(f's_add_u32 m0, s{sC_}, {WR+i*4096}'); o(f's_mov_b32 s{sB}, {i*16384}')
    o(f'buffer_load_dwordx4 v249, {sr(rW1,4)}, s{sB} offen lds')
    o(f's_add_u32 m0, s{sC_}, {WR+32768+i*4096}'); o('s_nop 0')
    o(f'buffer_load_dwordx4 v249, {sr(rW2,4)}, s{sB} offen lds')
    o('s_waitcnt vmcnt(%s)' % OPT.get('paceu','8'))
for idx in range(4,10):
    tile=(idx>>1)+5*(idx&1)
    o(f's_add_u32 m0, s{sC_}, {XT+tile*8192}'); o(f's_lshl_b32 s{sB}, s{sNB}, 9'); o(f's_add_u32 s{sB}, s{sB}, {tile*8192}')
    o(f'buffer_load_dwordx4 v246, {sr(rX,4)}, s{sB} offen lds')
    o(f's_add_u32 m0, s{sC_}, {XT+tile*8192+4096}'); o('s_nop 0')
    o(f'buffer_load_dwordx4 v247, {sr(rX,4)}, s{sB} offen lds')
    o('s_waitcnt vmcnt(8)')
    if idx==7: lds_inc(C_WA,17)
    if idx==9: lds_inc(C_XE,17)
XLAST=True
o(f's_lshl_b32 s{sD}, s{sR}, 11')
o(f's_mov_b32 s{sSP}, 0')
lp=U('poll1'); dn=U('poll1d')
lab(lp)
for p in range(8):
    o(f'buffer_load_dwordx2 {vr(SG+2*p,2)}, v{T}, {sr(rSEG,4)}, s{sD} offen offset:{p*256} sc1')
o(f'v_mov_b32 v19, s{sNONCE}')
l=U('xl'); o(f's_cmp_lg_u32 s{sSP}, 0'); o(f's_cbranch_scc1 {l}')
o('s_waitcnt vmcnt(12)'); lds_inc(C_XE+4,17)
o('s_waitcnt vmcnt(8)'); lds_inc(C_XE+8,17)
lab(l)
o('s_waitcnt vmcnt(0)')
o(f'v_xor_b32 v20, v{SG+1}, v19')
for p in range(1,8):
    o(f'v_xor_b32 v21, v{SG+2*p+1}, v19'); o('v_or_b32 v20, v20, v21')
o('v_cmp_ne_u32 vcc, 0, v20')
o(f's_cbranch_vccz {dn}')
o('s_sleep 6')
o(f's_add_u32 s{sSP}, s{sSP}, 1'); o(f's_cmp_lt_u32 s{sSP}, 0x10000'); o(f's_cbranch_scc1 {lp}')
lab(dn)
stamp(5)
o('v_mov_b32 v20, 0')
for p in range(8):
    o(f'v_lshrrev_b32 v{SG+2*p+1}, 16, v{SG+2*p}')
    o(f'v_max_u32 v20, v20, v{SG+2*p+1}')
o('v_cmp_lt_u32 vcc, 32, v20')
l=U('nofb'); o(f's_cbranch_vccz {l}')
o('v_mov_b32 v21, 1'); o(f'ds_write_b32 v{VZ}, v21 offset:{C_FB}')
lab(l)
o(f's_mov_b32 s{sSP}, 0')
lr=U('recld'); dr=U('recok')
lab(lr)
for p in range(8):
    o(f'v_and_b32 v19, 0xffff, v{SG+2*p}')
    o(f'v_lshl_add_u32 v19, v19, 3, v{T+1}')
    o(f's_mov_b32 s{sA}, {p*32*CHCAP*8}')
    o(f'v_cmp_lt_u32 vcc, 16, v{SG+2*p+1}')
    o(f'buffer_load_dwordx4 {vr(RC0+4*p,4)}, v19, {sr(rREC,4)}, s{sA} offen sc1')
    l=U('ld1'); o(f's_cbranch_vccz {l}')
    o(f'buffer_load_dwordx4 {vr(RC1+4*p,4)}, v19, {sr(rREC,4)}, s{sA} offen offset:128 sc1')
    lab(l)
l=U('sig'); o(f's_cmp_lg_u32 s{sSP}, 0'); o(f's_cbranch_scc1 {l}_r')
lds_inc(C_RL,20)
o('s_waitcnt vmcnt(0)')
o(f's_branch {l}')
lab(l+'_r')
o('s_waitcnt vmcnt(0)')
lab(l)
o('v_mov_b32 v21, 0x05040100'); o('v_mov_b32 v22, 0'); o(f'v_mov_b32 v23, s{sNONCE}')
for p in range(8):
    for st in range(2):
        rec=(RC0 if st==0 else RC1)+4*p
        if st==1:
            l=U('v1'); o(f'v_cmp_lt_u32 vcc, 16, v{SG+2*p+1}'); o(f's_cbranch_vccz {l}')
        o(f'v_cmpx_lt_u32 vcc, v{IX+2*st}, v{SG+2*p+1}')
        o(f'v_perm_b32 v20, v{rec+3}, v{rec+1}, v21'); o('v_xor_b32 v20, v20, v23'); o('v_or_b32 v22, v22, v20')
        o('s_mov_b64 exec, -1')
        if st==1: lab(l)
o('v_cmp_ne_u32 vcc, 0, v22')
o(f's_cbranch_vccz {dr}')
o('s_sleep 2')
o(f's_add_u32 s{sSP}, s{sSP}, 1'); o(f's_cmp_lt_u32 s{sSP}, 0x10000'); o(f's_cbranch_scc1 {lr}')
lab(dr)
stamp(6)
def each_rec(fn):
    for p in range(8):
        for st in range(2):
            if st==1:
                l=U('st1'); o(f'v_cmp_lt_u32 vcc, 16, v{SG+2*p+1}'); o(f's_cbranch_vccz {l}')
            for i in range(2):
                rec=(RC0 if st==0 else RC1)+4*p+2*i
                o(f'v_cmpx_lt_u32 vcc, v{IX+2*st+i}, v{SG+2*p+1}')
                fn(rec, SA+4*p+2*st+i)
            o('s_mov_b64 exec, -1')
            if st==1: lab(l)
SD='dst_sel:DWORD dst_unused:UNUSED_PAD src0_sel:DWORD src1_sel:BYTE_0'
o('v_mov_b32 v22, 1'); o('v_mov_b32 v23, 64')
def f_hist(rec,sa):
    o(f'v_lshlrev_b32_sdwa v20, 2, v{rec} {SD}'); o(f'ds_add_rtn_u32 v{sa-SA+RKB}, v20, v22 offset:{DEG}')
each_rec(f_hist)
o('s_waitcnt lgkmcnt(0)')
lds_inc(C_E1,20)
stamp(7)
o(f's_cmp_lg_u32 s{sW}, 4')
o('s_cbranch_scc1 L_e_prefill')
lds_spin(C_E1,4,20)
D0,K0,P0=24,28,32
o('v_lshlrev_b32 v19, 2, v1')
for a in range(3): o(f'ds_read_b32 v{D0+a}, v19 offset:{DEG+a*256}')
perm=[]
for w in range(8): perm += ([w,w+4,11-w] if w<4 else [19-w,23-w]) if 'oldperm' not in OPT else ([w,15-w] + ([19-w] if w<4 else []))
o('v_mov_b32 v38, 31')
for i,g in enumerate(perm): o(f'v_writelane_b32 v38, {g}, {i}')
o('v_lshlrev_b32 v38, 2, v38')
o('v_sub_u32 v37, 252, v19')
o('s_waitcnt lgkmcnt(0)')
for a in range(3):
    o(f'v_min_u32 v{K0+a}, 63, v{D0+a}'); o(f'v_lshlrev_b32 v{K0+a}, 2, v{K0+a}')
    if a==2: o('v_cmpx_gt_u32 vcc, 32, v1')
    o(f'ds_add_rtn_u32 v{P0+a}, v{K0+a}, v22 offset:{HIST2}')
o('s_mov_b64 exec, -1')
o('s_waitcnt lgkmcnt(0)')
o(f'ds_read_b32 v36, v37 offset:{HIST2}')
for a in range(3): o(f'v_sub_u32 v{K0+a}, 252, v{K0+a}')
o('s_waitcnt lgkmcnt(0)')
o('v_mov_b32 v35, v36') if False else None
o('v_mov_b32 v39, v36')
scan64(36)
o('v_sub_u32 v36, v36, v39')
for a in range(3): o(f'ds_bpermute_b32 v{K0+a}, v{K0+a}, v36')
o('s_waitcnt lgkmcnt(0)')
for a in range(3):
    o(f'v_add_u32 v{P0+a}, v{P0+a}, v{K0+a}')
    o(f'v_add_u32 v21, {64*a}, v1')
    o(f'v_cmp_gt_u32 vcc, s{sNV}, v21')
    o(f'v_lshlrev_b32 v20, 3, v{P0+a}')
    o(f'v_lshrrev_b32 v{K0+a}, 3, v{P0+a}'); o(f'v_lshlrev_b32 v{K0+a}, 2, v{K0+a}')
    o('v_mov_b32 v40, 0x200000')
    o('v_and_b32 v43, 15, v21'); o('v_lshlrev_b32 v43, 4, v43'); o('v_lshl_add_u32 v43, v21, 9, v43')
    o('v_cndmask_b32 v42, v40, v21, vcc')
    if a==2: o('v_cmpx_gt_u32 vcc, 32, v1')
    o(f'ds_write_b64 v20, v[42:43] offset:{NODEOF}')
    o(f'ds_max_u32 v{K0+a}, v{D0+a} offset:{LG}')
o('s_mov_b64 exec, -1')
o('s_waitcnt lgkmcnt(0)')
o(f'ds_read_b32 v39, v38 offset:{LG}')
o('s_waitcnt lgkmcnt(0)')
o('v_add_u32 v39, 1, v39'); o('v_lshrrev_b32 v39, 1, v39')
o('v_mov_b32 v40, v39')
scan64(39)
o('v_sub_u32 v40, v39, v40')
o('v_lshlrev_b32 v40, 7, v40'); o(f'v_add_u32 v40, {ELL}, v40')
o(f'ds_write_b32 v38, v40 offset:{GBASE}')
o(f'v_readlane_b32 s{sA}, v39, 19')
o('s_waitcnt lgkmcnt(0)')
for a in range(3): o(f'ds_read_b32 v{K0+a}, v{K0+a} offset:{GBASE}')
o(f's_cmp_le_u32 s{sA}, {ELLB-4}')
l=U('fits'); o(f's_cbranch_scc1 {l}')
o('v_mov_b32 v21, 1'); o(f'ds_write_b32 v{VZ}, v21 offset:{C_FB}')
lab(l)
o('s_waitcnt lgkmcnt(0)')
for a in range(3):
    o(f'v_and_b32 v21, 7, v{P0+a}'); o(f'v_lshl_add_u32 v21, v21, 3, v{K0+a}')
    o(f'ds_write_b32 v19, v21 offset:{CUR+a*256}')
o('s_waitcnt lgkmcnt(0)')
lds_inc(C_SORT,20)
o('s_branch L_e_wait')
lab('L_e_prefill')
lds_spin(C_G,4,20)
o(f's_sub_u32 s{sA}, s{sW}, 5'); o(f's_lshl_b32 s{sA}, s{sA}, 10'); o(f's_add_u32 s{sA}, s{sA}, {ELL}')
o(f'v_lshlrev_b32 v20, 4, v1'); o(f'v_add_u32 v20, s{sA}, v20')
o(f'v_mov_b32 v24, {N*256}'); o('v_mov_b32 v25, 0'); o(f'v_mov_b32 v26, {N*256}'); o('v_mov_b32 v27, 0')
for i in range(12): o(f'ds_write_b128 v20, v[24:27] offset:{i*3072}')
o('s_waitcnt lgkmcnt(0)')
lds_inc(C_P,20)
lab('L_e_wait')
lds_spin(C_SORT,1,20)
lds_spin(C_P,3,20)
stamp(8)
o(f'ds_read_b32 v20, v{VZ} offset:{C_FB}'); o('s_waitcnt lgkmcnt(0)')
o(f'v_readfirstlane_b32 s{sA}, v20'); o(f's_cmp_lg_u32 s{sA}, 0'); o('s_cbranch_scc1 L_e_done')
def f_slot(rec,sa):
    o(f'v_lshlrev_b32_sdwa v20, 2, v{rec} {SD}'); o(f'ds_read_b32 v{sa}, v20 offset:{CUR}')
each_rec(f_slot)
o('s_waitcnt lgkmcnt(0)')
def f_put(rec,sa):
    o(f'v_lshl_add_u32 v{sa}, v{sa-SA+RKB}, 6, v{sa}'); o(f'v_and_b32 v{rec+1}, v24, v{rec+1}'); o(f'ds_write_b64 v{sa}, {vr(rec,2)}')
o('v_mov_b32 v24, 0xffff0000')
each_rec(f_put)
lab('L_e_done')
o('s_waitcnt lgkmcnt(0)')
stamp(9)
o(f's_cmp_lg_u32 s{sW}, 4')
o('s_cbranch_scc1 L_main_setup')
o('v_lshlrev_b32 v20, 4, v1')
o(f's_lshl_b32 s{sD}, s{sS}, 10'); o(f's_add_u32 s{sD}, s{sD}, {SEGT_FLAG2}')
o(f's_mov_b32 s{sSP}, 0')
lp=U('poll2'); dn=U('poll2d')
lab(lp)
o(f'buffer_load_dword v21, v20, {sr(rSEG,4)}, s{sD} offen sc1')
o('s_waitcnt vmcnt(0)')
o(f'v_cmp_ne_u32 vcc, s{sNONCE}, v21')
o(f's_cbranch_vccz {dn}')
o('s_sleep 2')
o(f's_add_u32 s{sSP}, s{sSP}, 1'); o(f's_cmp_lt_u32 s{sSP}, 0x10000'); o(f's_cbranch_scc1 {lp}')
lab(dn)
l=U('noep')
o('s_cmp_lg_u32 s2, 0'); o(f's_cbranch_scc1 {l}')
o('s_mov_b64 exec, 1')
o(f'v_mov_b32 v21, s{sNONCE}')
o(f'global_store_dword v{VZ}, v21, {sr(sEP,2)} sc1')
o('s_mov_b64 exec, -1')
lab(l)
LOFF,RP=2,3
S1A,S1B,S2A,S2B,ONE=4,8,12,16,20
WC=24; NUM=32; DEN=40; C=48; DX,DY=72,104; R0,R1=136,152
OFA,OFB,EA_,EB_,AD=168,170,172,174,176
lab('L_main_setup')
o('s_setprio 0')
stamp(10)
o(f'v_and_b32 v{LOFF}, 7, v1'); o(f'v_lshlrev_b32 v{LOFF}, 4, v{LOFF}')
o('v_bfe_u32 v196, v1, 3, 2'); o('v_bfe_u32 v197, v1, 2, 1'); o('v_lshrrev_b32 v198, 5, v1'); o('v_and_b32 v199, 3, v1')
o('v_cmp_eq_u32 vcc, v197, v198'); o('v_mov_b32 v195, 7'); o('v_and_b32 v193, 1, v196')
o('v_cndmask_b32 v199, v195, v199, vcc')
LO,HI=0x00003f80,0x3f800000
o('v_cmp_gt_u32 vcc, 2, v196'); o(f'v_mov_b32 v194, {LO:#x}'); o(f'v_mov_b32 v195, {HI:#x}')
o('v_cndmask_b32 v192, v194, v195, vcc')
o('v_cndmask_b32 v191, v195, v194, vcc')
o('v_lshl_add_u32 v199, v193, 3, v199')
for i in range(4):
    o(f'v_cmp_eq_u32 vcc, {i}, v199'); o(f'v_cmp_eq_u32 s[98:99], {8+i}, v199'); o('s_nop 0')
    o(f'v_cndmask_b32 v{S1A+i}, 0, v192, vcc'); o(f'v_cndmask_b32 v{S2A+i}, 0, v191, vcc')
    o(f'v_cndmask_b32 v{S1B+i}, 0, v192, s[98:99]'); o(f'v_cndmask_b32 v{S2B+i}, 0, v191, s[98:99]')
o('v_cmp_gt_u32 vcc, 32, v1')
for i in range(1,4): o(f'v_mov_b32 v{ONE+i}, 0')
o(f'v_cndmask_b32 v{ONE}, 0, v194, vcc')
for i in range(4):
    o(f'v_lshlrev_b32 v{WC+2*i}, 16, v{250+i}'); o(f'v_and_b32 v{WC+2*i+1}, 0xffff0000, v{250+i}')
for i in range(8): o(f'v_mul_f32 v{WC+i}, {NLOG2E:#x}, v{WC+i}')
for i in range(8):
    o(f'v_mov_b32 v{C+i}, 0'); o(f'v_mov_b32 v{C+16+i}, 0')
LOFF_=LOFF
sPAR,sNBT,sODD,sG1,sG2,sLN=97,47,96,46,13,14
NLN,LT,OA,AUN,XRN,UF,XF,VAUK,VKA,VOK=178,180,181,182,190,194,202,210,211,212
TM=214
o(f'v_add_u32 v{VAUK}, {AU}, v{LOFF}')
o(f'v_bfe_u32 v{TM}, v1, 1, 2'); o(f's_lshl_b32 s92, s{sS}, 3'); o(f'v_add_u32 v{TM}, s92, v{TM}'); o(f'v_lshlrev_b32 v{TM}, 4, v{TM}')
o(f'v_and_b32 v{TM+1}, 1, v1'); o(f'v_lshl_add_u32 v{VKA}, v{TM+1}, 3, v{TM}')
o(f's_lshl_b32 s92, s{sNB}, 9'); o(f's_lshl_b32 s93, s{sS}, 7'); o('s_add_u32 s92, s92, s93')
o(f'v_lshrrev_b32 v{TM}, 1, v{LOFF}'); o(f'v_add_u32 v{VOK}, s92, v{TM}')
o(f'v_lshrrev_b32 v{TM+2}, 3, v1'); o(f'v_lshlrev_b32 v{TM+2}, 3, v{TM+2}')
o(f's_sub_u32 s12, 19, s{sW}'); o(f's_cmp_lt_u32 s{sW}, 4'); o(f's_cselect_b32 s12, s{sW}, s12')
o(f's_add_u32 s{sG1}, s{sW}, 4'); o(f's_sub_u32 s92, 23, s{sW}'); o(f's_sub_u32 s{sG2}, 11, s{sW}')
o(f's_cmp_ge_u32 s{sW}, 4'); o(f's_cselect_b32 s{sG1}, s92, s{sG1}'); o(f's_cselect_b32 s{sG2}, -1, s{sG2}')
def node_prefetch(gs):
    o(f's_lshl_b32 s92, s{gs}, 6'); o(f'v_add_u32 v{TM}, s92, v{TM+2}'); o(f'ds_read_b64 {vr(NLN,2)}, v{TM} offset:{NODEOF}')
    o(f's_lshl_b32 s92, s{gs}, 2'); o(f'v_mov_b32 v{TM+1}, s92'); o(f'ds_read_b32 v{LT}, v{TM+1} offset:{LG}')
def raw_prefetch():
    o(f'v_lshl_add_u32 v{TM}, v{NLN}, 8, v{VAUK}')
    o(f'v_xor_b32 v{TM+1}, v{NLN+1}, v{VKA}'); o(f'v_xor_b32 v{TM+3}, 64, v{TM+1}')
    o(f'ds_read_b128 {vr(AUN,4)}, v{TM}'); o(f'ds_read_b128 {vr(AUN+4,4)}, v{TM} offset:128')
    o(f'ds_read_b64 {vr(XRN,2)}, v{TM+1} offset:{XT}'); o(f'ds_read_b64 {vr(XRN+2,2)}, v{TM+3} offset:{XT}')
o(f's_xor_b32 s15, s{sR}, 1'); o(f's_mul_i32 s15, s15, {RN*256}'); o(f's_mul_i32 s92, s{sW}, 5120'); o('s_add_u32 s15, s15, s92')
o(f'v_lshlrev_b32 v{TM+4}, 4, v1')
o('s_waitcnt lgkmcnt(0)' if 'nowait' in OPT else 's_waitcnt vmcnt(0) lgkmcnt(0)')
o('s_barrier')
stamp(11)
if 'xE' in OPT: o('s_branch L_done')
if 'pre2' in OPT:
    for i in range(5):
        o(f'buffer_load_dwordx4 v[232:235], v{TM+4}, {sr(rTR,4)}, s15 offen sc1')
        o('s_add_u32 s15, s15, 1024')
o(f'ds_read_b32 v{TM+5}, v{VZ} offset:{C_FB}')
o(f's_lshl_b32 s{sA}, s12, 2'); o(f'v_mov_b32 v{TM+6}, s{sA}'); o(f'ds_read_b32 v{RP}, v{TM+6} offset:{GBASE}')
node_prefetch(12)
l=U('ap'); o(f's_cmp_ge_u32 s{sW}, 4'); o(f's_cbranch_scc1 {l}'); o('s_setprio 1'); lab(l)
o('s_waitcnt lgkmcnt(0)')
o(f'v_readfirstlane_b32 s{sA}, v{TM+5}'); o(f's_cmp_lg_u32 s{sA}, 0'); o('s_cbranch_scc1 L_fallback')
o(f'v_add_u32 v{RP}, v{RP}, v{TM+2}')
o(f'v_readfirstlane_b32 s{sLN}, v{LT}')
def mfma(d,a,b,c): o(f'v_mfma_f32_32x32x16_bf16 {vr(d,16)}, {vr(a,4)}, {vr(b,4)}, {c}')
def unpack_list(D,R):
    f=lambda d,a,b,c: f'v_mfma_f32_32x32x16_bf16 {vr(d,16)}, {vr(a,4)}, {vr(b,4)}, {c}'
    return [f(D,S1A,R,vr(C,16)), f(D,S1B,R+4,vr(D,16)), f(D+16,S2A,R+8,vr(C+8,16)), f(D+16,S2B,R+12,vr(D+16,16))]
def gfma(D,Er):
    for sl in range(2):
        for j in range(4):
            g=D+8+8*sl+2*j
            sel='op_sel:[0,0,0] op_sel_hi:[0,1,1]' if sl==0 else 'op_sel:[1,0,0] op_sel_hi:[1,1,1]'
            o(f'v_pk_fma_f32 {vr(g,2)}, {vr(Er,2)}, {vr(WC+2*j,2)}, {vr(g,2)} {sel}')
def loads(R,OF):
    o(f'v_and_or_b32 v{AD}, v{OF}, s{sM}, v{LOFF}'); o(f'v_and_or_b32 v{AD+1}, v{OF+1}, s{sM}, v{LOFF}')
    o(f'buffer_load_dwordx4 {vr(R,4)}, v{AD}, {sr(rTR,4)}, 0 offen sc1')
    o(f'buffer_load_dwordx4 {vr(R+4,4)}, v{AD}, {sr(rTR,4)}, 0 offen offset:128 sc1')
    o(f'buffer_load_dwordx4 {vr(R+8,4)}, v{AD+1}, {sr(rTR,4)}, 0 offen sc1')
    o(f'buffer_load_dwordx4 {vr(R+12,4)}, v{AD+1}, {sr(rTR,4)}, 0 offen offset:128 sc1')
def rd_off(dst,b): o(f'ds_read2_b32 {vr(dst,2)}, v{RP} offset0:{b*32} offset1:{b*32+16}')
def rd_e(dst,b): o(f'ds_read2_b32 {vr(dst,2)}, v{RP} offset0:{b*32+1} offset1:{b*32+17}')
def dsreads(P):
    OFn=OFB if P==0 else OFA; En=EB_ if P==0 else EA_
    rd_off(OFn,P+3); rd_e(En,P+1)
    if P==1: o(f'v_add_u32 v{RP}, 256, v{RP}')
def accum(D):
    for sl in range(2):
        for j in range(4):
            g=D+8+8*sl+2*j
            o(f'v_pk_add_f32 {vr(DEN+2*j,2)}, {vr(DEN+2*j,2)}, {vr(g,2)}')
            v=(D+2*j) if sl==0 else (D+24+2*j)
            o(f'v_pk_fma_f32 {vr(NUM+2*j,2)}, {vr(g,2)}, {vr(v,2)}, {vr(NUM+2*j,2)}')
Ds=[DX,DY]; Rs=[R0,R1]; OFs=[OFA,OFB]; Es=[EA_,EB_]
rd_off(OFA,0); rd_off(OFB,1)
raw_prefetch()
o('s_waitcnt lgkmcnt(4)')
loads(R0,OFA); loads(R1,OFB)
rd_off(OFA,2); rd_e(EA_,0)
o(f's_mov_b32 s{sPAR}, 0')
if PROF: o('s_mov_b32 s3, 0')
lab('L_group')
o(f's_min_u32 s{sLN}, s{sLN}, {2*ELLB}')
o(f's_and_b32 s{sODD}, s{sLN}, 1'); o(f's_add_u32 s{sNBT}, s{sLN}, 1'); o(f's_lshr_b32 s{sNBT}, s{sNBT}, 1')
o(f'v_lshl_add_u32 v{OA}, v{NLN}, 9, v{VOK}')
mfma(NUM,C,C,'0')
o('s_waitcnt lgkmcnt(0)')
for i in range(8): o(f'v_lshlrev_b32 v{C+8+i}, 16, v{AUN+i}')
l=U('nonext')
o(f's_cmp_eq_u32 s{sG1}, -1'); o(f's_cbranch_scc1 {l}')
node_prefetch(sG1)
lab(l)
for i in range(8): o(f'v_and_b32 v{UF+i}, 0xffff0000, v{AUN+i}')
for i in range(4):
    o(f'v_lshlrev_b32 v{XF+2*i}, 16, v{XRN+i}'); o(f'v_and_b32 v{XF+2*i+1}, 0xffff0000, v{XRN+i}')
if PROF:
    o(f's_memtime s[100:101]'); o('s_waitcnt lgkmcnt(0)')
    o(f's_add_u32 m0, s3, 36'); o('s_nop 3'); o('v_writelane_b32 v255, s100, m0')
    o(f's_add_u32 m0, s3, 60'); o('s_nop 3'); o(f'v_writelane_b32 v255, s{sLN}, m0')
o(f's_cmp_eq_u32 s{sNBT}, 0'); o('s_cbranch_scc1 L_epi')
o(f's_cmp_eq_u32 s{sPAR}, 1'); o('s_cbranch_scc1 L_gs1')
def exps(D): return [f'v_exp_f32 v{D+8+i}, v{D+8+i}' for i in range(16)]
def rcps(D): return [f'v_rcp_f32 v{D+8+i}, v{D+8+i}' for i in range(16)]
for P in range(2):
    lab(f'L_gs{P}')
    o('s_waitcnt vmcnt(4)')
    for t in unpack_list(Ds[P],Rs[P]): o(t)
    o('s_waitcnt lgkmcnt(0)')
    loads(Rs[P],OFs[P])
    dsreads(P)
    o('s_nop 7')
    gfma(Ds[P],Es[P])
    o(f's_branch L_body{P}')
for P in range(2):
    Q=P^1
    lab(f'L_body{P}')
    o(f's_sub_u32 s{sNBT}, s{sNBT}, 1'); o(f's_cmp_eq_u32 s{sNBT}, 0'); o(f's_cbranch_scc1 L_last{P}')
    ex=exps(Ds[P]); un=unpack_list(Ds[Q],Rs[Q])
    o('s_waitcnt vmcnt(4)')
    for k in range(4):
        o(un[k])
        for t in ex[4*k:4*k+4]: o(t)
    o('s_nop 1')
    mfma(Ds[P]+8,ONE,ONE,vr(Ds[P]+8,16))
    o('s_waitcnt lgkmcnt(0)')
    loads(Rs[Q],OFs[Q])
    o('s_nop 2')
    dsreads(Q)
    for t in rcps(Ds[P]): o(t)
    gfma(Ds[Q],Es[Q])
    accum(Ds[P])
    if P==1: o('s_branch L_body0')
for P in range(2):
    lab(f'L_last{P}')
    D=Ds[P]
    o(f's_cmp_eq_u32 s{sODD}, 1'); o(f's_cbranch_scc1 L_half{P}')
    for t in exps(D): o(t)
    o('s_nop 1')
    mfma(D+8,ONE,ONE,vr(D+8,16))
    o('s_nop 7'); o('s_nop 3')
    for t in rcps(D): o(t)
    accum(D)
    o(f's_mov_b32 s{sPAR}, {P^1}')
    o('s_branch L_epi')
    lab(f'L_half{P}')
    for t in exps(D)[:8]: o(t)
    for j in range(4): o(f'v_pk_add_f32 {vr(D+8+2*j,2)}, {vr(D+8+2*j,2)}, 1.0 op_sel_hi:[1,0]')
    for t in rcps(D)[:8]: o(t)
    for j in range(4):
        g=D+8+2*j
        o(f'v_pk_add_f32 {vr(DEN+2*j,2)}, {vr(DEN+2*j,2)}, {vr(g,2)}')
        o(f'v_pk_fma_f32 {vr(NUM+2*j,2)}, {vr(g,2)}, {vr(D+2*j,2)}, {vr(NUM+2*j,2)}')
    o(f's_mov_b32 s{sPAR}, {P^1}')
    if P==0: o('s_branch L_epi')
lab('L_epi')
if PROF:
    o(f's_memtime s[100:101]'); o('s_waitcnt lgkmcnt(0)')
    o(f's_add_u32 m0, s3, 40'); o('s_nop 3'); o('v_writelane_b32 v255, s100, m0')
l=U('nonext2')
o(f's_cmp_eq_u32 s{sG1}, -1'); o(f's_cbranch_scc1 {l}')
o('s_waitcnt lgkmcnt(0)')
o(f'v_readfirstlane_b32 s{sLN}, v{LT}')
raw_prefetch()
lab(l)
o('s_mov_b32 s92, 0x358637bd'); o('s_mov_b32 s93, 0x358637bd')
for j in range(4): o(f'v_pk_add_f32 {vr(DEN+2*j,2)}, {vr(DEN+2*j,2)}, s[92:93]')
for i in range(8): o(f'v_rcp_f32 v{DEN+i}, v{DEN+i}')
o('s_nop 0')
for j in range(4): o(f'v_pk_fma_f32 {vr(UF+2*j,2)}, {vr(NUM+2*j,2)}, {vr(DEN+2*j,2)}, {vr(UF+2*j,2)}')
for i in range(8): o(f'v_max_f32 v{UF+i}, 0, v{UF+i}')
for j in range(4): o(f'v_pk_add_f32 {vr(UF+2*j,2)}, {vr(UF+2*j,2)}, {vr(XF+2*j,2)}')
for i in range(4): o(f'v_cvt_pk_bf16_f32 v{UF+i}, v{UF+2*i}, v{UF+2*i+1}')
o(f'buffer_store_dwordx2 {vr(UF,2)}, v{OA}, {sr(rOUT,4)}, 0 offen')
o(f'buffer_store_dwordx2 {vr(UF+2,2)}, v{OA}, {sr(rOUT,4)}, 0 offen offset:64')
if PROF:
    o(f's_memtime s[100:101]'); o('s_waitcnt lgkmcnt(0)')
    o(f's_add_u32 m0, s3, 56'); o('s_nop 3'); o('v_writelane_b32 v255, s100, m0')
    o('s_add_u32 s3, s3, 1')
o(f's_cmp_eq_u32 s{sG1}, -1'); o('s_cbranch_scc1 L_done')
o(f's_mov_b32 s{sG1}, s{sG2}'); o(f's_mov_b32 s{sG2}, -1')
o('s_branch L_group')
lab('L_done')
stamp(12)
if PROF:
    o('s_waitcnt vmcnt(0)')
    srd_off(92,sWS,WS_PROF,0x100000)
    o(f's_lshl_b32 s96, s2, 3'); o(f's_add_u32 s96, s96, s{sW}'); o('s_lshl_b32 s96, s96, 8')
    o('v_lshlrev_b32 v2, 2, v1')
    o('buffer_store_dword v255, v2, s[92:95], s96 offen')
o('s_endpgm')
lab('L_codeend')
lab('L_fallback')
FN,FD,FA,FU,FW=10,11,12,13,14
o('v_lshlrev_b32 v5, 2, v1')
o(f's_lshl_b32 s92, s{sS}, 7')
o('v_lshlrev_b32 v6, 1, v1'); o(f'v_add_u32 v6, s92, v6')
srd(64,sWC,512)
o(f'buffer_load_ushort v{FW}, v6, s[64:67], 0 offen')
o('s_waitcnt vmcnt(0)')
o(f'v_lshlrev_b32 v{FW}, 16, v{FW}'); o(f'v_mul_f32 v{FW}, {NLOG2E:#x}, v{FW}')
o(f's_mov_b32 s46, s{sW}')
lab('L_fb_node')
o(f's_cmp_ge_u32 s46, s{sNV}'); o('s_cbranch_scc1 L_fb_end')
o(f's_lshl_b32 s92, s46, 8'); o(f's_add_u32 s92, s92, {AU}'); o(f'v_add_u32 v7, s92, v5'); o('ds_read_b32 v8, v7')
o('s_waitcnt lgkmcnt(0)')
o(f'v_lshlrev_b32 v{FA}, 16, v8'); o(f'v_and_b32 v{FU}, 0xffff0000, v8')
o(f'v_mov_b32 v{FN}, 0'); o(f'v_mov_b32 v{FD}, 0')
o(f's_add_u32 s47, s46, s{sNB}')
o('s_mov_b32 s93, 0')
lab('L_fb_e')
o('v_add_u32 v7, s93, v1'); o('v_lshlrev_b32 v8, 2, v7'); o('v_lshlrev_b32 v7, 1, v7')
o(f'buffer_load_dword v15, v8, {sr(rDST,4)}, 0 offen')
o(f'buffer_load_dword v16, v8, {sr(rSRC,4)}, 0 offen')
o(f'buffer_load_ushort v17, v7, {sr(rEA,4)}, 0 offen')
o('s_waitcnt vmcnt(0)')
o('v_cmp_eq_u32 vcc, s47, v15')
o('s_mov_b64 s[94:95], vcc')
lab('L_fb_m')
o('s_cmp_eq_u64 s[94:95], 0'); o('s_cbranch_scc1 L_fb_next')
o('s_ff1_i32_b64 s96, s[94:95]')
o('s_bitset0_b64 s[94:95], s96')
o('v_readlane_b32 s97, v16, s96'); o('v_readlane_b32 s92, v17, s96')
o('s_nop 1')
o('s_lshl_b32 s97, s97, 8'); o('s_lshl_b32 s92, s92, 16')
o('s_nop 4')
o(f'buffer_load_dword v18, v5, {sr(rTR,4)}, s97 offen sc1')
o('s_waitcnt vmcnt(0)')
o('v_lshlrev_b32 v19, 16, v18'); o('v_and_b32 v18, 0xffff0000, v18')
o(f'v_add_f32 v19, v19, v{FA}'); o(f'v_fmac_f32 v19, s92, v{FW}')
o('v_exp_f32 v19, v19'); o('s_nop 0'); o('v_add_f32 v19, 1.0, v19'); o('v_rcp_f32 v19, v19'); o('s_nop 0')
o(f'v_add_f32 v{FD}, v{FD}, v19'); o(f'v_fmac_f32 v{FN}, v19, v18')
o('s_branch L_fb_m')
lab('L_fb_next')
o('s_add_u32 s93, s93, 64'); o(f's_cmp_lt_u32 s93, {E}'); o('s_cbranch_scc1 L_fb_e')
o('s_mov_b32 s92, 0x358637bd')
o(f'v_add_f32 v{FD}, s92, v{FD}'); o(f'v_rcp_f32 v{FD}, v{FD}'); o('s_nop 0')
o(f'v_fmac_f32 v{FU}, v{FN}, v{FD}'); o(f'v_max_f32 v{FU}, 0, v{FU}')
o('s_lshl_b32 s92, s47, 9')
o(f'buffer_load_ushort v18, v6, {sr(rX,4)}, s92 offen')
o('s_waitcnt vmcnt(0)')
o(f'v_lshlrev_b32 v18, 16, v18'); o(f'v_add_f32 v{FU}, v{FU}, v18')
o(f'v_cvt_pk_bf16_f32 v18, v{FU}, v{FU}')
o(f'buffer_store_short v18, v6, {sr(rOUT,4)}, s92 offen')
o('s_add_u32 s46, s46, 8'); o('s_branch L_fb_node')
lab('L_fb_end')
lab('L_end')
o('s_endpgm')
L=[x for x in L if x is not None]
hdr=open('gather_scatter__edge_featured_mpnn_gatedgcn__graph.s.ref').read().split('; Override')[0]
out=hdr+f'''; Generated by dev/gen2.py (hand-written generator). One fused persistent launch, 1 workgroup per CU.
; @launch grid=(256,1,1) block=(512,1,1) lds={LDS_TOTAL}
.amdgcn_target "amdgcn-amd-amdhsa--gfx950"
.text
.globl {NAME}
.p2align 8
.type {NAME},@function
'''+'\n'.join(L)+f'''
.section .rodata,"a"
.p2align 6
.amdhsa_kernel {NAME}
  .amdhsa_next_free_vgpr 256
  .amdhsa_next_free_sgpr 102
  .amdhsa_accum_offset 256
  .amdhsa_group_segment_fixed_size 0
  .amdhsa_kernarg_size 96
  .amdhsa_user_sgpr_count 2
  .amdhsa_user_sgpr_kernarg_segment_ptr 1
  .amdhsa_system_sgpr_workgroup_id_x 1
.end_amdhsa_kernel
'''
fn=[a for a in sys.argv[1:] if not a.startswith('--')]
open(fn[0] if fn else 'k.s','w').write(out)
```

```python
import sys
NAME='gather_scatter__edge_featured_mpnn_gatedgcn__graph_kernel'
PROF = '--prof' in sys.argv
OPT = {a.split('=')[0][2:]:(a.split('=')[1] if '=' in a else '1') for a in sys.argv[1:] if a.startswith('--')}
N=10000; E=160000; RN=157; CH=625; CHCAP=704
SLICE=10240*256
WS_RECS=0xA00000; WS_SEGT=0xB80000; SEGT_FLAG2=0x20000; WS_EPOCH=0xBB0000; WS_PROF=0xC00000
HIST1=0; DEG=256; HIST2=1024; LG=1280; GBASE=1408; CUR=1536; NODEOF=2304; CNT=3840
C_W=CNT; C_G=CNT+4; C_T=CNT+8; C_E1=CNT+12; C_SORT=CNT+16; C_P=CNT+20; C_FB=CNT+24; C_X=CNT+28; C_G1=CNT+32; C_H=CNT+36; C_R=CNT+40; C_X2=CNT+44; C_S=CNT+48; C_RL=CNT+52; C_X1=CNT+56; C_PG=CNT+60; C_X0=CNT+64; C_XE=CNT+68; C_WA=CNT+80
XT=4096; WR=XT+81920; AU=WR; ELL=WR+40960; ELLB=288
LDS_TOTAL=163840
RST=WR+65536
assert ELL+ELLB*128==LDS_TOTAL
NLOG2E=0xbfb8aa3b
sEP=4
sI,sROT,sTL,sWROT=6,7,8,9
sM=10
sX,sEA,sSRC,sDST,sWA,sWB,sWC,sWU=16,18,20,22,24,26,28,30
sWV,sOUT,sDBG,sWS=32,34,36,38
sW,sS,sR,sNONCE,sNB,sNV=40,41,42,43,44,45
rX,rDST,rSRC,rEA,rW1,rW2,rTW,rTR,rREC,rSEG,rOUT=48,52,56,60,64,68,72,76,80,84,88
sA,sB,sC_,sD,sSP=92,93,94,95,96
L=[]
def o(t): L.append('  '+t)
def lab(t): L.append(t+':')
def vr(a,n): return f'v[{a}:{a+n-1}]' if n>1 else f'v{a}'
def sr(a,n): return f's[{a}:{a+n-1}]'
uid=[0]
def U(p):
    uid[0]+=1; return f'L_{p}_{uid[0]}'
def srd(r,base,size):
    o(f's_mov_b32 s{r}, s{base}'); o(f's_mov_b32 s{r+1}, s{base+1}')
    o(f's_mov_b32 s{r+2}, {size}'); o(f's_mov_b32 s{r+3}, 0x20000')
def srd_off(r,base,off,size):
    o(f's_add_u32 s{r}, s{base}, {off}'); o(f's_addc_u32 s{r+1}, s{base+1}, 0')
    o(f's_mov_b32 s{r+2}, {size}'); o(f's_mov_b32 s{r+3}, 0x20000')
def stamp(idx):
    if not PROF: return
    o(f's_memrealtime s[100:101]'); o('s_waitcnt lgkmcnt(0)'); o(f'v_writelane_b32 v255, s100, {idx}')
    o(f's_memtime s[100:101]'); o('s_waitcnt lgkmcnt(0)'); o(f'v_writelane_b32 v255, s100, {idx+32}')
VZ=248
def lds_spin(addr, need, vtmp):
    l=U('spin'); d=U('spind')
    o(f's_mov_b32 s{sSP}, 0')
    lab(l)
    o(f'ds_read_b32 v{vtmp}, v{VZ} offset:{addr}')
    o('s_waitcnt lgkmcnt(0)')
    o(f'v_readfirstlane_b32 s{sA}, v{vtmp}')
    o(f's_add_u32 s{sSP}, s{sSP}, 1')
    o(f's_cmp_ge_u32 s{sA}, {need}')
    o(f's_cbranch_scc1 {d}')
    o('s_sleep 1')
    o(f's_cmp_lt_u32 s{sSP}, 0x40000')
    o(f's_cbranch_scc1 {l}')
    lab(d)
def lds_inc(addr, vtmp, ret=False):
    o(f'v_mov_b32 v{vtmp}, 1')
    o('s_mov_b64 exec, 1')
    if ret:
        o(f'ds_add_rtn_u32 v{vtmp}, v{VZ}, v{vtmp} offset:{addr}')
        o('s_waitcnt lgkmcnt(0)')
        o(f'v_readfirstlane_b32 s{sA}, v{vtmp}')
    else:
        o(f'ds_add_u32 v{VZ}, v{vtmp} offset:{addr}')
    o('s_mov_b64 exec, -1')
def scan64(v):
    for sh in (1,2,4,8):
        o('s_nop 1'); o(f'v_add_u32_dpp v{v}, v{v}, v{v} row_shr:{sh} row_mask:0xf bank_mask:0xf')
    o('s_nop 1'); o(f'v_add_u32_dpp v{v}, v{v}, v{v} row_bcast:15 row_mask:0xa bank_mask:0xf')
    o('s_nop 1'); o(f'v_add_u32_dpp v{v}, v{v}, v{v} row_bcast:31 row_mask:0xc bank_mask:0xf')
    o('s_nop 1')
lab(NAME)
o('s_cmp_ge_u32 s2, 256')
o('s_cbranch_scc1 L_end')
o('s_load_dwordx16 s[16:31], s[0:1], 0')
o('s_load_dwordx8 s[32:39], s[0:1], 64')
o('v_and_b32 v1, 63, v0')
o('v_lshrrev_b32 v2, 6, v0')
o(f'v_mov_b32 v{VZ}, 0')
o(f'v_readfirstlane_b32 s{sW}, v2')
o('s_getpc_b64 s[12:13]')
lab('L_pc')
if 'nopf' not in OPT:
    o(f's_cmp_lg_u32 s{sW}, 7'); o('s_cbranch_scc1 L_nopf')
    o('s_lshr_b32 s3, s2, 3'); o('s_lshl_b32 s3, s3, 10')
    o('v_lshl_add_u32 v2, v1, 4, s3')
    o('v_cmp_gt_u32 vcc, L_codeend-L_pc-16, v2')
    o('s_and_saveexec_b64 s[98:99], vcc')
    o('s_cbranch_execz L_nopf2')
    o('global_load_dwordx4 v[240:243], v2, s[12:13]')
    lab('L_nopf2')
    o('s_mov_b64 exec, -1')
    lab('L_nopf')
o('v_lshlrev_b32 v17, 3, v0'); o('v_mov_b32 v20, 0'); o('v_mov_b32 v21, 0')
o('ds_write_b64 v17, v[20:21]')
o(f's_and_b32 s{sS}, s2, 7'); o(f's_lshr_b32 s{sS}, s{sS}, 1')
o(f's_lshr_b32 s{sR}, s2, 3'); o(f's_lshl_b32 s{sR}, s{sR}, 1'); o(f's_and_b32 s{sA}, s2, 1'); o(f's_or_b32 s{sR}, s{sR}, s{sA}')
o(f's_mul_i32 s{sNB}, s{sR}, {RN}')
o(f's_sub_u32 s{sNV}, {N}, s{sNB}'); o(f's_min_u32 s{sNV}, s{sNV}, {RN}')
if PROF: o('v_mov_b32 v255, 0')
for _v in (56,57,58,59,60,61,62,63,240,241,242,243): o(f'v_mov_b32 v{_v}, 0')
o(f's_mul_i32 s{sROT}, s{sS}, 5'); o(f's_add_u32 s{sROT}, s{sROT}, 1'); o(f's_lshr_b32 s{sROT}, s{sROT}, 1')
o(f's_lshr_b32 s{sWROT}, s2, 3')
o(f's_mov_b32 s{sM}, 0xffffff00')
def build_common():
    srd(rOUT,sOUT,N*512)
    o(f's_mul_i32 s{sA}, s{sS}, {SLICE}')
    o(f's_add_u32 s{rTW}, s{sWS}, s{sA}'); o(f's_addc_u32 s{rTW+1}, s{sWS+1}, 0')
    o(f's_add_u32 s{sA}, s{sNB}, s{sNV}'); o(f's_lshl_b32 s{rTW+2}, s{sA}, 8'); o(f's_mov_b32 s{rTW+3}, 0x20000')
    o(f's_mov_b32 s{rTR}, s{rTW}'); o(f's_mov_b32 s{rTR+1}, s{rTW+1}'); o(f's_mov_b32 s{rTR+2}, {(N+1)*256}'); o(f's_mov_b32 s{rTR+3}, 0x20000')
    srd_off(rSEG,sWS,WS_SEGT,0x21000)
    o(f's_add_u32 s{sEP}, s{sWS}, {WS_EPOCH}'); o(f's_addc_u32 s{sEP+1}, s{sWS+1}, 0')
    o(f's_load_dword s{sNONCE}, {sr(sEP,2)}, 0')
def wc_load():
    o('v_and_b32 v17, 7, v1'); o('v_lshlrev_b32 v17, 3, v17')
    o(f's_lshl_b32 s{sA}, s{sS}, 7'); o(f'v_add_u32 v17, s{sA}, v17')
    srd(rREC,sWC,512)
    o(f'buffer_load_dwordx2 v[250:251], v17, {sr(rREC,4)}, 0 offen')
    o(f'buffer_load_dwordx2 v[252:253], v17, {sr(rREC,4)}, 0 offen offset:64')
def wvoff(dst, wexpr_s):
    o('v_lshrrev_b32 v17, 3, v1')
    o(f's_lshl_b32 s{sA}, s{wexpr_s}, 3'); o(f'v_add_u32 v17, s{sA}, v17')
    o('v_bfe_u32 v20, v1, 4, 1')
    o(f's_and_b32 s{sA}, s{wexpr_s}, 1'); o(f's_lshl_b32 s{sA}, s{sA}, 1'); o(f'v_or_b32 v20, s{sA}, v20')
    o('v_bfe_u32 v19, v1, 1, 2'); o('v_xor_b32 v19, v19, v20'); o('v_lshlrev_b32 v19, 1, v19')
    o('v_and_b32 v20, 1, v1'); o('v_or_b32 v19, v19, v20')
    o('v_lshlrev_b32 v19, 4, v19'); o('v_lshl_add_u32 v19, v17, 9, v19')
    o(f's_lshl_b32 s{sA}, s{sS}, 7'); o(f'v_add_u32 v{dst}, s{sA}, v19')
o(f's_cmp_ge_u32 s{sW}, 4')
o('s_cbranch_scc1 L_e0')
o('v_lshrrev_b32 v17, 5, v1')
o(f's_lshl_b32 s{sA}, s{sW}, 1'); o(f'v_add_u32 v17, s{sA}, v17')
o('v_and_b32 v18, 31, v1'); o('v_and_b32 v19, 15, v17'); o('v_xor_b32 v22, v18, v19')
o('v_lshlrev_b32 v22, 4, v22'); o('v_lshl_add_u32 v22, v17, 9, v22')
o('v_add_u32 v17, 8, v17'); o('v_and_b32 v19, 15, v17'); o('v_xor_b32 v23, v18, v19')
o('v_lshlrev_b32 v23, 4, v23'); o('v_lshl_add_u32 v23, v17, 9, v23')
wvoff(249,sW)
o('s_waitcnt lgkmcnt(0)')
o('s_barrier')
stamp(0)
if 'stlb' in OPT:
    def touch(base, off_s=None, off_i=0):
        if off_s is None and off_i==0:
            o(f's_load_dword s13, {sr(base,2)}, 0'); return
        if off_s is not None:
            o(f's_add_u32 s14, s{base}, s{off_s}'); o(f's_addc_u32 s15, s{base+1}, 0')
            if off_i: o(f's_add_u32 s14, s14, {off_i}'); o('s_addc_u32 s15, s15, 0')
        else:
            o(f's_add_u32 s14, s{base}, {off_i}'); o(f's_addc_u32 s15, s{base+1}, 0')
        o('s_load_dword s13, s[14:15], 0')
    o(f's_lshl_b32 s3, s{sNB}, 9')
    touch(sX,3); touch(sWB); touch(sWV); touch(sWA); touch(sWU); touch(sOUT,3)
    touch(sWS,None,WS_RECS)
    o(f's_mul_i32 s3, s{sS}, {SLICE}')
    touch(sWS,3); touch(sWS,3,0x100000); touch(sWS,3,0x200000); touch(sWS,3,SLICE-256)
wc_load()
srd(rX,sX,N*512); srd(rW1,sWB,131072); srd(rW2,sWV,131072)
o(f's_lshl_b32 s{sC_}, s{sW}, 10')
o(f's_mov_b32 s{sTL}, s{sROT}')
o(f's_mov_b32 s{sI}, 0')
lab('L_dmaw')
o(f's_add_u32 s{sA}, s{sI}, s{sWROT}'); o(f's_and_b32 s{sA}, s{sA}, 7')
o(f's_lshl_b32 s{sB}, s{sA}, 14'); o(f's_lshl_b32 s{sA}, s{sA}, 12'); o(f's_add_u32 s{sA}, s{sA}, s{sC_}')
o(f's_add_u32 m0, s{sA}, {WR}'); o('s_nop 0')
o(f'buffer_load_dwordx4 v249, {sr(rW1,4)}, s{sB} offen lds')
o(f's_add_u32 m0, s{sA}, {WR+32768}'); o('s_nop 0')
o(f'buffer_load_dwordx4 v249, {sr(rW2,4)}, s{sB} offen lds')
o('s_waitcnt vmcnt(%s)' % OPT.get('pacew',OPT.get('pace','8')))
o(f's_add_u32 s{sI}, s{sI}, 1'); o(f's_cmp_lt_u32 s{sI}, 8'); o('s_cbranch_scc1 L_dmaw')
def xloop(lo,hi,name):
    o(f's_mov_b32 s{sI}, {lo}')
    lab(name)
    o(f's_lshr_b32 s{sTL}, s{sI}, 1'); o(f's_and_b32 s{sA}, s{sI}, 1'); o(f's_mul_i32 s{sA}, s{sA}, 5'); o(f's_add_u32 s{sTL}, s{sTL}, s{sA}')
    o(f's_lshl_b32 s{sA}, s{sTL}, 13'); o(f's_add_u32 s{sD}, s{sA}, s{sC_}'); o(f's_add_u32 m0, s{sD}, {XT}')
    o(f's_lshl_b32 s{sB}, s{sNB}, 9'); o(f's_add_u32 s{sB}, s{sB}, s{sA}')
    o(f'buffer_load_dwordx4 v22, {sr(rX,4)}, s{sB} offen lds')
    o(f's_add_u32 m0, s{sD}, {XT+4096}'); o('s_nop 0')
    o(f'buffer_load_dwordx4 v23, {sr(rX,4)}, s{sB} offen lds')
    o('s_waitcnt vmcnt(%s)' % OPT.get('pace','8'))
    o(f's_add_u32 s{sI}, s{sI}, 1'); o(f's_cmp_lt_u32 s{sI}, {hi}'); o(f's_cbranch_scc1 {name}')
xloop(0,4,'L_dmax1')
stamp(19)
build_common()
srd(rDST,sDST,E*4); srd(rSRC,sSRC,E*4); srd(rEA,sEA,E*2); srd_off(rREC,sWS,WS_RECS,256*CHCAP*8)
WF,AF,ACC,XA,XC,TRA,TOF,AUA=64,192,224,56,60,240,241,242
o(f's_and_b32 s{sD}, s{sW}, 1'); o(f's_lshl_b32 s{sD}, s{sD}, 1')
o('v_lshrrev_b32 v17, 4, v1')
o('v_bfe_u32 v18, v1, 2, 2')
o('v_lshl_add_u32 v19, v17, 3, v18')
o('v_lshlrev_b32 v19, 7, v19')
o('v_bfe_u32 v20, v1, 3, 1')
o('v_and_b32 v21, 1, v17'); o('v_lshl_or_b32 v20, v21, 1, v20')
o(f'v_xor_b32 v20, s{sD}, v20')
o('v_and_b32 v21, 3, v1'); o('v_lshl_add_u32 v19, v21, 3, v19'); o(f'v_add_u32 v19, {WR}, v19')
o(f'v_lshl_add_u32 v{TRA}, v20, 5, v19')
o('v_xor_b32 v20, 1, v20'); o(f'v_lshl_add_u32 v{TRA+3}, v20, 5, v19')
def wfrags():
    for m in range(2):
        for t in range(2):
            for ks in range(8):
                r=WF+64*m+32*t+4*ks; a=TRA if t==0 else TRA+3
                o(f'ds_read_b64_tr_b16 {vr(r,2)}, v{a} offset:{m*32768+ks*4096}')
                o(f'ds_read_b64_tr_b16 {vr(r+2,2)}, v{a} offset:{m*32768+ks*4096+512}')
o('v_and_b32 v18, 15, v1')
for k in range(4):
    o(f'v_and_b32 v19, 12, v18'); o(f'v_xor_b32 v19, {4*k}, v19')
    o('v_and_b32 v20, 3, v18'); o('v_xor_b32 v20, v20, v17')
    o('v_add_u32 v19, v19, v20'); o('v_lshlrev_b32 v19, 4, v19')
    o(f'v_lshl_add_u32 v{XA+k}, v18, 9, v19')
    o(f'v_add_u32 v{XA+k}, {XT}, v{XA+k}')
o('v_lshlrev_b32 v19, 10, v17')
o(f's_lshl_b32 s{sA}, s{sD}, 6')
o('v_lshl_add_u32 v19, v18, 2, v19'); o(f'v_add_u32 v{TOF}, s{sA}, v19')
o(f's_lshr_b32 s{sROT}, s{sW}, 1'); o(f's_mul_i32 s{sROT}, s{sROT}, 5')

o('s_waitcnt vmcnt(8) lgkmcnt(0)')
o(f's_mul_i32 s{sNONCE}, s{sNONCE}, 0x9E3779B1'); o(f's_add_u32 s{sNONCE}, s{sNONCE}, 0x7F4A7C15')
lds_inc(C_X,244)
lds_spin(C_X,4,244)
stamp(2)
wfrags()
if 'z1a' not in OPT:
    o('s_waitcnt lgkmcnt(0)')
    o(f's_lshl_b32 s{sC_}, s{sW}, 10')
lds_inc(C_W,244)
o('s_waitcnt vmcnt(0)')
lds_inc(C_X0,244)
lds_spin(C_X0,4,244)
stamp(3)
stamp(4)
o('s_branch L_g_gemm')
lab('L_e0')
if 'noprio' not in OPT: o('s_setprio %s' % OPT.get('eprio','2'))
o('v_subrev_u32 v14, 256, v0')
o(f's_mul_i32 s{sA}, s2, {CH}')
o(f'v_add_u32 v15, s{sA}, v14')
o('v_lshlrev_b32 v16, 1, v15'); o('v_lshlrev_b32 v15, 2, v15')
o(f'v_cmp_gt_u32 vcc, {CH-512}, v14')
o('v_add_u32 v18, 2048, v15'); o('v_add_u32 v19, 1024, v16')
o('v_mov_b32 v17, 0x40000000')
o('v_cndmask_b32 v18, v17, v18, vcc'); o('v_cndmask_b32 v19, v17, v19, vcc')
o('s_waitcnt lgkmcnt(0)')
ED,ES,EE=2,5,8
srd(rDST,sDST,E*4)
o(f'buffer_load_dword v{ED}, v15, {sr(rDST,4)}, 0 offen')
o(f'buffer_load_dword v{ED+1}, v15, {sr(rDST,4)}, 0 offen offset:1024')
o(f'buffer_load_dword v{ED+2}, v18, {sr(rDST,4)}, 0 offen')
srd(rSRC,sSRC,E*4)
o(f'buffer_load_dword v{ES}, v15, {sr(rSRC,4)}, 0 offen')
o(f'buffer_load_dword v{ES+1}, v15, {sr(rSRC,4)}, 0 offen offset:1024')
o(f'buffer_load_dword v{ES+2}, v18, {sr(rSRC,4)}, 0 offen')
srd(rEA,sEA,E*2)
o(f'buffer_load_ushort v{EE}, v16, {sr(rEA,4)}, 0 offen')
o(f'buffer_load_ushort v{EE+1}, v16, {sr(rEA,4)}, 0 offen offset:512')
o(f'buffer_load_ushort v{EE+2}, v19, {sr(rEA,4)}, 0 offen')
o('s_barrier')
stamp(0)
wc_load()
srd(rW1,sWA,131072); srd(rW2,sWU,131072)
o('s_lshr_b32 s3, s2, 3'); o('s_lshl_b32 s3, s3, 12')
o('v_lshrrev_b32 v17, 3, v1'); o('v_lshlrev_b32 v17, 9, v17'); o('v_and_b32 v19, 7, v1'); o('v_lshl_add_u32 v17, v19, 4, v17')
o(f's_lshl_b32 s{sA}, s{sS}, 7'); o(f'v_add_u32 v17, s{sA}, v17')
l=U('wu')
if 'nowu' not in OPT:
    o(f's_cmp_lg_u32 s{sW}, 4'); o(f's_cbranch_scc1 {l}_a')
    o(f'buffer_load_dwordx4 v[240:243], v17, {sr(rW1,4)}, s3 offen')
    lab(l+'_a')
    o(f's_cmp_lg_u32 s{sW}, 5'); o(f's_cbranch_scc1 {l}_b')
    o(f'buffer_load_dwordx4 v[240:243], v17, {sr(rW2,4)}, s3 offen')
    lab(l+'_b')
build_common()
srd(rX,sX,N*512); srd_off(rREC,sWS,WS_RECS,256*CHCAP*8)
if 'notlb' not in OPT:
    o(f's_cmp_lg_u32 s{sW}, 6'); o(f's_cbranch_scc1 {l}_c')
    o('v_lshlrev_b32 v17, 20, v1'); o('v_cmpx_gt_u32 vcc, 3, v1')
    o(f'buffer_load_dword v244, v17, {sr(rTR,4)}, 0 offen')
    o('s_mov_b64 exec, -1')
    lab(l+'_c')
    o(f's_cmp_lg_u32 s{sW}, 7'); o(f's_cbranch_scc1 {l}_d')
    o(f's_lshl_b32 s{sA}, s{sNB}, 9')
    o(f'buffer_load_dword v244, v{VZ}, {sr(rOUT,4)}, s{sA} offen')
    o(f'buffer_load_dword v245, v{VZ}, {sr(rREC,4)}, 0 offen')
    lab(l+'_d')
o(f's_sub_u32 s{sD}, s{sW}, 4')
wvoff(249,sD)
o('v_lshrrev_b32 v17, 5, v1')
o(f's_lshl_b32 s{sA}, s{sD}, 1'); o(f'v_add_u32 v17, s{sA}, v17')
o('v_and_b32 v18, 31, v1'); o('v_and_b32 v19, 15, v17'); o('v_xor_b32 v246, v18, v19')
o('v_lshlrev_b32 v246, 4, v246'); o('v_lshl_add_u32 v246, v17, 9, v246')
o('v_add_u32 v17, 8, v17'); o('v_and_b32 v19, 15, v17'); o('v_xor_b32 v247, v18, v19')
o('v_lshlrev_b32 v247, 4, v247'); o('v_lshl_add_u32 v247, v17, 9, v247')
o('s_waitcnt vmcnt(%d)' % (2 if ('nowu' in OPT or 'notlb' in OPT) else 3))
stamp(22)
o(f's_mov_b32 s{sA}, 106862')
RR,RK_,RW=36,24,28
for k in range(3):
    o(f'v_mul_lo_u32 v{RR+k}, v{ED+k}, s{sA}')
for k in range(3):
    o(f'v_lshrrev_b32 v{RR+k}, 24, v{RR+k}')
    o(f'v_mul_u32_u24 v17, {RN}, v{RR+k}'); o(f'v_sub_u32 v17, v{ED+k}, v17')
    o(f'v_lshl_or_b32 v{RW+2*k}, v{ES+k}, 8, v17'); o(f'v_lshlrev_b32 v{RW+2*k+1}, 16, v{EE+k}')
    o(f'v_lshlrev_b32 v{RR+k}, 2, v{RR+k}')
o('v_mov_b32 v16, 1')
o(f'ds_add_rtn_u32 v{RK_}, v{RR}, v16 offset:{HIST1}')
o(f'ds_add_rtn_u32 v{RK_+1}, v{RR+1}, v16 offset:{HIST1}')
o(f'v_cmpx_gt_u32 vcc, {CH-512}, v14')
o(f'ds_add_rtn_u32 v{RK_+2}, v{RR+2}, v16 offset:{HIST1}')
o('s_mov_b64 exec, -1')
lds_inc(C_H,17)
o('v_lshlrev_b32 v18, 2, v1')
def spin_with(addr,need,vtmp,reads):
    l=U('spw'); d=U('spwd')
    o(f's_mov_b32 s{sSP}, 0')
    lab(l)
    o(f'ds_read_b32 v{vtmp}, v{VZ} offset:{addr}')
    for t in reads: o(t)
    o('s_waitcnt lgkmcnt(0)')
    o(f'v_readfirstlane_b32 s{sA}, v{vtmp}')
    o(f's_add_u32 s{sSP}, s{sSP}, 1')
    o(f's_cmp_ge_u32 s{sA}, {need}')
    o(f's_cbranch_scc1 {d}')
    o(f's_cmp_lt_u32 s{sSP}, 0x40000')
    o(f's_cbranch_scc1 {l}')
    lab(d)
spin_with(C_H,4,17,[f'ds_read_b32 v20, v18 offset:{HIST1}'])
o(f's_mul_i32 s{sNONCE}, s{sNONCE}, 0x9E3779B1'); o(f's_add_u32 s{sNONCE}, s{sNONCE}, 0x7F4A7C15')
o('v_add_u32 v21, 1, v20'); o('v_and_b32 v21, -2, v21'); o('v_mov_b32 v22, v21')
scan64(21)
o('v_sub_u32 v22, v21, v22')
for k in range(3): o(f'ds_bpermute_b32 v{RR+k}, v{RR+k}, v22')
o('s_waitcnt lgkmcnt(0)')
for k in range(3): o(f'v_add_lshl_u32 v{RR+k}, v{RR+k}, v{RK_+k}, 3')
for k in range(3): o(f'v_add_u32 v{RR+k}, {RST}, v{RR+k}')
o(f'ds_write_b64 v{RR}, {vr(RW,2)}')
o(f'ds_write_b64 v{RR+1}, {vr(RW+2,2)}')
o(f'v_cmpx_gt_u32 vcc, {CH-512}, v14')
o(f'ds_write_b64 v{RR+2}, {vr(RW+4,2)}')
o('s_mov_b64 exec, -1')
lds_inc(C_S,16)
o('v_lshlrev_b32 v17, 4, v14'); o(f'v_add_u32 v18, {RST}, v17')
spin_with(C_S,4,16,['ds_read_b128 v[28:31], v18','ds_read_b128 v[32:35], v18 offset:4096'])
o(f's_mul_i32 s{sA}, s2, {CHCAP*8}'); o(f's_add_u32 s{sB}, s{sA}, 4096')
o(f's_and_b32 s{sC_}, s{sNONCE}, 0xffff'); o(f's_lshr_b32 s{sD}, s{sNONCE}, 16')
o('v_mov_b32 v19, 0xffff0000')
o(f'v_and_or_b32 v29, v29, v19, s{sC_}'); o(f'v_and_or_b32 v31, v31, v19, s{sD}')
o(f'v_and_or_b32 v33, v33, v19, s{sC_}'); o(f'v_and_or_b32 v35, v35, v19, s{sD}')
if 'noEst' not in OPT:
    o(f'buffer_store_dwordx4 v[28:31], v17, {sr(rREC,4)}, s{sA} offen sc1')
    o(f'v_cmpx_gt_u32 vcc, {(CHCAP*8-4096)//16}, v14')
    o(f'buffer_store_dwordx4 v[32:35], v17, {sr(rREC,4)}, s{sB} offen sc1')
    o('s_mov_b64 exec, -1')
stamp(2)
l=U('nopub')
if 'noEst' in OPT: o(f's_branch {l}')
o(f's_cmp_lg_u32 s{sW}, 4'); o(f's_cbranch_scc1 {l}')
o('v_lshl_or_b32 v24, v20, 16, v22'); o(f'v_mov_b32 v25, s{sNONCE}')
o('v_lshlrev_b32 v17, 11, v1')
o(f's_lshl_b32 s{sA}, s2, 3')
o(f'buffer_store_dwordx2 v[24:25], v17, {sr(rSEG,4)}, s{sA} offen sc1')
lab(l)
stamp(3)
stamp(4)
o('s_branch L_main_setup' if 'xE' in OPT else 's_branch L_eteam_b')
lab('L_g_gemm')
if 'gprio' in OPT: o('s_setprio 3')
sTE=11
sTC=12
def xread(ks): return f'ds_read_b128 {vr(AF+4*ks,4)}, v{XC+(ks&3)} offset:{256 if ks>=4 else 0}'
def epi_list(which,a,t):
    e=[]
    for i in range(4): e.append(f'v_mul_f32 v{a+i}, {NLOG2E:#x}, v{a+i}')
    for i in range(4): e.append(f'v_cvt_pk_bf16_f32 v{a+i}, v{a+i}, v{a+4+i}')
    if which==1:
        for i in range(4): e.append(f'buffer_store_dword v{a+i}, v{TOF}, {sr(rTW,4)}, s{sB if t==1 else sD} offen offset:{i*256+64*t} sc1')
    else:
        for i in range(4): e.append(f'ds_write_b32 v{AUA if t==1 else AUA+2}, v{a+i} offset:{i*256+64*t}')
    return e
def addr_ops(which,tile_s,t):
    dst = sB if t==1 else sD
    if which==1: return [f's_lshl_b32 s{dst}, s{tile_s}, 4', f's_add_u32 s{dst}, s{dst}, s{sNB}', f's_lshl_b32 s{dst}, s{dst}, 8']
    return [f's_lshl_b32 s{dst}, s{tile_s}, 12', f's_add_u32 s{dst}, s{dst}, {AU}', f'v_add_u32 v{AUA if t==1 else AUA+2}, s{dst}, v{TOF}']
sTO=[13,14,15,46,47]
PK=8
def gemm_body(which, j):
    B0,V0,B1,V1=ACC,ACC+4,ACC+8,ACC+12
    if which==1:
        def epi1(a,jj,t):
            e=[f'v_mul_f32 v{a+i}, {NLOG2E:#x}, v{a+i}' for i in range(4)]
            e+=[f'v_cvt_pk_bf16_f32 v{PK+8*jj+4*t+i}, v{a+i}, v{a+4+i}' for i in range(4)]
            return e
        eP1=epi1(B1,j-1,1) if j>0 else []; eP0=epi1(B0,j,0)
        a1=[]; a0=[]
    else:
        eP1=epi_list(2,B1,1); eP0=epi_list(2,B0,0)
        a1=addr_ops(2,sTE,1); a0=addr_ops(2,sTC,0)
    fill=[[] for _ in range(16)]
    if which==2:
        fill[0]+=a1[0:2]; fill[1]+=a1[2:3]+a0[0:1]; fill[2]+=a0[1:3]
        fill[3]+=eP1[0:3]; fill[4]+=eP1[3:6]; fill[5]+=eP1[6:9]; fill[6]+=eP1[9:11]; fill[7]+=eP1[11:12]
    elif eP1:
        fill[3]+=eP1[0:2]; fill[4]+=eP1[2:4]; fill[5]+=eP1[4:6]; fill[6]+=eP1[6:8]
    if not (which==1 and j==4):
        for ks in range(8): fill[8+ks].append(xread(ks))
    if which==2:
        fill[11]+=eP0[0:3]; fill[12]+=eP0[3:6]; fill[13]+=eP0[6:9]; fill[14]+=eP0[9:11]; fill[15]+=eP0[11:12]
        tail=[f's_mov_b32 s{sTE}, s{sTC}', f's_add_u32 s{sTC}, s{sTC}, 1', f's_add_u32 s{sA}, s{sTC}, 1', f's_lshl_b32 s{sA}, s{sA}, 13']
        fill[9]+=tail[0:2]; fill[10]+=tail[2:4]
    else:
        fill[11]+=eP0[0:2]; fill[12]+=eP0[2:4]; fill[13]+=eP0[4:6]; fill[14]+=eP0[6:8]
        fill[9]+=[f's_add_u32 s{sTC}, s{sTC}, 8192']
    seq=[]
    for sl in range(16):
        for t in fill[sl]:
            if t.startswith('ds_read'): seq.append((sl,'r'))
            elif t.startswith('ds_write'): seq.append((sl,'w'))
    def waitcount(ks):
        if which==1: return 7-ks
        n=0; found=False; k=-1
        for (sl,kind) in seq:
            if kind=='r':
                k+=1
                if k==ks: found=True; continue
            if found: n+=1
        for (sl,kind) in seq:
            if sl<ks: n+=1
        return n
    for ph in range(2):
        for ks in range(8):
            ab,av=(B0,V0) if ph==0 else (B1,V1)
            wb=WF+32*ph+4*ks; wv=WF+64+32*ph+4*ks
            if ph==0: o(f's_waitcnt lgkmcnt({min(waitcount(ks),15)})')
            c1='0' if ks==0 else vr(ab,4); c2='0' if ks==0 else vr(av,4)
            f=fill[8*ph+ks]
            o(f'v_mfma_f32_16x16x32_bf16 {vr(ab,4)}, {vr(AF+4*ks,4)}, {vr(wb,4)}, {c1}')
            h=(len(f)+1)//2 if ph==0 else 0
            for t in f[:h]: o(t)
            o(f'v_mfma_f32_16x16x32_bf16 {vr(av,4)}, {vr(AF+4*ks,4)}, {vr(wv,4)}, {c2}')
            for t in f[h:]: o(t)
    if which==2:
        for k in range(4): o(f'v_add_u32 v{XC+k}, s{sA}, v{XA+k}')
    elif j<3:
        for k in range(4): o(f'v_add_u32 v{XC+k}, s{sTC}, v{XA+k}')
def table_stores():
    for j in range(5):
        o(f's_add_u32 s{sB}, s{sROT}, {j}'); o(f's_lshl_b32 s{sB}, s{sB}, 4'); o(f's_add_u32 s{sB}, s{sB}, s{sNB}'); o(f's_lshl_b32 s{sB}, s{sB}, 8')
        for t in range(2):
            for i in range(4):
                o(f'buffer_store_dword v{PK+8*j+4*t+i}, v{TOF}, {sr(rTW,4)}, s{sB} offen offset:{i*256+64*t} sc1')
def gemm1():
    o(f's_lshl_b32 s{sTC}, s{sROT}, 13')
    for k in range(4): o(f'v_add_u32 v{XC+k}, s{sTC}, v{XA+k}')
    for ks in range(8): o(xread(ks))
    o(f's_add_u32 s{sTC}, s{sTC}, 8192')
    for k in range(4): o(f'v_add_u32 v{XC+k}, s{sTC}, v{XA+k}')
    o('s_waitcnt lgkmcnt(0)')
    for j in range(5):
        if j in (1,2,3): lds_spin(C_XE+4*(j-1),4,244)
        gemm_body(1,j)
    o('s_nop 7')
    for i in range(4): o(f'v_mul_f32 v{ACC+8+i}, {NLOG2E:#x}, v{ACC+8+i}')
    for i in range(4): o(f'v_cvt_pk_bf16_f32 v{PK+32+4+i}, v{ACC+8+i}, v{ACC+12+i}')
def dummy_row():
    l=U('nodummy')
    o(f's_cmp_lg_u32 s{sR}, 63'); o(f's_cbranch_scc1 {l}')
    o(f's_cmp_lg_u32 s{sW}, 0'); o(f's_cbranch_scc1 {l}')
    o('v_mov_b32 v244, 0x7f7f'); o('v_lshlrev_b32 v245, 2, v1'); o(f'v_add_u32 v245, {N*256}, v245')
    o(f'buffer_store_dword v244, v245, {sr(rTR,4)}, 0 offen sc1')
    lab(l)
def own_prefetch(dst):
    o(f's_lshl_b32 s{sA}, s{sNB}, 8'); o(f's_mul_i32 s{sB}, s{sW}, 10240'); o(f's_add_u32 s{sA}, s{sA}, s{sB}')
    if 'touch' in OPT:
        o('v_lshlrev_b32 v243, 7, v1')
        o(f'buffer_load_dword v244, v243, {sr(rTW,4)}, s{sA} offen sc1')
        o(f's_add_u32 s{sA}, s{sA}, 8192'); o('v_cmpx_gt_u32 vcc, 16, v1')
        o(f'buffer_load_dword v245, v243, {sr(rTW,4)}, s{sA} offen sc1')
        o('s_mov_b64 exec, -1')
        return
    o('v_lshlrev_b32 v243, 4, v1')
    for i in range(10):
        o(f'buffer_load_dwordx4 {dst}, v243, {sr(rTW,4)}, s{sA} offen sc1')
        o(f's_add_u32 s{sA}, s{sA}, 1024')
def gemm2():
    B0,V0,B1,V1=ACC,ACC+4,ACC+8,ACC+12
    for j in range(5):
        o(f's_add_u32 s{sTO[j]}, s{sROT}, {j}'); o(f's_lshl_b32 s{sTO[j]}, s{sTO[j]}, 4'); o(f's_add_u32 s{sTO[j]}, s{sTO[j]}, s{sNB}'); o(f's_lshl_b32 s{sTO[j]}, s{sTO[j]}, 8')
    o(f's_lshl_b32 s{sTC}, s{sROT}, 13')
    for k in range(4): o(f'v_add_u32 v{XC+k}, s{sTC}, v{XA+k}')
    for ks in range(8): o(xread(ks))
    o(f's_add_u32 s{sTC}, s{sTC}, 8192')
    for k in range(4): o(f'v_add_u32 v{XC+k}, s{sTC}, v{XA+k}')
    o(f's_lshl_b32 s{sA}, s{sROT}, 12'); o(f's_add_u32 s{sA}, s{sA}, {AU}'); o(f'v_add_u32 v{AUA}, s{sA}, v{TOF}')
    o('s_waitcnt lgkmcnt(0)')
    def epi(a,jj,t):
        e=[f'v_mul_f32 v{a+i}, {NLOG2E:#x}, v{a+i}' for i in range(4)]
        e+=[f'v_cvt_pk_bf16_f32 v{a+i}, v{a+i}, v{a+4+i}' for i in range(4)]
        e+=[f'ds_write_b32 v{AUA}, v{a+i} offset:{jj*4096+i*256+64*t}' for i in range(4)]
        return e
    def tst(jj): return [f'buffer_store_dword v{PK+8*jj+4*t+i}, v{TOF}, {sr(rTW,4)}, s{sTO[jj]} offen offset:{i*256+64*t} sc1' for t in range(2) for i in range(4)]
    stores={0:tst(0)+tst(1),1:tst(2)+tst(3),2:tst(4),3:[],4:[]}
    prev_tail=0
    for j in range(5):
        eP1=epi(B1,j-1,1) if j>0 else []; eP0=epi(B0,j,0)
        fill=[[] for _ in range(16)]
        if eP1:
            fill[3]+=eP1[0:3]; fill[4]+=eP1[3:6]; fill[5]+=eP1[6:9]; fill[6]+=eP1[9:11]; fill[7]+=eP1[11:12]
        if j<4:
            for ks in range(8): fill[8+ks].append(xread(ks))
        fill[11]+=eP0[0:3]; fill[12]+=eP0[3:6]; fill[13]+=eP0[6:9]; fill[14]+=eP0[9:11]; fill[15]+=eP0[11:12]
        if j<3: fill[9]+=[f's_add_u32 s{sTC}, s{sTC}, 8192']
        st=list(stores[j])
        for sl in range(16):
            if st: fill[sl].append(st.pop(0))
        seq=[(sl,('r' if t.startswith('ds_read') else 'w')) for sl in range(16) for t in fill[sl] if t.startswith('ds_')]
        for ph in range(2):
            for ks in range(8):
                ab,av=(B0,V0) if ph==0 else (B1,V1)
                wb=WF+32*ph+4*ks; wv=WF+64+32*ph+4*ks
                if ph==0 and j>0:
                    n=0; found=False; k=-1
                    for (sl,kind) in prevseq:
                        if kind=='r':
                            k+=1
                            if k==ks: found=True; continue
                        if found: n+=1
                    n+=sum(1 for (sl,kind) in seq if sl<ks)
                    o(f's_waitcnt lgkmcnt({min(n,15)})')
                c1='0' if ks==0 else vr(ab,4); c2='0' if ks==0 else vr(av,4)
                f=fill[8*ph+ks]
                o(f'v_mfma_f32_16x16x32_bf16 {vr(ab,4)}, {vr(AF+4*ks,4)}, {vr(wb,4)}, {c1}')
                h=(len(f)+1)//2 if ph==0 else 0
                for t in f[:h]: o(t)
                o(f'v_mfma_f32_16x16x32_bf16 {vr(av,4)}, {vr(AF+4*ks,4)}, {vr(wv,4)}, {c2}')
                for t in f[h:]: o(t)
        if j<3:
            for k in range(4): o(f'v_add_u32 v{XC+k}, s{sTC}, v{XA+k}')
        prevseq=seq
        if j==int(OPT.get('f2it','3')):
            l=U('nf2')
            o('s_waitcnt vmcnt(0)')
            lds_inc(C_T,244,ret=True)
            o(f's_cmp_lg_u32 s{sA}, 3'); o(f's_cbranch_scc1 {l}')
            o('s_mov_b64 exec, 1')
            for i in range(4): o(f'v_mov_b32 v{244+i}, s{sNONCE}')
            o(f's_lshl_b32 s{sA}, s{sS}, 6'); o(f's_add_u32 s{sA}, s{sA}, s{sR}'); o(f's_lshl_b32 s{sA}, s{sA}, 4')
            o(f's_add_u32 s{sA}, s{sA}, {SEGT_FLAG2}')
            o(f'buffer_store_dwordx4 v[244:247], v{VZ}, {sr(rSEG,4)}, s{sA} offen sc1')
            o('s_mov_b64 exec, -1')
            lab(l)
            if 'preat' in OPT:
                o('s_nop 1'); own_prefetch('v[244:247]')
    o('s_nop 7')
    for t in epi(B1,4,1): o(t)
    if 'nopre' not in OPT and 'preat' not in OPT:
        own_prefetch('v[232:235]' if 'nowait' in OPT else 'v[44:47]')
    if 'preout' in OPT:
        o('v_lshrrev_b32 v245, 3, v1'); o('v_lshlrev_b32 v245, 9, v245'); o('v_and_b32 v246, 7, v1'); o('v_lshl_add_u32 v245, v246, 4, v245')
        o(f's_mul_i32 s{sB}, s{sW}, {40*512}'); o(f's_lshl_b32 s{sA}, s{sNB}, 9'); o(f's_add_u32 s{sA}, s{sA}, s{sB}')
        o(f's_lshl_b32 s{sB}, s{sS}, 7'); o(f's_add_u32 s{sA}, s{sA}, s{sB}')
        for i in range(5):
            o(f'buffer_load_dwordx4 v[44:47], v245, {sr(rOUT,4)}, s{sA} offen')
            o(f's_add_u32 s{sA}, s{sA}, {8*512}')
gemm1()
stamp(5)
lds_spin(C_WA,4,244)
wfrags()
if 'z1a' not in OPT: o('s_waitcnt lgkmcnt(0)')
lds_inc(C_G,244)
lds_spin(C_G,4,244)
stamp(18)
if 'xE' not in OPT and 'nogate' not in OPT: lds_spin(C_RL,4,244)
dummy_row()
stamp(6)
gemm2()
o('s_waitcnt lgkmcnt(0)')
stamp(7)
o('s_branch L_main_setup')
lab('L_eteam_b')
SG,RC0,RC1,SA,RKB=64,80,112,144,200
T=176
o(f's_sub_u32 s{sC_}, s{sW}, 4')
o('v_lshrrev_b32 v17, 3, v1')
o(f's_lshl_b32 s{sA}, s{sC_}, 3'); o(f'v_add_u32 v17, s{sA}, v17')
o(f'v_lshlrev_b32 v{T}, 3, v17')
o('v_and_b32 v18, 7, v1')
o(f'v_mul_u32_u24 v{T+1}, {CHCAP*8}, v17'); o(f'v_lshl_add_u32 v{T+1}, v18, 4, v{T+1}')
IX=T+2
o(f'v_lshlrev_b32 v{IX}, 1, v18'); o(f'v_add_u32 v{IX+1}, 1, v{IX}'); o(f'v_add_u32 v{IX+2}, 16, v{IX}'); o(f'v_add_u32 v{IX+3}, 17, v{IX}')
lds_spin(C_W,4,17)
o(f's_sub_u32 s{sC_}, s{sW}, 4'); o(f's_lshl_b32 s{sC_}, s{sC_}, 10')
for i in range(8):
    o(f's_add_u32 m0, s{sC_}, {WR+i*4096}'); o(f's_mov_b32 s{sB}, {i*16384}')
    o(f'buffer_load_dwordx4 v249, {sr(rW1,4)}, s{sB} offen lds')
    o(f's_add_u32 m0, s{sC_}, {WR+32768+i*4096}'); o('s_nop 0')
    o(f'buffer_load_dwordx4 v249, {sr(rW2,4)}, s{sB} offen lds')
    o('s_waitcnt vmcnt(%s)' % OPT.get('paceu','8'))
for idx in range(4,10):
    tile=(idx>>1)+5*(idx&1)
    o(f's_add_u32 m0, s{sC_}, {XT+tile*8192}'); o(f's_lshl_b32 s{sB}, s{sNB}, 9'); o(f's_add_u32 s{sB}, s{sB}, {tile*8192}')
    o(f'buffer_load_dwordx4 v246, {sr(rX,4)}, s{sB} offen lds')
    o(f's_add_u32 m0, s{sC_}, {XT+tile*8192+4096}'); o('s_nop 0')
    o(f'buffer_load_dwordx4 v247, {sr(rX,4)}, s{sB} offen lds')
    o('s_waitcnt vmcnt(8)')
    if idx==7: lds_inc(C_WA,17)
    if idx==9: lds_inc(C_XE,17)
XLAST=True
o(f's_lshl_b32 s{sD}, s{sR}, 11')
o(f's_mov_b32 s{sSP}, 0')
lp=U('poll1'); dn=U('poll1d')
lab(lp)
for p in range(8):
    o(f'buffer_load_dwordx2 {vr(SG+2*p,2)}, v{T}, {sr(rSEG,4)}, s{sD} offen offset:{p*256} sc1')
o(f'v_mov_b32 v19, s{sNONCE}')
l=U('xl'); o(f's_cmp_lg_u32 s{sSP}, 0'); o(f's_cbranch_scc1 {l}')
o('s_waitcnt vmcnt(12)'); lds_inc(C_XE+4,17)
o('s_waitcnt vmcnt(8)'); lds_inc(C_XE+8,17)
lab(l)
o('s_waitcnt vmcnt(0)')
o(f'v_xor_b32 v20, v{SG+1}, v19')
for p in range(1,8):
    o(f'v_xor_b32 v21, v{SG+2*p+1}, v19'); o('v_or_b32 v20, v20, v21')
o('v_cmp_ne_u32 vcc, 0, v20')
o(f's_cbranch_vccz {dn}')
o('s_sleep 6')
o(f's_add_u32 s{sSP}, s{sSP}, 1'); o(f's_cmp_lt_u32 s{sSP}, 0x10000'); o(f's_cbranch_scc1 {lp}')
lab(dn)
stamp(5)
o('v_mov_b32 v20, 0')
for p in range(8):
    o(f'v_lshrrev_b32 v{SG+2*p+1}, 16, v{SG+2*p}')
    o(f'v_max_u32 v20, v20, v{SG+2*p+1}')
o('v_cmp_lt_u32 vcc, 32, v20')
l=U('nofb'); o(f's_cbranch_vccz {l}')
o('v_mov_b32 v21, 1'); o(f'ds_write_b32 v{VZ}, v21 offset:{C_FB}')
lab(l)
o(f's_mov_b32 s{sSP}, 0')
lr=U('recld'); dr=U('recok')
lab(lr)
for p in range(8):
    o(f'v_and_b32 v19, 0xffff, v{SG+2*p}')
    o(f'v_lshl_add_u32 v19, v19, 3, v{T+1}')
    o(f's_mov_b32 s{sA}, {p*32*CHCAP*8}')
    o(f'v_cmp_lt_u32 vcc, 16, v{SG+2*p+1}')
    o(f'buffer_load_dwordx4 {vr(RC0+4*p,4)}, v19, {sr(rREC,4)}, s{sA} offen sc1')
    l=U('ld1'); o(f's_cbranch_vccz {l}')
    o(f'buffer_load_dwordx4 {vr(RC1+4*p,4)}, v19, {sr(rREC,4)}, s{sA} offen offset:128 sc1')
    lab(l)
l=U('sig'); o(f's_cmp_lg_u32 s{sSP}, 0'); o(f's_cbranch_scc1 {l}_r')
lds_inc(C_RL,20)
o('s_waitcnt vmcnt(0)')
o(f's_branch {l}')
lab(l+'_r')
o('s_waitcnt vmcnt(0)')
lab(l)
o('v_mov_b32 v21, 0x05040100'); o('v_mov_b32 v22, 0'); o(f'v_mov_b32 v23, s{sNONCE}')
for p in range(8):
    for st in range(2):
        rec=(RC0 if st==0 else RC1)+4*p
        if st==1:
            l=U('v1'); o(f'v_cmp_lt_u32 vcc, 16, v{SG+2*p+1}'); o(f's_cbranch_vccz {l}')
        o(f'v_cmpx_lt_u32 vcc, v{IX+2*st}, v{SG+2*p+1}')
        o(f'v_perm_b32 v20, v{rec+3}, v{rec+1}, v21'); o('v_xor_b32 v20, v20, v23'); o('v_or_b32 v22, v22, v20')
        o('s_mov_b64 exec, -1')
        if st==1: lab(l)
o('v_cmp_ne_u32 vcc, 0, v22')
o(f's_cbranch_vccz {dr}')
o('s_sleep 2')
o(f's_add_u32 s{sSP}, s{sSP}, 1'); o(f's_cmp_lt_u32 s{sSP}, 0x10000'); o(f's_cbranch_scc1 {lr}')
lab(dr)
stamp(6)
def each_rec(fn):
    for p in range(8):
        for st in range(2):
            if st==1:
                l=U('st1'); o(f'v_cmp_lt_u32 vcc, 16, v{SG+2*p+1}'); o(f's_cbranch_vccz {l}')
            for i in range(2):
                rec=(RC0 if st==0 else RC1)+4*p+2*i
                o(f'v_cmpx_lt_u32 vcc, v{IX+2*st+i}, v{SG+2*p+1}')
                fn(rec, SA+4*p+2*st+i)
            o('s_mov_b64 exec, -1')
            if st==1: lab(l)
SD='dst_sel:DWORD dst_unused:UNUSED_PAD src0_sel:DWORD src1_sel:BYTE_0'
o('v_mov_b32 v22, 1'); o('v_mov_b32 v23, 64')
def f_hist(rec,sa):
    o(f'v_lshlrev_b32_sdwa v20, 2, v{rec} {SD}'); o(f'ds_add_rtn_u32 v{sa-SA+RKB}, v20, v22 offset:{DEG}')
each_rec(f_hist)
lds_inc(C_E1,20)
stamp(7)
o(f's_cmp_lg_u32 s{sW}, 4')
o('s_cbranch_scc1 L_e_prefill')
D0,K0,P0=24,28,32
o('v_lshlrev_b32 v19, 2, v1')
perm=[]
for w in range(8): perm += ([w,w+4,11-w] if w<4 else [19-w,23-w]) if 'oldperm' not in OPT else ([w,15-w] + ([19-w] if w<4 else []))
o('v_mov_b32 v38, 31')
for i,g in enumerate(perm): o(f'v_writelane_b32 v38, {g}, {i}')
o('v_lshlrev_b32 v38, 2, v38')
o('v_sub_u32 v37, 252, v19')
spin_with(C_E1,4,20,[f'ds_read_b32 v{D0+a}, v19 offset:{DEG+a*256}' for a in range(3)])
for a in range(3):
    o(f'v_min_u32 v{K0+a}, 63, v{D0+a}'); o(f'v_lshlrev_b32 v{K0+a}, 2, v{K0+a}')
    if a==2: o('v_cmpx_gt_u32 vcc, 32, v1')
    o(f'ds_add_rtn_u32 v{P0+a}, v{K0+a}, v22 offset:{HIST2}')
o('s_mov_b64 exec, -1')
o(f'ds_read_b32 v36, v37 offset:{HIST2}')
for a in range(3): o(f'v_sub_u32 v{K0+a}, 252, v{K0+a}')
o('s_waitcnt lgkmcnt(0)')
o('v_mov_b32 v35, v36') if False else None
o('v_mov_b32 v39, v36')
scan64(36)
o('v_sub_u32 v36, v36, v39')
for a in range(3): o(f'ds_bpermute_b32 v{K0+a}, v{K0+a}, v36')
o('s_waitcnt lgkmcnt(0)')
for a in range(3):
    o(f'v_add_u32 v{P0+a}, v{P0+a}, v{K0+a}')
    o(f'v_add_u32 v21, {64*a}, v1')
    o(f'v_cmp_gt_u32 vcc, s{sNV}, v21')
    o(f'v_lshlrev_b32 v20, 3, v{P0+a}')
    o(f'v_lshrrev_b32 v{K0+a}, 3, v{P0+a}'); o(f'v_lshlrev_b32 v{K0+a}, 2, v{K0+a}')
    o('v_mov_b32 v40, 0x200000')
    o('v_and_b32 v43, 15, v21'); o('v_lshlrev_b32 v43, 4, v43'); o('v_lshl_add_u32 v43, v21, 9, v43')
    o('v_cndmask_b32 v42, v40, v21, vcc')
    if a==2: o('v_cmpx_gt_u32 vcc, 32, v1')
    o(f'ds_write_b64 v20, v[42:43] offset:{NODEOF}')
    o(f'ds_max_u32 v{K0+a}, v{D0+a} offset:{LG}')
o('s_mov_b64 exec, -1')
o(f'ds_read_b32 v39, v38 offset:{LG}')
o('s_waitcnt lgkmcnt(0)')
o('v_add_u32 v39, 1, v39'); o('v_lshrrev_b32 v39, 1, v39')
o('v_mov_b32 v40, v39')
scan64(39)
o('v_sub_u32 v40, v39, v40')
o('v_lshlrev_b32 v40, 7, v40'); o(f'v_add_u32 v40, {ELL}, v40')
o(f'ds_write_b32 v38, v40 offset:{GBASE}')
o(f'v_readlane_b32 s{sA}, v39, 19')
for a in range(3): o(f'ds_read_b32 v{K0+a}, v{K0+a} offset:{GBASE}')
o(f's_cmp_le_u32 s{sA}, {ELLB-4}')
l=U('fits'); o(f's_cbranch_scc1 {l}')
o('v_mov_b32 v21, 1'); o(f'ds_write_b32 v{VZ}, v21 offset:{C_FB}')
lab(l)
o('s_waitcnt lgkmcnt(0)')
for a in range(3):
    o(f'v_and_b32 v21, 7, v{P0+a}'); o(f'v_lshl_add_u32 v21, v21, 3, v{K0+a}')
    o(f'ds_write_b32 v19, v21 offset:{CUR+a*256}')
lds_inc(C_SORT,20)
o('s_branch L_e_wait')
lab('L_e_prefill')
lds_spin(C_G,4,20)
o(f's_sub_u32 s{sA}, s{sW}, 5'); o(f's_lshl_b32 s{sA}, s{sA}, 10'); o(f's_add_u32 s{sA}, s{sA}, {ELL}')
o(f'v_lshlrev_b32 v20, 4, v1'); o(f'v_add_u32 v20, s{sA}, v20')
o(f'v_mov_b32 v24, {N*256}'); o('v_mov_b32 v25, 0'); o(f'v_mov_b32 v26, {N*256}'); o('v_mov_b32 v27, 0')
for i in range(12): o(f'ds_write_b128 v20, v[24:27] offset:{i*3072}')
lds_inc(C_P,21)
lab('L_e_wait')
if 'z1b' in OPT:
    lw=U('ew'); ld=U('ewd')
    o(f's_mov_b32 s{sSP}, 0')
    lab(lw)
    o(f'ds_read_b32 v20, v{VZ} offset:{C_SORT}'); o(f'ds_read_b32 v21, v{VZ} offset:{C_P}'); o(f'ds_read_b32 v25, v{VZ} offset:{C_FB}')
    o('s_waitcnt lgkmcnt(0)')
    o(f'v_readfirstlane_b32 s{sA}, v20'); o(f'v_readfirstlane_b32 s{sB}, v21'); o(f'v_readfirstlane_b32 s{sC_}, v25')
    o(f's_mul_i32 s{sA}, s{sA}, 3'); o(f's_min_u32 s{sA}, s{sA}, s{sB}')
    o(f's_add_u32 s{sSP}, s{sSP}, 1')
    o(f's_cmp_ge_u32 s{sA}, 3'); o(f's_cbranch_scc1 {ld}')
    o('s_sleep 1')
    o(f's_cmp_lt_u32 s{sSP}, 0x40000'); o(f's_cbranch_scc1 {lw}')
    lab(ld)
    stamp(8)
    o(f's_cmp_lg_u32 s{sC_}, 0'); o('s_cbranch_scc1 L_e_done')
else:
    lds_spin(C_SORT,1,20)
    lds_spin(C_P,3,20)
    stamp(8)
    o(f'ds_read_b32 v20, v{VZ} offset:{C_FB}'); o('s_waitcnt lgkmcnt(0)')
    o(f'v_readfirstlane_b32 s{sA}, v20'); o(f's_cmp_lg_u32 s{sA}, 0'); o('s_cbranch_scc1 L_e_done')
def f_slot(rec,sa):
    o(f'v_lshlrev_b32_sdwa v20, 2, v{rec} {SD}'); o(f'ds_read_b32 v{sa}, v20 offset:{CUR}')
each_rec(f_slot)
o('s_waitcnt lgkmcnt(0)')
def f_put(rec,sa):
    o(f'v_lshl_add_u32 v{sa}, v{sa-SA+RKB}, 6, v{sa}'); o(f'v_and_b32 v{rec+1}, v24, v{rec+1}'); o(f'ds_write_b64 v{sa}, {vr(rec,2)}')
o('v_mov_b32 v24, 0xffff0000')
each_rec(f_put)
lab('L_e_done')
o('s_waitcnt lgkmcnt(0)')
stamp(9)
o(f's_cmp_lg_u32 s{sW}, 4')
o('s_cbranch_scc1 L_main_setup')
o('v_lshlrev_b32 v20, 4, v1')
o(f's_lshl_b32 s{sD}, s{sS}, 10'); o(f's_add_u32 s{sD}, s{sD}, {SEGT_FLAG2}')
o(f's_mov_b32 s{sSP}, 0')
lp=U('poll2'); dn=U('poll2d')
lab(lp)
o(f'buffer_load_dword v21, v20, {sr(rSEG,4)}, s{sD} offen sc1')
o('s_waitcnt vmcnt(0)')
o(f'v_cmp_ne_u32 vcc, s{sNONCE}, v21')
o(f's_cbranch_vccz {dn}')
o('s_sleep 2')
o(f's_add_u32 s{sSP}, s{sSP}, 1'); o(f's_cmp_lt_u32 s{sSP}, 0x10000'); o(f's_cbranch_scc1 {lp}')
lab(dn)
l=U('noep')
o('s_cmp_lg_u32 s2, 0'); o(f's_cbranch_scc1 {l}')
o('s_mov_b64 exec, 1')
o(f'v_mov_b32 v21, s{sNONCE}')
o(f'global_store_dword v{VZ}, v21, {sr(sEP,2)} sc1')
o('s_mov_b64 exec, -1')
lab(l)
LOFF,RP=2,3
S1A,S1B,S2A,S2B,ONE=4,8,12,16,20
WC=24; NUM=32; DEN=40; C=48; DX,DY=72,104; R0,R1=136,152
OFA,OFB,EA_,EB_,AD=168,170,172,174,176
lab('L_main_setup')
o('s_setprio 0')
stamp(10)
o(f'v_and_b32 v{LOFF}, 7, v1'); o(f'v_lshlrev_b32 v{LOFF}, 4, v{LOFF}')
o('v_bfe_u32 v196, v1, 3, 2'); o('v_bfe_u32 v197, v1, 2, 1'); o('v_lshrrev_b32 v198, 5, v1'); o('v_and_b32 v199, 3, v1')
o('v_cmp_eq_u32 vcc, v197, v198'); o('v_mov_b32 v195, 7'); o('v_and_b32 v193, 1, v196')
o('v_cndmask_b32 v199, v195, v199, vcc')
LO,HI=0x00003f80,0x3f800000
o('v_cmp_gt_u32 vcc, 2, v196'); o(f'v_mov_b32 v194, {LO:#x}'); o(f'v_mov_b32 v195, {HI:#x}')
o('v_cndmask_b32 v192, v194, v195, vcc')
o('v_cndmask_b32 v191, v195, v194, vcc')
o('v_lshl_add_u32 v199, v193, 3, v199')
for i in range(4):
    o(f'v_cmp_eq_u32 vcc, {i}, v199'); o(f'v_cmp_eq_u32 s[98:99], {8+i}, v199'); o('s_nop 0')
    o(f'v_cndmask_b32 v{S1A+i}, 0, v192, vcc'); o(f'v_cndmask_b32 v{S2A+i}, 0, v191, vcc')
    o(f'v_cndmask_b32 v{S1B+i}, 0, v192, s[98:99]'); o(f'v_cndmask_b32 v{S2B+i}, 0, v191, s[98:99]')
o('v_cmp_gt_u32 vcc, 32, v1')
for i in range(1,4): o(f'v_mov_b32 v{ONE+i}, 0')
o(f'v_cndmask_b32 v{ONE}, 0, v194, vcc')
for i in range(4):
    o(f'v_lshlrev_b32 v{WC+2*i}, 16, v{250+i}'); o(f'v_and_b32 v{WC+2*i+1}, 0xffff0000, v{250+i}')
for i in range(8): o(f'v_mul_f32 v{WC+i}, {NLOG2E:#x}, v{WC+i}')
for i in range(8):
    o(f'v_mov_b32 v{C+i}, 0'); o(f'v_mov_b32 v{C+16+i}, 0')
LOFF_=LOFF
sPAR,sNBT,sODD,sG1,sG2,sLN=97,47,96,46,13,14
NLN,LT,OA,AUN,XRN,UF,XF,VAUK,VKA,VOK=178,180,181,182,190,194,202,210,211,212
TM=214
o(f'v_add_u32 v{VAUK}, {AU}, v{LOFF}')
o(f'v_bfe_u32 v{TM}, v1, 1, 2'); o(f's_lshl_b32 s92, s{sS}, 3'); o(f'v_add_u32 v{TM}, s92, v{TM}'); o(f'v_lshlrev_b32 v{TM}, 4, v{TM}')
o(f'v_and_b32 v{TM+1}, 1, v1'); o(f'v_lshl_add_u32 v{VKA}, v{TM+1}, 3, v{TM}')
o(f's_lshl_b32 s92, s{sNB}, 9'); o(f's_lshl_b32 s93, s{sS}, 7'); o('s_add_u32 s92, s92, s93')
o(f'v_lshrrev_b32 v{TM}, 1, v{LOFF}'); o(f'v_add_u32 v{VOK}, s92, v{TM}')
o(f'v_lshrrev_b32 v{TM+2}, 3, v1'); o(f'v_lshlrev_b32 v{TM+2}, 3, v{TM+2}')
o(f's_sub_u32 s12, 19, s{sW}'); o(f's_cmp_lt_u32 s{sW}, 4'); o(f's_cselect_b32 s12, s{sW}, s12')
o(f's_add_u32 s{sG1}, s{sW}, 4'); o(f's_sub_u32 s92, 23, s{sW}'); o(f's_sub_u32 s{sG2}, 11, s{sW}')
o(f's_cmp_ge_u32 s{sW}, 4'); o(f's_cselect_b32 s{sG1}, s92, s{sG1}'); o(f's_cselect_b32 s{sG2}, -1, s{sG2}')
def node_prefetch(gs):
    o(f's_lshl_b32 s92, s{gs}, 6'); o(f'v_add_u32 v{TM}, s92, v{TM+2}'); o(f'ds_read_b64 {vr(NLN,2)}, v{TM} offset:{NODEOF}')
    o(f's_lshl_b32 s92, s{gs}, 2'); o(f'v_mov_b32 v{TM+1}, s92'); o(f'ds_read_b32 v{LT}, v{TM+1} offset:{LG}')
def raw_prefetch():
    o(f'v_lshl_add_u32 v{TM}, v{NLN}, 8, v{VAUK}')
    o(f'v_xor_b32 v{TM+1}, v{NLN+1}, v{VKA}'); o(f'v_xor_b32 v{TM+3}, 64, v{TM+1}')
    o(f'ds_read_b128 {vr(AUN,4)}, v{TM}'); o(f'ds_read_b128 {vr(AUN+4,4)}, v{TM} offset:128')
    o(f'ds_read_b64 {vr(XRN,2)}, v{TM+1} offset:{XT}'); o(f'ds_read_b64 {vr(XRN+2,2)}, v{TM+3} offset:{XT}')
o(f's_xor_b32 s15, s{sR}, 1'); o(f's_mul_i32 s15, s15, {RN*256}'); o(f's_mul_i32 s92, s{sW}, 5120'); o('s_add_u32 s15, s15, s92')
o(f'v_lshlrev_b32 v{TM+4}, 4, v1')
o('s_waitcnt lgkmcnt(0)' if 'nowait' in OPT else 's_waitcnt vmcnt(0) lgkmcnt(0)')
o('s_barrier')
stamp(11)
if 'xE' in OPT: o('s_branch L_done')
if 'pre2t' in OPT:
    o(f'v_lshlrev_b32 v{TM+4}, 7, v1'); o('v_cmpx_gt_u32 vcc, 40, v1')
    o(f'buffer_load_dword v232, v{TM+4}, {sr(rTR,4)}, s15 offen sc1')
    o('s_mov_b64 exec, -1')
if 'pre2' in OPT:
    for i in range(5):
        o(f'buffer_load_dwordx4 v[232:235], v{TM+4}, {sr(rTR,4)}, s15 offen sc1')
        o('s_add_u32 s15, s15, 1024')
o(f'ds_read_b32 v{TM+5}, v{VZ} offset:{C_FB}')
o(f's_lshl_b32 s{sA}, s12, 2'); o(f'v_mov_b32 v{TM+6}, s{sA}'); o(f'ds_read_b32 v{RP}, v{TM+6} offset:{GBASE}')
node_prefetch(12)
l=U('ap'); o(f's_cmp_ge_u32 s{sW}, 4'); o(f's_cbranch_scc1 {l}'); o('s_setprio 1'); lab(l)
o('s_waitcnt lgkmcnt(0)')
o(f'v_readfirstlane_b32 s{sA}, v{TM+5}'); o(f's_cmp_lg_u32 s{sA}, 0'); o('s_cbranch_scc1 L_fallback')
o(f'v_add_u32 v{RP}, v{RP}, v{TM+2}')
o(f'v_readfirstlane_b32 s{sLN}, v{LT}')
def mfma(d,a,b,c): o(f'v_mfma_f32_32x32x16_bf16 {vr(d,16)}, {vr(a,4)}, {vr(b,4)}, {c}')
def unpack_list(D,R):
    f=lambda d,a,b,c: f'v_mfma_f32_32x32x16_bf16 {vr(d,16)}, {vr(a,4)}, {vr(b,4)}, {c}'
    return [f(D,S1A,R,vr(C,16)), f(D,S1B,R+4,vr(D,16)), f(D+16,S2A,R+8,vr(C+8,16)), f(D+16,S2B,R+12,vr(D+16,16))]
def gfma(D,Er):
    for sl in range(2):
        for j in range(4):
            g=D+8+8*sl+2*j
            sel='op_sel:[0,0,0] op_sel_hi:[0,1,1]' if sl==0 else 'op_sel:[1,0,0] op_sel_hi:[1,1,1]'
            o(f'v_pk_fma_f32 {vr(g,2)}, {vr(Er,2)}, {vr(WC+2*j,2)}, {vr(g,2)} {sel}')
def loads(R,OF):
    o(f'v_and_or_b32 v{AD}, v{OF}, s{sM}, v{LOFF}'); o(f'v_and_or_b32 v{AD+1}, v{OF+1}, s{sM}, v{LOFF}')
    o(f'buffer_load_dwordx4 {vr(R,4)}, v{AD}, {sr(rTR,4)}, 0 offen sc1')
    o(f'buffer_load_dwordx4 {vr(R+4,4)}, v{AD}, {sr(rTR,4)}, 0 offen offset:128 sc1')
    o(f'buffer_load_dwordx4 {vr(R+8,4)}, v{AD+1}, {sr(rTR,4)}, 0 offen sc1')
    o(f'buffer_load_dwordx4 {vr(R+12,4)}, v{AD+1}, {sr(rTR,4)}, 0 offen offset:128 sc1')
def rd_off(dst,b): o(f'ds_read2_b32 {vr(dst,2)}, v{RP} offset0:{b*32} offset1:{b*32+16}')
def rd_e(dst,b): o(f'ds_read2_b32 {vr(dst,2)}, v{RP} offset0:{b*32+1} offset1:{b*32+17}')
def dsreads(P):
    OFn=OFB if P==0 else OFA; En=EB_ if P==0 else EA_
    rd_off(OFn,P+3); rd_e(En,P+1)
    if P==1: o(f'v_add_u32 v{RP}, 256, v{RP}')
def accum(D):
    for sl in range(2):
        for j in range(4):
            g=D+8+8*sl+2*j
            o(f'v_pk_add_f32 {vr(DEN+2*j,2)}, {vr(DEN+2*j,2)}, {vr(g,2)}')
            v=(D+2*j) if sl==0 else (D+24+2*j)
            o(f'v_pk_fma_f32 {vr(NUM+2*j,2)}, {vr(g,2)}, {vr(v,2)}, {vr(NUM+2*j,2)}')
Ds=[DX,DY]; Rs=[R0,R1]; OFs=[OFA,OFB]; Es=[EA_,EB_]
rd_off(OFA,0); rd_off(OFB,1)
raw_prefetch()
o('s_waitcnt lgkmcnt(4)')
loads(R0,OFA); loads(R1,OFB)
rd_off(OFA,2); rd_e(EA_,0)
o(f's_mov_b32 s{sPAR}, 0')
if PROF: o('s_mov_b32 s3, 0')
lab('L_group')
o(f's_min_u32 s{sLN}, s{sLN}, {2*ELLB}')
o(f's_and_b32 s{sODD}, s{sLN}, 1'); o(f's_add_u32 s{sNBT}, s{sLN}, 1'); o(f's_lshr_b32 s{sNBT}, s{sNBT}, 1')
o(f'v_lshl_add_u32 v{OA}, v{NLN}, 9, v{VOK}')
mfma(NUM,C,C,'0')
o('s_waitcnt lgkmcnt(0)')
for i in range(8): o(f'v_lshlrev_b32 v{C+8+i}, 16, v{AUN+i}')
l=U('nonext')
o(f's_cmp_eq_u32 s{sG1}, -1'); o(f's_cbranch_scc1 {l}')
node_prefetch(sG1)
lab(l)
for i in range(8): o(f'v_and_b32 v{UF+i}, 0xffff0000, v{AUN+i}')
for i in range(4):
    o(f'v_lshlrev_b32 v{XF+2*i}, 16, v{XRN+i}'); o(f'v_and_b32 v{XF+2*i+1}, 0xffff0000, v{XRN+i}')
if PROF:
    o(f's_memtime s[100:101]'); o('s_waitcnt lgkmcnt(0)')
    o(f's_add_u32 m0, s3, 36'); o('s_nop 3'); o('v_writelane_b32 v255, s100, m0')
    o(f's_add_u32 m0, s3, 60'); o('s_nop 3'); o(f'v_writelane_b32 v255, s{sLN}, m0')
o(f's_cmp_eq_u32 s{sNBT}, 0'); o('s_cbranch_scc1 L_epi')
o(f's_cmp_eq_u32 s{sPAR}, 1'); o('s_cbranch_scc1 L_gs1')
def exps(D): return [f'v_exp_f32 v{D+8+i}, v{D+8+i}' for i in range(16)]
def rcps(D): return [f'v_rcp_f32 v{D+8+i}, v{D+8+i}' for i in range(16)]
for P in range(2):
    lab(f'L_gs{P}')
    o('s_waitcnt vmcnt(4)')
    for t in unpack_list(Ds[P],Rs[P]): o(t)
    o('s_waitcnt lgkmcnt(0)')
    loads(Rs[P],OFs[P])
    dsreads(P)
    o('s_nop 7')
    gfma(Ds[P],Es[P])
    o(f's_branch L_body{P}')
for P in range(2):
    Q=P^1
    lab(f'L_body{P}')
    o(f's_sub_u32 s{sNBT}, s{sNBT}, 1'); o(f's_cmp_eq_u32 s{sNBT}, 0'); o(f's_cbranch_scc1 L_last{P}')
    ex=exps(Ds[P]); un=unpack_list(Ds[Q],Rs[Q])
    o('s_waitcnt vmcnt(4)')
    for k in range(4):
        o(un[k])
        for t in ex[4*k:4*k+4]: o(t)
    o('s_nop 1')
    mfma(Ds[P]+8,ONE,ONE,vr(Ds[P]+8,16))
    o('s_waitcnt lgkmcnt(0)')
    loads(Rs[Q],OFs[Q])
    o('s_nop 2')
    dsreads(Q)
    for t in rcps(Ds[P]): o(t)
    gfma(Ds[Q],Es[Q])
    accum(Ds[P])
    if P==1: o('s_branch L_body0')
for P in range(2):
    lab(f'L_last{P}')
    D=Ds[P]
    o(f's_cmp_eq_u32 s{sODD}, 1'); o(f's_cbranch_scc1 L_half{P}')
    for t in exps(D): o(t)
    o('s_nop 1')
    mfma(D+8,ONE,ONE,vr(D+8,16))
    o('s_nop 7'); o('s_nop 3')
    for t in rcps(D): o(t)
    accum(D)
    o(f's_mov_b32 s{sPAR}, {P^1}')
    o('s_branch L_epi')
    lab(f'L_half{P}')
    for t in exps(D)[:8]: o(t)
    for j in range(4): o(f'v_pk_add_f32 {vr(D+8+2*j,2)}, {vr(D+8+2*j,2)}, 1.0 op_sel_hi:[1,0]')
    for t in rcps(D)[:8]: o(t)
    for j in range(4):
        g=D+8+2*j
        o(f'v_pk_add_f32 {vr(DEN+2*j,2)}, {vr(DEN+2*j,2)}, {vr(g,2)}')
        o(f'v_pk_fma_f32 {vr(NUM+2*j,2)}, {vr(g,2)}, {vr(D+2*j,2)}, {vr(NUM+2*j,2)}')
    o(f's_mov_b32 s{sPAR}, {P^1}')
    if P==0: o('s_branch L_epi')
lab('L_epi')
if PROF:
    o(f's_memtime s[100:101]'); o('s_waitcnt lgkmcnt(0)')
    o(f's_add_u32 m0, s3, 40'); o('s_nop 3'); o('v_writelane_b32 v255, s100, m0')
l=U('nonext2')
o(f's_cmp_eq_u32 s{sG1}, -1'); o(f's_cbranch_scc1 {l}')
o('s_waitcnt lgkmcnt(0)')
o(f'v_readfirstlane_b32 s{sLN}, v{LT}')
raw_prefetch()
lab(l)
o('s_mov_b32 s92, 0x358637bd'); o('s_mov_b32 s93, 0x358637bd')
for j in range(4): o(f'v_pk_add_f32 {vr(DEN+2*j,2)}, {vr(DEN+2*j,2)}, s[92:93]')
for i in range(8): o(f'v_rcp_f32 v{DEN+i}, v{DEN+i}')
o('s_nop 0')
for j in range(4): o(f'v_pk_fma_f32 {vr(UF+2*j,2)}, {vr(NUM+2*j,2)}, {vr(DEN+2*j,2)}, {vr(UF+2*j,2)}')
for i in range(8): o(f'v_max_f32 v{UF+i}, 0, v{UF+i}')
for j in range(4): o(f'v_pk_add_f32 {vr(UF+2*j,2)}, {vr(UF+2*j,2)}, {vr(XF+2*j,2)}')
for i in range(4): o(f'v_cvt_pk_bf16_f32 v{UF+i}, v{UF+2*i}, v{UF+2*i+1}')
o(f'buffer_store_dwordx2 {vr(UF,2)}, v{OA}, {sr(rOUT,4)}, 0 offen')
o(f'buffer_store_dwordx2 {vr(UF+2,2)}, v{OA}, {sr(rOUT,4)}, 0 offen offset:64')
if PROF:
    o(f's_memtime s[100:101]'); o('s_waitcnt lgkmcnt(0)')
    o(f's_add_u32 m0, s3, 56'); o('s_nop 3'); o('v_writelane_b32 v255, s100, m0')
    o('s_add_u32 s3, s3, 1')
o(f's_cmp_eq_u32 s{sG1}, -1'); o('s_cbranch_scc1 L_done')
o(f's_mov_b32 s{sG1}, s{sG2}'); o(f's_mov_b32 s{sG2}, -1')
o('s_branch L_group')
lab('L_done')
stamp(12)
if PROF:
    o('s_waitcnt vmcnt(0)')
    srd_off(92,sWS,WS_PROF,0x100000)
    o(f's_lshl_b32 s96, s2, 3'); o(f's_add_u32 s96, s96, s{sW}'); o('s_lshl_b32 s96, s96, 8')
    o('v_lshlrev_b32 v2, 2, v1')
    o('buffer_store_dword v255, v2, s[92:95], s96 offen')
o('s_endpgm')
lab('L_codeend')
lab('L_fallback')
FN,FD,FA,FU,FW=10,11,12,13,14
o('v_lshlrev_b32 v5, 2, v1')
o(f's_lshl_b32 s92, s{sS}, 7')
o('v_lshlrev_b32 v6, 1, v1'); o(f'v_add_u32 v6, s92, v6')
srd(64,sWC,512)
o(f'buffer_load_ushort v{FW}, v6, s[64:67], 0 offen')
o('s_waitcnt vmcnt(0)')
o(f'v_lshlrev_b32 v{FW}, 16, v{FW}'); o(f'v_mul_f32 v{FW}, {NLOG2E:#x}, v{FW}')
o(f's_mov_b32 s46, s{sW}')
lab('L_fb_node')
o(f's_cmp_ge_u32 s46, s{sNV}'); o('s_cbranch_scc1 L_fb_end')
o(f's_lshl_b32 s92, s46, 8'); o(f's_add_u32 s92, s92, {AU}'); o(f'v_add_u32 v7, s92, v5'); o('ds_read_b32 v8, v7')
o('s_waitcnt lgkmcnt(0)')
o(f'v_lshlrev_b32 v{FA}, 16, v8'); o(f'v_and_b32 v{FU}, 0xffff0000, v8')
o(f'v_mov_b32 v{FN}, 0'); o(f'v_mov_b32 v{FD}, 0')
o(f's_add_u32 s47, s46, s{sNB}')
o('s_mov_b32 s93, 0')
lab('L_fb_e')
o('v_add_u32 v7, s93, v1'); o('v_lshlrev_b32 v8, 2, v7'); o('v_lshlrev_b32 v7, 1, v7')
o(f'buffer_load_dword v15, v8, {sr(rDST,4)}, 0 offen')
o(f'buffer_load_dword v16, v8, {sr(rSRC,4)}, 0 offen')
o(f'buffer_load_ushort v17, v7, {sr(rEA,4)}, 0 offen')
o('s_waitcnt vmcnt(0)')
o('v_cmp_eq_u32 vcc, s47, v15')
o('s_mov_b64 s[94:95], vcc')
lab('L_fb_m')
o('s_cmp_eq_u64 s[94:95], 0'); o('s_cbranch_scc1 L_fb_next')
o('s_ff1_i32_b64 s96, s[94:95]')
o('s_bitset0_b64 s[94:95], s96')
o('v_readlane_b32 s97, v16, s96'); o('v_readlane_b32 s92, v17, s96')
o('s_nop 1')
o('s_lshl_b32 s97, s97, 8'); o('s_lshl_b32 s92, s92, 16')
o('s_nop 4')
o(f'buffer_load_dword v18, v5, {sr(rTR,4)}, s97 offen sc1')
o('s_waitcnt vmcnt(0)')
o('v_lshlrev_b32 v19, 16, v18'); o('v_and_b32 v18, 0xffff0000, v18')
o(f'v_add_f32 v19, v19, v{FA}'); o(f'v_fmac_f32 v19, s92, v{FW}')
o('v_exp_f32 v19, v19'); o('s_nop 0'); o('v_add_f32 v19, 1.0, v19'); o('v_rcp_f32 v19, v19'); o('s_nop 0')
o(f'v_add_f32 v{FD}, v{FD}, v19'); o(f'v_fmac_f32 v{FN}, v19, v18')
o('s_branch L_fb_m')
lab('L_fb_next')
o('s_add_u32 s93, s93, 64'); o(f's_cmp_lt_u32 s93, {E}'); o('s_cbranch_scc1 L_fb_e')
o('s_mov_b32 s92, 0x358637bd')
o(f'v_add_f32 v{FD}, s92, v{FD}'); o(f'v_rcp_f32 v{FD}, v{FD}'); o('s_nop 0')
o(f'v_fmac_f32 v{FU}, v{FN}, v{FD}'); o(f'v_max_f32 v{FU}, 0, v{FU}')
o('s_lshl_b32 s92, s47, 9')
o(f'buffer_load_ushort v18, v6, {sr(rX,4)}, s92 offen')
o('s_waitcnt vmcnt(0)')
o(f'v_lshlrev_b32 v18, 16, v18'); o(f'v_add_f32 v{FU}, v{FU}, v18')
o(f'v_cvt_pk_bf16_f32 v18, v{FU}, v{FU}')
o(f'buffer_store_short v18, v6, {sr(rOUT,4)}, s92 offen')
o('s_add_u32 s46, s46, 8'); o('s_branch L_fb_node')
lab('L_fb_end')
lab('L_end')
o('s_endpgm')
L=[x for x in L if x is not None]
hdr=open('gather_scatter__edge_featured_mpnn_gatedgcn__graph.s.ref').read().split('; Override')[0]
out=hdr+f'''; Generated by dev/gen2.py (hand-written generator). One fused persistent launch, 1 workgroup per CU.
; @launch grid=(256,1,1) block=(512,1,1) lds={LDS_TOTAL}
.amdgcn_target "amdgcn-amd-amdhsa--gfx950"
.text
.globl {NAME}
.p2align 8
.type {NAME},@function
'''+'\n'.join(L)+f'''
.section .rodata,"a"
.p2align 6
.amdhsa_kernel {NAME}
  .amdhsa_next_free_vgpr 256
  .amdhsa_next_free_sgpr 102
  .amdhsa_accum_offset 256
  .amdhsa_group_segment_fixed_size 0
  .amdhsa_kernarg_size 96
  .amdhsa_user_sgpr_count 2
  .amdhsa_user_sgpr_kernarg_segment_ptr 1
  .amdhsa_system_sgpr_workgroup_id_x 1
.end_amdhsa_kernel
'''
fn=[a for a in sys.argv[1:] if not a.startswith('--')]
open(fn[0] if fn else 'k.s','w').write(out)
```
